```python
import torch

def _softmax(x, axis=-1):
    return torch.softmax(x, dim=axis)
def _gelu(x):
    return torch.nn.functional.gelu(x, approximate="tanh")
def _silu(x):
    return torch.nn.functional.silu(x)
def _sigmoid(x):
    return torch.sigmoid(x)
def _layernorm(x, axis=-1, eps=1e-5):
    m = x.mean(dim=axis, keepdim=True)
    v = x.var(dim=axis, keepdim=True, unbiased=False)
    return (x - m) / torch.sqrt(v + eps)
def _scatter_add(tgt, idx, src, axis=0):
    return tgt.clone().index_add_(axis, idx, src)
def _segment_sum(src, seg, n):
    out = torch.zeros((n,) + src.shape[1:], dtype=src.dtype)
    return out.index_add_(0, seg, src)
def _pad(x, pw):
    flat = tuple(v for pair in reversed(pw) for v in pair)
    return torch.nn.functional.pad(x, flat)

kernel_name = 'concat_heads__gqa_block_cached__sliding_block_cached__decode'

def setup_inputs():

    _w = (lambda a: (lambda t: t.to(torch.bfloat16) if t.is_floating_point() else t)(torch.as_tensor(a)))
    def _A_setup():
        B, Sq, D = 4, 1, 512
        Hq, Hkv, Sk, Dh = 32, 32, 8192, 128
        assert Hq % Hkv == 0, (Hq, Hkv)
        return {
            "x": _w((lambda *s: torch.randn(*s, dtype=torch.bfloat16) * 0.8)(B, Sq, D)),
            "k_cache": _w((lambda *s: torch.randn(*s, dtype=torch.bfloat16) * 1.6)(B, Hkv, Sk, Dh)),
            "v_cache": _w((lambda *s: torch.randn(*s, dtype=torch.bfloat16) * 0.2)(B, Hkv, Sk, Dh)),
            "wq": _w((lambda *s: torch.randn(*s, dtype=torch.bfloat16) * 1.6)(D, Hq * Dh) * (D ** -0.5)),
            "wo": _w((lambda *s: torch.randn(*s, dtype=torch.bfloat16) * 0.2)(Hq * Dh, D) * ((Hq * Dh) ** -0.5)),
        }
    _A_in = _A_setup()

    def _B_setup():
        B, Sq, D = 4, 1, 512
        Hq, Hkv, Sk, Dh = 32, 32, 8192, 128
        assert Hq % Hkv == 0, (Hq, Hkv)
        return {
            "x": _w((lambda *s: torch.randn(*s, dtype=torch.bfloat16) * 0.8)(B, Sq, D)),
            "k_cache": _w((lambda *s: torch.randn(*s, dtype=torch.bfloat16) * 1.6)(B, Hkv, Sk, Dh)),
            "v_cache": _w((lambda *s: torch.randn(*s, dtype=torch.bfloat16) * 0.2)(B, Hkv, Sk, Dh)),
            "wq": _w((lambda *s: torch.randn(*s, dtype=torch.bfloat16) * 1.6)(D, Hq * Dh) * (D ** -0.5)),
            "wo": _w((lambda *s: torch.randn(*s, dtype=torch.bfloat16) * 0.2)(Hq * Dh, D) * ((Hq * Dh) ** -0.5)),
        }
    _B_in = _B_setup()

    return {
        "A_x": _A_in["x"],
        "A_k_cache": _A_in["k_cache"],
        "A_v_cache": _A_in["v_cache"],
        "A_wq": _A_in["wq"],
        "A_wo": _A_in["wo"],
        "B_x": _B_in["x"],
        "B_k_cache": _B_in["k_cache"],
        "B_v_cache": _B_in["v_cache"],
        "B_wq": _B_in["wq"],
        "B_wo": _B_in["wo"],
    }

def reference(A_x, A_k_cache, A_v_cache, A_wq, A_wo, B_x, B_k_cache, B_v_cache, B_wq, B_wo):
    def _A_ref(x, k_cache, v_cache, wq, wo):
        B, Sq, D = x.shape
        Hq, Dh = 32, 128
        Hkv = k_cache.shape[1]
        rep = Hq // Hkv
        q = (lambda x, *d: x.permute(*d))((x @ wq).reshape(B, Sq, Hq, Dh), 0, 2, 1, 3)
        k = (lambda x, n, axis: torch.repeat_interleave(x, n, dim=axis))(k_cache, rep, axis=1)
        v = (lambda x, n, axis: torch.repeat_interleave(x, n, dim=axis))(v_cache, rep, axis=1)
        scores = torch.einsum("bhqd,bhkd->bhqk", q, k) * (Dh ** -0.5)
        p = _softmax(scores, axis=-1)
        o = torch.einsum("bhqk,bhkd->bhqd", p, v)
        return (lambda x, *d: x.permute(*d))(o, 0, 2, 1, 3).reshape(B, Sq, Hq * Dh) @ wo

    def _B_ref(x, k_cache, v_cache, wq, wo):
        B, Sq, D = x.shape
        Hq, Dh = 32, 128
        Hkv, Sk = k_cache.shape[1], k_cache.shape[2]
        W = min(4096, max(256, Sk // 4))
        rep = Hq // Hkv
        q = (lambda x, *d: x.permute(*d))((x @ wq).reshape(B, Sq, Hq, Dh), 0, 2, 1, 3)
        k = (lambda x, n, axis: torch.repeat_interleave(x, n, dim=axis))(k_cache[:, :, Sk - W:, :], rep, axis=1)
        v = (lambda x, n, axis: torch.repeat_interleave(x, n, dim=axis))(v_cache[:, :, Sk - W:, :], rep, axis=1)
        scores = torch.einsum("bhqd,bhkd->bhqk", q, k) * (Dh ** -0.5)
        p = _softmax(scores, axis=-1)
        o = torch.einsum("bhqk,bhkd->bhqd", p, v)
        return (lambda x, *d: x.permute(*d))(o, 0, 2, 1, 3).reshape(B, Sq, Hq * Dh) @ wo

    a = _A_ref(A_x, A_k_cache, A_v_cache, A_wq, A_wo)
    b = _B_ref(B_x, B_k_cache, B_v_cache, B_wq, B_wo)
    return torch.concatenate([a, b], axis=-1)
```

```python
import sys, math, struct
NAME = 'concat_heads__gqa_block_cached__sliding_block_cached__decode'

def f32(x):
    return '0x%08x' % struct.unpack('<I', struct.pack('<f', x))[0]
def br4(i):
    return ((i & 1) << 3) | ((i & 2) << 1) | ((i & 4) >> 1) | ((i & 8) >> 3)

QP = 0x000000
YP = 0x080000
OP = 0x100000
ST = 0x140000
EP = 0x150000
WS_USED = 0x160000
STAMP = 0x40000000

L_Q = 0
L_CNT = 512
L_RED = 1024
L_O = 1024 + 8192
LDS_BYTES = L_O + 4096
SPIN = 1 << 17
DPPF = 'row_mask:0xf bank_mask:0xf'

class G:
    def __init__(s): s.L = []; s.n = 0
    def e(s, x): s.L.append(x)
    def lab(s, p):
        s.n += 1
        return f'L_{p}{s.n}'

def gen(D=5, DB=None, diag=False, pol='nt', wqfirst=False, hdiag=False):
    DB = DB or D
    g = G(); e = g.e
    e(f'; @launch grid=(256,1,1) block=(512,1,1) lds={LDS_BYTES}')
    e('.amdgcn_target "amdgcn-amd-amdhsa--gfx950"')
    e('.text')
    e(f'.globl {NAME}_kernel')
    e('.p2align 8')
    e(f'.type {NAME}_kernel,@function')
    e(f'{NAME}_kernel:')
    sAx, sAk, sAv, sAwq, sAwo, sBx, sBk, sBv = 16, 18, 20, 22, 24, 26, 28, 30
    sBwq, sBwo, sOut, sDbg, sWs = 32, 34, 36, 38, 40
    sW, sH, sJ, sB, sSide = 42, 43, 44, 45, 46
    sT0, sT1, sT2, sT3 = 47, 48, 49, 50
    sSlab, sSpin = 51, 52
    sE, sTag, sNF = 74, 75, 76
    e('s_cmp_ge_u32 s2, 256')
    e('s_cbranch_scc1 L_end')
    e('s_load_dwordx16 s[16:31], s[0:1], 0')
    e('s_load_dwordx8 s[32:39], s[0:1], 64')
    e('s_load_dwordx2 s[40:41], s[0:1], 96')
    if diag or hdiag: e('s_memrealtime s[80:81]')
    e('v_lshrrev_b32 v1, 6, v0')
    e('v_and_b32 v0, 63, v0')
    e(f'v_readfirstlane_b32 s{sW}, v1')
    e(f's_lshr_b32 s{sH}, s2, 3')
    e(f's_and_b32 s{sJ}, s2, 7')
    e(f's_and_b32 s{sB}, s2, 3')
    e(f's_lshr_b32 s{sSide}, s{sJ}, 2')
    e('s_mov_b32 s7, 0x20000')
    e('s_mov_b32 s11, 0x20000')
    e(f's_mov_b32 s10, {WS_USED if not diag else 0x41000000}')
    e(f's_mov_b32 s{sNF}, 0xffffff00')
    e(f's_cmp_ge_u32 s{sW}, 4')
    e('s_cbranch_scc1 L_service')

    def stamp(idx, only_wave=None):
        if not diag: return
        l = g.lab('st')
        if only_wave is not None:
            e(f's_cmp_lg_u32 s{sW}, {only_wave}')
            e(f's_cbranch_scc1 {l}')
        e(f's_memrealtime s[82:83]')
        e('s_waitcnt lgkmcnt(0)')
        e(f'v_writelane_b32 v254, s82, {idx}')
        e(f'v_writelane_b32 v255, s83, {idx}')
        e(f'{l}:')
    def flush_stamps(idxs):
        if not diag: return
        m = sum(1 << i for i in idxs)
        e('s_lshl_b32 s84, s2, 7'); e(f's_add_u32 s84, s84, {STAMP}')
        e('s_mov_b64 exec, -1')
        e('v_lshlrev_b32 v253, 3, v0')
        e(f's_mov_b64 exec, {m}')
        e('buffer_store_dwordx2 v[254:255], v253, s[8:11], s84 offen')
    def load_epoch():
        e(f's_mov_b32 s{sE}, {EP}')
        e(f's_load_dword s{sE}, s[{sWs}:{sWs+1}], s{sE}')
    def make_tag(vTag):
        e(f's_add_u32 s{sE}, s{sE}, 1')
        e(f's_and_b32 s{sTag}, s{sE}, 0xff')
        e(f'v_mov_b32 v{vTag}, s{sTag}')
    def tag(r, vTag):
        e(f'v_and_or_b32 v{r}, v{r}, s{sNF}, v{vTag}')
    def untag(regs):
        for r in regs: e(f'v_and_b32 v{r}, s{sNF}, v{r}')
    def check(regs, t, vTag):
        e(f'v_xor_b32 v{t}, v{regs[0]}, v{vTag}')
        e(f'v_xor_b32 v{t+1}, v{regs[1]}, v{vTag}')
        for k, r in enumerate(regs[2:]):
            tt = t + (k & 1)
            e(f'v_bitop3_b32 v{tt}, v{tt}, v{r}, v{vTag} bitop3:0xf6')
        e(f'v_or_b32 v{t}, v{t}, v{t+1}')
        e(f'v_and_b32 v{t}, 0xff, v{t}')
        e(f'v_cmp_ne_u32 vcc, 0, v{t}')

    X0, X1, X2 = 60, 124, 188
    vOff = 2; vL16 = 6; vPd = 7; vQ = 8; vS = 12; vT = 20; vMask = 44; vAcc = 48; vAccB = 52; vP = 56
    vPA = 124
    vSt = 132; vMl = 136; vR2 = 140; vStA = 152; vTg = 153; vF = 154; vOa = 155
    sOff, sN = 53, 54
    sM3, sM4 = 60, 62
    sC = 64
    sFA0, sFA1, sFB = 67, 68, 69
    sWb, sSeg = 72, 73
    sHk = 70
    e(f's_lshl_b32 s{sT0}, s{sB}, 5')
    e(f's_add_u32 s{sT0}, s{sT0}, s{sH}')
    e(f's_lshl_b32 s{sSlab}, s{sT0}, 21')
    e(f'v_lshlrev_b32 v{vL16}, 4, v0')
    e(f'v_bfe_u32 v{vOff+1}, v0, 4, 1')
    e(f'v_lshl_add_u32 v{vOff}, v{vOff+1}, 15, v{vL16}')
    e(f'v_lshrrev_b32 v{vOff+1}, 5, v0')
    e(f'v_lshl_add_u32 v{vOff}, v{vOff+1}, 13, v{vOff}')
    e(f's_lshl_b32 s{sT0}, s{sW}, 8')
    e(f'v_xor_b32 v{vOff}, s{sT0}, v{vOff}')
    for j in range(1, 4):
        e(f'v_xor_b32 v{vOff+j}, {j << 8}, v{vOff}')
    e(f's_and_b32 s{sT0}, s{sW}, 1')
    e(f's_lshl_b32 s{sT0}, s{sT0}, 12')
    e(f's_add_u32 s{sWb}, s{sSlab}, s{sT0}')
    e(f's_lshr_b32 s{sT0}, s{sW}, 1')
    e(f's_lshl_b32 s{sT0}, s{sT0}, 14')
    e(f's_add_u32 s{sWb}, s{sWb}, s{sT0}')
    e(f's_lshl_b32 s{sT0}, s{sSide}, 16')
    e(f's_add_u32 s{sWb}, s{sWb}, s{sT0}')
    e(f's_add_u32 s{sOff}, s{sWb}, 0x180000')
    e('s_mov_b32 s6, 0x10000000')
    e('s_waitcnt lgkmcnt(0)')
    e(f's_mov_b32 s4, s{sBk}'); e(f's_mov_b32 s5, s{sBk+1}')
    def issue(buf, i):
        v = buf + 4 * i
        e(f'buffer_load_dwordx4 v[{v}:{v+3}], v{vOff + (i >> 2)}, s[4:7], s{sOff} offen offset:{(i & 3) * 1024} {pol}')
    allhooks = [4, 12, 20, 19, 23, 24, 30, 31, 32, 39, 40]
    def mask64(ns): return sum(1 << n for n in ns)
    k = 0
    if wqfirst: e('s_barrier')
    for buf in (X1, X2, X0):
        for i in range(16):
            if k >= DB: e(f's_waitcnt vmcnt({DB-1})')
            issue(buf, i)
            k += 1
            if k == DB:
                load_epoch()
                if not wqfirst: e('s_barrier')
                e(f's_mov_b32 s8, s{sWs}'); e(f's_mov_b32 s9, s{sWs+1}')
                if diag:
                    e('v_writelane_b32 v254, s80, 0'); e('v_writelane_b32 v255, s81, 0')
                e(f's_mov_b32 s{sM3}, 0xcccccccc'); e(f's_mov_b32 s{sM3+1}, 0xcccccccc')
                e(f's_mov_b32 s{sM4}, 0xaaaaaaaa'); e(f's_mov_b32 s{sM4+1}, 0xaaaaaaaa')
                e(f's_mov_b32 s{sC}, {f32(128 ** -0.5 * math.log2(math.e))}')
                m = mask64(allhooks)
                e(f's_mov_b32 s{sHk}, 0x{m & 0xffffffff:08x}'); e(f's_mov_b32 s{sHk+1}, 0x{m >> 32:08x}')
                e(f'v_and_b32 v{vT}, 15, v0')
                e(f'v_lshlrev_b32 v1, 4, v{vT}')
                e(f'v_and_b32 v{vT+1}, 1, v0')
                e(f'v_lshlrev_b32 v{vT+1}, 4, v{vT+1}')
                e(f'v_mov_b32 v{vT+2}, 0xffff')
                e(f'v_lshlrev_b32 v{vT+2}, v{vT+1}, v{vT+2}')
                e(f'v_lshrrev_b32 v{vT}, 1, v{vT}')
                for r in range(4):
                    e(f'v_cmp_eq_u32 vcc, {4 + r}, v{vT}')
                    e(f'v_mov_b32 v{vAcc + r}, 0')
                    e(f'v_mov_b32 v{vS + r}, 0xff800000')
                    e(f'v_cndmask_b32 v{vMask + r}, 0, v{vT+2}, vcc')
                e(f'v_mov_b32 v{vS + 4}, 0xff800000')
        e(f's_add_u32 s{sOff}, s{sOff}, 0x20000')
    stamp(1, 0)
    e('s_barrier')
    e(f'ds_read_b128 v[{vQ}:{vQ+3}], v1 offset:{L_Q + 256}')
    e('s_waitcnt lgkmcnt(0)')
    stamp(2, 0)

    def kops(buf, T):
        dots = [[] for _ in range(20)]
        post = [[] for _ in range(20)]
        d = [T, T + 1, T + 2]
        for i in range(16):
            t = d[i % 3]; kk = buf + 4 * i
            dots[i].append(f'v_dot2_f32_bf16 v{t}, v{kk}, v{vQ}, 0')
            for r in range(1, 4):
                dots[i].append(f'v_dot2_f32_bf16 v{t}, v{kk + r}, v{vQ + r}, v{t}')
            a = T + 3 + ((i >> 1) & 1)
            b = T + 5 + ((i >> 2) & 1)
            bm1 = '0x3' if i % 2 == 0 else '0xc'
            bm2 = '0x5' if (i >> 1) % 2 == 0 else '0xa'
            post[i + 1].append(f'v_add_f32_dpp v{a}, v{t}, v{t} row_ror:8 row_mask:0xf bank_mask:{bm1}')
            if i % 2 == 1:
                post[i + 2].append(f'v_add_f32_dpp v{b}, v{a}, v{a} row_half_mirror row_mask:0xf bank_mask:{bm2}')
            if i % 4 == 3:
                post[i + 3].append(f'v_add_f32_dpp v{b}, v{b}, v{b} quad_perm:[2,3,0,1] {DPPF}')
            if i % 8 == 7:
                c = T + 7 if i == 7 else T + 5
                post[i + 3].append(f'v_cndmask_b32 v{c}, v{T+5}, v{T+6}, s[{sM3}:{sM3+1}]')
                post[i + 4].append(f'v_add_f32_dpp v{c}, v{c}, v{c} quad_perm:[1,0,3,2] {DPPF}')
        return [dots[i] + post[i] for i in range(20)]
    def kfinal(T, dst):
        return f'v_cndmask_b32 v{dst}, v{T+7}, v{T+5}, s[{sM4}:{sM4+1}]'
    def ktail(stepsets):
        for s_ in range(16, 20):
            e('s_nop 2' if s_ == 16 else 's_nop 1')
            for st in stepsets:
                for op in st[s_]: e(op)

    sets = [kops(X0, vT), kops(X1, vT + 8), kops(X2, vT + 16)]
    for i in range(16):
        for op in sets[0][i]: e(op)
        e(f's_waitcnt vmcnt({DB-1})')
        issue(X0, i)
        for op in sets[1][i]: e(op)
        for op in sets[2][i]: e(op)
    ktail(sets)
    e(kfinal(vT + 8, vS + 5)); e(kfinal(vT + 16, vS + 6)); e(kfinal(vT, vS + 7))
    make_tag(vTg)
    e(f's_mov_b32 s4, s{sAk}'); e(f's_mov_b32 s5, s{sAk+1}')
    e(f's_mov_b32 s{sOff}, s{sWb}')
    e(f's_mov_b32 s{sN}, 4')
    e(f's_mov_b32 s{sSeg}, 2')
    stamp(3, 0)

    e('L_kbody:')
    ks = kops(X0, vT)
    for i in range(16):
        for op in ks[i]: e(op)
        if i < 7: e(f'v_mov_b32 v{vS + i}, v{vS + i + 1}')
        e(f's_waitcnt vmcnt({D-1})')
        issue(X0, i)
    ktail([ks])
    e(kfinal(vT, vS + 7))
    e(f's_bitcmp1_b64 s[{sHk}:{sHk+1}], s{sN}')
    e('s_cbranch_scc1 L_hooks')
    e(f's_add_u32 s{sOff}, s{sOff}, 0x20000')
    e(f's_add_u32 s{sN}, s{sN}, 1')
    e('s_branch L_kbody')

    e('L_vbody:')
    e(f'v_and_b32 v{vPd}, 0xffff, v{vP}')
    e(f'v_lshl_or_b32 v{vPd}, v{vPd}, 16, v{vPd}')
    for r in range(3):
        e(f'v_alignbit_b32 v{vP + r}, v{vP + r + 1}, v{vP + r}, 16')
    e(f'v_lshrrev_b32 v{vP+3}, 16, v{vP+3}')
    def vand(i):
        a = vS + 4 * (i & 1)
        for r in range(4):
            e(f'v_and_b32_dpp v{a + r}, v{vPd}, v{vMask + r} row_newbcast:{br4(i)} {DPPF}')
    vand(0)
    for i in range(16):
        if i < 15: vand(i + 1)
        a = vS + 4 * (i & 1); v = X0 + 4 * i
        e(f'v_mfma_f32_16x16x32_bf16 v[{vAcc}:{vAcc+3}], v[{a}:{a+3}], v[{v}:{v+3}], v[{vAcc}:{vAcc+3}]')
        e(f's_waitcnt vmcnt({D-1})')
        issue(X0, i)
    e(f's_bitcmp1_b64 s[{sHk}:{sHk+1}], s{sN}')
    e('s_cbranch_scc1 L_hooks')
    e(f's_add_u32 s{sOff}, s{sOff}, 0x20000')
    e(f's_add_u32 s{sN}, s{sN}, 1')
    e('s_branch L_vbody')

    e('L_hooks:')
    T = vT
    e(f's_cmp_eq_u32 s{sN}, 40'); e('s_cbranch_scc1 L_sfin')
    e(f's_cmp_eq_u32 s{sN}, 39'); e('s_cbranch_scc1 L_h39')
    e(f's_cmp_eq_u32 s{sN}, 19'); e('s_cbranch_scc1 L_h19')
    e(f's_cmp_eq_u32 s{sN}, 23'); e('s_cbranch_scc1 L_h23')
    e(f's_cmp_eq_u32 s{sN}, 30'); e('s_cbranch_scc1 L_h30')
    e(f's_cmp_eq_u32 s{sN}, 31'); e('s_cbranch_scc1 L_h31')
    for r in range(4): e(f'v_mov_b32 v{vP + r}, v{vPA + r}')
    for r in range(4): e(f'v_mov_b32 v{vPA + r}, v{vPA + 4 + r}')
    e(f's_cmp_gt_u32 s{sN}, 20'); e('s_cbranch_scc1 L_hsw')
    e(f'v_max3_f32 v{T}, v{vS}, v{vS+1}, v{vS+2}')
    e(f'v_max3_f32 v{T+1}, v{vS+3}, v{vS+4}, v{vS+5}')
    e(f'v_max3_f32 v{T}, v{T}, v{vS+6}, v{vS+7}')
    e(f'v_max_f32 v{T}, v{T}, v{T+1}')
    def rowred(op, r):
        for ctl in ('quad_perm:[1,0,3,2]', 'quad_perm:[2,3,0,1]', 'row_half_mirror', 'row_mirror'):
            e('s_nop 1')
            e(f'{op}_dpp v{r}, v{r}, v{r} {ctl} {DPPF}')
    def allred(op, r, tmp):
        rowred(op, r)
        for sw in ('v_permlane16_swap_b32', 'v_permlane32_swap_b32'):
            e(f'v_mov_b32 v{tmp}, v{r}')
            e('s_nop 1')
            e(f'{sw} v{tmp}, v{r}')
            e('s_nop 1')
            e(f'{op} v{r}, v{r}, v{tmp}')
    allred('v_max_f32', T, T + 1)
    e(f'v_mul_f32 v{T+2}, s{sC}, v{T}')
    for r in range(8): e(f'v_fma_f32 v{vS + r}, v{vS + r}, s{sC}, -v{T+2}')
    for r in range(8): e(f'v_exp_f32 v{vS + r}, v{vS + r}')
    e(f'v_cmp_eq_u32 vcc, s{sSeg}, v0')
    for r in range(4): e(f'v_cvt_pk_bf16_f32 v{vPA + 4 + r}, v{vS + 2*r}, v{vS + 2*r + 1}')
    e(f'v_cndmask_b32 v{vMl}, v{vMl}, v{T+2}, vcc')
    for r in range(4): e(f'v_add_f32 v{vS + 2*r}, v{vS + 2*r}, v{vS + 2*r + 1}')
    e(f'v_add_f32 v{vS}, v{vS}, v{vS+2}')
    e(f'v_add_f32 v{vS+4}, v{vS+4}, v{vS+6}')
    e(f'v_add_f32 v{T}, v{vS}, v{vS+4}')
    allred('v_add_f32', T, T + 1)
    e(f'v_cndmask_b32 v{vMl+1}, v{vMl+1}, v{T}, vcc')
    e(f's_add_u32 s{sSeg}, s{sSeg}, 1')
    e(f's_cmp_eq_u32 s{sSeg}, 3')
    e(f's_cselect_b32 s{sSeg}, 0, s{sSeg}')
    e(f'ds_read_b128 v[{vQ}:{vQ+3}], v1 offset:{L_Q}')
    e('s_waitcnt lgkmcnt(0)')
    e(f's_cmp_eq_u32 s{sN}, 20'); e('s_cbranch_scc0 L_h_done')
    stamp(14, 0)
    e(f'v_mov_b32 v{vP}, v{vP+2}'); e(f'v_mov_b32 v{vP+1}, v{vP+3}')
    e(f's_lshl_b32 s{sT0}, s2, 8'); e(f's_lshl_b32 s{sT1}, s{sW}, 6'); e(f's_add_u32 s{sT0}, s{sT0}, s{sT1}')
    e(f's_add_u32 s{sT0}, s{sT0}, {ST}')
    e(f'v_mov_b32 v{vMl+2}, s{sE}'); e(f'v_mov_b32 v{vMl+3}, s{sE}')
    e('s_mov_b64 exec, 15')
    e(f'buffer_store_dwordx4 v[{vMl}:{vMl+3}], v{vL16}, s[8:11], s{sT0} offen sc1')
    e('s_mov_b64 exec, -1')
    e('s_branch L_h_done')
    e('L_hsw:')
    for r in range(4): e(f'v_mov_b32_dpp v{vMask + r}, v{vMask + r} row_ror:8 {DPPF}')
    e(f's_cmp_eq_u32 s{sN}, 24'); e('s_cbranch_scc0 L_h_done')
    for r in range(4): e(f'v_mov_b32 v{vAccB + r}, v{vAcc + r}')
    for r in range(4): e(f'v_mov_b32 v{vAcc + r}, 0')
    e('s_branch L_h_done')
    e('L_h19:')
    e(f's_mov_b32 s4, s{sBv}'); e(f's_mov_b32 s5, s{sBv+1}')
    e(f's_add_u32 s{sOff}, s{sWb}, {0x180000 - 0x20000}')
    e('s_branch L_h_done')
    e('L_h23:')
    e(f's_mov_b32 s4, s{sAv}'); e(f's_mov_b32 s5, s{sAv+1}')
    e(f's_sub_u32 s{sOff}, s{sWb}, 0x20000')
    e('s_branch L_h_done')
    e('L_h39:')
    e('s_mov_b32 s6, 0')
    e('s_branch L_h_done')
    e('L_h30:')
    e(f'v_and_b32 v{T}, 3, v0')
    e(f'v_lshlrev_b32 v{vStA}, 6, v{T}')
    e(f'v_bfe_u32 v{T}, v0, 2, 1')
    e(f'v_lshl_add_u32 v{vStA}, v{T}, 10, v{vStA}')
    e(f'v_lshrrev_b32 v{T}, 3, v0')
    e(f'v_min_u32 v{T}, 2, v{T}')
    e(f'v_lshl_add_u32 v{vStA}, v{T}, 4, v{vStA}')
    e(f's_and_b32 s{sT0}, s2, 0xfb'); e(f's_lshl_b32 s{sT0}, s{sT0}, 8'); e(f's_add_u32 s{sT0}, s{sT0}, {ST}')
    e(f'v_add_u32 v{vStA}, s{sT0}, v{vStA}')
    e(f'buffer_load_dwordx4 v[{vSt}:{vSt+3}], v{vStA}, s[8:11], 0 offen sc1')
    e('s_branch L_h_done')
    e('L_h31:')
    e(f's_mov_b32 s{sSpin}, {SPIN}')
    e('L_h31s:')
    e(f'v_cmp_ne_u32 vcc, s{sE}, v{vSt+2}')
    e('s_cbranch_vccz L_h31k')
    e(f's_sub_u32 s{sSpin}, s{sSpin}, 1')
    e('s_cbranch_scc1 L_h31k')
    e(f'buffer_load_dwordx4 v[{vSt}:{vSt+3}], v{vStA}, s[8:11], 0 offen sc1')
    e('s_waitcnt vmcnt(0)')
    e('s_branch L_h31s')
    e('L_h31k:')
    e(f'v_mov_b32 v{T}, v{vSt}')
    rowred('v_max_f32', T)
    e(f'v_sub_f32 v{T}, v{vSt}, v{T}')
    e(f'v_exp_f32 v{T}, v{T}')
    e('s_nop 0')
    e(f'v_mul_f32 v{T+1}, v{T}, v{vSt+1}')
    rowred('v_add_f32', T + 1)
    e(f'v_rcp_f32 v{T+1}, v{T+1}')
    e('s_nop 0')
    e(f'v_mul_f32 v{T}, v{T}, v{T+1}')
    e(f's_lshl_b32 s{sT0}, s{sSide}, 2'); e(f's_add_u32 s{sT0}, s{sT0}, s{sW}')
    e(f's_add_u32 s{sT1}, s{sT0}, 8'); e(f's_add_u32 s{sT2}, s{sT0}, 16')
    e(f'v_readlane_b32 s{sFA0}, v{T}, s{sT0}')
    e(f'v_readlane_b32 s{sFA1}, v{T}, s{sT1}')
    e(f'v_readlane_b32 s{sFB}, v{T}, s{sT2}')
    e('v_cmp_gt_u32 vcc, 32, v0')
    e(f'v_mov_b32 v{T}, s{sFA0}')
    e(f'v_mov_b32 v{T+1}, s{sFA1}')
    e(f'v_cndmask_b32 v{vF}, v{T+1}, v{T}, vcc')
    e(f'v_mov_b32 v{T}, s{sFB}')
    e(f'v_add_f32 v{T}, v{T}, v{T}')
    for r in range(4): e(f'v_mul_f32 v{vAccB + r}, v{T}, v{vAccB + r}')
    e(f'v_lshrrev_b32 v{T}, 5, v0')
    e(f'v_bfe_u32 v{T+1}, v0, 3, 1')
    e(f'v_lshl_add_u32 v{T}, v{T}, 1, v{T+1}')
    e(f's_and_b32 s{sT0}, s2, 127')
    e(f'v_xor_b32 v{T+1}, s{sT0}, v{T}')
    e(f'v_lshlrev_b32 v{vOa}, 8, v{T+1}')
    e(f'v_lshl_add_u32 v{vOa}, v{T}, 15, v{vOa}')
    e(f'v_and_b32 v{T}, 7, v0')
    e(f'v_lshl_add_u32 v{vOa}, v{T}, 5, v{vOa}')
    e(f'v_and_b32 v{T}, 16, v0')
    e(f's_lshr_b32 s{sT0}, s2, 7'); e(f's_lshl_b32 s{sT0}, s{sT0}, 17'); e(f's_add_u32 s{sT0}, s{sT0}, {OP}')
    e(f'v_add3_u32 v{vOa}, v{vOa}, v{T}, s{sT0}')
    e(f's_lshl_b32 s{sT0}, s{sW}, 10')
    e(f'v_add_u32 v1, s{sT0}, v{vL16}')
    e('L_h_done:')
    e(f's_add_u32 s{sOff}, s{sOff}, 0x20000')
    e(f's_add_u32 s{sN}, s{sN}, 1')
    e(f's_cmp_gt_u32 s{sN}, 20')
    e('s_cbranch_scc1 L_vbody')
    e('s_branch L_kbody')
    e('L_sfin:')
    e('s_nop 1')
    for r in range(4): e(f'v_mul_f32 v{vAcc + r}, v{vF}, v{vAcc + r}')
    for r in range(4): e(f'v_permlane32_swap_b32 v{vAcc + r}, v{vAccB + r}')
    for r in range(4): e(f'v_add_f32 v{vAcc + r}, v{vAcc + r}, v{vAccB + r}')
    e(f'ds_write_b128 v1, v[{vAcc}:{vAcc+3}] offset:{L_O}')
    e(f's_cmp_lg_u32 s{sW}, 0')
    e('s_waitcnt lgkmcnt(0)')
    e('s_barrier')
    e('s_cbranch_scc1 L_end')
    for w in range(1, 4):
        r = vR2 + 4 * (w - 1)
        e(f'ds_read_b128 v[{r}:{r+3}], v1 offset:{L_O + w * 1024}')
    e('s_waitcnt lgkmcnt(1)')
    for r in range(4): e(f'v_add_f32 v{vAcc + r}, v{vAcc + r}, v{vR2 + r}')
    e('s_waitcnt lgkmcnt(0)')
    for r in range(4): e(f'v_add_f32 v{vR2 + 4 + r}, v{vR2 + 4 + r}, v{vR2 + 8 + r}')
    for r in range(4): e(f'v_add_f32 v{vAcc + r}, v{vAcc + r}, v{vR2 + 4 + r}')
    for r in range(4): tag(vAcc + r, vTg)
    e(f'buffer_store_dwordx4 v[{vAcc}:{vAcc+3}], v{vOa}, s[8:11], 0 offen sc1')
    stamp(4)
    flush_stamps([0, 1, 2, 3, 4, 14])
    e('s_endpgm')

    e('L_service:')
    sU = sB; sBeta = sSide
    sIt, sDst = 53, 54
    vG = 2; vC = 3; vA = 4; vA2 = 5; vL = 6; vZ = 7
    vXA = 8; vWt = 16; vSel = 48; vOpA = 56; vD = 64; vR = 72
    vA3 = 104; vTg = 105; vX3 = 108; vX4 = 109; vOut = 110
    e(f's_sub_u32 s{sW}, s{sW}, 4')
    e(f'v_lshrrev_b32 v{vG}, 4, v0')
    e(f'v_and_b32 v{vC}, 15, v0')
    e(f'v_mov_b32 v{vZ}, 0')
    e(f'ds_write_b32 v{vZ}, v{vZ} offset:{L_CNT}')
    e(f'v_lshlrev_b32 v{vA}, 16, v{vG}')
    e(f'v_lshl_add_u32 v{vA}, v{vC}, 4, v{vA}')
    e(f'v_lshrrev_b32 v{vA2}, 3, v{vC}')
    e(f'v_lshlrev_b32 v{vA2}, 10, v{vA2}')
    e(f'v_lshl_add_u32 v{vA2}, v{vG}, 4, v{vA2}')
    e(f's_lshl_b32 s{sT0}, s{sU}, 7')
    e(f's_lshl_b32 s{sT1}, s{sW}, 5')
    e(f's_add_u32 s{sT0}, s{sT0}, s{sT1}')
    e(f's_lshl_b32 s{sT1}, s{sT0}, 1')
    e(f's_lshl_b32 s{sT0}, s{sT0}, 13')
    e(f's_lshl_b32 s{sT2}, s{sH}, 8')
    e(f's_add_u32 s{sT0}, s{sT0}, s{sT2}')
    e('s_mov_b32 s6, 0x400000')
    e('s_mov_b32 s14, 4096')
    e('s_mov_b32 s15, 0x20000')
    e(f's_cmp_eq_u32 s{sBeta}, 0')
    e('s_waitcnt lgkmcnt(0)')
    e(f's_cselect_b64 s[4:5], s[{sAwq}:{sAwq+1}], s[{sBwq}:{sBwq+1}]')
    e(f's_cselect_b64 s[12:13], s[{sAx}:{sAx+1}], s[{sBx}:{sBx+1}]')
    for m in range(2):
        e(f'buffer_load_dwordx4 v[{vXA + 4*m}:{vXA + 4*m + 3}], v{vA2}, s[12:15], s{sT1} offen offset:{2048*m}')
    for i in range(8):
        e(f'buffer_load_dwordx4 v[{vWt + 4*i}:{vWt + 4*i + 3}], v{vA}, s[4:7], s{sT0} offen {pol}')
        if i < 7: e(f's_add_u32 s{sT0}, s{sT0}, 8192')
    load_epoch()
    e('s_barrier')
    e(f's_mov_b32 s8, s{sWs}'); e(f's_mov_b32 s9, s{sWs+1}')
    e(f'v_lshlrev_b32 v{vL}, 4, v0')
    e(f'v_mov_b32 v{vX4}, 0'); e(f'v_mov_b32 v{vOut}, 0')
    e(f'v_and_b32 v{vR}, 7, v0')
    e(f'v_and_b32 v{vR+1}, 1, v0')
    e(f'v_lshlrev_b32 v{vR+1}, 4, v{vR+1}')
    e(f'v_mov_b32 v{vR+2}, 0xffff')
    e(f'v_lshlrev_b32 v{vR+2}, v{vR+1}, v{vR+2}')
    e(f'v_lshrrev_b32 v{vR}, 1, v{vR}')
    e(f'v_mov_b32 v{vR+4}, 0x0c0c0c0c')
    e(f's_mov_b32 s{sT0}, 0x01000100')
    e(f's_mov_b32 s{sT1}, 0x03020302')
    for r in range(4):
        e(f'v_cmp_eq_u32 vcc, {r}, v{vR}')
        e('s_nop 1')
        e(f'v_cndmask_b32 v{vR+3}, 0, v{vR+2}, vcc')
        e(f'v_bfi_b32 v{vSel + r}, v{vR+3}, s{sT0}, v{vR+4}')
        e(f'v_bfi_b32 v{vSel + 4 + r}, v{vR+3}, s{sT1}, v{vR+4}')
    e(f's_mov_b32 s{sIt}, 4')
    e(f's_lshl_b32 s{sT0}, s{sW}, 11')
    e(f'v_add_u32 v{vA}, s{sT0}, v{vL}')
    e(f'v_lshrrev_b32 v{vR}, 5, v0')
    e(f'v_bfe_u32 v{vR+1}, v0, 3, 1')
    e(f'v_lshl_add_u32 v{vR}, v{vR}, 1, v{vR+1}')
    e(f's_lshl_b32 s{sT0}, s2, 1'); e(f's_and_b32 s{sT0}, s{sT0}, 127')
    e(f'v_xor_b32 v{vR+1}, s{sT0}, v{vR}')
    e(f'v_lshlrev_b32 v{vA2}, 8, v{vR+1}')
    e(f'v_lshl_add_u32 v{vA2}, v{vR}, 15, v{vA2}')
    e(f'v_and_b32 v{vR}, 7, v0')
    e(f'v_lshl_add_u32 v{vA2}, v{vR}, 5, v{vA2}')
    e(f'v_and_b32 v{vR}, 16, v0')
    e(f'v_add_u32 v{vA2}, v{vA2}, v{vR}')
    e(f'v_xor_b32 v{vA3}, 0x100, v{vA2}')
    e(f's_lshr_b32 s{sDst}, s2, 6'); e(f's_lshl_b32 s{sDst}, s{sDst}, 17')
    if QP: e(f's_add_u32 s{sDst}, s{sDst}, {QP}')
    e('s_waitcnt lgkmcnt(0)')
    make_tag(vTg)
    e('s_waitcnt vmcnt(0)')
    stamp(5, 0)
    e('L_gemv:')
    seq = [(i, m) for i in range(8) for m in range(2)]
    def perms(k):
        i, m = seq[k]
        a = vOpA + 4 * (k & 1); x = vXA + 4 * m + (i >> 1)
        for r in range(4):
            e(f'v_perm_b32 v{a + r}, v{x}, v{x}, v{vSel + 4 * (i & 1) + r}')
    perms(0)
    for k, (i, m) in enumerate(seq):
        if k < 15: perms(k + 1)
        else: e('s_nop 0')
        a = vOpA + 4 * (k & 1); d = vD + 4 * m; w = vWt + 4 * i
        c = f'v[{d}:{d+3}]' if i > 0 else '0'
        e(f'v_mfma_f32_16x16x32_bf16 v[{d}:{d+3}], v[{a}:{a+3}], v[{w}:{w+3}], {c}')
    e(f'v_mov_b32 v{vR}, 1')
    e('s_nop 5')
    e(f'ds_write_b128 v{vA}, v[{vD}:{vD+3}] offset:{L_RED}')
    e(f'ds_write_b128 v{vA}, v[{vD+4}:{vD+7}] offset:{L_RED + 1024}')
    e('s_mov_b64 exec, 1')
    e(f'ds_add_u32 v{vZ}, v{vR} offset:{L_CNT}')
    e('s_mov_b64 exec, -1')
    e(f's_cmp_lg_u32 s{sW}, 0')
    e('s_cbranch_scc1 L_notleader')
    e(f's_mov_b32 s{sSpin}, {SPIN * 8}')
    e('L_cspin:')
    e(f'ds_read_b32 v{vR}, v{vZ} offset:{L_CNT}')
    e(f's_sub_u32 s{sSpin}, s{sSpin}, 1')
    e('s_cbranch_scc1 L_cout')
    e('s_waitcnt lgkmcnt(0)')
    e(f'v_cmp_eq_u32 vcc, s{sIt}, v{vR}')
    e('s_cbranch_vccz L_cspin')
    e('L_cout:')
    for w in range(1, 4):
        for m in range(2):
            r = vR + ((w - 1) * 2 + m) * 4
            e(f'ds_read_b128 v[{r}:{r+3}], v{vL} offset:{L_RED + w * 2048 + m * 1024}')
    e('s_waitcnt lgkmcnt(4)')
    for r in range(8): e(f'v_add_f32 v{vD + r}, v{vD + r}, v{vR + r}')
    e('s_waitcnt lgkmcnt(0)')
    for r in range(8): e(f'v_add_f32 v{vR + 8 + r}, v{vR + 8 + r}, v{vR + 16 + r}')
    for r in range(8): e(f'v_add_f32 v{vD + r}, v{vD + r}, v{vR + 8 + r}')
    for r in range(8): tag(vD + r, vTg)
    e(f'buffer_store_dwordx4 v[{vD}:{vD+3}], v{vA2}, s[8:11], s{sDst} offen sc1')
    e(f'buffer_store_dwordx4 v[{vD+4}:{vD+7}], v{vA3}, s[8:11], s{sDst} offen sc1')
    e(f's_cmp_eq_u32 s{sIt}, 8')
    e('s_cbranch_scc1 L_x4')
    stamp(6)
    e(f'v_bfe_u32 v{vR}, v0, 4, 1')
    e(f's_and_b32 s{sT0}, s{sB}, 1'); e(f's_lshl_b32 s{sT0}, s{sT0}, 1')
    e(f'v_or_b32 v{vR}, s{sT0}, v{vR}')
    e(f'v_lshrrev_b32 v{vR+1}, 5, v0')
    e(f'v_lshlrev_b32 v{vR+1}, 3, v{vR+1}')
    e(f's_and_b32 s{sT0}, s{sH}, 7'); e(f's_lshl_b32 s{sT0}, s{sT0}, 4'); e(f's_lshr_b32 s{sT1}, s{sB}, 1'); e(f's_or_b32 s{sT0}, s{sT0}, s{sT1}')
    e(f'v_or_b32 v{vR+1}, s{sT0}, v{vR+1}')
    e(f'v_xor_b32 v{vR+1}, v{vR+1}, v{vR}')
    e(f'v_lshlrev_b32 v{vR+1}, 8, v{vR+1}')
    e(f'v_lshl_add_u32 v{vR+1}, v{vR}, 15, v{vR+1}')
    e(f'v_lshl_add_u32 v{vR}, v{vC}, 4, v{vR+1}')
    e(f'v_xor_b32 v{vR+1}, 0x200, v{vR}')
    e(f's_mov_b32 s{sSpin}, {SPIN}')
    e('L_x1spin:')
    for r in range(4):
        d = vR + 4 + 4 * r
        e(f'buffer_load_dwordx4 v[{d}:{d+3}], v{vR + (r & 1)}, s[8:11], s{sDst} offen offset:{(r >> 1) * 1024} sc1')
    e(f's_sub_u32 s{sSpin}, s{sSpin}, 1')
    e('s_cbranch_scc1 L_x1out')
    e('s_waitcnt vmcnt(0)')
    check(list(range(vR + 4, vR + 20)), vR + 2, vTg)
    e('s_cbranch_vccnz L_x1spin')
    e('L_x1out:')
    e('s_waitcnt vmcnt(0)')
    stamp(7)
    untag(range(vR + 4, vR + 20))
    e(f'v_lshlrev_b32 v{vR+1}, 3, v0')
    for r in range(4):
        e(f'v_add_f32 v{vR + 4 + r}, v{vR + 4 + r}, v{vR + 8 + r}')
        e(f'v_add_f32 v{vR + 12 + r}, v{vR + 12 + r}, v{vR + 16 + r}')
    for r in range(4): e(f'v_add_f32 v{vR + 4 + r}, v{vR + 4 + r}, v{vR + 12 + r}')
    e(f'v_cvt_pk_bf16_f32 v{vR+4}, v{vR+4}, v{vR+5}')
    e(f'v_cvt_pk_bf16_f32 v{vR+5}, v{vR+6}, v{vR+7}')
    e(f'ds_write_b64 v{vR+1}, v[{vR+4}:{vR+5}] offset:{L_Q}')
    e('s_waitcnt lgkmcnt(0)')
    stamp(8)
    e('L_notleader:')
    e(f's_cmp_eq_u32 s{sIt}, 8')
    e('s_cbranch_scc1 L_end')
    e('s_barrier')
    e(f's_cmp_eq_u32 s{sBeta}, 0')
    e(f's_cselect_b64 s[4:5], s[{sAwo}:{sAwo+1}], s[{sBwo}:{sBwo+1}]')
    e(f'v_lshlrev_b32 v{vR}, 13, v{vG}')
    e(f'v_lshl_add_u32 v{vR}, v{vC}, 4, v{vR}')
    e(f's_lshl_b32 s{sT0}, s{sH}, 17')
    e(f's_lshl_b32 s{sT1}, s{sW}, 15')
    e(f's_add_u32 s{sT0}, s{sT0}, s{sT1}')
    e(f's_lshl_b32 s{sT1}, s{sU}, 8')
    e(f's_add_u32 s{sT0}, s{sT0}, s{sT1}')
    e(f's_add_u32 s{sT1}, s{sT0}, 4096')
    for i in range(8):
        e(f'buffer_load_dwordx4 v[{vWt + 4*i}:{vWt + 4*i + 3}], v{vR}, s[4:7], s{sT0 if i < 4 else sT1} offen offset:{(i & 3) * 1024} {pol}')
        e('s_waitcnt vmcnt(0)')
    sX3, sX4a, sX4b, sOo = 64, 66, 67, 68
    e(f'v_and_b32 v{vR}, 1, v0')
    e(f'v_lshlrev_b32 v{vR}, 2, v{vR}')
    e(f'v_bfe_u32 v{vR+1}, v0, 2, 1')
    e(f'v_lshl_add_u32 v{vR}, v{vR+1}, 1, v{vR}')
    e(f'v_bfe_u32 v{vR+1}, v0, 3, 1')
    e(f'v_add_u32 v{vR}, v{vR}, v{vR+1}')
    e(f's_lshl_b32 s{sT0}, s{sBeta}, 1'); e(f's_lshr_b32 s{sT1}, s{sW}, 1'); e(f's_add_u32 s{sT0}, s{sT0}, s{sT1}')
    e(f'v_xor_b32 v{vR}, s{sT0}, v{vR}')
    e(f'v_lshlrev_b32 v{vX3}, 8, v{vR}')
    e(f'v_lshl_add_u32 v{vX3}, v{vG}, 5, v{vX3}')
    e(f'v_bfe_u32 v{vR+1}, v0, 1, 1')
    e(f'v_lshl_add_u32 v{vX3}, v{vR+1}, 4, v{vX3}')
    e(f's_lshl_b32 s{sX3}, s{sT0}, 15')
    e(f's_and_b32 s{sT1}, s{sW}, 1'); e(f's_lshl_b32 s{sT1}, s{sT1}, 7'); e(f's_add_u32 s{sX3}, s{sX3}, s{sT1}')
    e(f's_and_b32 s{sT1}, s{sH}, 15'); e(f's_lshl_b32 s{sT1}, s{sT1}, 11'); e(f's_add_u32 s{sX3}, s{sX3}, s{sT1}')
    e(f's_lshr_b32 s{sT1}, s{sH}, 4'); e(f's_lshl_b32 s{sT1}, s{sT1}, 17'); e(f's_add_u32 s{sX3}, s{sX3}, s{sT1}')
    e(f's_add_u32 s{sX3}, s{sX3}, {OP}')
    e(f'v_bfe_u32 v{vR}, v0, 2, 3')
    e(f'v_lshlrev_b32 v{vX4}, 12, v{vR}')
    e(f'v_lshrrev_b32 v{vR}, 5, v0')
    e(f'v_lshl_add_u32 v{vX4}, v{vR}, 17, v{vX4}')
    e(f'v_and_b32 v{vR}, 3, v0')
    e(f'v_lshl_add_u32 v{vX4}, v{vR}, 4, v{vX4}')
    e(f'v_lshlrev_b32 v{vOut}, 3, v{vR}')
    e(f's_bfe_u32 s{sT0}, s{sH}, 0x20002')
    e(f's_lshl_b32 s{sT1}, s{sJ}, 1'); e(f's_lshr_b32 s{sT2}, s{sH}, 4'); e(f's_or_b32 s{sT1}, s{sT1}, s{sT2}')
    e(f's_xor_b32 s{sT1}, s{sT1}, s{sT0}'); e(f's_lshl_b32 s{sT1}, s{sT1}, 8')
    e(f's_lshl_b32 s{sT0}, s{sT0}, 15'); e(f's_add_u32 s{sT0}, s{sT0}, s{sT1}')
    e(f's_and_b32 s{sT1}, s{sH}, 3'); e(f's_lshl_b32 s{sT1}, s{sT1}, 6'); e(f's_add_u32 s{sT0}, s{sT0}, s{sT1}')
    e(f's_add_u32 s{sX4a}, s{sT0}, {YP}')
    e(f's_add_u32 s{sX4b}, s{sX4a}, 0x40000')
    e(f's_lshr_b32 s{sT0}, s{sH}, 3'); e(f's_lshl_b32 s{sT0}, s{sT0}, 11')
    e(f's_lshl_b32 s{sT1}, s{sJ}, 8'); e(f's_add_u32 s{sT0}, s{sT0}, s{sT1}')
    e(f's_and_b32 s{sT1}, s{sH}, 7'); e(f's_lshl_b32 s{sT1}, s{sT1}, 5'); e(f's_add_u32 s{sOo}, s{sT0}, s{sT1}')
    e(f's_mov_b32 s12, s{sOut}'); e(f's_mov_b32 s13, s{sOut+1}'); e('s_mov_b32 s14, 8192')
    e(f's_mov_b32 s{sIt}, 8')
    e(f's_add_u32 s{sDst}, s{sDst}, {YP - QP}')
    e(f's_mov_b32 s{sSpin}, {SPIN}')
    e('s_barrier')
    stamp(9, 0)
    e('L_x3spin:')
    e(f'buffer_load_dwordx4 v[{vR}:{vR+3}], v{vX3}, s[8:11], s{sX3} offen sc1')
    e(f's_sub_u32 s{sSpin}, s{sSpin}, 1')
    e('s_cbranch_scc1 L_x3out')
    e('s_waitcnt vmcnt(0)')
    check(list(range(vR, vR + 4)), vR + 4, vTg)
    e('s_cbranch_vccnz L_x3spin')
    e('L_x3out:')
    e('s_waitcnt vmcnt(0)')
    stamp(10, 0)
    untag(range(vR, vR + 4))
    for r in range(4): e(f'v_add_f32_dpp v{vR+r}, v{vR+r}, v{vR+r} quad_perm:[1,0,3,2] {DPPF}')
    e(f'v_cvt_pk_bf16_f32 v{vR}, v{vR}, v{vR+1}')
    e(f'v_cvt_pk_bf16_f32 v{vR+1}, v{vR+2}, v{vR+3}')
    e('s_nop 1')
    for bb in range(2):
        for m in range(2):
            for hh in range(2):
                for r in range(2):
                    bm = '0x3' if bb == 0 else '0xc'
                    e(f'v_mov_b32_dpp v{vXA + 4*m + 2*hh + r}, v{vR + r} row_newbcast:{bb*8 + m*4 + hh*2} row_mask:0xf bank_mask:{bm}')
    e('s_branch L_gemv')
    e('L_x4:')
    stamp(11)
    e(f's_mov_b32 s{sSpin}, {SPIN}')
    e('L_x4spin:')
    for k in range(2):
        e(f'buffer_load_dwordx4 v[{vR + 4*k}:{vR + 4*k + 3}], v{vX4}, s[8:11], s{sX4a + k} offen sc1')
    e(f's_sub_u32 s{sSpin}, s{sSpin}, 1')
    e('s_cbranch_scc1 L_x4out')
    e('s_waitcnt vmcnt(0)')
    check(list(range(vR, vR + 8)), vR + 8, vTg)
    e('s_cbranch_vccnz L_x4spin')
    e('L_x4out:')
    e('s_waitcnt vmcnt(0)')
    untag(range(vR, vR + 8))
    for r in range(4): e(f'v_add_f32 v{vR + r}, v{vR + r}, v{vR + 4 + r}')
    for ctl in ('row_ror:4', 'row_ror:8'):
        for r in range(4): e(f'v_add_f32_dpp v{vR+r}, v{vR+r}, v{vR+r} {ctl} {DPPF}')
    for sw in ('v_permlane16_swap_b32', 'v_permlane32_swap_b32'):
        for r in range(4): e(f'v_mov_b32 v{vR+4+r}, v{vR+r}')
        for r in range(4): e(f'{sw} v{vR+4+r}, v{vR+r}')
        for r in range(4): e(f'v_add_f32 v{vR+r}, v{vR+r}, v{vR+4+r}')
    e(f'v_cvt_pk_bf16_f32 v{vR}, v{vR}, v{vR+1}')
    e(f'v_cvt_pk_bf16_f32 v{vR+1}, v{vR+2}, v{vR+3}')
    e('s_mov_b64 exec, 15')
    e(f'buffer_store_dwordx2 v[{vR}:{vR+1}], v{vOut}, s[12:15], s{sOo} offen')
    stamp(12)
    flush_stamps([5, 6, 7, 8, 9, 10, 11, 12])
    e('s_cmp_lg_u32 s2, 0')
    e('s_cbranch_scc1 L_end')
    e('s_mov_b64 exec, 1')
    e(f'v_mov_b32 v{vR+2}, s{sE}')
    e(f's_mov_b32 s{sT0}, {EP}')
    e(f'buffer_store_dword v{vR+2}, off, s[8:11], s{sT0}')
    if hdiag:
        e('s_memrealtime s[82:83]'); e('s_waitcnt lgkmcnt(0)'); e('s_sub_u32 s82, s82, s80')
        e(f's_mov_b32 s12, s{sDbg}'); e(f's_mov_b32 s13, s{sDbg+1}'); e('s_mov_b32 s14, 256')
        e(f'v_mov_b32 v{vR+3}, s82')
        e(f'buffer_store_dword v{vR+3}, off, s[12:15], 0')
    e('L_end:')
    e('s_endpgm')
    e('.section .rodata,"a"')
    e('.p2align 6')
    e(f'.amdhsa_kernel {NAME}_kernel')
    e('  .amdhsa_next_free_vgpr 256')
    e('  .amdhsa_next_free_sgpr 96')
    e('  .amdhsa_accum_offset 256')
    e('  .amdhsa_group_segment_fixed_size 0')
    e('  .amdhsa_kernarg_size 104')
    e('  .amdhsa_user_sgpr_count 2')
    e('  .amdhsa_user_sgpr_kernarg_segment_ptr 1')
    e('  .amdhsa_system_sgpr_workgroup_id_x 1')
    e('  .amdhsa_float_denorm_mode_32 3')
    e('.end_amdhsa_kernel')
    return '\n'.join(g.L) + '\n'

if __name__ == '__main__':
    import ast
    for spec in sys.argv[1:]:
        name, _, opts = spec.partition(':')
        kw = {}
        for o in filter(None, opts.split(',')):
            k_, v_ = o.split('=')
            try: kw[k_] = ast.literal_eval(v_)
            except Exception: kw[k_] = v_
        open(name, 'w').write(gen(**kw))
```

```python
import sys, math, struct
NAME = 'concat_heads__gqa_block_cached__sliding_block_cached__decode'

def f32(x):
    return '0x%08x' % struct.unpack('<I', struct.pack('<f', x))[0]
def br4(i):
    return ((i & 1) << 3) | ((i & 2) << 1) | ((i & 4) >> 1) | ((i & 8) >> 3)

QP = 0x000000
YP = 0x080000
OP = 0x100000
ST = 0x140000
EP = 0x150000
RC = 0x160000
WS_USED = 0x180000
STAMP = 0x40000000

L_Q = 0
L_CNT = 512
L_LVL = 516
L_RED = 1024
L_O = 1024 + 8192
LDS_BYTES = L_O + 4096
SPIN = 1 << 17
DPPF = 'row_mask:0xf bank_mask:0xf'

class G:
    def __init__(s): s.L = []; s.n = 0
    def e(s, x): s.L.append(x)
    def lab(s, p):
        s.n += 1
        return f'L_{p}{s.n}'

def gen(D=5, DB=None, diag=False, pol='nt', wqfirst=False, hdiag=False, probe_t=None, tlb=0, boost=(2, 8), wfirst=1, early=1, DW=5, nbuf=3, slp3=0, slp4=0, stp='sc1', ldp='sc1', pretouch=1, outp='', rc=None, th=(3, 6), cks=(6,10,14,18,22,26,29,32,35,37), rcat=7, pat=0):
    stp = stp.replace('_', ' '); ldp = ldp.replace('_', ' '); outp = outp.replace('_', ' ')
    DB = DB or D
    g = G(); e = g.e
    e(f'; @launch grid=(256,1,1) block=(512,1,1) lds={LDS_BYTES}')
    e('.amdgcn_target "amdgcn-amd-amdhsa--gfx950"')
    e('.text')
    e(f'.globl {NAME}_kernel')
    e('.p2align 8')
    e(f'.type {NAME}_kernel,@function')
    e(f'{NAME}_kernel:')
    sAx, sAk, sAv, sAwq, sAwo, sBx, sBk, sBv = 16, 18, 20, 22, 24, 26, 28, 30
    sBwq, sBwo, sOut, sDbg, sWs = 32, 34, 36, 38, 40
    sW, sH, sJ, sB, sSide = 42, 43, 44, 45, 46
    sT0, sT1, sT2, sT3 = 47, 48, 49, 50
    sSlab, sSpin = 51, 52
    sE, sTag, sNF = 74, 75, 76
    e('s_cmp_ge_u32 s2, 256')
    e('s_cbranch_scc1 L_end')
    e('s_load_dwordx16 s[16:31], s[0:1], 0')
    e('s_load_dwordx8 s[32:39], s[0:1], 64')
    e('s_load_dwordx2 s[40:41], s[0:1], 96')
    if diag or hdiag or probe_t is not None: e('s_memrealtime s[80:81]')
    e('v_lshrrev_b32 v1, 6, v0')
    e('v_and_b32 v0, 63, v0')
    e(f'v_readfirstlane_b32 s{sW}, v1')
    e(f's_lshr_b32 s{sH}, s2, 3')
    e(f's_and_b32 s{sJ}, s2, 7')
    e(f's_and_b32 s{sB}, s2, 3')
    e(f's_lshr_b32 s{sSide}, s{sJ}, 2')
    e('s_mov_b32 s7, 0x20000')
    e('s_mov_b32 s11, 0x20000')
    e(f's_mov_b32 s10, {WS_USED if not diag else 0x41000000}')
    e(f's_mov_b32 s{sNF}, 0xffffff00')
    e(f's_cmp_ge_u32 s{sW}, 4')
    e('s_cbranch_scc1 L_service')

    def stamp(idx, only_wave=None):
        if probe_t == idx:
            e('s_memrealtime s[86:87]'); e('s_waitcnt lgkmcnt(0)')
        if not diag: return
        l = g.lab('st')
        if only_wave is not None:
            e(f's_cmp_lg_u32 s{sW}, {only_wave}')
            e(f's_cbranch_scc1 {l}')
        e(f's_memrealtime s[82:83]')
        e('s_waitcnt lgkmcnt(0)')
        e(f'v_writelane_b32 v254, s82, {idx}')
        e(f'v_writelane_b32 v255, s83, {idx}')
        e(f'{l}:')
    def flush_stamps(idxs):
        if probe_t in idxs:
            l = g.lab('pt')
            e('s_cmp_lg_u32 s2, 0'); e(f's_cbranch_scc1 {l}x')
            if probe_t == 0: e('s_mov_b32 s86, s80')
            e('s_sub_u32 s86, s86, s80'); e('s_mul_i32 s86, s86, 10'); e('s_add_u32 s86, s86, 20000')
            e(f'{l}:'); e('s_memrealtime s[82:83]'); e('s_waitcnt lgkmcnt(0)'); e('s_sub_u32 s82, s82, s80')
            e('s_cmp_lt_u32 s82, s86'); e(f's_cbranch_scc1 {l}')
            e(f'{l}x:')
        if not diag: return
        m = sum(1 << i for i in idxs)
        e('s_lshl_b32 s84, s2, 7'); e(f's_add_u32 s84, s84, {STAMP}')
        e('s_mov_b64 exec, -1')
        e('v_lshlrev_b32 v253, 3, v0')
        e(f's_mov_b64 exec, {m}')
        e('buffer_store_dwordx2 v[254:255], v253, s[8:11], s84 offen')
    def load_epoch():
        e(f's_mov_b32 s{sE}, {EP}')
        e(f's_load_dword s{sE}, s[{sWs}:{sWs+1}], s{sE}')
    def make_tag(vTag):
        e(f's_add_u32 s{sE}, s{sE}, 1')
        e(f's_and_b32 s{sTag}, s{sE}, 0xff')
        e(f'v_mov_b32 v{vTag}, s{sTag}')
    def tag(r, vTag):
        e(f'v_and_or_b32 v{r}, v{r}, s{sNF}, v{vTag}')
    def untag(regs):
        for r in regs: e(f'v_and_b32 v{r}, s{sNF}, v{r}')
    def check(regs, t, vTag):
        e(f'v_xor_b32 v{t}, v{regs[0]}, v{vTag}')
        e(f'v_xor_b32 v{t+1}, v{regs[1]}, v{vTag}')
        for k, r in enumerate(regs[2:]):
            tt = t + (k & 1)
            e(f'v_bitop3_b32 v{tt}, v{tt}, v{r}, v{vTag} bitop3:0xf6')
        e(f'v_or_b32 v{t}, v{t}, v{t+1}')
        e(f'v_and_b32 v{t}, 0xff, v{t}')
        e(f'v_cmp_ne_u32 vcc, 0, v{t}')

    X0, X1, X2 = 60, 124, 188
    vOff = 2; vL16 = 6; vPd = 7; vQ = 8; vS = 12; vT = 20; vMask = 44; vAcc = 48; vAccB = 52; vP = 56
    vPA = 124
    vSt = 132; vMl = 136; vR2 = 140; vStA = 152; vTg = 153; vF = 154; vOa = 155
    sOff, sN = 53, 54
    sM3, sM4 = 60, 62
    sC = 64
    sFA0, sFA1, sFB = 67, 68, 69
    sWb, sSeg = 72, 73
    sHk = 70
    e(f's_lshl_b32 s{sT0}, s{sB}, 5')
    e(f's_add_u32 s{sT0}, s{sT0}, s{sH}')
    e(f's_lshl_b32 s{sSlab}, s{sT0}, 21')
    e(f'v_lshlrev_b32 v{vL16}, 4, v0')
    e(f'v_bfe_u32 v{vOff+1}, v0, 4, 1')
    e(f'v_lshl_add_u32 v{vOff}, v{vOff+1}, 15, v{vL16}')
    e(f'v_lshrrev_b32 v{vOff+1}, 5, v0')
    e(f'v_lshl_add_u32 v{vOff}, v{vOff+1}, 13, v{vOff}')
    e(f's_lshl_b32 s{sT0}, s{sW}, 8')
    e(f'v_xor_b32 v{vOff}, s{sT0}, v{vOff}')
    if pat == 1:
        e(f's_lshl_b32 s{sT0}, s{sSide}, 13')
        e(f'v_xor_b32 v{vOff}, s{sT0}, v{vOff}')
    for j in range(1, 4):
        e(f'v_xor_b32 v{vOff+j}, {(j << 8) | ((j >> 1) << 16 if pat == 1 else 0)}, v{vOff}')
    e(f's_and_b32 s{sT0}, s{sW}, 1')
    e(f's_lshl_b32 s{sT0}, s{sT0}, 12')
    e(f's_add_u32 s{sWb}, s{sSlab}, s{sT0}')
    e(f's_lshr_b32 s{sT0}, s{sW}, 1')
    e(f's_lshl_b32 s{sT0}, s{sT0}, 14')
    e(f's_add_u32 s{sWb}, s{sWb}, s{sT0}')
    if pat == 0:
        e(f's_lshl_b32 s{sT0}, s{sSide}, 16')
        e(f's_add_u32 s{sWb}, s{sWb}, s{sT0}')
    e(f's_add_u32 s{sOff}, s{sWb}, 0x180000')
    e('s_mov_b32 s6, 0x10000000')
    e('s_waitcnt lgkmcnt(0)')
    e(f's_mov_b32 s4, s{sBk}'); e(f's_mov_b32 s5, s{sBk+1}')
    def issue(buf, i):
        v = buf + 4 * i
        e(f'buffer_load_dwordx4 v[{v}:{v+3}], v{vOff + (i >> 2)}, s[4:7], s{sOff} offen offset:{(i & 3) * 1024} {pol}')
    allhooks = [3, 4, 12, 20, 19, 23, 24, 30, 31, 32, 39, 40]
    def mask64(ns): return sum(1 << n for n in ns)
    def setup():
        load_epoch()
        e(f's_mov_b32 s8, s{sWs}'); e(f's_mov_b32 s9, s{sWs+1}')
        if diag:
            e('v_writelane_b32 v254, s80, 0'); e('v_writelane_b32 v255, s81, 0')
        e(f's_mov_b32 s{sM3}, 0xcccccccc'); e(f's_mov_b32 s{sM3+1}, 0xcccccccc')
        e(f's_mov_b32 s{sM4}, 0xaaaaaaaa'); e(f's_mov_b32 s{sM4+1}, 0xaaaaaaaa')
        e(f's_mov_b32 s{sC}, {f32(128 ** -0.5 * math.log2(math.e))}')
        m = mask64(allhooks)
        e(f's_mov_b32 s{sHk}, 0x{m & 0xffffffff:08x}'); e(f's_mov_b32 s{sHk+1}, 0x{m >> 32:08x}')
        e(f'v_and_b32 v{vT}, 15, v0')
        e(f'v_lshlrev_b32 v1, 4, v{vT}')
        e(f'v_and_b32 v{vT+1}, 1, v0')
        e(f'v_lshlrev_b32 v{vT+1}, 4, v{vT+1}')
        e(f'v_mov_b32 v{vT+2}, 0xffff')
        e(f'v_lshlrev_b32 v{vT+2}, v{vT+1}, v{vT+2}')
        e(f'v_lshrrev_b32 v{vT}, 1, v{vT}')
        for r in range(4):
            e(f'v_cmp_eq_u32 vcc, {4 + r}, v{vT}')
            e(f'v_mov_b32 v{vAcc + r}, 0')
            e(f'v_mov_b32 v{vS + r}, 0xff800000')
            e(f'v_cndmask_b32 v{vMask + r}, 0, v{vT+2}, vcc')
        e(f'v_mov_b32 v{vS + 4}, 0xff800000'); e(f'v_mov_b32 v{vS + 5}, 0xff800000')
    k = 0
    kbar = early if wfirst else DB
    bufs = (X1, X2, X0) if nbuf == 3 else (X1, X0)
    if kbar == 0:
        setup(); e('s_barrier')
    for buf in bufs:
        for i in range(16):
            if k >= DB: e(f's_waitcnt vmcnt({DB-1})')
            issue(buf, i)
            k += 1
            if k == kbar:
                if wfirst: setup()
                e('s_barrier')
                if not wfirst: setup()
        e(f's_add_u32 s{sOff}, s{sOff}, 0x20000')
    stamp(1, 0)
    e('s_barrier')
    e(f'ds_read_b128 v[{vQ}:{vQ+3}], v1 offset:{L_Q + 256}')
    e('s_waitcnt lgkmcnt(0)')
    stamp(2, 0)

    sCk, sRc, sRk, sIsC = 56, 58, 59, 65
    vLv = 156; vZz = 157
    def body_begin(tagn):
        if not rc: return
        e(f's_bitcmp1_b64 s[{sCk}:{sCk+1}], s{sN}')
        e(f's_cselect_b32 s{sIsC}, 1, 0')
        e(f's_cbranch_scc0 L_nt{tagn}')
        e(f's_mov_b32 s{sRk}, 1')
        e(f's_atomic_add s{sRk}, s[{sWs}:{sWs+1}], s{sRc} glc')
        e(f's_add_u32 s{sRc}, s{sRc}, 8192')
        e(f'L_nt{tagn}:')
        setflags()
    def setflags():
        e(f's_cmp_eq_u32 s{sT3}, 0')
        e('s_cselect_b64 vcc, -1, 0')
        e(f's_cmp_eq_u32 s{sT3}, 2')
    def throttle(tagn, i):
        if not rc:
            if boost and tagn == 'v':
                e(f's_cbranch_scc1 L_vb{i}')
                e(f's_waitcnt vmcnt({D-1})')
                e(f'L_vb{i}:')
                e(f's_waitcnt vmcnt({boost[1]-1})')
            else:
                e(f's_waitcnt vmcnt({D-1})')
            return
        if i == rcat:
            e(f's_cmp_eq_u32 s{sIsC}, 0')
            e(f's_cbranch_scc1 L_nu{tagn}')
            e('s_waitcnt lgkmcnt(0)')
            e(f's_cmp_ge_u32 s{sRk}, {th[0]}'); e(f's_cselect_b32 s{sT0}, 1, 0')
            e(f's_cmp_ge_u32 s{sRk}, {th[1]}'); e(f's_cselect_b32 s{sT0}, 2, s{sT0}')
            e(f'v_mov_b32 v{vLv}, s{sT0}')
            e(f'ds_write_b32 v{vZz}, v{vLv} offset:{L_LVL}')
            e(f'L_nu{tagn}:')
            e(f's_cmp_eq_u32 s{sT3}, 2')
        if i == rcat + 2:
            e(f'ds_read_b32 v{vLv}, v{vZz} offset:{L_LVL}')
        if i == rcat + 3:
            e('s_waitcnt lgkmcnt(0)')
            e(f'v_readfirstlane_b32 s{sT3}, v{vLv}')
            setflags()
        dd = [int(x + (0.5 if i & 1 else 0)) for x in rc]
        e(f's_waitcnt vmcnt({dd[2]-1})')
        e(f's_cbranch_scc1 L_go{tagn}{i}')
        e(f's_waitcnt vmcnt({dd[1]-1})')
        if dd[0] != dd[1]:
            e(f's_cbranch_vccz L_go{tagn}{i}')
            e(f's_waitcnt vmcnt({dd[0]-1})')
        e(f'L_go{tagn}{i}:')
    def kops(buf, T):
        dots = [[] for _ in range(20)]
        post = [[] for _ in range(20)]
        d = [T, T + 1, T + 2]
        for i in range(16):
            t = d[i % 3]; kk = buf + 4 * i
            dots[i].append(f'v_dot2_f32_bf16 v{t}, v{kk}, v{vQ}, 0')
            for r in range(1, 4):
                dots[i].append(f'v_dot2_f32_bf16 v{t}, v{kk + r}, v{vQ + r}, v{t}')
            a = T + 3 + ((i >> 1) & 1)
            b = T + 5 + ((i >> 2) & 1)
            bm1 = '0x3' if i % 2 == 0 else '0xc'
            bm2 = '0x5' if (i >> 1) % 2 == 0 else '0xa'
            post[i + 1].append(f'v_add_f32_dpp v{a}, v{t}, v{t} row_ror:8 row_mask:0xf bank_mask:{bm1}')
            if i % 2 == 1:
                post[i + 2].append(f'v_add_f32_dpp v{b}, v{a}, v{a} row_half_mirror row_mask:0xf bank_mask:{bm2}')
            if i % 4 == 3:
                post[i + 3].append(f'v_add_f32_dpp v{b}, v{b}, v{b} quad_perm:[2,3,0,1] {DPPF}')
            if i % 8 == 7:
                c = T + 7 if i == 7 else T + 5
                post[i + 3].append(f'v_cndmask_b32 v{c}, v{T+5}, v{T+6}, s[{sM3}:{sM3+1}]')
                post[i + 4].append(f'v_add_f32_dpp v{c}, v{c}, v{c} quad_perm:[1,0,3,2] {DPPF}')
        return [dots[i] + post[i] for i in range(20)]
    def kfinal(T, dst):
        return f'v_cndmask_b32 v{dst}, v{T+7}, v{T+5}, s[{sM4}:{sM4+1}]'
    def ktail(stepsets):
        for s_ in range(16, 20):
            e('s_nop 2' if s_ == 16 else 's_nop 1')
            for st in stepsets:
                for op in st[s_]: e(op)

    sets = [kops(X0, vT), kops(X1, vT + 8), kops(X2, vT + 16)][:nbuf]
    for i in range(16):
        for op in sets[0][i]: e(op)
        e(f's_waitcnt vmcnt({DB-1})')
        issue(X0, i)
        for st in sets[1:]:
            for op in st[i]: e(op)
    ktail(sets)
    if nbuf == 3:
        e(kfinal(vT + 8, vS + 5)); e(kfinal(vT + 16, vS + 6)); e(kfinal(vT, vS + 7))
    else:
        e(kfinal(vT + 8, vS + 6)); e(kfinal(vT, vS + 7))
    make_tag(vTg)
    if nbuf == 3:
        e(f's_mov_b32 s4, s{sAk}'); e(f's_mov_b32 s5, s{sAk+1}')
        e(f's_mov_b32 s{sOff}, s{sWb}')
    else:
        e(f's_add_u32 s{sOff}, s{sOff}, 0x20000')
    e(f's_mov_b32 s{sN}, {nbuf + 1}')
    e(f's_mov_b32 s{sSeg}, 2')
    if rc:
        m = mask64(cks)
        e(f's_cmp_eq_u32 s{sW}, 0')
        e(f's_cselect_b32 s{sCk}, 0x{m & 0xffffffff:08x}, 0'); e(f's_cselect_b32 s{sCk+1}, 0x{m >> 32:08x}, 0')
        e(f's_lshl_b32 s{sRc}, s{sH}, 8'); e(f's_add_u32 s{sRc}, s{sRc}, {RC}')
        e(f's_mov_b32 s{sT3}, 1')
        e(f'v_mov_b32 v{vZz}, 0')
    stamp(3, 0)

    e('L_kbody:')
    ks = kops(X0, vT)
    body_begin('k')
    for i in range(16):
        for op in ks[i]: e(op)
        if i < 7: e(f'v_mov_b32 v{vS + i}, v{vS + i + 1}')
        throttle('k', i)
        issue(X0, i)
    ktail([ks])
    e(kfinal(vT, vS + 7))
    e(f's_bitcmp1_b64 s[{sHk}:{sHk+1}], s{sN}')
    e('s_cbranch_scc1 L_hooks')
    e(f's_add_u32 s{sOff}, s{sOff}, 0x20000')
    e(f's_add_u32 s{sN}, s{sN}, 1')
    e('s_branch L_kbody')

    e('L_vbody:')
    e(f'v_and_b32 v{vPd}, 0xffff, v{vP}')
    e(f'v_lshl_or_b32 v{vPd}, v{vPd}, 16, v{vPd}')
    for r in range(3):
        e(f'v_alignbit_b32 v{vP + r}, v{vP + r + 1}, v{vP + r}, 16')
    e(f'v_lshrrev_b32 v{vP+3}, 16, v{vP+3}')
    def vand(i):
        a = vS + 4 * (i & 1)
        for r in range(4):
            e(f'v_and_b32_dpp v{a + r}, v{vPd}, v{vMask + r} row_newbcast:{br4(i)} {DPPF}')
    if boost and not rc: e(f's_cmp_ge_u32 s{sN}, {40 - boost[0]}')
    body_begin('v')
    vand(0)
    for i in range(16):
        if i < 15: vand(i + 1)
        a = vS + 4 * (i & 1); v = X0 + 4 * i
        e(f'v_mfma_f32_16x16x32_bf16 v[{vAcc}:{vAcc+3}], v[{a}:{a+3}], v[{v}:{v+3}], v[{vAcc}:{vAcc+3}]')
        throttle('v', i)
        issue(X0, i)
    e(f's_bitcmp1_b64 s[{sHk}:{sHk+1}], s{sN}')
    e('s_cbranch_scc1 L_hooks')
    e(f's_add_u32 s{sOff}, s{sOff}, 0x20000')
    e(f's_add_u32 s{sN}, s{sN}, 1')
    e('s_branch L_vbody')

    e('L_hooks:')
    T = vT
    e(f's_cmp_eq_u32 s{sN}, 40'); e('s_cbranch_scc1 L_sfin')
    e(f's_cmp_eq_u32 s{sN}, 39'); e('s_cbranch_scc1 L_h39')
    e(f's_cmp_eq_u32 s{sN}, 19'); e('s_cbranch_scc1 L_h19')
    e(f's_cmp_eq_u32 s{sN}, 3'); e('s_cbranch_scc1 L_h3')
    e(f's_cmp_eq_u32 s{sN}, 23'); e('s_cbranch_scc1 L_h23')
    e(f's_cmp_eq_u32 s{sN}, 30'); e('s_cbranch_scc1 L_h30')
    e(f's_cmp_eq_u32 s{sN}, 31'); e('s_cbranch_scc1 L_h31')
    for r in range(4): e(f'v_mov_b32 v{vP + r}, v{vPA + r}')
    for r in range(4): e(f'v_mov_b32 v{vPA + r}, v{vPA + 4 + r}')
    e(f's_cmp_gt_u32 s{sN}, 20'); e('s_cbranch_scc1 L_hsw')
    e(f'v_max3_f32 v{T}, v{vS}, v{vS+1}, v{vS+2}')
    e(f'v_max3_f32 v{T+1}, v{vS+3}, v{vS+4}, v{vS+5}')
    e(f'v_max3_f32 v{T}, v{T}, v{vS+6}, v{vS+7}')
    e(f'v_max_f32 v{T}, v{T}, v{T+1}')
    def rowred(op, r):
        for ctl in ('quad_perm:[1,0,3,2]', 'quad_perm:[2,3,0,1]', 'row_half_mirror', 'row_mirror'):
            e('s_nop 1')
            e(f'{op}_dpp v{r}, v{r}, v{r} {ctl} {DPPF}')
    def allred(op, r, tmp):
        rowred(op, r)
        for sw in ('v_permlane16_swap_b32', 'v_permlane32_swap_b32'):
            e(f'v_mov_b32 v{tmp}, v{r}')
            e('s_nop 1')
            e(f'{sw} v{tmp}, v{r}')
            e('s_nop 1')
            e(f'{op} v{r}, v{r}, v{tmp}')
    allred('v_max_f32', T, T + 1)
    e(f'v_mul_f32 v{T+2}, s{sC}, v{T}')
    for r in range(8): e(f'v_fma_f32 v{vS + r}, v{vS + r}, s{sC}, -v{T+2}')
    for r in range(8): e(f'v_exp_f32 v{vS + r}, v{vS + r}')
    e(f'v_cmp_eq_u32 vcc, s{sSeg}, v0')
    for r in range(4): e(f'v_cvt_pk_bf16_f32 v{vPA + 4 + r}, v{vS + 2*r}, v{vS + 2*r + 1}')
    e(f'v_cndmask_b32 v{vMl}, v{vMl}, v{T+2}, vcc')
    for r in range(4): e(f'v_add_f32 v{vS + 2*r}, v{vS + 2*r}, v{vS + 2*r + 1}')
    e(f'v_add_f32 v{vS}, v{vS}, v{vS+2}')
    e(f'v_add_f32 v{vS+4}, v{vS+4}, v{vS+6}')
    e(f'v_add_f32 v{T}, v{vS}, v{vS+4}')
    allred('v_add_f32', T, T + 1)
    e(f'v_cndmask_b32 v{vMl+1}, v{vMl+1}, v{T}, vcc')
    e(f's_add_u32 s{sSeg}, s{sSeg}, 1')
    e(f's_cmp_eq_u32 s{sSeg}, 3')
    e(f's_cselect_b32 s{sSeg}, 0, s{sSeg}')
    e(f'ds_read_b128 v[{vQ}:{vQ+3}], v1 offset:{L_Q}')
    e('s_waitcnt lgkmcnt(0)')
    e(f's_cmp_eq_u32 s{sN}, 20'); e('s_cbranch_scc0 L_h_done')
    stamp(14, 0)
    e(f'v_mov_b32 v{vP}, v{vP+2}'); e(f'v_mov_b32 v{vP+1}, v{vP+3}')
    e(f's_lshl_b32 s{sT0}, s2, 8'); e(f's_lshl_b32 s{sT1}, s{sW}, 6'); e(f's_add_u32 s{sT0}, s{sT0}, s{sT1}')
    e(f's_add_u32 s{sT0}, s{sT0}, {ST}')
    e(f'v_mov_b32 v{vMl+2}, s{sE}'); e(f'v_mov_b32 v{vMl+3}, s{sE}')
    e('s_mov_b64 exec, 15')
    e(f'buffer_store_dwordx4 v[{vMl}:{vMl+3}], v{vL16}, s[8:11], s{sT0} offen sc1')
    e('s_mov_b64 exec, -1')
    e('s_branch L_h_done')
    e('L_hsw:')
    for r in range(4): e(f'v_mov_b32_dpp v{vMask + r}, v{vMask + r} row_ror:8 {DPPF}')
    e(f's_cmp_eq_u32 s{sN}, 24'); e('s_cbranch_scc0 L_h_done')
    for r in range(4): e(f'v_mov_b32 v{vAccB + r}, v{vAcc + r}')
    for r in range(4): e(f'v_mov_b32 v{vAcc + r}, 0')
    e('s_branch L_h_done')
    e('L_h3:')
    e(f's_mov_b32 s4, s{sAk}'); e(f's_mov_b32 s5, s{sAk+1}')
    e(f's_sub_u32 s{sOff}, s{sWb}, 0x20000')
    e('s_branch L_h_done')
    e('L_h19:')
    e(f's_mov_b32 s4, s{sBv}'); e(f's_mov_b32 s5, s{sBv+1}')
    e(f's_add_u32 s{sOff}, s{sWb}, {0x180000 - 0x20000}')
    e('s_branch L_h_done')
    e('L_h23:')
    e(f's_mov_b32 s4, s{sAv}'); e(f's_mov_b32 s5, s{sAv+1}')
    e(f's_sub_u32 s{sOff}, s{sWb}, 0x20000')
    e('s_branch L_h_done')
    e('L_h39:')
    e('s_mov_b32 s6, 0')
    e('s_branch L_h_done')
    e('L_h30:')
    e(f'v_and_b32 v{T}, 3, v0')
    e(f'v_lshlrev_b32 v{vStA}, 6, v{T}')
    e(f'v_bfe_u32 v{T}, v0, 2, 1')
    e(f'v_lshl_add_u32 v{vStA}, v{T}, 10, v{vStA}')
    e(f'v_lshrrev_b32 v{T}, 3, v0')
    e(f'v_min_u32 v{T}, 2, v{T}')
    e(f'v_lshl_add_u32 v{vStA}, v{T}, 4, v{vStA}')
    e(f's_and_b32 s{sT0}, s2, 0xfb'); e(f's_lshl_b32 s{sT0}, s{sT0}, 8'); e(f's_add_u32 s{sT0}, s{sT0}, {ST}')
    e(f'v_add_u32 v{vStA}, s{sT0}, v{vStA}')
    e(f'buffer_load_dwordx4 v[{vSt}:{vSt+3}], v{vStA}, s[8:11], 0 offen sc1')
    e('s_branch L_h_done')
    e('L_h31:')
    e(f's_mov_b32 s{sSpin}, {SPIN}')
    e('L_h31s:')
    e(f'v_cmp_ne_u32 vcc, s{sE}, v{vSt+2}')
    e('s_cbranch_vccz L_h31k')
    e(f's_sub_u32 s{sSpin}, s{sSpin}, 1')
    e('s_cbranch_scc1 L_h31k')
    e(f'buffer_load_dwordx4 v[{vSt}:{vSt+3}], v{vStA}, s[8:11], 0 offen sc1')
    e('s_waitcnt vmcnt(0)')
    e('s_branch L_h31s')
    e('L_h31k:')
    e(f'v_mov_b32 v{T}, v{vSt}')
    rowred('v_max_f32', T)
    e(f'v_sub_f32 v{T}, v{vSt}, v{T}')
    e(f'v_exp_f32 v{T}, v{T}')
    e('s_nop 0')
    e(f'v_mul_f32 v{T+1}, v{T}, v{vSt+1}')
    rowred('v_add_f32', T + 1)
    e(f'v_rcp_f32 v{T+1}, v{T+1}')
    e('s_nop 0')
    e(f'v_mul_f32 v{T}, v{T}, v{T+1}')
    e(f's_lshl_b32 s{sT0}, s{sSide}, 2'); e(f's_add_u32 s{sT0}, s{sT0}, s{sW}')
    e(f's_add_u32 s{sT1}, s{sT0}, 8'); e(f's_add_u32 s{sT2}, s{sT0}, 16')
    e(f'v_readlane_b32 s{sFA0}, v{T}, s{sT0}')
    e(f'v_readlane_b32 s{sFA1}, v{T}, s{sT1}')
    e(f'v_readlane_b32 s{sFB}, v{T}, s{sT2}')
    e('v_cmp_gt_u32 vcc, 32, v0')
    e(f'v_mov_b32 v{T}, s{sFA0}')
    e(f'v_mov_b32 v{T+1}, s{sFA1}')
    e(f'v_cndmask_b32 v{vF}, v{T+1}, v{T}, vcc')
    e(f'v_mov_b32 v{T}, s{sFB}')
    e(f'v_add_f32 v{T}, v{T}, v{T}')
    for r in range(4): e(f'v_mul_f32 v{vAccB + r}, v{T}, v{vAccB + r}')
    e(f'v_lshrrev_b32 v{T}, 5, v0')
    e(f'v_bfe_u32 v{T+1}, v0, 3, 1')
    e(f'v_lshl_add_u32 v{T}, v{T}, 1, v{T+1}')
    e(f's_and_b32 s{sT0}, s2, 127')
    e(f'v_xor_b32 v{T+1}, s{sT0}, v{T}')
    e(f'v_lshlrev_b32 v{vOa}, 8, v{T+1}')
    e(f'v_lshl_add_u32 v{vOa}, v{T}, 15, v{vOa}')
    e(f'v_and_b32 v{T}, 7, v0')
    e(f'v_lshl_add_u32 v{vOa}, v{T}, 5, v{vOa}')
    e(f'v_and_b32 v{T}, 16, v0')
    e(f's_lshr_b32 s{sT0}, s2, 7'); e(f's_lshl_b32 s{sT0}, s{sT0}, 17'); e(f's_add_u32 s{sT0}, s{sT0}, {OP}')
    e(f'v_add3_u32 v{vOa}, v{vOa}, v{T}, s{sT0}')
    e(f's_lshl_b32 s{sT0}, s{sW}, 10')
    e(f'v_add_u32 v1, s{sT0}, v{vL16}')
    e('L_h_done:')
    e(f's_add_u32 s{sOff}, s{sOff}, 0x20000')
    e(f's_add_u32 s{sN}, s{sN}, 1')
    e(f's_cmp_gt_u32 s{sN}, 20')
    e('s_cbranch_scc1 L_vbody')
    e('s_branch L_kbody')
    e('L_sfin:')
    e('s_nop 1')
    for r in range(4): e(f'v_mul_f32 v{vAcc + r}, v{vF}, v{vAcc + r}')
    for r in range(4): e(f'v_permlane32_swap_b32 v{vAcc + r}, v{vAccB + r}')
    for r in range(4): e(f'v_add_f32 v{vAcc + r}, v{vAcc + r}, v{vAccB + r}')
    e(f'ds_write_b128 v1, v[{vAcc}:{vAcc+3}] offset:{L_O}')
    e(f's_cmp_lg_u32 s{sW}, 0')
    e('s_waitcnt lgkmcnt(0)')
    e('s_barrier')
    e('s_cbranch_scc1 L_end')
    for w in range(1, 4):
        r = vR2 + 4 * (w - 1)
        e(f'ds_read_b128 v[{r}:{r+3}], v1 offset:{L_O + w * 1024}')
    e('s_waitcnt lgkmcnt(1)')
    for r in range(4): e(f'v_add_f32 v{vAcc + r}, v{vAcc + r}, v{vR2 + r}')
    e('s_waitcnt lgkmcnt(0)')
    for r in range(4): e(f'v_add_f32 v{vR2 + 4 + r}, v{vR2 + 4 + r}, v{vR2 + 8 + r}')
    for r in range(4): e(f'v_add_f32 v{vAcc + r}, v{vAcc + r}, v{vR2 + 4 + r}')
    for r in range(4): tag(vAcc + r, vTg)
    e(f'buffer_store_dwordx4 v[{vAcc}:{vAcc+3}], v{vOa}, s[8:11], 0 offen {stp}')
    stamp(4)
    flush_stamps([0, 1, 2, 3, 4, 14])
    e('s_endpgm')

    def tlbpf():
        e(f's_lshl_b32 s{sT0}, s{sB}, 5'); e(f's_add_u32 s{sT0}, s{sT0}, s{sH}'); e(f's_lshl_b32 s{sT0}, s{sT0}, 21')
        e(f's_load_dword s77, s[{sAk}:{sAk+1}], s{sT0}')
        e(f's_load_dword s78, s[{sBv}:{sBv+1}], s{sT0}')
        e(f's_load_dword s79, s[{sAv}:{sAv+1}], s{sT0}')
        e(f's_load_dword s60, s[{sOut}:{sOut+1}], 0')
    e('L_service:')
    sU = sB; sBeta = sSide
    sIt, sDst = 53, 54
    vG = 2; vC = 3; vA = 4; vA2 = 5; vL = 6; vZ = 7
    vXA = 8; vWt = 16; vSel = 48; vOpA = 56; vD = 64; vR = 72
    vA3 = 104; vTg = 105; vX3 = 108; vX4 = 109; vOut = 110
    e(f's_sub_u32 s{sW}, s{sW}, 4')
    e(f'v_lshrrev_b32 v{vG}, 4, v0')
    e(f'v_and_b32 v{vC}, 15, v0')
    e(f'v_mov_b32 v{vZ}, 0')
    e(f'ds_write_b32 v{vZ}, v{vZ} offset:{L_CNT}')
    if rc:
        e(f'v_mov_b32 v{vA}, 1')
        e(f'ds_write_b32 v{vZ}, v{vA} offset:{L_LVL}')
    e(f'v_lshlrev_b32 v{vA}, 16, v{vG}')
    e(f'v_lshl_add_u32 v{vA}, v{vC}, 4, v{vA}')
    e(f'v_lshrrev_b32 v{vA2}, 3, v{vC}')
    e(f'v_lshlrev_b32 v{vA2}, 10, v{vA2}')
    e(f'v_lshl_add_u32 v{vA2}, v{vG}, 4, v{vA2}')
    e(f's_lshl_b32 s{sT0}, s{sU}, 7')
    e(f's_lshl_b32 s{sT1}, s{sW}, 5')
    e(f's_add_u32 s{sT0}, s{sT0}, s{sT1}')
    e(f's_lshl_b32 s{sT1}, s{sT0}, 1')
    e(f's_lshl_b32 s{sT0}, s{sT0}, 13')
    e(f's_lshl_b32 s{sT2}, s{sH}, 8')
    e(f's_add_u32 s{sT0}, s{sT0}, s{sT2}')
    e('s_mov_b32 s6, 0x400000')
    e('s_mov_b32 s14, 4096')
    e('s_mov_b32 s15, 0x20000')
    e(f's_cmp_eq_u32 s{sBeta}, 0')
    e('s_waitcnt lgkmcnt(0)')
    e(f's_cselect_b64 s[4:5], s[{sAwq}:{sAwq+1}], s[{sBwq}:{sBwq+1}]')
    e(f's_cselect_b64 s[12:13], s[{sAx}:{sAx+1}], s[{sBx}:{sBx+1}]')
    for m in range(2):
        e(f'buffer_load_dwordx4 v[{vXA + 4*m}:{vXA + 4*m + 3}], v{vA2}, s[12:15], s{sT1} offen offset:{2048*m}')
    vWo = 112
    def wo_addr(va):
        e(f'v_lshlrev_b32 v{va}, 13, v{vG}')
        e(f'v_lshl_add_u32 v{va}, v{vC}, 4, v{va}')
        e(f's_lshl_b32 s{sT0}, s{sH}, 17')
        e(f's_lshl_b32 s{sT1}, s{sW}, 15')
        e(f's_add_u32 s{sT0}, s{sT0}, s{sT1}')
        e(f's_lshl_b32 s{sT1}, s{sU}, 8')
        e(f's_add_u32 s{sT0}, s{sT0}, s{sT1}')
        e(f's_add_u32 s{sT1}, s{sT0}, 4096')
        e(f's_cmp_eq_u32 s{sBeta}, 0')
        e(f's_cselect_b64 s[4:5], s[{sAwo}:{sAwo+1}], s[{sBwo}:{sBwo+1}]')
    for i in range(8):
        if wfirst and i >= DW: e(f's_waitcnt vmcnt({DW-1})')
        e(f'buffer_load_dwordx4 v[{vWt + 4*i}:{vWt + 4*i + 3}], v{vA}, s[4:7], s{sT0} offen {pol}')
        if i < 7: e(f's_add_u32 s{sT0}, s{sT0}, 8192')
        if i == min(DW, 8) - 1: load_epoch()
    if wfirst == 2:
        wo_addr(vR)
        for i in range(8):
            if 8 + i >= DW: e(f's_waitcnt vmcnt({DW-1})')
            e(f'buffer_load_dwordx4 v[{vWo + 4*i}:{vWo + 4*i + 3}], v{vR}, s[4:7], s{sT0 if i < 4 else sT1} offen offset:{(i & 3) * 1024} {pol}')
    e('s_barrier')
    e(f's_mov_b32 s8, s{sWs}'); e(f's_mov_b32 s9, s{sWs+1}')
    e(f'v_lshlrev_b32 v{vL}, 4, v0')
    e(f'v_mov_b32 v{vX4}, 0'); e(f'v_mov_b32 v{vOut}, 0')
    if rc:
        assert wfirst != 2 and len(cks) <= 16
        e(f's_lshl_b32 s{sT0}, s{sW}, 3'); e(f's_add_u32 s{sT0}, s{sT0}, s{sJ}')
        e(f's_cmp_ge_u32 s{sT0}, {len(cks)}'); e('s_cbranch_scc1 L_norc')
        e(f's_lshl_b32 s{sT0}, s{sT0}, 5'); e(f's_add_u32 s{sT0}, s{sT0}, s{sH}'); e(f's_lshl_b32 s{sT0}, s{sT0}, 8'); e(f's_add_u32 s{sT0}, s{sT0}, {RC}')
        e('s_mov_b64 exec, 0xffff')
        e(f'v_lshlrev_b32 v{vR}, 2, v0')
        e(f'buffer_store_dword v{vZ}, v{vR}, s[8:11], s{sT0} offen sc1')
        e('s_mov_b64 exec, -1')
        e('L_norc:')
    e(f'v_and_b32 v{vR}, 7, v0')
    e(f'v_and_b32 v{vR+1}, 1, v0')
    e(f'v_lshlrev_b32 v{vR+1}, 4, v{vR+1}')
    e(f'v_mov_b32 v{vR+2}, 0xffff')
    e(f'v_lshlrev_b32 v{vR+2}, v{vR+1}, v{vR+2}')
    e(f'v_lshrrev_b32 v{vR}, 1, v{vR}')
    e(f'v_mov_b32 v{vR+4}, 0x0c0c0c0c')
    e(f's_mov_b32 s{sT0}, 0x01000100')
    e(f's_mov_b32 s{sT1}, 0x03020302')
    for r in range(4):
        e(f'v_cmp_eq_u32 vcc, {r}, v{vR}')
        e('s_nop 1')
        e(f'v_cndmask_b32 v{vR+3}, 0, v{vR+2}, vcc')
        e(f'v_bfi_b32 v{vSel + r}, v{vR+3}, s{sT0}, v{vR+4}')
        e(f'v_bfi_b32 v{vSel + 4 + r}, v{vR+3}, s{sT1}, v{vR+4}')
    e(f's_mov_b32 s{sIt}, 4')
    e(f's_lshl_b32 s{sT0}, s{sW}, 11')
    e(f'v_add_u32 v{vA}, s{sT0}, v{vL}')
    e(f'v_lshrrev_b32 v{vR}, 5, v0')
    e(f'v_bfe_u32 v{vR+1}, v0, 3, 1')
    e(f'v_lshl_add_u32 v{vR}, v{vR}, 1, v{vR+1}')
    e(f's_lshl_b32 s{sT0}, s2, 1'); e(f's_and_b32 s{sT0}, s{sT0}, 127')
    e(f'v_xor_b32 v{vR+1}, s{sT0}, v{vR}')
    e(f'v_lshlrev_b32 v{vA2}, 8, v{vR+1}')
    e(f'v_lshl_add_u32 v{vA2}, v{vR}, 15, v{vA2}')
    e(f'v_and_b32 v{vR}, 7, v0')
    e(f'v_lshl_add_u32 v{vA2}, v{vR}, 5, v{vA2}')
    e(f'v_and_b32 v{vR}, 16, v0')
    e(f'v_add_u32 v{vA2}, v{vA2}, v{vR}')
    e(f'v_xor_b32 v{vA3}, 0x100, v{vA2}')
    e(f's_lshr_b32 s{sDst}, s2, 6'); e(f's_lshl_b32 s{sDst}, s{sDst}, 17')
    if QP: e(f's_add_u32 s{sDst}, s{sDst}, {QP}')
    e('s_waitcnt lgkmcnt(0)')
    make_tag(vTg)
    e(f's_waitcnt vmcnt({8 if wfirst == 2 else 0})')
    stamp(5, 0)
    e('L_gemv:')
    seq = [(i, m) for i in range(8) for m in range(2)]
    def perms(k):
        i, m = seq[k]
        a = vOpA + 4 * (k & 1); x = vXA + 4 * m + (i >> 1)
        for r in range(4):
            e(f'v_perm_b32 v{a + r}, v{x}, v{x}, v{vSel + 4 * (i & 1) + r}')
    perms(0)
    for k, (i, m) in enumerate(seq):
        if k < 15: perms(k + 1)
        else: e('s_nop 0')
        a = vOpA + 4 * (k & 1); d = vD + 4 * m; w = vWt + 4 * i
        c = f'v[{d}:{d+3}]' if i > 0 else '0'
        e(f'v_mfma_f32_16x16x32_bf16 v[{d}:{d+3}], v[{a}:{a+3}], v[{w}:{w+3}], {c}')
    e(f'v_mov_b32 v{vR}, 1')
    e('s_nop 5')
    e(f'ds_write_b128 v{vA}, v[{vD}:{vD+3}] offset:{L_RED}')
    e(f'ds_write_b128 v{vA}, v[{vD+4}:{vD+7}] offset:{L_RED + 1024}')
    e('s_mov_b64 exec, 1')
    e(f'ds_add_u32 v{vZ}, v{vR} offset:{L_CNT}')
    e('s_mov_b64 exec, -1')
    e(f's_cmp_lg_u32 s{sW}, 0')
    e('s_cbranch_scc1 L_notleader')
    e(f's_mov_b32 s{sSpin}, {SPIN * 8}')
    e('L_cspin:')
    e(f'ds_read_b32 v{vR}, v{vZ} offset:{L_CNT}')
    e(f's_sub_u32 s{sSpin}, s{sSpin}, 1')
    e('s_cbranch_scc1 L_cout')
    e('s_waitcnt lgkmcnt(0)')
    e(f'v_cmp_eq_u32 vcc, s{sIt}, v{vR}')
    e('s_cbranch_vccz L_cspin')
    e('L_cout:')
    for w in range(1, 4):
        for m in range(2):
            r = vR + ((w - 1) * 2 + m) * 4
            e(f'ds_read_b128 v[{r}:{r+3}], v{vL} offset:{L_RED + w * 2048 + m * 1024}')
    e('s_waitcnt lgkmcnt(4)')
    for r in range(8): e(f'v_add_f32 v{vD + r}, v{vD + r}, v{vR + r}')
    e('s_waitcnt lgkmcnt(0)')
    for r in range(8): e(f'v_add_f32 v{vR + 8 + r}, v{vR + 8 + r}, v{vR + 16 + r}')
    for r in range(8): e(f'v_add_f32 v{vD + r}, v{vD + r}, v{vR + 8 + r}')
    for r in range(8): tag(vD + r, vTg)
    e(f'buffer_store_dwordx4 v[{vD}:{vD+3}], v{vA2}, s[8:11], s{sDst} offen {stp}')
    e(f'buffer_store_dwordx4 v[{vD+4}:{vD+7}], v{vA3}, s[8:11], s{sDst} offen {stp}')
    e(f's_cmp_eq_u32 s{sIt}, 8')
    e('s_cbranch_scc1 L_x4')
    stamp(6)
    e(f'v_bfe_u32 v{vR}, v0, 4, 1')
    e(f's_and_b32 s{sT0}, s{sB}, 1'); e(f's_lshl_b32 s{sT0}, s{sT0}, 1')
    e(f'v_or_b32 v{vR}, s{sT0}, v{vR}')
    e(f'v_lshrrev_b32 v{vR+1}, 5, v0')
    e(f'v_lshlrev_b32 v{vR+1}, 3, v{vR+1}')
    e(f's_and_b32 s{sT0}, s{sH}, 7'); e(f's_lshl_b32 s{sT0}, s{sT0}, 4'); e(f's_lshr_b32 s{sT1}, s{sB}, 1'); e(f's_or_b32 s{sT0}, s{sT0}, s{sT1}')
    e(f'v_or_b32 v{vR+1}, s{sT0}, v{vR+1}')
    e(f'v_xor_b32 v{vR+1}, v{vR+1}, v{vR}')
    e(f'v_lshlrev_b32 v{vR+1}, 8, v{vR+1}')
    e(f'v_lshl_add_u32 v{vR+1}, v{vR}, 15, v{vR+1}')
    e(f'v_lshl_add_u32 v{vR}, v{vC}, 4, v{vR+1}')
    e(f'v_xor_b32 v{vR+1}, 0x200, v{vR}')
    e(f's_mov_b32 s{sSpin}, {SPIN}')
    e('L_x1spin:')
    for r in range(4):
        d = vR + 4 + 4 * r
        e(f'buffer_load_dwordx4 v[{d}:{d+3}], v{vR + (r & 1)}, s[8:11], s{sDst} offen offset:{(r >> 1) * 1024} sc1')
    e(f's_sub_u32 s{sSpin}, s{sSpin}, 1')
    e('s_cbranch_scc1 L_x1out')
    e('s_waitcnt vmcnt(0)')
    check(list(range(vR + 4, vR + 20)), vR + 2, vTg)
    e('s_cbranch_vccnz L_x1spin')
    e('L_x1out:')
    e('s_waitcnt vmcnt(0)')
    stamp(7)
    untag(range(vR + 4, vR + 20))
    e(f'v_lshlrev_b32 v{vR+1}, 3, v0')
    for r in range(4):
        e(f'v_add_f32 v{vR + 4 + r}, v{vR + 4 + r}, v{vR + 8 + r}')
        e(f'v_add_f32 v{vR + 12 + r}, v{vR + 12 + r}, v{vR + 16 + r}')
    for r in range(4): e(f'v_add_f32 v{vR + 4 + r}, v{vR + 4 + r}, v{vR + 12 + r}')
    e(f'v_cvt_pk_bf16_f32 v{vR+4}, v{vR+4}, v{vR+5}')
    e(f'v_cvt_pk_bf16_f32 v{vR+5}, v{vR+6}, v{vR+7}')
    e(f'ds_write_b64 v{vR+1}, v[{vR+4}:{vR+5}] offset:{L_Q}')
    e('s_waitcnt lgkmcnt(0)')
    stamp(8)
    e('L_notleader:')
    e(f's_cmp_eq_u32 s{sIt}, 8')
    e('s_cbranch_scc1 L_end')
    if tlb:
        e(f's_cmp_lg_u32 s{sW}, 1'); e('s_cbranch_scc1 L_notlb')
        tlbpf()
        e('s_waitcnt lgkmcnt(0)')
        e('L_notlb:')
    e('s_barrier')
    if wfirst == 2:
        e('s_waitcnt vmcnt(0)')
        for r in range(32): e(f'v_mov_b32 v{vWt + r}, v{vWo + r}')
    else:
        wo_addr(vR)
        for i in range(8):
            e(f'buffer_load_dwordx4 v[{vWt + 4*i}:{vWt + 4*i + 3}], v{vR}, s[4:7], s{sT0 if i < 4 else sT1} offen offset:{(i & 3) * 1024} {pol}')
            e('s_waitcnt vmcnt(0)')
    sX3, sX4a, sX4b, sOo = 64, 66, 67, 68
    e(f'v_and_b32 v{vR}, 1, v0')
    e(f'v_lshlrev_b32 v{vR}, 2, v{vR}')
    e(f'v_bfe_u32 v{vR+1}, v0, 2, 1')
    e(f'v_lshl_add_u32 v{vR}, v{vR+1}, 1, v{vR}')
    e(f'v_bfe_u32 v{vR+1}, v0, 3, 1')
    e(f'v_add_u32 v{vR}, v{vR}, v{vR+1}')
    e(f's_lshl_b32 s{sT0}, s{sBeta}, 1'); e(f's_lshr_b32 s{sT1}, s{sW}, 1'); e(f's_add_u32 s{sT0}, s{sT0}, s{sT1}')
    e(f'v_xor_b32 v{vR}, s{sT0}, v{vR}')
    e(f'v_lshlrev_b32 v{vX3}, 8, v{vR}')
    e(f'v_lshl_add_u32 v{vX3}, v{vG}, 5, v{vX3}')
    e(f'v_bfe_u32 v{vR+1}, v0, 1, 1')
    e(f'v_lshl_add_u32 v{vX3}, v{vR+1}, 4, v{vX3}')
    e(f's_lshl_b32 s{sX3}, s{sT0}, 15')
    e(f's_and_b32 s{sT1}, s{sW}, 1'); e(f's_lshl_b32 s{sT1}, s{sT1}, 7'); e(f's_add_u32 s{sX3}, s{sX3}, s{sT1}')
    e(f's_and_b32 s{sT1}, s{sH}, 15'); e(f's_lshl_b32 s{sT1}, s{sT1}, 11'); e(f's_add_u32 s{sX3}, s{sX3}, s{sT1}')
    e(f's_lshr_b32 s{sT1}, s{sH}, 4'); e(f's_lshl_b32 s{sT1}, s{sT1}, 17'); e(f's_add_u32 s{sX3}, s{sX3}, s{sT1}')
    e(f's_add_u32 s{sX3}, s{sX3}, {OP}')
    e(f'v_bfe_u32 v{vR}, v0, 2, 3')
    e(f'v_lshlrev_b32 v{vX4}, 12, v{vR}')
    e(f'v_lshrrev_b32 v{vR}, 5, v0')
    e(f'v_lshl_add_u32 v{vX4}, v{vR}, 17, v{vX4}')
    e(f'v_and_b32 v{vR}, 3, v0')
    e(f'v_lshl_add_u32 v{vX4}, v{vR}, 4, v{vX4}')
    e(f'v_lshlrev_b32 v{vOut}, 3, v{vR}')
    e(f's_bfe_u32 s{sT0}, s{sH}, 0x20002')
    e(f's_lshl_b32 s{sT1}, s{sJ}, 1'); e(f's_lshr_b32 s{sT2}, s{sH}, 4'); e(f's_or_b32 s{sT1}, s{sT1}, s{sT2}')
    e(f's_xor_b32 s{sT1}, s{sT1}, s{sT0}'); e(f's_lshl_b32 s{sT1}, s{sT1}, 8')
    e(f's_lshl_b32 s{sT0}, s{sT0}, 15'); e(f's_add_u32 s{sT0}, s{sT0}, s{sT1}')
    e(f's_and_b32 s{sT1}, s{sH}, 3'); e(f's_lshl_b32 s{sT1}, s{sT1}, 6'); e(f's_add_u32 s{sT0}, s{sT0}, s{sT1}')
    e(f's_add_u32 s{sX4a}, s{sT0}, {YP}')
    e(f's_add_u32 s{sX4b}, s{sX4a}, 0x40000')
    e(f's_lshr_b32 s{sT0}, s{sH}, 3'); e(f's_lshl_b32 s{sT0}, s{sT0}, 11')
    e(f's_lshl_b32 s{sT1}, s{sJ}, 8'); e(f's_add_u32 s{sT0}, s{sT0}, s{sT1}')
    e(f's_and_b32 s{sT1}, s{sH}, 7'); e(f's_lshl_b32 s{sT1}, s{sT1}, 5'); e(f's_add_u32 s{sOo}, s{sT0}, s{sT1}')
    e(f's_mov_b32 s12, s{sOut}'); e(f's_mov_b32 s13, s{sOut+1}'); e('s_mov_b32 s14, 8192')
    e(f's_mov_b32 s{sIt}, 8')
    e(f's_add_u32 s{sDst}, s{sDst}, {YP - QP}')
    e(f's_mov_b32 s{sSpin}, {SPIN}')
    if pretouch:
        e(f'buffer_load_dwordx4 v[{vR}:{vR+3}], v{vX3}, s[8:11], s{sX3} offen {ldp}')
        e(f's_cmp_lg_u32 s{sW}, 0'); e('s_cbranch_scc1 L_nopt')
        for k in range(2):
            e(f'buffer_load_dwordx4 v[{vR + 4 + 4*k}:{vR + 4*k + 7}], v{vX4}, s[8:11], s{sX4a + k} offen {ldp}')
        e('L_nopt:')
        e('s_waitcnt vmcnt(0)')
    e('s_barrier')
    stamp(9, 0)
    e('s_branch L_x3go')
    e('L_x3spin:')
    if slp3: e(f's_sleep {slp3}')
    e('L_x3go:')
    e(f'buffer_load_dwordx4 v[{vR}:{vR+3}], v{vX3}, s[8:11], s{sX3} offen {ldp}')
    e(f's_sub_u32 s{sSpin}, s{sSpin}, 1')
    e('s_cbranch_scc1 L_x3out')
    e('s_waitcnt vmcnt(0)')
    check(list(range(vR, vR + 4)), vR + 4, vTg)
    e('s_cbranch_vccnz L_x3spin')
    e('L_x3out:')
    e('s_waitcnt vmcnt(0)')
    stamp(10, 0)
    untag(range(vR, vR + 4))
    for r in range(4): e(f'v_add_f32_dpp v{vR+r}, v{vR+r}, v{vR+r} quad_perm:[1,0,3,2] {DPPF}')
    e(f'v_cvt_pk_bf16_f32 v{vR}, v{vR}, v{vR+1}')
    e(f'v_cvt_pk_bf16_f32 v{vR+1}, v{vR+2}, v{vR+3}')
    e('s_nop 1')
    for bb in range(2):
        for m in range(2):
            for hh in range(2):
                for r in range(2):
                    bm = '0x3' if bb == 0 else '0xc'
                    e(f'v_mov_b32_dpp v{vXA + 4*m + 2*hh + r}, v{vR + r} row_newbcast:{bb*8 + m*4 + hh*2} row_mask:0xf bank_mask:{bm}')
    e('s_branch L_gemv')
    e('L_x4:')
    stamp(11)
    e(f's_mov_b32 s{sSpin}, {SPIN}')
    e('L_x4spin:')
    if slp4: e(f's_sleep {slp4}')
    for k in range(2):
        e(f'buffer_load_dwordx4 v[{vR + 4*k}:{vR + 4*k + 3}], v{vX4}, s[8:11], s{sX4a + k} offen {ldp}')
    e(f's_sub_u32 s{sSpin}, s{sSpin}, 1')
    e('s_cbranch_scc1 L_x4out')
    e('s_waitcnt vmcnt(0)')
    check(list(range(vR, vR + 8)), vR + 8, vTg)
    e('s_cbranch_vccnz L_x4spin')
    e('L_x4out:')
    e('s_waitcnt vmcnt(0)')
    untag(range(vR, vR + 8))
    for r in range(4): e(f'v_add_f32 v{vR + r}, v{vR + r}, v{vR + 4 + r}')
    for ctl in ('row_ror:4', 'row_ror:8'):
        for r in range(4): e(f'v_add_f32_dpp v{vR+r}, v{vR+r}, v{vR+r} {ctl} {DPPF}')
    for sw in ('v_permlane16_swap_b32', 'v_permlane32_swap_b32'):
        for r in range(4): e(f'v_mov_b32 v{vR+4+r}, v{vR+r}')
        for r in range(4): e(f'{sw} v{vR+4+r}, v{vR+r}')
        for r in range(4): e(f'v_add_f32 v{vR+r}, v{vR+r}, v{vR+4+r}')
    e(f'v_cvt_pk_bf16_f32 v{vR}, v{vR}, v{vR+1}')
    e(f'v_cvt_pk_bf16_f32 v{vR+1}, v{vR+2}, v{vR+3}')
    e('s_mov_b64 exec, 15')
    e(f'buffer_store_dwordx2 v[{vR}:{vR+1}], v{vOut}, s[12:15], s{sOo} offen {outp}')
    stamp(12)
    flush_stamps([5, 6, 7, 8, 9, 10, 11, 12])
    e('s_cmp_lg_u32 s2, 0')
    e('s_cbranch_scc1 L_end')
    e('s_mov_b64 exec, 1')
    e(f'v_mov_b32 v{vR+2}, s{sE}')
    e(f's_mov_b32 s{sT0}, {EP}')
    e(f'buffer_store_dword v{vR+2}, off, s[8:11], s{sT0}')
    if hdiag:
        e('s_memrealtime s[82:83]'); e('s_waitcnt lgkmcnt(0)'); e('s_sub_u32 s82, s82, s80')
        e(f's_mov_b32 s12, s{sDbg}'); e(f's_mov_b32 s13, s{sDbg+1}'); e('s_mov_b32 s14, 256')
        e(f'v_mov_b32 v{vR+3}, s82')
        e(f'buffer_store_dword v{vR+3}, off, s[12:15], 0')
    e('L_end:')
    e('s_endpgm')
    e('.section .rodata,"a"')
    e('.p2align 6')
    e(f'.amdhsa_kernel {NAME}_kernel')
    e('  .amdhsa_next_free_vgpr 256')
    e('  .amdhsa_next_free_sgpr 96')
    e('  .amdhsa_accum_offset 256')
    e('  .amdhsa_group_segment_fixed_size 0')
    e('  .amdhsa_kernarg_size 104')
    e('  .amdhsa_user_sgpr_count 2')
    e('  .amdhsa_user_sgpr_kernarg_segment_ptr 1')
    e('  .amdhsa_system_sgpr_workgroup_id_x 1')
    e('  .amdhsa_float_denorm_mode_32 3')
    e('.end_amdhsa_kernel')
    return '\n'.join(g.L) + '\n'

if __name__ == '__main__':
    import ast
    for spec in sys.argv[1:]:
        name, _, opts = spec.partition(':')
        kw = {}
        for o in filter(None, opts.split(',')):
            k_, v_ = o.split('=')
            v_ = v_.replace('/', ',')
            try: kw[k_] = ast.literal_eval(v_)
            except Exception: kw[k_] = v_
        open(name, 'w').write(gen(**kw))
```

```python
NAME = 'concat_heads__gqa_block_cached__sliding_block_cached__decode'

def hdr(e, name):
    e('.text'); e(f'.globl {name}'); e('.p2align 8'); e(f'.type {name},@function'); e(f'{name}:')
def kd(e, name, nv, ns=64):
    acc = (nv + 3) // 4 * 4
    e(f'.amdhsa_kernel {name}')
    e(f'  .amdhsa_next_free_vgpr {nv}')
    e(f'  .amdhsa_next_free_sgpr {ns}')
    e(f'  .amdhsa_accum_offset {min(acc,256)}')
    e('  .amdhsa_group_segment_fixed_size 0')
    e('  .amdhsa_kernarg_size 104')
    e('  .amdhsa_user_sgpr_count 2')
    e('  .amdhsa_user_sgpr_kernarg_segment_ptr 1')
    e('  .amdhsa_system_sgpr_workgroup_id_x 1')
    e('.end_amdhsa_kernel')

def gen(W=4, NB=4, R=2, pol='nt', lds=90000, mode='near'):
    L = []; e = L.append
    e(f'; @launch kernel=probe_kernel grid=(128,1,1) block=(64,1,1) lds=0')
    e(f'; @launch kernel=main_kernel grid=(256,1,1) block=({W*64},1,1) lds={lds}')
    e('.amdgcn_target "amdgcn-amd-amdhsa--gfx950"')
    hdr(e, 'probe_kernel')
    e('s_cmp_ge_u32 s2, 128'); e('s_cbranch_scc1 L_pend')
    e('s_load_dwordx4 s[24:27], s[0:1], 8')
    e('s_load_dwordx4 s[28:31], s[0:1], 48')
    e('s_load_dwordx2 s[8:9], s[0:1], 96')
    e('s_getreg_b32 s20, hwreg(HW_REG_XCC_ID)')
    e('s_and_b32 s20, s20, 7'); e('s_lshr_b32 s20, s20, 2')
    e('s_waitcnt lgkmcnt(0)')
    e('s_mov_b32 s6, 0x10000000'); e('s_mov_b32 s7, 0x20000')
    e('s_mov_b32 s10, 0x1000000'); e('s_mov_b32 s11, 0x20000')
    e('v_mov_b32 v1, 0'); e('s_mov_b64 exec, 1')
    e('s_mov_b32 s33, 0')
    for t in range(4):
        e(f's_mov_b32 s4, s{24+2*t}'); e(f's_mov_b32 s5, s{25+2*t}')
        e('s_lshl_b32 s12, s2, 21')
        e('buffer_load_dword v2, v1, s[4:7], s12 offen nt'); e('s_waitcnt vmcnt(0)')
        e('s_add_u32 s12, s12, 0x10000')
        e('buffer_load_dword v2, v1, s[4:7], s12 offen nt'); e('s_waitcnt vmcnt(0)')
        e('s_add_u32 s12, s12, 0x200')
        e('s_mov_b32 s32, 0'); e('s_mov_b32 s14, 0')
        e(f'L_p{t}:')
        for par in range(2):
            e('s_memtime s[16:17]'); e('s_waitcnt lgkmcnt(0)')
            e('buffer_load_dword v2, v1, s[4:7], s12 offen nt'); e('s_waitcnt vmcnt(0)')
            e('s_memtime s[18:19]'); e('s_waitcnt lgkmcnt(0)')
            e('s_sub_u32 s18, s18, s16')
            e(f's_mov_b32 s{34+par}, s18')
            e('s_add_u32 s12, s12, 8192')
        e('s_cmp_gt_u32 s34, s35'); e('s_cselect_b32 s18, 1, 0'); e('s_add_u32 s32, s32, s18')
        e('s_add_u32 s14, s14, 1'); e('s_cmp_lt_u32 s14, 9'); e(f's_cbranch_scc1 L_p{t}')
        e('s_cmp_gt_u32 s32, 4'); e('s_cselect_b32 s18, 1, 0'); e('s_xor_b32 s18, s18, s20')
        e(f's_lshl_b32 s18, s18, {t}'); e('s_or_b32 s33, s33, s18')
        e(f's_lshl_b32 s32, s32, {8+4*t}'); e('s_or_b32 s33, s33, s32')
    e('v_mov_b32 v3, s33'); e('s_lshl_b32 s13, s2, 2')
    e('buffer_store_dword v3, v1, s[8:11], s13 offen'); e('s_waitcnt vmcnt(0)')
    e('L_pend:'); e('s_endpgm')

    hdr(e, 'main_kernel')
    assert R * NB in (4, 8)
    IB = R * NB * 1024
    e('s_cmp_ge_u32 s2, 256'); e('s_cbranch_scc1 L_end')
    e('s_memrealtime s[40:41]')
    e('s_load_dwordx4 s[24:27], s[0:1], 8')
    e('s_load_dwordx4 s[28:31], s[0:1], 48')
    e('s_load_dwordx4 s[44:47], s[0:1], 88')
    e('v_lshrrev_b32 v1, 6, v0'); e('v_and_b32 v2, 63, v0'); e('s_nop 0')
    e('v_readfirstlane_b32 s12, v1'); e('v_lshlrev_b32 v2, 4, v2'); e('v_add_u32 v6, 4096, v2')
    e('s_lshr_b32 s13, s2, 3'); e('s_lshl_b32 s13, s13, 2'); e('s_and_b32 s14, s2, 3'); e('s_add_u32 s13, s13, s14')
    e('s_lshr_b32 s14, s2, 2'); e('s_and_b32 s14, s14, 1')
    e('s_lshl_b32 s15, s13, 2')
    e('s_waitcnt lgkmcnt(0)')
    e('s_load_dword s33, s[46:47], s15')
    e('s_mov_b32 s4, s24'); e('s_mov_b32 s5, s25'); e('s_mov_b32 s6, 0x10000000'); e('s_mov_b32 s7, 0x20000')
    e('s_mov_b32 s8, s26'); e('s_mov_b32 s9, s27'); e('s_mov_b32 s10, 0x10000000'); e('s_mov_b32 s11, 0x20000')
    e('s_waitcnt lgkmcnt(0)')
    e('s_lshl_b32 s16, s13, 21')
    if IB == 8192:
        e('s_lshl_b32 s17, s12, 14')
    else:
        e('s_lshr_b32 s17, s12, 1'); e('s_lshl_b32 s17, s17, 14'); e('s_and_b32 s18, s12, 1'); e('s_lshl_b32 s18, s18, 12'); e('s_add_u32 s17, s17, s18')
    e('s_add_u32 s16, s16, s17')
    for t in range(4):
        if mode in ('near', 'far'):
            e(f's_lshr_b32 s18, s33, {t}'); e('s_and_b32 s18, s18, 1'); e('s_xor_b32 s18, s18, s14')
            if mode == 'far': e('s_xor_b32 s18, s18, 1')
        elif mode == 'mixed':
            e(f's_lshr_b32 s18, s33, {t}'); e('s_and_b32 s18, s18, 1'); e('s_xor_b32 s18, s18, s14')
            if t & 1: e('s_xor_b32 s18, s18, 1')
        elif mode == 'blind':
            e('s_mov_b32 s18, s14')
        e('s_lshl_b32 s18, s18, 13')
        e(f's_add_u32 s{60+t}, s16, s18')
        if t >= 2: e(f's_add_u32 s{60+t}, s{60+t}, {6144*256}')
    stride = W * IB * 2
    nA = (1 << 21) // stride; nB = (1 << 19) // stride
    e('s_mov_b32 s21, 0'); e('v_mov_b32 v3, 0'); e('v_mov_b32 v5, 0')
    base = 8
    def loads(r, which):
        sp = 's[4:7]' if which == 0 else 's[8:11]'
        so = f's{60+which}'
        if r > 0:
            e(f's_add_u32 s23, {so}, {r*NB*1024}'); so = 's23'
        for i in range(NB):
            v = base + ((r * 2 + which) * NB + i) * 4
            vo = 'v2' if i < 4 else 'v6'
            e(f'buffer_load_dwordx4 v[{v}:{v+3}], {vo}, {sp}, {so} offen offset:{(i%4)*1024} {pol}')
    def consume(r, which):
        for i in range(NB):
            v = base + ((r * 2 + which) * NB + i) * 4
            e(f'v_xor_b32 v3, v3, v{v}')
    for r in range(R):
        loads(r, 0); loads(r, 1)
    e('s_memrealtime s[42:43]')
    cnt = (2 * R - 1) * NB
    e('L_loop:')
    e(f's_add_u32 s60, s60, {stride}'); e(f's_add_u32 s61, s61, {stride}')
    e('s_add_u32 s21, s21, 1')
    e(f's_cmp_eq_u32 s21, {nA+nB}'); e('s_cbranch_scc1 L_drain')
    e(f's_cmp_eq_u32 s21, {nA}')
    e('s_cselect_b32 s60, s62, s60'); e('s_cselect_b32 s61, s63, s61')
    e('s_cselect_b64 s[4:5], s[28:29], s[4:5]'); e('s_cselect_b64 s[8:9], s[30:31], s[8:9]')
    for r in range(R):
        e(f's_waitcnt vmcnt({cnt})'); consume(r, 0); loads(r, 0)
        e(f's_waitcnt vmcnt({cnt})'); consume(r, 1); loads(r, 1)
    e('s_branch L_loop')
    e('L_drain:')
    e('s_memrealtime s[54:55]')
    for r in range(R):
        e(f's_waitcnt vmcnt({(2*R-1-2*r)*NB})'); consume(r, 0)
        e(f's_waitcnt vmcnt({(2*R-2-2*r)*NB})'); consume(r, 1)
    e('s_barrier')
    e('s_memrealtime s[56:57]')
    e('s_getreg_b32 s50, hwreg(HW_REG_XCC_ID)'); e('s_getreg_b32 s51, hwreg(HW_REG_HW_ID)')
    e('s_cmp_lg_u32 s12, 0'); e('s_cbranch_scc1 L_end')
    e('s_waitcnt lgkmcnt(0)')
    e('s_lshl_b32 s48, s2, 6'); e('s_add_u32 s48, s48, 0x40000000')
    e('s_add_u32 s46, s46, s48'); e('s_addc_u32 s47, s47, 0')
    e('v_mov_b32 v8, s40'); e('v_mov_b32 v9, s41'); e('v_mov_b32 v10, s42'); e('v_mov_b32 v11, s43')
    e('v_mov_b32 v12, s56'); e('v_mov_b32 v13, s57'); e('v_mov_b32 v14, s50'); e('v_mov_b32 v15, s51')
    e('v_mov_b32 v16, s54'); e('v_mov_b32 v17, s55'); e('v_mov_b32 v18, s33'); e('v_mov_b32 v19, v3')
    e('global_store_dwordx4 v5, v[8:11], s[46:47]')
    e('global_store_dwordx4 v5, v[12:15], s[46:47] offset:16')
    e('global_store_dwordx4 v5, v[16:19], s[46:47] offset:32')
    e('s_waitcnt vmcnt(0)')
    e('L_end:'); e('s_endpgm')
    e('.section .rodata,"a"'); e('.p2align 6')
    kd(e, 'probe_kernel', 8)
    e('.p2align 6')
    kd(e, 'main_kernel', max(24, base + 2 * R * NB * 4), 72)
    return '\n'.join(L) + '\n'

if __name__ == '__main__':
    cfgs = {}
    for nb in (2, 4):
        for m in ('near', 'far', 'mixed', 'blind'):
            cfgs[f'n_w4_nb{nb}_r2_{m}'] = dict(W=4, NB=nb, R=2, mode=m)
    cfgs['n_w8_nb2_r2_near'] = dict(W=8, NB=2, R=2, mode='near')
    cfgs['n_w2_nb4_r2_near'] = dict(W=2, NB=4, R=2, mode='near')
    cfgs['n_w2_nb2_r2_near'] = dict(W=2, NB=2, R=2, mode='near')
    for k, c in cfgs.items():
        open(k + '.s', 'w').write(gen(**c))
    print(' '.join(k + '.s' for k in cfgs))
```

```python
from gen_numa import hdr, kd
import gen_numa
NAME = gen_numa.NAME

def probe(e):
    src = gen_numa.gen().split('\n')
    i0 = [i for i, l in enumerate(src) if l == '.text'][0]
    i1 = [i for i, l in enumerate(src) if l == 'L_pend:'][0]
    for l in src[i0:i1 + 2]: e(l)

def gen(W=4, D=4, pol='nt', lds=90000, mode='near', item=8, order=(0, 2, 1, 3)):
    L = []; e = L.append
    e(f'; @launch kernel=probe_kernel grid=(128,1,1) block=(64,1,1) lds=0')
    e(f'; @launch kernel=main_kernel grid=(256,1,1) block=({W*64},1,1) lds={lds}')
    e('.amdgcn_target "amdgcn-amd-amdhsa--gfx950"')
    probe(e)
    hdr(e, 'main_kernel')
    e('s_cmp_ge_u32 s2, 256'); e('s_cbranch_scc1 L_end')
    e('s_memrealtime s[40:41]')
    e('s_load_dwordx4 s[24:27], s[0:1], 8')
    e('s_load_dwordx4 s[28:31], s[0:1], 48')
    e('s_load_dwordx4 s[44:47], s[0:1], 88')
    e('v_lshrrev_b32 v1, 6, v0'); e('v_and_b32 v2, 63, v0'); e('s_nop 0')
    e('v_readfirstlane_b32 s12, v1'); e('v_lshlrev_b32 v2, 4, v2'); e('v_add_u32 v6, 4096, v2')
    e('s_lshr_b32 s13, s2, 3'); e('s_lshl_b32 s13, s13, 2'); e('s_and_b32 s14, s2, 3'); e('s_add_u32 s13, s13, s14')
    e('s_lshr_b32 s14, s2, 2'); e('s_and_b32 s14, s14, 1')
    e('s_lshl_b32 s15, s13, 2')
    e('s_waitcnt lgkmcnt(0)')
    e('s_load_dword s33, s[46:47], s15')
    e('s_mov_b32 s6, 0x10000000'); e('s_mov_b32 s7, 0x20000')
    e('s_waitcnt lgkmcnt(0)')
    e('s_lshl_b32 s16, s13, 21')
    ipg = 8 // item
    assert W % ipg == 0
    if mode == 'contig':
        e(f's_mul_i32 s17, s12, {item*1024}')
        e('s_add_u32 s16, s16, s17')
        stride = W * item * 1024
        for t in range(4):
            e(f's_lshl_b32 s18, s14, {20 if t < 2 else 18}')
            e(f's_add_u32 s{60+t}, s16, s18')
            if t >= 2: e(f's_add_u32 s{60+t}, s{60+t}, {6144*256}')
    else:
        lg = ipg.bit_length() - 1
        e(f's_lshr_b32 s17, s12, {lg}'); e('s_lshl_b32 s17, s17, 14'); e(f's_and_b32 s18, s12, {ipg-1}'); e(f's_mul_i32 s18, s18, {item*1024}'); e('s_add_u32 s17, s17, s18')
        e('s_add_u32 s16, s16, s17')
        for t in range(4):
            e(f's_lshr_b32 s18, s33, {t}'); e('s_and_b32 s18, s18, 1'); e('s_xor_b32 s18, s18, s14')
            if mode == 'far': e('s_xor_b32 s18, s18, 1')
            e('s_lshl_b32 s18, s18, 13')
            e(f's_add_u32 s{60+t}, s16, s18')
            if t >= 2: e(f's_add_u32 s{60+t}, s{60+t}, {6144*256}')
        stride = W * item * 1024 * 2
    n = [(1 << 20) // (W * item * 1024)] * 2 + [(1 << 18) // (W * item * 1024)] * 2
    bounds = []; c = 0
    for t in order:
        c += n[t]; bounds.append(c)
    e('s_mov_b32 s21, 0'); e('v_mov_b32 v3, 0'); e('v_mov_b32 v5, 0')
    t = order[0]
    e(f's_mov_b32 s4, s{24+2*t}'); e(f's_mov_b32 s5, s{25+2*t}'); e(f's_mov_b32 s20, s{60+t}')
    base = 8
    import math
    U = D // math.gcd(D, item)
    def adv(lbl):
        e(f's_add_u32 s20, s20, {stride}')
        e('s_add_u32 s21, s21, 1')
        for k in range(3):
            t = order[k + 1]
            e(f's_cmp_eq_u32 s21, {bounds[k]}')
            e(f's_cselect_b32 s20, s{60+t}, s20')
            e(f's_cselect_b64 s[4:5], s[{24+2*t}:{25+2*t}], s[4:5]')
        e(f's_cmp_eq_u32 s21, {bounds[3]}')
        e('s_cbranch_scc1 L_drain')
    e('s_memrealtime s[42:43]')
    e('L_loop:')
    k = 0
    for u in range(U):
        for i in range(item):
            v = base + (k % D) * 4
            e(f's_waitcnt vmcnt({D-1})')
            e(f'v_xor_b32 v3, v3, v{v}')
            vo = 'v2' if i < 4 else 'v6'
            e(f'buffer_load_dwordx4 v[{v}:{v+3}], {vo}, s[4:7], s20 offen offset:{(i%4)*1024} {pol}')
            k += 1
        adv(u)
    e('s_branch L_loop')
    e('L_drain:')
    e('s_memrealtime s[54:55]')
    e('s_waitcnt vmcnt(0)')
    e('s_barrier')
    e('s_memrealtime s[56:57]')
    e('s_getreg_b32 s50, hwreg(HW_REG_XCC_ID)'); e('s_getreg_b32 s51, hwreg(HW_REG_HW_ID)')
    e('s_cmp_lg_u32 s12, 0'); e('s_cbranch_scc1 L_end')
    e('s_waitcnt lgkmcnt(0)')
    e('s_lshl_b32 s48, s2, 6'); e('s_add_u32 s48, s48, 0x40000000')
    e('s_add_u32 s46, s46, s48'); e('s_addc_u32 s47, s47, 0')
    e('v_mov_b32 v8, s40'); e('v_mov_b32 v9, s41'); e('v_mov_b32 v10, s42'); e('v_mov_b32 v11, s43')
    e('v_mov_b32 v12, s56'); e('v_mov_b32 v13, s57'); e('v_mov_b32 v14, s50'); e('v_mov_b32 v15, s51')
    e('v_mov_b32 v16, s54'); e('v_mov_b32 v17, s55'); e('v_mov_b32 v18, s33'); e('v_mov_b32 v19, v3')
    e('global_store_dwordx4 v5, v[8:11], s[46:47]')
    e('global_store_dwordx4 v5, v[12:15], s[46:47] offset:16')
    e('global_store_dwordx4 v5, v[16:19], s[46:47] offset:32')
    e('s_waitcnt vmcnt(0)')
    e('L_end:'); e('s_endpgm')
    e('.section .rodata,"a"'); e('.p2align 6')
    kd(e, 'probe_kernel', 8)
    e('.p2align 6')
    kd(e, 'main_kernel', max(24, base + D * 4), 72)
    return '\n'.join(L) + '\n'

if __name__ == '__main__':
    cfgs = {}
    for D in (3, 4, 5, 6, 8):
        cfgs[f'm_w4_d{D}_near'] = dict(W=4, D=D, mode='near')
    for D in (4, 5, 6, 8):
        cfgs[f'm_w4_d{D}_contig'] = dict(W=4, D=D, mode='contig')
    cfgs['m_w4_d4_near_i2'] = dict(W=4, D=4, mode='near', item=2)
    cfgs['m_w4_d5_near_i4'] = dict(W=4, D=5, mode='near', item=4)
    cfgs['m_w8_d2_near'] = dict(W=8, D=2, mode='near')
    cfgs['m_w8_d3_near'] = dict(W=8, D=3, mode='near')
    cfgs['m_w2_d8_near'] = dict(W=2, D=8, mode='near')
    cfgs['m_w2_d10_near'] = dict(W=2, D=10, mode='near')
    cfgs['m_w4_d6_contig_i2'] = dict(W=4, D=6, mode='contig', item=2)
    for k, c in cfgs.items():
        open(k + '.s', 'w').write(gen(**c))
    print(' '.join(k + '.s' for k in cfgs))
```

```python
import sys, math, struct
NAME = 'concat_heads__gqa_block_cached__sliding_block_cached__decode'

def f32(x):
    return '0x%08x' % struct.unpack('<I', struct.pack('<f', x))[0]
def br4(i):
    return ((i & 1) << 3) | ((i & 2) << 1) | ((i & 4) >> 1) | ((i & 8) >> 3)

QP = 0x000000
YP = 0x080000
OP = 0x100000
ST = 0x140000
EP = 0x150000
RC = 0x160000
EV = 0x180000
PP = 0x200000
WS_USED = 0x400000
STAMP = 0x40000000

L_Q = 0
L_CNT = 512
L_LVL = 516
L_CN2 = 520
L_EV = 528
L_KAP = 544
L_RED = 1024
L_O = 1024 + 8192
LDS_BYTES = L_O + 4096
SPIN = 1 << 17
DPPF = 'row_mask:0xf bank_mask:0xf'

class G:
    def __init__(s): s.L = []; s.n = 0
    def e(s, x): s.L.append(x)
    def lab(s, p):
        s.n += 1
        return f'L_{p}{s.n}'

def gen(D=5, DB=None, diag=False, pol='nt', wqfirst=False, hdiag=False, probe_t=None, tlb=0, boost=(2, 8), wfirst=1, early=1, DW=5, nbuf=3, slp3=0, slp4=0, stp='sc1', ldp='sc1', pretouch=1, outp='', rc=(5, 6, 7), th=(3, 6), cks=(8,12,16,20,24,28,31,34,37), rcat=7, pat=1, numa=1, shA=6, shB=10, shV=16, truth=0, forcex=None, lvl0=0, ppst='sc1', ppld='sc1'):
    ppst = ppst.replace('_', ' '); ppld = ppld.replace('_', ' ')
    stp = stp.replace('_', ' '); ldp = ldp.replace('_', ' '); outp = outp.replace('_', ' ')
    DB = DB or D
    g = G(); e = g.e
    if truth:
        e('; @launch kernel=probe_kernel grid=(128,1,1) block=(64,1,1) lds=0')
        e(f'; @launch kernel={NAME}_kernel grid=(256,1,1) block=(512,1,1) lds={LDS_BYTES}')
    else:
        e(f'; @launch grid=(256,1,1) block=(512,1,1) lds={LDS_BYTES}')
    e('.amdgcn_target "amdgcn-amd-amdhsa--gfx950"')
    if truth:
        import gen_numa2
        gen_numa2.probe(lambda x: e(x + ('\ns_add_u32 s13, s13, 0x600000' if x == 's_lshl_b32 s13, s2, 2' else '')))
    e('.text')
    e(f'.globl {NAME}_kernel')
    e('.p2align 8')
    e(f'.type {NAME}_kernel,@function')
    e(f'{NAME}_kernel:')
    sAx, sAk, sAv, sAwq, sAwo, sBx, sBk, sBv = 16, 18, 20, 22, 24, 26, 28, 30
    sBwq, sBwo, sOut, sDbg, sWs = 32, 34, 36, 38, 40
    sW, sH, sJ, sB, sSide = 42, 43, 44, 45, 46
    sT0, sT1, sT2, sT3 = 47, 48, 49, 50
    sSlab, sSpin = 51, 52
    sE, sTag, sNF = 74, 75, 76
    e('s_cmp_ge_u32 s2, 256')
    e('s_cbranch_scc1 L_end')
    e('s_load_dwordx16 s[16:31], s[0:1], 0')
    e('s_load_dwordx8 s[32:39], s[0:1], 64')
    e('s_load_dwordx2 s[40:41], s[0:1], 96')
    if diag or hdiag or probe_t is not None: e('s_memrealtime s[80:81]')
    e('v_lshrrev_b32 v1, 6, v0')
    e('v_and_b32 v0, 63, v0')
    e(f'v_readfirstlane_b32 s{sW}, v1')
    e(f's_lshr_b32 s{sH}, s2, 3')
    e(f's_and_b32 s{sJ}, s2, 7')
    e(f's_and_b32 s{sB}, s2, 3')
    e(f's_lshr_b32 s{sSide}, s{sJ}, 2')
    e('s_mov_b32 s7, 0x20000')
    e('s_mov_b32 s11, 0x20000')
    e(f's_mov_b32 s10, {WS_USED if not diag else 0x41000000}')
    e(f's_mov_b32 s{sNF}, 0xffffff00')
    e(f's_cmp_ge_u32 s{sW}, 4')
    e('s_cbranch_scc1 L_service')

    def stamp(idx, only_wave=None):
        if probe_t == idx:
            e('s_memrealtime s[86:87]'); e('s_waitcnt lgkmcnt(0)')
        if not diag: return
        l = g.lab('st')
        if only_wave is not None:
            e(f's_cmp_lg_u32 s{sW}, {only_wave}')
            e(f's_cbranch_scc1 {l}')
        e(f's_memrealtime s[82:83]')
        e('s_waitcnt lgkmcnt(0)')
        e(f'v_writelane_b32 v254, s82, {idx}')
        e(f'v_writelane_b32 v255, s83, {idx}')
        e(f'{l}:')
    def flush_stamps(idxs):
        if probe_t in idxs:
            l = g.lab('pt')
            e('s_cmp_lg_u32 s2, 0'); e(f's_cbranch_scc1 {l}x')
            if probe_t == 0: e('s_mov_b32 s86, s80')
            e('s_sub_u32 s86, s86, s80'); e('s_mul_i32 s86, s86, 10'); e('s_add_u32 s86, s86, 20000')
            e(f'{l}:'); e('s_memrealtime s[82:83]'); e('s_waitcnt lgkmcnt(0)'); e('s_sub_u32 s82, s82, s80')
            e('s_cmp_lt_u32 s82, s86'); e(f's_cbranch_scc1 {l}')
            e(f'{l}x:')
        if not diag: return
        m = sum(1 << i for i in idxs)
        e('s_lshl_b32 s84, s2, 7'); e(f's_add_u32 s84, s84, {STAMP}')
        e('s_mov_b64 exec, -1')
        e('v_lshlrev_b32 v253, 3, v0')
        e(f's_mov_b64 exec, {m}')
        e('buffer_store_dwordx2 v[254:255], v253, s[8:11], s84 offen')
    def load_epoch():
        e(f's_mov_b32 s{sE}, {EP}')
        e(f's_load_dword s{sE}, s[{sWs}:{sWs+1}], s{sE}')
    def make_tag(vTag):
        e(f's_add_u32 s{sE}, s{sE}, 1')
        e(f's_and_b32 s{sTag}, s{sE}, 0xff')
        e(f'v_mov_b32 v{vTag}, s{sTag}')
    def tag(r, vTag):
        e(f'v_and_or_b32 v{r}, v{r}, s{sNF}, v{vTag}')
    def untag(regs):
        for r in regs: e(f'v_and_b32 v{r}, s{sNF}, v{r}')
    def check(regs, t, vTag):
        e(f'v_xor_b32 v{t}, v{regs[0]}, v{vTag}')
        e(f'v_xor_b32 v{t+1}, v{regs[1]}, v{vTag}')
        for k, r in enumerate(regs[2:]):
            tt = t + (k & 1)
            e(f'v_bitop3_b32 v{tt}, v{tt}, v{r}, v{vTag} bitop3:0xf6')
        e(f'v_or_b32 v{t}, v{t}, v{t+1}')
        e(f'v_and_b32 v{t}, 0xff, v{t}')
        e(f'v_cmp_ne_u32 vcc, 0, v{t}')

    X0, X1, X2 = 60, 124, 188
    vOff = 2; vL16 = 6; vPd = 7; vQ = 8; vS = 12; vT = 20; vMask = 44; vAcc = 48; vAccB = 52; vP = 56
    vPA = 124
    vSt = 132; vMl = 136; vR2 = 140; vStA = 152; vTg = 153; vF = 154; vOa = 155
    sOff, sN = 53, 54
    sM3, sM4 = 60, 62
    sC = 64
    sFA0, sFA1, sFB = 67, 68, 69
    sWb, sSeg = 72, 73
    sHk = 70
    sVk = 78; sKK = 55; sKV = 66; sX = 77; sPPa = 14; sPPb = 15; s7f = 13
    vPat = 160; vPs = 164; vPPa = 168; vPPb = 169
    e(f's_lshl_b32 s{sT0}, s{sB}, 5')
    e(f's_add_u32 s{sT0}, s{sT0}, s{sH}')
    e(f's_lshl_b32 s{sSlab}, s{sT0}, 21')
    e(f'v_lshlrev_b32 v{vL16}, 4, v0')
    e(f'v_bfe_u32 v{vOff+1}, v0, 4, 1')
    e(f'v_lshl_add_u32 v{vOff}, v{vOff+1}, 15, v{vL16}')
    e(f'v_lshrrev_b32 v{vOff+1}, 5, v0')
    e(f'v_lshl_add_u32 v{vOff}, v{vOff+1}, 13, v{vOff}')
    e(f's_lshl_b32 s{sT0}, s{sW}, 8')
    e(f'v_xor_b32 v{vOff}, s{sT0}, v{vOff}')
    if pat == 1:
        e(f's_lshl_b32 s{sT0}, s{sSide}, 13')
        e(f'v_xor_b32 v{vOff}, s{sT0}, v{vOff}')
    for j in range(1, 4):
        e(f'v_xor_b32 v{vOff+j}, {(j << 8) | ((j >> 1) << 16 if pat == 1 else 0)}, v{vOff}')
    e(f's_and_b32 s{sT0}, s{sW}, 1')
    e(f's_lshl_b32 s{sT0}, s{sT0}, 12')
    e(f's_add_u32 s{sWb}, s{sSlab}, s{sT0}')
    e(f's_lshr_b32 s{sT0}, s{sW}, 1')
    e(f's_lshl_b32 s{sT0}, s{sT0}, 14')
    e(f's_add_u32 s{sWb}, s{sWb}, s{sT0}')
    if pat == 0:
        e(f's_lshl_b32 s{sT0}, s{sSide}, 16')
        e(f's_add_u32 s{sWb}, s{sWb}, s{sT0}')
    e(f's_add_u32 s{sOff}, s{sWb}, 0x180000')
    e('s_mov_b32 s6, 0x10000000')
    e('s_waitcnt lgkmcnt(0)')
    e(f's_mov_b32 s4, s{sBk}'); e(f's_mov_b32 s5, s{sBk+1}')
    def issue(buf, i):
        v = buf + 4 * i
        e(f'buffer_load_dwordx4 v[{v}:{v+3}], v{vOff + (i >> 2)}, s[4:7], s{sOff} offen offset:{(i & 3) * 1024} {pol}')
    allhooks = [3, 4, 7, 8, 16, 22, 23, 24, 30, 31, 32, 39, 40]
    vkind = list(range(5, 9)) + list(range(25, 41))
    def mask64(ns): return sum(1 << n for n in ns)
    def setup():
        load_epoch()
        e(f's_mov_b32 s8, s{sWs}'); e(f's_mov_b32 s9, s{sWs+1}')
        if diag:
            e('v_writelane_b32 v254, s80, 0'); e('v_writelane_b32 v255, s81, 0')
        e(f's_mov_b32 s{sM3}, 0xcccccccc'); e(f's_mov_b32 s{sM3+1}, 0xcccccccc')
        e(f's_mov_b32 s{sM4}, 0xaaaaaaaa'); e(f's_mov_b32 s{sM4+1}, 0xaaaaaaaa')
        e(f's_mov_b32 s{sC}, {f32(128 ** -0.5 * math.log2(math.e))}')
        m = mask64(allhooks)
        e(f's_mov_b32 s{sHk}, 0x{m & 0xffffffff:08x}'); e(f's_mov_b32 s{sHk+1}, 0x{m >> 32:08x}')
        e(f'v_and_b32 v{vT}, 15, v0')
        e(f'v_lshlrev_b32 v1, 4, v{vT}')
        e(f'v_and_b32 v{vT+1}, 1, v0')
        e(f'v_lshlrev_b32 v{vT+1}, 4, v{vT+1}')
        e(f'v_mov_b32 v{vT+2}, 0xffff')
        e(f'v_lshlrev_b32 v{vT+2}, v{vT+1}, v{vT+2}')
        e(f'v_lshrrev_b32 v{vT}, 1, v{vT}')
        for r in range(4):
            e(f'v_cmp_eq_u32 vcc, {4 + r}, v{vT}')
            e(f'v_mov_b32 v{vAcc + r}, 0')
            e(f'v_mov_b32 v{vS + r}, 0xff800000')
            e(f'v_cndmask_b32 v{vMask + r}, 0, v{vT+2}, vcc')
        e(f'v_mov_b32 v{vS + 4}, 0xff800000'); e(f'v_mov_b32 v{vS + 5}, 0xff800000')
    k = 0
    kbar = early if wfirst else DB
    bufs = (X1, X2, X0) if nbuf == 3 else (X1, X0)
    if kbar == 0:
        setup(); e('s_barrier')
    for buf in bufs:
        for i in range(16):
            if k >= DB: e(f's_waitcnt vmcnt({DB-1})')
            issue(buf, i)
            k += 1
            if k == kbar:
                if wfirst: setup()
                e('s_barrier')
                if not wfirst: setup()
        e(f's_add_u32 s{sOff}, s{sOff}, 0x20000')
    stamp(1, 0)
    e('s_barrier')
    e(f'ds_read_b128 v[{vQ}:{vQ+3}], v1 offset:{L_Q + 256}')
    e('s_waitcnt lgkmcnt(0)')
    stamp(2, 0)

    sCk, sRc, sRk, sIsC = 56, 58, 59, 65
    vLv = 156; vZz = 157
    def body_begin(tagn):
        if diag:
            e('s_memrealtime s[82:83]'); e('s_mov_b32 m0, s%d' % sN); e('s_waitcnt lgkmcnt(0)')
            e('v_writelane_b32 v252, s82, m0')
        if not rc: return
        e(f's_bitcmp1_b64 s[{sCk}:{sCk+1}], s{sN}')
        e(f's_cselect_b32 s{sIsC}, 1, 0')
        e(f's_cbranch_scc0 L_nt{tagn}')
        e(f's_mov_b32 s{sRk}, 1')
        e(f's_atomic_add s{sRk}, s[{sWs}:{sWs+1}], s{sRc} glc')
        e(f's_add_u32 s{sRc}, s{sRc}, 8192')
        e(f'L_nt{tagn}:')
        setflags()
    def setflags():
        e(f's_cmp_eq_u32 s{sT3}, 0')
        e('s_cselect_b64 vcc, -1, 0')
        e(f's_cmp_eq_u32 s{sT3}, 2')
    def throttle(tagn, i):
        if not rc:
            if boost and tagn == 'v':
                e(f's_cbranch_scc1 L_vb{i}')
                e(f's_waitcnt vmcnt({D-1})')
                e(f'L_vb{i}:')
                e(f's_waitcnt vmcnt({boost[1]-1})')
            else:
                e(f's_waitcnt vmcnt({D-1})')
            return
        if i == rcat:
            e(f's_cmp_eq_u32 s{sIsC}, 0')
            e(f's_cbranch_scc1 L_nu{tagn}')
            e('s_waitcnt lgkmcnt(0)')
            e(f's_cmp_ge_u32 s{sRk}, {th[0]}'); e(f's_cselect_b32 s{sT0}, 1, 0')
            e(f's_cmp_ge_u32 s{sRk}, {th[1]}'); e(f's_cselect_b32 s{sT0}, 2, s{sT0}')
            e(f'v_mov_b32 v{vLv}, s{sT0}')
            e(f'ds_write_b32 v{vZz}, v{vLv} offset:{L_LVL}')
            e(f'L_nu{tagn}:')
            e(f's_cmp_eq_u32 s{sT3}, 2')
        if i == rcat + 2:
            e(f'ds_read_b32 v{vLv}, v{vZz} offset:{L_LVL}')
        if i == rcat + 3:
            e('s_waitcnt lgkmcnt(0)')
            e(f'v_readfirstlane_b32 s{sT3}, v{vLv}')
            setflags()
        dd = [int(x + (0.5 if i & 1 else 0)) for x in rc]
        e(f's_waitcnt vmcnt({dd[2]-1})')
        e(f's_cbranch_scc1 L_go{tagn}{i}')
        e(f's_waitcnt vmcnt({dd[1]-1})')
        if dd[0] != dd[1]:
            e(f's_cbranch_vccz L_go{tagn}{i}')
            e(f's_waitcnt vmcnt({dd[0]-1})')
        e(f'L_go{tagn}{i}:')
    def kops(buf, T):
        dots = [[] for _ in range(20)]
        post = [[] for _ in range(20)]
        d = [T, T + 1, T + 2]
        for i in range(16):
            t = d[i % 3]; kk = buf + 4 * i
            dots[i].append(f'v_dot2_f32_bf16 v{t}, v{kk}, v{vQ}, 0')
            for r in range(1, 4):
                dots[i].append(f'v_dot2_f32_bf16 v{t}, v{kk + r}, v{vQ + r}, v{t}')
            a = T + 3 + ((i >> 1) & 1)
            b = T + 5 + ((i >> 2) & 1)
            bm1 = '0x3' if i % 2 == 0 else '0xc'
            bm2 = '0x5' if (i >> 1) % 2 == 0 else '0xa'
            post[i + 1].append(f'v_add_f32_dpp v{a}, v{t}, v{t} row_ror:8 row_mask:0xf bank_mask:{bm1}')
            if i % 2 == 1:
                post[i + 2].append(f'v_add_f32_dpp v{b}, v{a}, v{a} row_half_mirror row_mask:0xf bank_mask:{bm2}')
            if i % 4 == 3:
                post[i + 3].append(f'v_add_f32_dpp v{b}, v{b}, v{b} quad_perm:[2,3,0,1] {DPPF}')
            if i % 8 == 7:
                c = T + 7 if i == 7 else T + 5
                post[i + 3].append(f'v_cndmask_b32 v{c}, v{T+5}, v{T+6}, s[{sM3}:{sM3+1}]')
                post[i + 4].append(f'v_add_f32_dpp v{c}, v{c}, v{c} quad_perm:[1,0,3,2] {DPPF}')
        return [dots[i] + post[i] for i in range(20)]
    def kfinal(T, dst):
        return f'v_cndmask_b32 v{dst}, v{T+7}, v{T+5}, s[{sM4}:{sM4+1}]'
    def ktail(stepsets):
        for s_ in range(16, 20):
            e('s_nop 2' if s_ == 16 else 's_nop 1')
            for st in stepsets:
                for op in st[s_]: e(op)

    sets = [kops(X0, vT), kops(X1, vT + 8), kops(X2, vT + 16)][:nbuf]
    for i in range(16):
        for op in sets[0][i]: e(op)
        e(f's_waitcnt vmcnt({DB-1})')
        issue(X0, i)
        for st in sets[1:]:
            for op in st[i]: e(op)
    ktail(sets)
    if nbuf == 3:
        e(kfinal(vT + 8, vS + 5)); e(kfinal(vT + 16, vS + 6)); e(kfinal(vT, vS + 7))
    else:
        e(kfinal(vT + 8, vS + 6)); e(kfinal(vT, vS + 7))
    make_tag(vTg)
    if nbuf == 3:
        e(f's_mov_b32 s4, s{sBv}'); e(f's_mov_b32 s5, s{sBv+1}')
        e(f's_add_u32 s{sOff}, s{sWb}, 0x180000')
    else:
        e(f's_add_u32 s{sOff}, s{sOff}, 0x20000')
    e(f's_mov_b32 s{sN}, {nbuf + 1}')
    e(f's_mov_b32 s{sSeg}, 2')
    e(f'v_mov_b32 v{vZz}, 0')
    m = mask64(vkind)
    e(f's_mov_b32 s{sVk}, 0x{m & 0xffffffff:08x}'); e(f's_mov_b32 s{sVk+1}, 0x{m >> 32:08x}')
    e(f's_mov_b32 s{sKK}, 0'); e(f's_mov_b32 s{sKV}, 0'); e(f's_mov_b32 s{sX}, 0')
    if rc:
        m = mask64(cks)
        e(f's_cmp_eq_u32 s{sW}, 0')
        e(f's_cselect_b32 s{sCk}, 0x{m & 0xffffffff:08x}, 0'); e(f's_cselect_b32 s{sCk+1}, 0x{m >> 32:08x}, 0')
        e(f's_lshl_b32 s{sRc}, s{sH}, 8'); e(f's_add_u32 s{sRc}, s{sRc}, {RC}')
        e(f's_mov_b32 s{sT3}, {lvl0}')
    stamp(3, 0)

    e('L_kbody:')
    ks = kops(X0, vT)
    body_begin('k')
    for i in range(16):
        for op in ks[i]: e(op)
        if i < 7: e(f'v_mov_b32 v{vS + i}, v{vS + i + 1}')
        throttle('k', i)
        issue(X0, i)
    ktail([ks])
    e(kfinal(vT, vS + 7))
    e(f's_bitcmp1_b64 s[{sHk}:{sHk+1}], s{sN}')
    e('s_cbranch_scc1 L_hooks')
    e(f's_add_u32 s{sOff}, s{sOff}, 0x20000')
    e(f's_add_u32 s{sN}, s{sN}, 1')
    e('s_branch L_kbody')

    e('L_vbody:')
    e(f'v_and_b32 v{vPd}, 0xffff, v{vP}')
    e(f'v_lshl_or_b32 v{vPd}, v{vPd}, 16, v{vPd}')
    for r in range(3):
        e(f'v_alignbit_b32 v{vP + r}, v{vP + r + 1}, v{vP + r}, 16')
    e(f'v_lshrrev_b32 v{vP+3}, 16, v{vP+3}')
    def vand(i):
        a = vS + 4 * (i & 1)
        for r in range(4):
            e(f'v_and_b32_dpp v{a + r}, v{vPd}, v{vMask + r} row_newbcast:{br4(i)} {DPPF}')
    if boost and not rc: e(f's_cmp_ge_u32 s{sN}, {40 - boost[0]}')
    body_begin('v')
    vand(0)
    for i in range(16):
        if i < 15: vand(i + 1)
        a = vS + 4 * (i & 1); v = X0 + 4 * i
        e(f'v_mfma_f32_16x16x32_bf16 v[{vAcc}:{vAcc+3}], v[{a}:{a+3}], v[{v}:{v+3}], v[{vAcc}:{vAcc+3}]')
        throttle('v', i)
        issue(X0, i)
    e(f's_bitcmp1_b64 s[{sHk}:{sHk+1}], s{sN}')
    e('s_cbranch_scc1 L_hooks')
    e(f's_add_u32 s{sOff}, s{sOff}, 0x20000')
    e(f's_add_u32 s{sN}, s{sN}, 1')
    e('s_branch L_vbody')

    e('L_hooks:')
    T = vT
    e(f's_cmp_eq_u32 s{sN}, 40'); e('s_cbranch_scc1 L_sfin')
    for n in (39, 7, 8, 22, 23, 30, 31, 32, 3):
        e(f's_cmp_eq_u32 s{sN}, {n}'); e(f's_cbranch_scc1 L_h{n}')
    def kspin(off, dst):
        l = g.lab('ks')
        e(f's_mov_b32 s{sSpin}, {SPIN * 8}')
        e(f'{l}:')
        e(f'ds_read_b32 v{T}, v{vZz} offset:{off}')
        e(f's_sub_u32 s{sSpin}, s{sSpin}, 1')
        e(f's_cbranch_scc1 {l}x')
        e('s_waitcnt lgkmcnt(0)')
        e(f'v_cmp_eq_u32 vcc, -1, v{T}')
        e(f's_cbranch_vccnz {l}')
        e(f'{l}x:')
        e('s_waitcnt lgkmcnt(0)')
        e(f'v_readfirstlane_b32 s{dst}, v{T}')
        e(f's_and_b32 s{dst}, s{dst}, 1')
    def pcheck(regs, seg):
        l = g.lab('pc')
        e(f's_cmp_eq_u32 s{sX}, 0'); e(f's_cbranch_scc1 {l}x')
        e(f's_mov_b32 s{sSpin}, {SPIN}')
        e(f'{l}:')
        for r in range(4): e(f'v_xor_b32 v{regs + r}, v{regs + r}, v{vPat + r}')
        e(f'v_or3_b32 v{T}, v{regs}, v{regs+1}, v{regs+2}')
        e(f'v_or_b32 v{T}, v{T}, v{regs+3}')
        e(f'v_and_b32 v{T}, 0x80008000, v{T}')
        e(f'v_cmp_ne_u32 vcc, 0, v{T}')
        e(f's_cbranch_vccz {l}x')
        e(f's_sub_u32 s{sSpin}, s{sSpin}, 1')
        e(f's_cbranch_scc1 {l}x')
        pload(regs, seg)
        e('s_waitcnt vmcnt(0)')
        e(f's_branch {l}')
        e(f'{l}x:')
    def pload(regs, seg):
        e(f'buffer_load_dwordx4 v[{regs}:{regs+3}], v{vPPa + seg}, s[8:11], s{sPPb} offen {ppld}')
    for r in range(4): e(f'v_mov_b32 v{vP + r}, v{vPA + r}')
    e(f'v_max3_f32 v{T}, v{vS}, v{vS+1}, v{vS+2}')
    e(f'v_max3_f32 v{T+1}, v{vS+3}, v{vS+4}, v{vS+5}')
    e(f'v_max3_f32 v{T}, v{T}, v{vS+6}, v{vS+7}')
    e(f'v_max_f32 v{T}, v{T}, v{T+1}')
    def rowred(op, r):
        for ctl in ('quad_perm:[1,0,3,2]', 'quad_perm:[2,3,0,1]', 'row_half_mirror', 'row_mirror'):
            e('s_nop 1')
            e(f'{op}_dpp v{r}, v{r}, v{r} {ctl} {DPPF}')
    def allred(op, r, tmp):
        rowred(op, r)
        for sw in ('v_permlane16_swap_b32', 'v_permlane32_swap_b32'):
            e(f'v_mov_b32 v{tmp}, v{r}')
            e('s_nop 1')
            e(f'{sw} v{tmp}, v{r}')
            e('s_nop 1')
            e(f'{op} v{r}, v{r}, v{tmp}')
    allred('v_max_f32', T, T + 1)
    e(f'v_mul_f32 v{T+2}, s{sC}, v{T}')
    for r in range(8): e(f'v_fma_f32 v{vS + r}, v{vS + r}, s{sC}, -v{T+2}')
    for r in range(8): e(f'v_exp_f32 v{vS + r}, v{vS + r}')
    e(f'v_cmp_eq_u32 vcc, s{sSeg}, v0')
    for r in range(4): e(f'v_cvt_pk_bf16_f32 v{vPA + r}, v{vS + 2*r}, v{vS + 2*r + 1}')
    e(f'v_cndmask_b32 v{vMl}, v{vMl}, v{T+2}, vcc')
    for r in range(4): e(f'v_add_f32 v{vS + 2*r}, v{vS + 2*r}, v{vS + 2*r + 1}')
    e(f'v_add_f32 v{vS}, v{vS}, v{vS+2}')
    e(f'v_add_f32 v{vS+4}, v{vS+4}, v{vS+6}')
    e(f'v_add_f32 v{T}, v{vS}, v{vS+4}')
    allred('v_add_f32', T, T + 1)
    e(f'v_cndmask_b32 v{vMl+1}, v{vMl+1}, v{T}, vcc')
    e(f's_cmp_eq_u32 s{sN}, 4'); e('s_cbranch_scc0 L_finA')
    e(f'v_mov_b32 v{vP}, v{vPA+2}'); e(f'v_mov_b32 v{vP+1}, v{vPA+3}')
    e(f's_mov_b32 s{sSeg}, 0')
    e(f'ds_read_b128 v[{vQ}:{vQ+3}], v1 offset:{L_Q}')
    e('s_waitcnt lgkmcnt(0)')
    e('s_branch L_h_done')
    e('L_finA:')
    if numa:
        e(f's_cmp_eq_u32 s{sN}, 16'); e('s_cbranch_scc0 L_finA1')
        kspin(L_KAP + 4, sKV)
        if truth:
            e(f's_lshl_b32 s90, s{sKV}, 1'); e('s_or_b32 s89, s89, s90')
            e('v_writelane_b32 v254, s88, 13'); e('v_writelane_b32 v255, s89, 13')
            if truth == 2:
                e(f's_bfe_u32 s{sKV}, s88, 0x10001'); e(f's_xor_b32 s{sKV}, s{sKV}, s{sSide}')
        e(f's_xor_b32 s{sX}, s{sKK}, s{sKV}')
        if forcex is not None: e(f's_mov_b32 s{sX}, {forcex}')
        e('L_finA1:')
        e(f's_cmp_eq_u32 s{sX}, 0'); e('s_cbranch_scc1 L_nops')
        for r in range(4): e(f'v_and_or_b32 v{vPs + r}, v{vPA + r}, s{s7f}, v{vPat + r}')
        e(f's_lshl_b32 s{sT0}, s{sSeg}, 8')
        e(f'v_xor_b32 v{T}, s{sT0}, v{vPPa}')
        e(f'buffer_store_dwordx4 v[{vPs}:{vPs+3}], v{T}, s[8:11], s{sPPa} offen {ppst}')
        e('L_nops:')
    e(f's_mov_b32 s{sSeg}, 1')
    e(f's_cmp_eq_u32 s{sN}, 24'); e('s_cbranch_scc0 L_h_done')
    stamp(14, 0)
    e(f's_lshl_b32 s{sT0}, s2, 8'); e(f's_lshl_b32 s{sT1}, s{sW}, 6'); e(f's_add_u32 s{sT0}, s{sT0}, s{sT1}')
    e(f's_add_u32 s{sT0}, s{sT0}, {ST}')
    e(f'v_mov_b32 v{vMl+2}, s{sE}'); e(f'v_mov_b32 v{vMl+3}, s{sE}')
    e('s_mov_b64 exec, 15')
    e(f'buffer_store_dwordx4 v[{vMl}:{vMl+3}], v{vL16}, s[8:11], s{sT0} offen sc1')
    e('s_mov_b64 exec, -1')
    e('s_branch L_h_done')
    e('L_h8:')
    for r in range(4): e(f'v_mov_b32_dpp v{vMask + r}, v{vMask + r} row_ror:8 {DPPF}')
    for r in range(4): e(f'v_mov_b32 v{vAccB + r}, v{vAcc + r}')
    for r in range(4): e(f'v_mov_b32 v{vAcc + r}, 0')
    if numa:
        e(f'v_mul_u32_u24 v{T}, 37, v0')
        e(f'v_xor_b32 v{T}, s{sTag}, v{T}')
        for r in range(4):
            e(f'v_bfe_u32 v{T+1}, v{T}, {2*r}, 1')
            e(f'v_bfe_u32 v{T+2}, v{T}, {2*r+1}, 1')
            e(f'v_lshlrev_b32 v{T+1}, 15, v{T+1}')
            e(f'v_lshl_or_b32 v{vPat + r}, v{T+2}, 31, v{T+1}')
        e(f's_mov_b32 s{s7f}, 0x7fff7fff')
        e(f'v_lshrrev_b32 v{T}, 4, v0')
        e(f'v_lshl_add_u32 v{vPPa}, v{T}, 15, v{vL16}')
        e(f's_and_b32 s{sT0}, s{sW}, 1'); e(f's_lshl_b32 s{sT0}, s{sT0}, 9')
        e(f'v_xor_b32 v{vPPa}, s{sT0}, v{vPPa}')
        e(f'v_xor_b32 v{vPPb}, 0x100, v{vPPa}')
        e(f's_lshr_b32 s{sT0}, s{sW}, 1'); e(f's_lshl_b32 s{sT0}, s{sT0}, 10')
        e(f's_and_b32 s{sT1}, s2, 15'); e(f's_lshl_b32 s{sT1}, s{sT1}, 11'); e(f's_add_u32 s{sT0}, s{sT0}, s{sT1}')
        e(f's_lshr_b32 s{sT1}, s2, 4'); e(f's_lshl_b32 s{sT1}, s{sT1}, 17'); e(f's_add_u32 s{sT0}, s{sT0}, s{sT1}')
        e(f's_add_u32 s{sPPa}, s{sT0}, {PP}')
        e(f's_xor_b32 s{sPPb}, s{sPPa}, 0x2000')
    e('s_branch L_h_done')
    e('L_h32:')
    for r in range(4): e(f'v_mov_b32_dpp v{vMask + r}, v{vMask + r} row_ror:8 {DPPF}')
    for r in range(4): e(f'v_mov_b32 v{vP + r}, v{vPA + r}')
    e('s_branch L_h_done')
    e('L_h3:')
    e(f's_mov_b32 s4, s{sBv}'); e(f's_mov_b32 s5, s{sBv+1}')
    e(f's_add_u32 s{sOff}, s{sWb}, {0x180000 - 0x20000}')
    e('s_branch L_h_done')
    e('L_h7:')
    stamp(15, 0)
    if numa:
        kspin(L_KAP, sKK)
        if truth:
            e(f's_lshr_b32 s88, s{sSlab}, 19'); e('s_add_u32 s88, s88, 0x600000')
            e(f's_load_dword s88, s[{sWs}:{sWs+1}], s88')
            e('s_waitcnt lgkmcnt(0)')
            e(f's_mov_b32 s89, s{sKK}')
            if truth == 2:
                e(f's_and_b32 s{sKK}, s88, 1'); e(f's_xor_b32 s{sKK}, s{sKK}, s{sSide}')
        for j in range(4): e(f'v_and_b32 v{vOff + j}, 0xffffdfff, v{vOff + j}')
    e(f's_mov_b32 s4, s{sAk}'); e(f's_mov_b32 s5, s{sAk+1}')
    e(f's_lshl_b32 s{sT0}, s{sKK}, 13'); e(f's_add_u32 s{sOff}, s{sWb}, s{sT0}')
    e(f's_sub_u32 s{sOff}, s{sOff}, 0x20000')
    e('s_branch L_h_done')
    e('L_h22:')
    if numa:
        e(f's_cmp_eq_u32 s{sX}, 0'); e('s_cbranch_scc1 L_h_done')
        pload(vPA, 0)
    e('s_branch L_h_done')
    e('L_h23:')
    if numa: pcheck(vPA, 0)
    e(f's_mov_b32 s4, s{sAv}'); e(f's_mov_b32 s5, s{sAv+1}')
    e(f's_lshl_b32 s{sT0}, s{sKV}, 13'); e(f's_add_u32 s{sOff}, s{sWb}, s{sT0}')
    e(f's_sub_u32 s{sOff}, s{sOff}, 0x20000')
    e('s_branch L_h_done')
    e('L_h39:')
    e('s_mov_b32 s6, 0')
    e('s_branch L_h_done')
    e('L_h30:')
    e(f'v_and_b32 v{T}, 3, v0')
    e(f'v_lshlrev_b32 v{vStA}, 6, v{T}')
    e(f'v_bfe_u32 v{T}, v0, 2, 1')
    e(f'v_lshl_add_u32 v{vStA}, v{T}, 10, v{vStA}')
    e(f'v_lshrrev_b32 v{T}, 3, v0')
    e(f'v_min_u32 v{T}, 2, v{T}')
    e(f'v_lshl_add_u32 v{vStA}, v{T}, 4, v{vStA}')
    e(f's_and_b32 s{sT0}, s2, 0xfb'); e(f's_lshl_b32 s{sT0}, s{sT0}, 8'); e(f's_add_u32 s{sT0}, s{sT0}, {ST}')
    e(f'v_add_u32 v{vStA}, s{sT0}, v{vStA}')
    e(f'buffer_load_dwordx4 v[{vSt}:{vSt+3}], v{vStA}, s[8:11], 0 offen sc1')
    if numa:
        e(f's_cmp_eq_u32 s{sX}, 0'); e('s_cbranch_scc1 L_h_done')
        pload(vPA, 1)
    e('s_branch L_h_done')
    e('L_h31:')
    if numa: pcheck(vPA, 1)
    e(f's_mov_b32 s{sSpin}, {SPIN}')
    e('L_h31s:')
    e(f'v_cmp_ne_u32 vcc, s{sE}, v{vSt+2}')
    e('s_cbranch_vccz L_h31k')
    e(f's_sub_u32 s{sSpin}, s{sSpin}, 1')
    e('s_cbranch_scc1 L_h31k')
    e(f'buffer_load_dwordx4 v[{vSt}:{vSt+3}], v{vStA}, s[8:11], 0 offen sc1')
    e('s_waitcnt vmcnt(0)')
    e('s_branch L_h31s')
    e('L_h31k:')
    e(f'v_mov_b32 v{T}, v{vSt}')
    rowred('v_max_f32', T)
    e(f'v_sub_f32 v{T}, v{vSt}, v{T}')
    e(f'v_exp_f32 v{T}, v{T}')
    e('s_nop 0')
    e(f'v_mul_f32 v{T+1}, v{T}, v{vSt+1}')
    rowred('v_add_f32', T + 1)
    e(f'v_rcp_f32 v{T+1}, v{T+1}')
    e('s_nop 0')
    e(f'v_mul_f32 v{T}, v{T}, v{T+1}')
    e(f's_lshl_b32 s{sT0}, s{sSide}, 2'); e(f's_add_u32 s{sT0}, s{sT0}, s{sW}')
    e(f's_add_u32 s{sT2}, s{sT0}, 16')
    e(f's_lshl_b32 s{sT1}, s{sX}, 2'); e(f's_xor_b32 s{sT0}, s{sT0}, s{sT1}')
    e(f's_add_u32 s{sT1}, s{sT0}, 8')
    e(f'v_readlane_b32 s{sFA0}, v{T}, s{sT0}')
    e(f'v_readlane_b32 s{sFA1}, v{T}, s{sT1}')
    e(f'v_readlane_b32 s{sFB}, v{T}, s{sT2}')
    e('v_cmp_gt_u32 vcc, 32, v0')
    e(f'v_mov_b32 v{T}, s{sFA0}')
    e(f'v_mov_b32 v{T+1}, s{sFA1}')
    e(f'v_cndmask_b32 v{vF}, v{T+1}, v{T}, vcc')
    e(f'v_mov_b32 v{T}, s{sFB}')
    e(f'v_add_f32 v{T}, v{T}, v{T}')
    for r in range(4): e(f'v_mul_f32 v{vAccB + r}, v{T}, v{vAccB + r}')
    e(f'v_lshrrev_b32 v{T}, 5, v0')
    e(f'v_bfe_u32 v{T+1}, v0, 3, 1')
    e(f'v_lshl_add_u32 v{T}, v{T}, 1, v{T+1}')
    e(f's_and_b32 s{sT0}, s2, 127')
    e(f'v_xor_b32 v{T+1}, s{sT0}, v{T}')
    e(f'v_lshlrev_b32 v{vOa}, 8, v{T+1}')
    e(f'v_lshl_add_u32 v{vOa}, v{T}, 15, v{vOa}')
    e(f'v_and_b32 v{T}, 7, v0')
    e(f'v_lshl_add_u32 v{vOa}, v{T}, 5, v{vOa}')
    e(f'v_and_b32 v{T}, 16, v0')
    e(f's_lshr_b32 s{sT0}, s2, 7'); e(f's_lshl_b32 s{sT0}, s{sT0}, 17'); e(f's_add_u32 s{sT0}, s{sT0}, {OP}')
    e(f'v_add3_u32 v{vOa}, v{vOa}, v{T}, s{sT0}')
    e(f's_lshl_b32 s{sT0}, s{sW}, 10')
    e(f'v_add_u32 v1, s{sT0}, v{vL16}')
    e('L_h_done:')
    e(f's_add_u32 s{sOff}, s{sOff}, 0x20000')
    e(f's_add_u32 s{sN}, s{sN}, 1')
    e(f's_bitcmp1_b64 s[{sVk}:{sVk+1}], s{sN}')
    e('s_cbranch_scc1 L_vbody')
    e('s_branch L_kbody')
    e('L_sfin:')
    e('s_nop 1')
    for r in range(4): e(f'v_mul_f32 v{vAcc + r}, v{vF}, v{vAcc + r}')
    for r in range(4): e(f'v_permlane32_swap_b32 v{vAcc + r}, v{vAccB + r}')
    for r in range(4): e(f'v_add_f32 v{vAcc + r}, v{vAcc + r}, v{vAccB + r}')
    e(f'ds_write_b128 v1, v[{vAcc}:{vAcc+3}] offset:{L_O}')
    e(f's_cmp_lg_u32 s{sW}, 0')
    e('s_waitcnt lgkmcnt(0)')
    e('s_barrier')
    e('s_cbranch_scc1 L_end')
    for w in range(1, 4):
        r = vR2 + 4 * (w - 1)
        e(f'ds_read_b128 v[{r}:{r+3}], v1 offset:{L_O + w * 1024}')
    e('s_waitcnt lgkmcnt(1)')
    for r in range(4): e(f'v_add_f32 v{vAcc + r}, v{vAcc + r}, v{vR2 + r}')
    e('s_waitcnt lgkmcnt(0)')
    for r in range(4): e(f'v_add_f32 v{vR2 + 4 + r}, v{vR2 + 4 + r}, v{vR2 + 8 + r}')
    for r in range(4): e(f'v_add_f32 v{vAcc + r}, v{vAcc + r}, v{vR2 + 4 + r}')
    for r in range(4): tag(vAcc + r, vTg)
    e(f'buffer_store_dwordx4 v[{vAcc}:{vAcc+3}], v{vOa}, s[8:11], 0 offen {stp}')
    stamp(4)
    flush_stamps([0, 1, 2, 3, 4, 13, 14, 15])
    if diag:
        e('s_mov_b64 exec, -1')
        e('s_lshl_b32 s84, s2, 8'); e(f's_add_u32 s84, s84, {STAMP + 0x8000}')
        e('v_lshlrev_b32 v253, 2, v0')
        e('buffer_store_dword v252, v253, s[8:11], s84 offen')
    e('s_endpgm')

    def tlbpf():
        e(f's_lshl_b32 s{sT0}, s{sB}, 5'); e(f's_add_u32 s{sT0}, s{sT0}, s{sH}'); e(f's_lshl_b32 s{sT0}, s{sT0}, 21')
        e(f's_load_dword s77, s[{sAk}:{sAk+1}], s{sT0}')
        e(f's_load_dword s78, s[{sBv}:{sBv+1}], s{sT0}')
        e(f's_load_dword s79, s[{sAv}:{sAv+1}], s{sT0}')
        e(f's_load_dword s60, s[{sOut}:{sOut+1}], 0')
    e('L_service:')
    sU = sB; sBeta = sSide
    sIt, sDst = 53, 54
    vG = 2; vC = 3; vA = 4; vA2 = 5; vL = 6; vZ = 7
    vXA = 8; vWt = 16; vSel = 48; vOpA = 56; vD = 64; vR = 72
    vA3 = 104; vTg = 105; vX3 = 108; vX4 = 109; vOut = 110
    e(f's_sub_u32 s{sW}, s{sW}, 4')
    e(f'v_lshrrev_b32 v{vG}, 4, v0')
    e(f'v_and_b32 v{vC}, 15, v0')
    e(f'v_mov_b32 v{vZ}, 0')
    e(f'ds_write_b32 v{vZ}, v{vZ} offset:{L_CNT}')
    if rc:
        e(f'v_mov_b32 v{vA}, {lvl0}')
        e(f'ds_write_b32 v{vZ}, v{vA} offset:{L_LVL}')
    if numa:
        e(f'v_mov_b32 v{vL}, 0')
        e(f'ds_write_b64 v{vZ}, v[{vL}:{vL+1}] offset:{L_CN2}')
        for r in range(4): e(f'v_mov_b32 v{vR + r}, -1')
        e(f'ds_write_b128 v{vZ}, v[{vR}:{vR+3}] offset:{L_EV}')
        e(f'ds_write_b64 v{vZ}, v[{vR}:{vR+1}] offset:{L_KAP}')
    e(f'v_lshlrev_b32 v{vA}, 16, v{vG}')
    e(f'v_lshl_add_u32 v{vA}, v{vC}, 4, v{vA}')
    e(f'v_lshrrev_b32 v{vA2}, 3, v{vC}')
    e(f'v_lshlrev_b32 v{vA2}, 10, v{vA2}')
    e(f'v_lshl_add_u32 v{vA2}, v{vG}, 4, v{vA2}')
    e(f's_lshl_b32 s{sT0}, s{sU}, 7')
    e(f's_lshl_b32 s{sT1}, s{sW}, 5')
    e(f's_add_u32 s{sT0}, s{sT0}, s{sT1}')
    e(f's_lshl_b32 s{sT1}, s{sT0}, 1')
    e(f's_lshl_b32 s{sT0}, s{sT0}, 13')
    e(f's_lshl_b32 s{sT2}, s{sH}, 8')
    e(f's_add_u32 s{sT0}, s{sT0}, s{sT2}')
    e('s_mov_b32 s6, 0x400000')
    e('s_mov_b32 s14, 4096')
    e('s_mov_b32 s15, 0x20000')
    e(f's_cmp_eq_u32 s{sBeta}, 0')
    e('s_waitcnt lgkmcnt(0)')
    e(f's_cselect_b64 s[4:5], s[{sAwq}:{sAwq+1}], s[{sBwq}:{sBwq+1}]')
    e(f's_cselect_b64 s[12:13], s[{sAx}:{sAx+1}], s[{sBx}:{sBx+1}]')
    for m in range(2):
        e(f'buffer_load_dwordx4 v[{vXA + 4*m}:{vXA + 4*m + 3}], v{vA2}, s[12:15], s{sT1} offen offset:{2048*m}')
    vWo = 112
    def wo_addr(va):
        e(f'v_lshlrev_b32 v{va}, 13, v{vG}')
        e(f'v_lshl_add_u32 v{va}, v{vC}, 4, v{va}')
        e(f's_lshl_b32 s{sT0}, s{sH}, 17')
        e(f's_lshl_b32 s{sT1}, s{sW}, 15')
        e(f's_add_u32 s{sT0}, s{sT0}, s{sT1}')
        e(f's_lshl_b32 s{sT1}, s{sU}, 8')
        e(f's_add_u32 s{sT0}, s{sT0}, s{sT1}')
        e(f's_add_u32 s{sT1}, s{sT0}, 4096')
        e(f's_cmp_eq_u32 s{sBeta}, 0')
        e(f's_cselect_b64 s[4:5], s[{sAwo}:{sAwo+1}], s[{sBwo}:{sBwo+1}]')
    for i in range(8):
        if wfirst and i >= DW: e(f's_waitcnt vmcnt({DW-1})')
        e(f'buffer_load_dwordx4 v[{vWt + 4*i}:{vWt + 4*i + 3}], v{vA}, s[4:7], s{sT0} offen {pol}')
        if i < 7: e(f's_add_u32 s{sT0}, s{sT0}, 8192')
        if i == min(DW, 8) - 1: load_epoch()
    if wfirst == 2:
        wo_addr(vR)
        for i in range(8):
            if 8 + i >= DW: e(f's_waitcnt vmcnt({DW-1})')
            e(f'buffer_load_dwordx4 v[{vWo + 4*i}:{vWo + 4*i + 3}], v{vR}, s[4:7], s{sT0 if i < 4 else sT1} offen offset:{(i & 3) * 1024} {pol}')
    e('s_barrier')
    e(f's_mov_b32 s8, s{sWs}'); e(f's_mov_b32 s9, s{sWs+1}')
    e(f'v_lshlrev_b32 v{vL}, 4, v0')
    e(f'v_mov_b32 v{vX4}, 0'); e(f'v_mov_b32 v{vOut}, 0')
    if rc:
        assert wfirst != 2 and len(cks) <= 16
        e(f's_lshl_b32 s{sT0}, s{sW}, 3'); e(f's_add_u32 s{sT0}, s{sT0}, s{sJ}')
        e(f's_cmp_ge_u32 s{sT0}, {len(cks)}'); e('s_cbranch_scc1 L_norc')
        e(f's_lshl_b32 s{sT0}, s{sT0}, 5'); e(f's_add_u32 s{sT0}, s{sT0}, s{sH}'); e(f's_lshl_b32 s{sT0}, s{sT0}, 8'); e(f's_add_u32 s{sT0}, s{sT0}, {RC}')
        e('s_mov_b64 exec, 0xffff')
        e(f'v_lshlrev_b32 v{vR}, 2, v0')
        e(f'buffer_store_dword v{vZ}, v{vR}, s[8:11], s{sT0} offen sc1')
        e('s_mov_b64 exec, -1')
        e('L_norc:')
    e(f'v_and_b32 v{vR}, 7, v0')
    e(f'v_and_b32 v{vR+1}, 1, v0')
    e(f'v_lshlrev_b32 v{vR+1}, 4, v{vR+1}')
    e(f'v_mov_b32 v{vR+2}, 0xffff')
    e(f'v_lshlrev_b32 v{vR+2}, v{vR+1}, v{vR+2}')
    e(f'v_lshrrev_b32 v{vR}, 1, v{vR}')
    e(f'v_mov_b32 v{vR+4}, 0x0c0c0c0c')
    e(f's_mov_b32 s{sT0}, 0x01000100')
    e(f's_mov_b32 s{sT1}, 0x03020302')
    for r in range(4):
        e(f'v_cmp_eq_u32 vcc, {r}, v{vR}')
        e('s_nop 1')
        e(f'v_cndmask_b32 v{vR+3}, 0, v{vR+2}, vcc')
        e(f'v_bfi_b32 v{vSel + r}, v{vR+3}, s{sT0}, v{vR+4}')
        e(f'v_bfi_b32 v{vSel + 4 + r}, v{vR+3}, s{sT1}, v{vR+4}')
    e(f's_mov_b32 s{sIt}, 4')
    e(f's_lshl_b32 s{sT0}, s{sW}, 11')
    e(f'v_add_u32 v{vA}, s{sT0}, v{vL}')
    e(f'v_lshrrev_b32 v{vR}, 5, v0')
    e(f'v_bfe_u32 v{vR+1}, v0, 3, 1')
    e(f'v_lshl_add_u32 v{vR}, v{vR}, 1, v{vR+1}')
    e(f's_lshl_b32 s{sT0}, s2, 1'); e(f's_and_b32 s{sT0}, s{sT0}, 127')
    e(f'v_xor_b32 v{vR+1}, s{sT0}, v{vR}')
    e(f'v_lshlrev_b32 v{vA2}, 8, v{vR+1}')
    e(f'v_lshl_add_u32 v{vA2}, v{vR}, 15, v{vA2}')
    e(f'v_and_b32 v{vR}, 7, v0')
    e(f'v_lshl_add_u32 v{vA2}, v{vR}, 5, v{vA2}')
    e(f'v_and_b32 v{vR}, 16, v0')
    e(f'v_add_u32 v{vA2}, v{vA2}, v{vR}')
    e(f'v_xor_b32 v{vA3}, 0x100, v{vA2}')
    e(f's_lshr_b32 s{sDst}, s2, 6'); e(f's_lshl_b32 s{sDst}, s{sDst}, 17')
    if QP: e(f's_add_u32 s{sDst}, s{sDst}, {QP}')
    e('s_waitcnt lgkmcnt(0)')
    make_tag(vTg)
    e(f's_waitcnt vmcnt({8 if wfirst == 2 else 0})')
    stamp(5, 0)
    e('L_gemv:')
    seq = [(i, m) for i in range(8) for m in range(2)]
    def perms(k):
        i, m = seq[k]
        a = vOpA + 4 * (k & 1); x = vXA + 4 * m + (i >> 1)
        for r in range(4):
            e(f'v_perm_b32 v{a + r}, v{x}, v{x}, v{vSel + 4 * (i & 1) + r}')
    perms(0)
    for k, (i, m) in enumerate(seq):
        if k < 15: perms(k + 1)
        else: e('s_nop 0')
        a = vOpA + 4 * (k & 1); d = vD + 4 * m; w = vWt + 4 * i
        c = f'v[{d}:{d+3}]' if i > 0 else '0'
        e(f'v_mfma_f32_16x16x32_bf16 v[{d}:{d+3}], v[{a}:{a+3}], v[{w}:{w+3}], {c}')
    e(f'v_mov_b32 v{vR}, 1')
    e('s_nop 5')
    e(f'ds_write_b128 v{vA}, v[{vD}:{vD+3}] offset:{L_RED}')
    e(f'ds_write_b128 v{vA}, v[{vD+4}:{vD+7}] offset:{L_RED + 1024}')
    e('s_mov_b64 exec, 1')
    e(f'ds_add_u32 v{vZ}, v{vR} offset:{L_CNT}')
    e('s_mov_b64 exec, -1')
    e(f's_cmp_lg_u32 s{sW}, 0')
    e('s_cbranch_scc1 L_notleader')
    e(f's_mov_b32 s{sSpin}, {SPIN * 8}')
    e('L_cspin:')
    e(f'ds_read_b32 v{vR}, v{vZ} offset:{L_CNT}')
    e(f's_sub_u32 s{sSpin}, s{sSpin}, 1')
    e('s_cbranch_scc1 L_cout')
    e('s_waitcnt lgkmcnt(0)')
    e(f'v_cmp_eq_u32 vcc, s{sIt}, v{vR}')
    e('s_cbranch_vccz L_cspin')
    e('L_cout:')
    for w in range(1, 4):
        for m in range(2):
            r = vR + ((w - 1) * 2 + m) * 4
            e(f'ds_read_b128 v[{r}:{r+3}], v{vL} offset:{L_RED + w * 2048 + m * 1024}')
    e('s_waitcnt lgkmcnt(4)')
    for r in range(8): e(f'v_add_f32 v{vD + r}, v{vD + r}, v{vR + r}')
    e('s_waitcnt lgkmcnt(0)')
    for r in range(8): e(f'v_add_f32 v{vR + 8 + r}, v{vR + 8 + r}, v{vR + 16 + r}')
    for r in range(8): e(f'v_add_f32 v{vD + r}, v{vD + r}, v{vR + 8 + r}')
    for r in range(8): tag(vD + r, vTg)
    e(f'buffer_store_dwordx4 v[{vD}:{vD+3}], v{vA2}, s[8:11], s{sDst} offen {stp}')
    e(f'buffer_store_dwordx4 v[{vD+4}:{vD+7}], v{vA3}, s[8:11], s{sDst} offen {stp}')
    e(f's_cmp_eq_u32 s{sIt}, 8')
    e('s_cbranch_scc1 L_x4')
    stamp(6)
    e(f'v_bfe_u32 v{vR}, v0, 4, 1')
    e(f's_and_b32 s{sT0}, s{sB}, 1'); e(f's_lshl_b32 s{sT0}, s{sT0}, 1')
    e(f'v_or_b32 v{vR}, s{sT0}, v{vR}')
    e(f'v_lshrrev_b32 v{vR+1}, 5, v0')
    e(f'v_lshlrev_b32 v{vR+1}, 3, v{vR+1}')
    e(f's_and_b32 s{sT0}, s{sH}, 7'); e(f's_lshl_b32 s{sT0}, s{sT0}, 4'); e(f's_lshr_b32 s{sT1}, s{sB}, 1'); e(f's_or_b32 s{sT0}, s{sT0}, s{sT1}')
    e(f'v_or_b32 v{vR+1}, s{sT0}, v{vR+1}')
    e(f'v_xor_b32 v{vR+1}, v{vR+1}, v{vR}')
    e(f'v_lshlrev_b32 v{vR+1}, 8, v{vR+1}')
    e(f'v_lshl_add_u32 v{vR+1}, v{vR}, 15, v{vR+1}')
    e(f'v_lshl_add_u32 v{vR}, v{vC}, 4, v{vR+1}')
    e(f'v_xor_b32 v{vR+1}, 0x200, v{vR}')
    e(f's_mov_b32 s{sSpin}, {SPIN}')
    e('L_x1spin:')
    for r in range(4):
        d = vR + 4 + 4 * r
        e(f'buffer_load_dwordx4 v[{d}:{d+3}], v{vR + (r & 1)}, s[8:11], s{sDst} offen offset:{(r >> 1) * 1024} sc1')
    e(f's_sub_u32 s{sSpin}, s{sSpin}, 1')
    e('s_cbranch_scc1 L_x1out')
    e('s_waitcnt vmcnt(0)')
    check(list(range(vR + 4, vR + 20)), vR + 2, vTg)
    e('s_cbranch_vccnz L_x1spin')
    e('L_x1out:')
    e('s_waitcnt vmcnt(0)')
    stamp(7)
    untag(range(vR + 4, vR + 20))
    e(f'v_lshlrev_b32 v{vR+1}, 3, v0')
    for r in range(4):
        e(f'v_add_f32 v{vR + 4 + r}, v{vR + 4 + r}, v{vR + 8 + r}')
        e(f'v_add_f32 v{vR + 12 + r}, v{vR + 12 + r}, v{vR + 16 + r}')
    for r in range(4): e(f'v_add_f32 v{vR + 4 + r}, v{vR + 4 + r}, v{vR + 12 + r}')
    e(f'v_cvt_pk_bf16_f32 v{vR+4}, v{vR+4}, v{vR+5}')
    e(f'v_cvt_pk_bf16_f32 v{vR+5}, v{vR+6}, v{vR+7}')
    e(f'ds_write_b64 v{vR+1}, v[{vR+4}:{vR+5}] offset:{L_Q}')
    e('s_waitcnt lgkmcnt(0)')
    stamp(8)
    e('L_notleader:')
    e(f's_cmp_eq_u32 s{sIt}, 8')
    e('s_cbranch_scc1 L_end')
    sE0, sE1, sPa, sCnt, sTm, sRd, sPr = 56, 57, 58, 59, 60, 64, 65
    def probe_setup(ptr):
        e(f's_mov_b32 s12, s{ptr}'); e(f's_mov_b32 s13, s{ptr+1}'); e('s_mov_b32 s14, 0x10000000')
        e(f's_lshl_b32 s{sT0}, s{sB}, 5'); e(f's_add_u32 s{sT0}, s{sT0}, s{sH}'); e(f's_lshl_b32 s{sPa}, s{sT0}, 21')
        e(f's_lshl_b32 s{sT0}, s{sSide}, 7'); e(f's_add_u32 s{sPa}, s{sPa}, s{sT0}')
        e(f's_mul_i32 s{sT0}, s{sW}, 0x83000'); e(f's_and_b32 s{sT0}, s{sT0}, 0x183000'); e(f's_add_u32 s{sPa}, s{sPa}, s{sT0}')
        e(f's_mov_b32 s{sE0}, -1'); e(f's_mov_b32 s{sE1}, -1')
    def probe_loop():
        l = g.lab('pr')
        e(f'{l}:')
        e(f's_memtime s[{sTm}:{sTm+1}]')
        e('s_waitcnt lgkmcnt(0)')
        e(f's_buffer_load_dword s{sPr}, s[12:15], s{sPa}')
        e('s_waitcnt lgkmcnt(0)')
        e(f's_memtime s[{sTm+2}:{sTm+3}]')
        e('s_waitcnt lgkmcnt(0)')
        e(f's_sub_u32 s{sT0}, s{sTm+2}, s{sTm}')
        e(f's_bitcmp1_b32 s{sPa}, 13')
        e(f's_cselect_b32 s{sT1}, -1, s{sT0}')
        e(f's_cselect_b32 s{sT0}, s{sT0}, -1')
        e(f's_min_u32 s{sE0}, s{sE0}, s{sT1}')
        e(f's_min_u32 s{sE1}, s{sE1}, s{sT0}')
        e(f's_xor_b32 s{sPa}, s{sPa}, 0x2000')
        e(f's_bitcmp1_b32 s{sCnt}, 0')
        e(f's_cselect_b32 s{sT0}, 0x4100, 0')
        e(f's_add_u32 s{sPa}, s{sPa}, s{sT0}')
        e(f's_sub_u32 s{sCnt}, s{sCnt}, 1')
        e(f's_cmp_lg_u32 s{sCnt}, 0')
        e(f's_cbranch_scc1 {l}')
    if numa:
        assert shA % 2 == 0 and shB % 2 == 0 and shV % 2 == 0 and (shA + shB) <= 30 and shV <= 30
        probe_setup(sAk)
        if shA:
            e(f's_cmp_eq_u32 s{sW}, 0'); e('s_cbranch_scc1 L_nopre')
            e(f's_mov_b32 s{sCnt}, {shA}')
            probe_loop()
            e('L_nopre:')
    e('s_barrier')
    if numa:
        e(f's_mov_b32 s{sRd}, 0')
        e(f's_mov_b32 s{sCnt}, {shB}')
        e('L_round:')
        probe_loop()
        e(f's_lshl_b32 s{sT0}, s{sRd}, 3'); e(f's_lshl_b32 s{sT1}, s{sRd}, 2')
        e('s_mov_b64 exec, 1')
        e(f'v_mov_b32 v{vR}, s{sT0}'); e(f'v_mov_b32 v{vR+1}, s{sT1}')
        e(f'v_mov_b32 v{vR+2}, s{sE0}'); e(f'v_mov_b32 v{vR+3}, s{sE1}'); e(f'v_mov_b32 v{vR+4}, 1')
        e(f'ds_min_u32 v{vR}, v{vR+2} offset:{L_EV}')
        e(f'ds_min_u32 v{vR}, v{vR+3} offset:{L_EV + 4}')
        e(f'ds_add_u32 v{vR+1}, v{vR+4} offset:{L_CN2}')
        e(f's_cmp_lg_u32 s{sW}, 0'); e('s_cbranch_scc1 L_rnext')
        e(f's_mov_b32 s{sSpin}, {SPIN * 8}')
        e('L_rspin:')
        e(f'ds_read_b32 v{vR+4}, v{vR+1} offset:{L_CN2}')
        e(f's_sub_u32 s{sSpin}, s{sSpin}, 1'); e('s_cbranch_scc1 L_rout')
        e('s_waitcnt lgkmcnt(0)')
        e(f'v_cmp_eq_u32 vcc, 4, v{vR+4}')
        e('s_cbranch_vccz L_rspin')
        e('L_rout:')
        e(f'ds_read_b64 v[{vR+2}:{vR+3}], v{vR} offset:{L_EV}')
        e(f's_lshl_b32 s{sT0}, s2, 8'); e(f's_add_u32 s{sT0}, s{sT0}, {EV}'); e(f's_xor_b32 s{sT1}, s{sT0}, 0x400')
        e('s_waitcnt lgkmcnt(0)')
        e(f'v_sub_u32 v{vR+2}, v{vR+2}, v{vR+3}')
        e(f'v_mov_b32 v{vR+3}, s{sE}')
        e(f'buffer_store_dwordx2 v[{vR+2}:{vR+3}], v{vR}, s[8:11], s{sT0} offen sc1')
        e(f's_mov_b32 s{sSpin}, {SPIN}')
        e('L_espin:')
        e(f'buffer_load_dwordx2 v[{vR+4}:{vR+5}], v{vR}, s[8:11], s{sT1} offen sc1')
        e(f's_sub_u32 s{sSpin}, s{sSpin}, 1'); e('s_cbranch_scc1 L_eout')
        e('s_waitcnt vmcnt(0)')
        e(f'v_cmp_eq_u32 vcc, s{sE}, v{vR+5}')
        e('s_cbranch_vccz L_espin')
        e('L_eout:')
        e('s_waitcnt vmcnt(0)')
        e(f'v_sub_u32 v{vR+6}, v{vR+2}, v{vR+4}')
        e(f'v_sub_u32 v{vR+7}, v{vR+4}, v{vR+2}')
        e(f's_cmp_eq_u32 s{sSide}, 0')
        e('s_cselect_b64 vcc, -1, 0')
        e(f'v_cndmask_b32 v{vR+6}, v{vR+7}, v{vR+6}, vcc')
        e(f'v_cmp_lt_i32 vcc, 0, v{vR+6}')
        e('s_nop 1')
        e(f'v_cndmask_b32 v{vR+6}, 0, 1, vcc')
        e(f'v_xor_b32 v{vR+6}, s{sSide}, v{vR+6}')
        e(f'ds_write_b32 v{vR+1}, v{vR+6} offset:{L_KAP}')
        if diag:
            e(f's_cmp_lg_u32 s{sRd}, 0'); e('s_cbranch_scc1 L_rnext')
            stamp(6)
        e('L_rnext:')
        e('s_mov_b64 exec, -1')
        e(f's_cmp_lg_u32 s{sRd}, 0'); e('s_cbranch_scc1 L_rdone')
        probe_setup(sAv)
        e(f's_mov_b32 s{sRd}, 1')
        e(f's_mov_b32 s{sCnt}, {shV}')
        e('s_branch L_round')
        e('L_rdone:')
    if wfirst == 2:
        e('s_waitcnt vmcnt(0)')
        for r in range(32): e(f'v_mov_b32 v{vWt + r}, v{vWo + r}')
    else:
        wo_addr(vR)
        for i in range(8):
            e(f'buffer_load_dwordx4 v[{vWt + 4*i}:{vWt + 4*i + 3}], v{vR}, s[4:7], s{sT0 if i < 4 else sT1} offen offset:{(i & 3) * 1024} {pol}')
            e('s_waitcnt vmcnt(0)')
    sX3, sX4a, sX4b, sOo = 64, 66, 67, 68
    e(f'v_and_b32 v{vR}, 1, v0')
    e(f'v_lshlrev_b32 v{vR}, 2, v{vR}')
    e(f'v_bfe_u32 v{vR+1}, v0, 2, 1')
    e(f'v_lshl_add_u32 v{vR}, v{vR+1}, 1, v{vR}')
    e(f'v_bfe_u32 v{vR+1}, v0, 3, 1')
    e(f'v_add_u32 v{vR}, v{vR}, v{vR+1}')
    e(f's_lshl_b32 s{sT0}, s{sBeta}, 1'); e(f's_lshr_b32 s{sT1}, s{sW}, 1'); e(f's_add_u32 s{sT0}, s{sT0}, s{sT1}')
    e(f'v_xor_b32 v{vR}, s{sT0}, v{vR}')
    e(f'v_lshlrev_b32 v{vX3}, 8, v{vR}')
    e(f'v_lshl_add_u32 v{vX3}, v{vG}, 5, v{vX3}')
    e(f'v_bfe_u32 v{vR+1}, v0, 1, 1')
    e(f'v_lshl_add_u32 v{vX3}, v{vR+1}, 4, v{vX3}')
    e(f's_lshl_b32 s{sX3}, s{sT0}, 15')
    e(f's_and_b32 s{sT1}, s{sW}, 1'); e(f's_lshl_b32 s{sT1}, s{sT1}, 7'); e(f's_add_u32 s{sX3}, s{sX3}, s{sT1}')
    e(f's_and_b32 s{sT1}, s{sH}, 15'); e(f's_lshl_b32 s{sT1}, s{sT1}, 11'); e(f's_add_u32 s{sX3}, s{sX3}, s{sT1}')
    e(f's_lshr_b32 s{sT1}, s{sH}, 4'); e(f's_lshl_b32 s{sT1}, s{sT1}, 17'); e(f's_add_u32 s{sX3}, s{sX3}, s{sT1}')
    e(f's_add_u32 s{sX3}, s{sX3}, {OP}')
    e(f'v_bfe_u32 v{vR}, v0, 2, 3')
    e(f'v_lshlrev_b32 v{vX4}, 12, v{vR}')
    e(f'v_lshrrev_b32 v{vR}, 5, v0')
    e(f'v_lshl_add_u32 v{vX4}, v{vR}, 17, v{vX4}')
    e(f'v_and_b32 v{vR}, 3, v0')
    e(f'v_lshl_add_u32 v{vX4}, v{vR}, 4, v{vX4}')
    e(f'v_lshlrev_b32 v{vOut}, 3, v{vR}')
    e(f's_bfe_u32 s{sT0}, s{sH}, 0x20002')
    e(f's_lshl_b32 s{sT1}, s{sJ}, 1'); e(f's_lshr_b32 s{sT2}, s{sH}, 4'); e(f's_or_b32 s{sT1}, s{sT1}, s{sT2}')
    e(f's_xor_b32 s{sT1}, s{sT1}, s{sT0}'); e(f's_lshl_b32 s{sT1}, s{sT1}, 8')
    e(f's_lshl_b32 s{sT0}, s{sT0}, 15'); e(f's_add_u32 s{sT0}, s{sT0}, s{sT1}')
    e(f's_and_b32 s{sT1}, s{sH}, 3'); e(f's_lshl_b32 s{sT1}, s{sT1}, 6'); e(f's_add_u32 s{sT0}, s{sT0}, s{sT1}')
    e(f's_add_u32 s{sX4a}, s{sT0}, {YP}')
    e(f's_add_u32 s{sX4b}, s{sX4a}, 0x40000')
    e(f's_lshr_b32 s{sT0}, s{sH}, 3'); e(f's_lshl_b32 s{sT0}, s{sT0}, 11')
    e(f's_lshl_b32 s{sT1}, s{sJ}, 8'); e(f's_add_u32 s{sT0}, s{sT0}, s{sT1}')
    e(f's_and_b32 s{sT1}, s{sH}, 7'); e(f's_lshl_b32 s{sT1}, s{sT1}, 5'); e(f's_add_u32 s{sOo}, s{sT0}, s{sT1}')
    e(f's_mov_b32 s12, s{sOut}'); e(f's_mov_b32 s13, s{sOut+1}'); e('s_mov_b32 s14, 8192')
    e(f's_mov_b32 s{sIt}, 8')
    e(f's_add_u32 s{sDst}, s{sDst}, {YP - QP}')
    e(f's_mov_b32 s{sSpin}, {SPIN}')
    if pretouch:
        e(f'buffer_load_dwordx4 v[{vR}:{vR+3}], v{vX3}, s[8:11], s{sX3} offen {ldp}')
        e(f's_cmp_lg_u32 s{sW}, 0'); e('s_cbranch_scc1 L_nopt')
        for k in range(2):
            e(f'buffer_load_dwordx4 v[{vR + 4 + 4*k}:{vR + 4*k + 7}], v{vX4}, s[8:11], s{sX4a + k} offen {ldp}')
        e('L_nopt:')
        e('s_waitcnt vmcnt(0)')
    e('s_barrier')
    stamp(9, 0)
    e('s_branch L_x3go')
    e('L_x3spin:')
    if slp3: e(f's_sleep {slp3}')
    e('L_x3go:')
    e(f'buffer_load_dwordx4 v[{vR}:{vR+3}], v{vX3}, s[8:11], s{sX3} offen {ldp}')
    e(f's_sub_u32 s{sSpin}, s{sSpin}, 1')
    e('s_cbranch_scc1 L_x3out')
    e('s_waitcnt vmcnt(0)')
    check(list(range(vR, vR + 4)), vR + 4, vTg)
    e('s_cbranch_vccnz L_x3spin')
    e('L_x3out:')
    e('s_waitcnt vmcnt(0)')
    stamp(10, 0)
    untag(range(vR, vR + 4))
    for r in range(4): e(f'v_add_f32_dpp v{vR+r}, v{vR+r}, v{vR+r} quad_perm:[1,0,3,2] {DPPF}')
    e(f'v_cvt_pk_bf16_f32 v{vR}, v{vR}, v{vR+1}')
    e(f'v_cvt_pk_bf16_f32 v{vR+1}, v{vR+2}, v{vR+3}')
    e('s_nop 1')
    for bb in range(2):
        for m in range(2):
            for hh in range(2):
                for r in range(2):
                    bm = '0x3' if bb == 0 else '0xc'
                    e(f'v_mov_b32_dpp v{vXA + 4*m + 2*hh + r}, v{vR + r} row_newbcast:{bb*8 + m*4 + hh*2} row_mask:0xf bank_mask:{bm}')
    e('s_branch L_gemv')
    e('L_x4:')
    stamp(11)
    e(f's_mov_b32 s{sSpin}, {SPIN}')
    e('L_x4spin:')
    if slp4: e(f's_sleep {slp4}')
    for k in range(2):
        e(f'buffer_load_dwordx4 v[{vR + 4*k}:{vR + 4*k + 3}], v{vX4}, s[8:11], s{sX4a + k} offen {ldp}')
    e(f's_sub_u32 s{sSpin}, s{sSpin}, 1')
    e('s_cbranch_scc1 L_x4out')
    e('s_waitcnt vmcnt(0)')
    check(list(range(vR, vR + 8)), vR + 8, vTg)
    e('s_cbranch_vccnz L_x4spin')
    e('L_x4out:')
    e('s_waitcnt vmcnt(0)')
    untag(range(vR, vR + 8))
    for r in range(4): e(f'v_add_f32 v{vR + r}, v{vR + r}, v{vR + 4 + r}')
    for ctl in ('row_ror:4', 'row_ror:8'):
        for r in range(4): e(f'v_add_f32_dpp v{vR+r}, v{vR+r}, v{vR+r} {ctl} {DPPF}')
    for sw in ('v_permlane16_swap_b32', 'v_permlane32_swap_b32'):
        for r in range(4): e(f'v_mov_b32 v{vR+4+r}, v{vR+r}')
        for r in range(4): e(f'{sw} v{vR+4+r}, v{vR+r}')
        for r in range(4): e(f'v_add_f32 v{vR+r}, v{vR+r}, v{vR+4+r}')
    e(f'v_cvt_pk_bf16_f32 v{vR}, v{vR}, v{vR+1}')
    e(f'v_cvt_pk_bf16_f32 v{vR+1}, v{vR+2}, v{vR+3}')
    e('s_mov_b64 exec, 15')
    e(f'buffer_store_dwordx2 v[{vR}:{vR+1}], v{vOut}, s[12:15], s{sOo} offen {outp}')
    stamp(12)
    flush_stamps([5, 6, 7, 8, 9, 10, 11, 12])
    e('s_cmp_lg_u32 s2, 0')
    e('s_cbranch_scc1 L_end')
    e('s_mov_b64 exec, 1')
    e(f'v_mov_b32 v{vR+2}, s{sE}')
    e(f's_mov_b32 s{sT0}, {EP}')
    e(f'buffer_store_dword v{vR+2}, off, s[8:11], s{sT0}')
    if hdiag:
        e('s_memrealtime s[82:83]'); e('s_waitcnt lgkmcnt(0)'); e('s_sub_u32 s82, s82, s80')
        e(f's_mov_b32 s12, s{sDbg}'); e(f's_mov_b32 s13, s{sDbg+1}'); e('s_mov_b32 s14, 256')
        e(f'v_mov_b32 v{vR+3}, s82')
        e(f'buffer_store_dword v{vR+3}, off, s[12:15], 0')
    e('L_end:')
    e('s_endpgm')
    e('.section .rodata,"a"')
    e('.p2align 6')
    e(f'.amdhsa_kernel {NAME}_kernel')
    e('  .amdhsa_next_free_vgpr 256')
    e('  .amdhsa_next_free_sgpr 96')
    e('  .amdhsa_accum_offset 256')
    e('  .amdhsa_group_segment_fixed_size 0')
    e('  .amdhsa_kernarg_size 104')
    e('  .amdhsa_user_sgpr_count 2')
    e('  .amdhsa_user_sgpr_kernarg_segment_ptr 1')
    e('  .amdhsa_system_sgpr_workgroup_id_x 1')
    e('  .amdhsa_float_denorm_mode_32 3')
    e('.end_amdhsa_kernel')
    if truth:
        import gen_numa
        e('.p2align 6')
        gen_numa.kd(e, 'probe_kernel', 8)
    return '\n'.join(g.L) + '\n'

if __name__ == '__main__':
    import ast
    for spec in sys.argv[1:]:
        name, _, opts = spec.partition(':')
        kw = {}
        for o in filter(None, opts.split(',')):
            k_, v_ = o.split('=')
            v_ = v_.replace('/', ',')
            try: kw[k_] = ast.literal_eval(v_)
            except Exception: kw[k_] = v_
        open(name, 'w').write(gen(**kw))
```

```python
import sys, math, struct
NAME = 'concat_heads__gqa_block_cached__sliding_block_cached__decode'

def f32(x):
    return '0x%08x' % struct.unpack('<I', struct.pack('<f', x))[0]
def br4(i):
    return ((i & 1) << 3) | ((i & 2) << 1) | ((i & 4) >> 1) | ((i & 8) >> 3)

QP = 0x000000
YP = QP
OP = 0x100000
ST = 0x140000
EP = 0x150000
RC = 0x160000
EV = 0x180000
PP = 0x200000
WS_USED = 0x400000
STAMP = 0x40000000

L_Q = 0
L_CNT = 512
L_LVL = 516
L_CN2 = 520
L_EV = 528
L_KAP = 544
L_CN3 = 552
L_RED = 1024
L_O = 1024 + 8192
L_ST = 768
L_W = L_O + 4096
WROW = 272
LDS_BYTES = L_W + 128 * WROW
SPIN = 1 << 17
DPPF = 'row_mask:0xf bank_mask:0xf'

class G:
    def __init__(s): s.L = []; s.n = 0
    def e(s, x): s.L.append(x)
    def lab(s, p):
        s.n += 1
        return f'L_{p}{s.n}'

def gen(D=5, DB=None, diag=False, pol='nt', wqfirst=False, hdiag=False, probe_t=None, tlb=0, boost=(2, 8), wfirst=1, early=1, DW=5, nbuf=3, slp3=0, slp4=0, stp='sc1', ldp='sc1', pretouch=0, outp='', rc=(5, 6, 7), endb=2, dmax=15, rordir=1, wgstat=1, cpre=0, light=0, bar3=1, mretry=1, fin1=0, th=(3, 6), cks=(8,12,16,20,24,28,31,34,37), rcat=7, pat=1, numa=1, shA=4, shB=4, shV=6, truth=0, forcex=None, lvl0=1, resets=(), rcg=1, pside=18, clip=200, rcv=(4.5, 5, 6), ppst='sc1', ppld='sc1'):
    ppst = ppst.replace('_', ' '); ppld = ppld.replace('_', ' ')
    stp = stp.replace('_', ' '); ldp = ldp.replace('_', ' '); outp = outp.replace('_', ' ')
    DB = DB or D
    g = G(); e = g.e
    if truth:
        e('; @launch kernel=probe_kernel grid=(128,1,1) block=(64,1,1) lds=0')
        e(f'; @launch kernel={NAME}_kernel grid=(256,1,1) block=(512,1,1) lds={LDS_BYTES}')
    else:
        e(f'; @launch grid=(256,1,1) block=(512,1,1) lds={LDS_BYTES}')
    e('.amdgcn_target "amdgcn-amd-amdhsa--gfx950"')
    if truth:
        import gen_numa2
        gen_numa2.probe(lambda x: e(x + ('\ns_add_u32 s13, s13, 0x600000' if x == 's_lshl_b32 s13, s2, 2' else '')))
    e('.text')
    e(f'.globl {NAME}_kernel')
    e('.p2align 8')
    e(f'.type {NAME}_kernel,@function')
    e(f'{NAME}_kernel:')
    sAx, sAk, sAv, sAwq, sAwo, sBx, sBk, sBv = 16, 18, 20, 22, 24, 26, 28, 30
    sBwq, sBwo, sOut, sDbg, sWs = 32, 34, 36, 38, 40
    sW, sH, sJ, sB, sSide = 42, 43, 44, 45, 46
    sT0, sT1, sT2, sT3 = 47, 48, 49, 50
    sSlab, sSpin = 51, 52
    sE, sTag, sNF = 74, 75, 76
    e('s_cmp_ge_u32 s2, 256')
    e('s_cbranch_scc1 L_end')
    e('s_load_dwordx16 s[16:31], s[0:1], 0')
    e('s_load_dwordx8 s[32:39], s[0:1], 64')
    e('s_load_dwordx2 s[40:41], s[0:1], 96')
    if diag or hdiag or probe_t is not None: e('s_memrealtime s[80:81]')
    e('v_lshrrev_b32 v1, 6, v0')
    e('v_and_b32 v0, 63, v0')
    e(f'v_readfirstlane_b32 s{sW}, v1')
    e(f's_lshr_b32 s{sH}, s2, 3')
    e(f's_and_b32 s{sJ}, s2, 7')
    e(f's_and_b32 s{sB}, s2, 3')
    e(f's_lshr_b32 s{sSide}, s{sJ}, 2')
    e('s_mov_b32 s7, 0x20000')
    e('s_mov_b32 s11, 0x20000')
    e(f's_mov_b32 s10, {WS_USED if not diag else 0x41000000}')
    e(f's_mov_b32 s{sNF}, 0xffffff00')
    e(f's_cmp_ge_u32 s{sW}, 4')
    e('s_cbranch_scc1 L_service')

    def stamp(idx, only_wave=None):
        if probe_t == idx:
            e('s_memrealtime s[86:87]'); e('s_waitcnt lgkmcnt(0)')
        if not diag: return
        l = g.lab('st')
        if only_wave is not None:
            e(f's_cmp_lg_u32 s{sW}, {only_wave}')
            e(f's_cbranch_scc1 {l}')
        e(f's_memrealtime s[82:83]')
        e('s_waitcnt lgkmcnt(0)')
        e(f'v_writelane_b32 v254, s82, {idx}')
        e(f'v_writelane_b32 v255, s83, {idx}')
        e(f'{l}:')
    def flush_stamps(idxs):
        if probe_t in idxs:
            l = g.lab('pt')
            e('s_cmp_lg_u32 s2, 0'); e(f's_cbranch_scc1 {l}x')
            if probe_t == 0: e('s_mov_b32 s86, s80')
            e('s_sub_u32 s86, s86, s80'); e('s_mul_i32 s86, s86, 10'); e('s_add_u32 s86, s86, 20000')
            e(f'{l}:'); e('s_memrealtime s[82:83]'); e('s_waitcnt lgkmcnt(0)'); e('s_sub_u32 s82, s82, s80')
            e('s_cmp_lt_u32 s82, s86'); e(f's_cbranch_scc1 {l}')
            e(f'{l}x:')
        if not diag: return
        m = sum(1 << i for i in idxs)
        e('s_lshl_b32 s84, s2, 7'); e(f's_add_u32 s84, s84, {STAMP}')
        e('s_mov_b64 exec, -1')
        e('v_lshlrev_b32 v253, 3, v0')
        e(f's_mov_b64 exec, {m}')
        e('buffer_store_dwordx2 v[254:255], v253, s[8:11], s84 offen')
    def load_epoch():
        e(f's_mov_b32 s{sE}, {EP}')
        e(f's_load_dword s{sE}, s[{sWs}:{sWs+1}], s{sE}')
    def make_tag(vTag):
        e(f's_add_u32 s{sE}, s{sE}, 1')
        e(f's_and_b32 s{sTag}, s{sE}, 0xff')
        e(f'v_mov_b32 v{vTag}, s{sTag}')
    def tag(r, vTag):
        e(f'v_and_or_b32 v{r}, v{r}, s{sNF}, v{vTag}')
    def check(regs, t, vTag):
        regs = list(regs)
        for r in regs: e(f'v_xor_b32 v{r}, v{r}, v{vTag}')
        e(f'v_or3_b32 v{t}, v{regs[0]}, v{regs[1]}, v{regs[2]}')
        rest = regs[3:]
        while len(rest) >= 2:
            e(f'v_or3_b32 v{t}, v{t}, v{rest[0]}, v{rest[1]}'); rest = rest[2:]
        e(f'v_bitop3_b32 v{t}, v{t}, v{rest[0]}, s{sNF} bitop3:0x54')
        e(f'v_cmp_ne_u32 vcc, 0, v{t}')

    sX4a, sX4b, sOo = 90, 91, 85
    def x4_setup(vR, vX4, vOut):
        e(f'v_bfe_u32 v{vR}, v0, 2, 3')
        e(f'v_lshlrev_b32 v{vX4}, 12, v{vR}')
        e(f'v_lshrrev_b32 v{vR}, 5, v0')
        e(f'v_lshl_add_u32 v{vX4}, v{vR}, 17, v{vX4}')
        e(f'v_and_b32 v{vR}, 3, v0')
        e(f'v_lshl_add_u32 v{vX4}, v{vR}, 4, v{vX4}')
        e(f'v_lshlrev_b32 v{vOut}, 3, v{vR}')
        e(f'v_bfe_u32 v{vR}, v0, 2, 2')
        e(f'v_lshl_add_u32 v{vOut}, v{vR}, 1, v{vOut}')
        e(f's_bfe_u32 s{sT0}, s{sH}, 0x20002')
        e(f's_lshl_b32 s{sT1}, s{sJ}, 1'); e(f's_lshr_b32 s{sT2}, s{sH}, 4'); e(f's_or_b32 s{sT1}, s{sT1}, s{sT2}')
        e(f's_xor_b32 s{sT1}, s{sT1}, s{sT0}'); e(f's_lshl_b32 s{sT1}, s{sT1}, 8')
        e(f's_lshl_b32 s{sT0}, s{sT0}, 15'); e(f's_add_u32 s{sT0}, s{sT0}, s{sT1}')
        e(f's_and_b32 s{sT1}, s{sH}, 3'); e(f's_lshl_b32 s{sT1}, s{sT1}, 6'); e(f's_add_u32 s{sT0}, s{sT0}, s{sT1}')
        e(f's_add_u32 s{sX4a}, s{sT0}, {YP}')
        e(f's_add_u32 s{sX4b}, s{sX4a}, 0x40000')
        e(f's_lshl_b32 s{sT0}, s{sJ}, 8'); e(f's_bfe_u32 s{sT1}, s{sH}, 0x20001'); e(f's_lshl_b32 s{sT1}, s{sT1}, 11'); e(f's_add_u32 s{sOo}, s{sT0}, s{sT1}')
        e(f's_lshr_b32 s{sT1}, s{sH}, 3'); e(f's_lshl_b32 s{sT1}, s{sT1}, 6'); e(f's_add_u32 s{sOo}, s{sOo}, s{sT1}')
        e(f's_and_b32 s{sT1}, s{sH}, 1'); e(f's_lshl_b32 s{sT1}, s{sT1}, 5'); e(f's_add_u32 s{sOo}, s{sOo}, s{sT1}')
        e(f's_mov_b32 s12, s{sOut}'); e(f's_mov_b32 s13, s{sOut+1}'); e('s_mov_b32 s14, 8192')
        e('s_mov_b32 s15, 0x20000')
    def x4_code(vR, vX4, vOut, vTg2):
        e(f's_mov_b32 s{sSpin}, {SPIN}')
        e('L_x4spin:')
        for k in range(2):
            e(f'buffer_load_dwordx4 v[{vR + 4*k}:{vR + 4*k + 3}], v{vX4}, s[8:11], s{sX4a + k} offen {ldp}')
        e(f's_sub_u32 s{sSpin}, s{sSpin}, 1')
        e('s_cbranch_scc1 L_x4out')
        e('s_waitcnt vmcnt(0)')
        check(range(vR, vR + 8), vR + 8, vTg2)
        if mretry:
            e('s_and_b64 exec, exec, vcc')
            e('s_cbranch_scc1 L_x4spin')
        else:
            e('s_cbranch_vccnz L_x4spin')
        e('L_x4out:')
        e('s_mov_b64 exec, -1')
        e('s_waitcnt vmcnt(0)')
        for r in range(4): e(f'v_add_f32 v{vR + r}, v{vR + r}, v{vR + 4 + r}')
        e(f'v_add_f32_dpp v{vR+4}, v{vR}, v{vR} row_ror:8 row_mask:0xf bank_mask:0x3')
        e(f'v_add_f32_dpp v{vR+5}, v{vR+1}, v{vR+1} row_ror:8 row_mask:0xf bank_mask:0x3')
        e(f'v_add_f32_dpp v{vR+4}, v{vR+2}, v{vR+2} row_ror:8 row_mask:0xf bank_mask:0xc')
        e(f'v_add_f32_dpp v{vR+5}, v{vR+3}, v{vR+3} row_ror:8 row_mask:0xf bank_mask:0xc')
        e('s_nop 0')
        e(f'v_add_f32_dpp v{vR}, v{vR+4}, v{vR+4} row_shl:4 row_mask:0xf bank_mask:0x5')
        e(f'v_add_f32_dpp v{vR}, v{vR+5}, v{vR+5} row_shr:4 row_mask:0xf bank_mask:0xa')
        for sw in ('v_permlane16_swap_b32', 'v_permlane32_swap_b32'):
            e(f'v_mov_b32 v{vR+1}, v{vR}')
            e('s_nop 1')
            e(f'{sw} v{vR+1}, v{vR}')
            e('s_nop 0')
            e(f'v_add_f32 v{vR}, v{vR}, v{vR+1}')
        e(f'v_cvt_pk_bf16_f32 v{vR}, v{vR}, v{vR}')
        e('s_mov_b64 exec, 0xffff')
        e(f'buffer_store_short v{vR}, v{vOut}, s[12:15], s{sOo} offen {outp}')
        stamp(12)
        flush_stamps([12] if fin1 else [5, 6, 7, 8, 9, 10, 11, 12])
        e('s_cmp_lg_u32 s2, 0')
        e('s_cbranch_scc1 L_end')
        e('s_mov_b64 exec, 1')
        e(f'v_mov_b32 v{vR+2}, s{sE}')
        e(f's_mov_b32 s{sT0}, {EP}')
        e(f'buffer_store_dword v{vR+2}, off, s[8:11], s{sT0}')
        if hdiag:
            e('s_memrealtime s[82:83]'); e('s_waitcnt lgkmcnt(0)'); e('s_sub_u32 s82, s82, s80')
            e(f's_mov_b32 s12, s{sDbg}'); e(f's_mov_b32 s13, s{sDbg+1}'); e('s_mov_b32 s14, 256')
            e(f'v_mov_b32 v{vR+3}, s82')
            e(f'buffer_store_dword v{vR+3}, off, s[12:15], 0')

    X0, X1, X2 = 60, 124, 188
    vOff = 2; vL16 = 6; vPd = 7; vQ = 8; vS = 12; vT = 20; vMask = 44; vAcc = 48; vAccB = 52; vP = 56
    vPA = 124
    vSt = 132; vMl = 136; vR2 = 140; vStA = 152; vTg = 153; vF = 154; vOa = 155
    sOff, sN = 53, 54
    sM3, sM4 = 60, 62
    sC = 64
    sFA0, sFA1, sFB = 67, 68, 69
    sWb, sSeg = 72, 73
    sHk = 70
    sVk = 78; sKK = 55; sKV = 66; sX = 77; sPPa = 14; sPPb = 15; s7f = 13
    vPat = 160; vPs = 164; vPPa = 168; vPPb = 169
    e(f's_lshl_b32 s{sT0}, s{sB}, 5')
    e(f's_add_u32 s{sT0}, s{sT0}, s{sH}')
    e(f's_lshl_b32 s{sSlab}, s{sT0}, 21')
    e(f'v_lshlrev_b32 v{vL16}, 4, v0')
    e(f'v_bfe_u32 v{vOff+1}, v0, 4, 1')
    e(f'v_lshl_add_u32 v{vOff}, v{vOff+1}, 15, v{vL16}')
    e(f'v_lshrrev_b32 v{vOff+1}, 5, v0')
    e(f'v_lshl_add_u32 v{vOff}, v{vOff+1}, 13, v{vOff}')
    e(f's_lshl_b32 s{sT0}, s{sW}, 8')
    e(f'v_xor_b32 v{vOff}, s{sT0}, v{vOff}')
    if pat == 1:
        e(f's_lshl_b32 s{sT0}, s{sSide}, 13')
        e(f'v_xor_b32 v{vOff}, s{sT0}, v{vOff}')
    for j in range(1, 4):
        e(f'v_xor_b32 v{vOff+j}, {(j << 8) | ((j >> 1) << 16 if pat == 1 else 0)}, v{vOff}')
    e(f's_and_b32 s{sT0}, s{sW}, 1')
    e(f's_lshl_b32 s{sT0}, s{sT0}, 12')
    e(f's_add_u32 s{sWb}, s{sSlab}, s{sT0}')
    e(f's_lshr_b32 s{sT0}, s{sW}, 1')
    e(f's_lshl_b32 s{sT0}, s{sT0}, 14')
    e(f's_add_u32 s{sWb}, s{sWb}, s{sT0}')
    if pat == 0:
        e(f's_lshl_b32 s{sT0}, s{sSide}, 16')
        e(f's_add_u32 s{sWb}, s{sWb}, s{sT0}')
    e(f's_add_u32 s{sOff}, s{sWb}, 0x180000')
    e('s_mov_b32 s6, 0x10000000')
    e('s_waitcnt lgkmcnt(0)')
    e(f's_mov_b32 s4, s{sBk}'); e(f's_mov_b32 s5, s{sBk+1}')
    if diag: e('s_memrealtime s[92:93]')
    def issue(buf, i):
        v = buf + 4 * i
        e(f'buffer_load_dwordx4 v[{v}:{v+3}], v{vOff + (i >> 2)}, s[4:7], s{sOff} offen offset:{(i & 3) * 1024} {pol}')
    allhooks = [3, 4, 7, 8, 16, 22, 23, 24, 30, 31, 32, 39, 40] + ([26] if wgstat else [])
    vkind = list(range(5, 9)) + list(range(25, 41))
    def mask64(ns): return sum(1 << n for n in ns)
    def setup():
        load_epoch()
        e(f's_mov_b32 s8, s{sWs}'); e(f's_mov_b32 s9, s{sWs+1}')
        if diag:
            e('v_writelane_b32 v254, s80, 0'); e('v_writelane_b32 v255, s81, 0')
        e(f's_mov_b32 s{sM3}, 0xcccccccc'); e(f's_mov_b32 s{sM3+1}, 0xcccccccc')
        e(f's_mov_b32 s{sM4}, 0xaaaaaaaa'); e(f's_mov_b32 s{sM4+1}, 0xaaaaaaaa')
        e(f's_mov_b32 s{sC}, {f32(128 ** -0.5 * math.log2(math.e))}')
        m = mask64(allhooks)
        e(f's_mov_b32 s{sHk}, 0x{m & 0xffffffff:08x}'); e(f's_mov_b32 s{sHk+1}, 0x{m >> 32:08x}')
        e(f'v_and_b32 v{vT}, 15, v0')
        e(f'v_lshlrev_b32 v1, 4, v{vT}')
        e(f'v_and_b32 v{vT+1}, 1, v0')
        e(f'v_lshlrev_b32 v{vT+1}, 4, v{vT+1}')
        e(f'v_mov_b32 v{vT+2}, 0xffff')
        e(f'v_lshlrev_b32 v{vT+2}, v{vT+1}, v{vT+2}')
        e(f'v_lshrrev_b32 v{vT}, 1, v{vT}')
        for r in range(4):
            e(f'v_cmp_eq_u32 vcc, {4 + r}, v{vT}')
            e(f'v_mov_b32 v{vAcc + r}, 0')
            e(f'v_mov_b32 v{vS + r}, 0xff800000')
            e(f'v_cndmask_b32 v{vMask + r}, 0, v{vT+2}, vcc')
        e(f'v_mov_b32 v{vS + 4}, 0xff800000'); e(f'v_mov_b32 v{vS + 5}, 0xff800000')
    k = 0
    kbar = early if wfirst else DB
    bufs = (X1, X2, X0) if nbuf == 3 else (X1, X0)
    if kbar == 0:
        setup(); e('s_barrier')
    for buf in bufs:
        for i in range(16):
            if k >= DB: e(f's_waitcnt vmcnt({DB-1})')
            issue(buf, i)
            k += 1
            if k == kbar:
                if wfirst: setup()
                e('s_barrier')
                if diag: e('s_memrealtime s[94:95]')
                if not wfirst: setup()
        e(f's_add_u32 s{sOff}, s{sOff}, 0x20000')
    stamp(1, 0)
    e('s_barrier')
    e(f'ds_read_b128 v[{vQ}:{vQ+3}], v1 offset:{L_Q + 256}')
    e('s_waitcnt lgkmcnt(0)')
    stamp(2, 0)
    if diag:
        e('v_writelane_b32 v252, s80, 44'); e('v_writelane_b32 v252, s92, 45'); e('v_writelane_b32 v252, s94, 46')

    sCk, sRc, sRk, sIsC = 56, 58, 59, 65
    vLv = 156; vZz = 157; sRs = 86
    def body_begin(tagn):
        if diag:
            e('s_memrealtime s[82:83]'); e('s_mov_b32 m0, s%d' % sN); e('s_waitcnt lgkmcnt(0)')
            e('v_writelane_b32 v252, s82, m0')
        if not rc: return
        e(f's_bitcmp1_b64 s[{sCk}:{sCk+1}], s{sN}')
        e(f's_cselect_b32 s{sIsC}, 1, 0')
        e(f's_cbranch_scc0 L_nt{tagn}')
        e(f's_mov_b32 s{sRk}, 1')
        e(f's_atomic_add s{sRk}, s[{sWs}:{sWs+1}], s{sRc} glc')
        e(f's_add_u32 s{sRc}, s{sRc}, 8192')
        e(f'L_nt{tagn}:')
        setflags()
    def setflags():
        if endb:
            e(f's_cmp_ge_u32 s{sN}, {41 - endb}')
            e(f's_cselect_b32 s{sT3}, 3, s{sT3}')
        e(f's_bitcmp0_b32 s{sT3}, 0')
        e('s_cselect_b64 vcc, -1, 0')
        e(f's_cmp_ge_u32 s{sT3}, 2')
    def throttle(tagn, i):
        if not rc:
            if boost and tagn == 'v':
                e(f's_cbranch_scc1 L_vb{i}')
                e(f's_waitcnt vmcnt({D-1})')
                e(f'L_vb{i}:')
                e(f's_waitcnt vmcnt({boost[1]-1})')
            else:
                e(f's_waitcnt vmcnt({D-1})')
            return
        if i == rcat:
            e(f's_cmp_eq_u32 s{sIsC}, 0')
            e(f's_cbranch_scc1 L_nu{tagn}')
            e('s_waitcnt lgkmcnt(0)')
            e(f's_cmp_ge_u32 s{sRk}, {th[0]}'); e(f's_cselect_b32 s{sT0}, 1, 0')
            e(f's_cmp_ge_u32 s{sRk}, {th[1]}'); e(f's_cselect_b32 s{sT0}, 2, s{sT0}')
            e(f'v_mov_b32 v{vLv}, s{sT0}')
            e(f'ds_write_b32 v{vZz}, v{vLv} offset:{L_LVL}')
            e(f'L_nu{tagn}:')
            if resets:
                e(f's_bitcmp1_b64 s[{sRs}:{sRs+1}], s{sN}')
                e(f's_cbranch_scc0 L_nv{tagn}')
                e(f'v_mov_b32 v{vLv}, 1')
                e(f'ds_write_b32 v{vZz}, v{vLv} offset:{L_LVL}')
                e(f'L_nv{tagn}:')
            e(f's_cmp_ge_u32 s{sT3}, 2')
        if i == rcat + 2:
            e(f'ds_read_b32 v{vLv}, v{vZz} offset:{L_LVL}')
        if i == rcat + 3:
            e('s_waitcnt lgkmcnt(0)')
            e(f'v_readfirstlane_b32 s{sT3}, v{vLv}')
            setflags()
        fr = (0, 0.5, 0.25, 0.75)[i & 3]
        dd = [int(x + fr) for x in (rcv if (rcv and tagn == 'v') else rc)]
        if endb and tagn == 'v':
            e(f's_waitcnt vmcnt({dmax-1})')
            e(f's_cbranch_scc0 L_lo{i}')
            e(f's_cbranch_vccz L_go{tagn}{i}')
            e(f'L_lo{i}:')
        e(f's_waitcnt vmcnt({dd[2]-1})')
        e(f's_cbranch_scc1 L_go{tagn}{i}')
        e(f's_waitcnt vmcnt({dd[1]-1})')
        if dd[0] != dd[1]:
            e(f's_cbranch_vccz L_go{tagn}{i}')
            e(f's_waitcnt vmcnt({dd[0]-1})')
        e(f'L_go{tagn}{i}:')
    def kops(buf, T):
        dots = [[] for _ in range(20)]
        post = [[] for _ in range(20)]
        d = [T, T + 1, T + 2]
        for i in range(16):
            t = d[i % 3]; kk = buf + 4 * i
            dots[i].append(f'v_dot2_f32_bf16 v{t}, v{kk}, v{vQ}, 0')
            for r in range(1, 4):
                dots[i].append(f'v_dot2_f32_bf16 v{t}, v{kk + r}, v{vQ + r}, v{t}')
            a = T + 3 + ((i >> 1) & 1)
            b = T + 5 + ((i >> 2) & 1)
            bm1 = '0x3' if i % 2 == 0 else '0xc'
            bm2 = '0x5' if (i >> 1) % 2 == 0 else '0xa'
            post[i + 1].append(f'v_add_f32_dpp v{a}, v{t}, v{t} row_ror:8 row_mask:0xf bank_mask:{bm1}')
            if i % 2 == 1:
                post[i + 2].append(f'v_add_f32_dpp v{b}, v{a}, v{a} row_half_mirror row_mask:0xf bank_mask:{bm2}')
            if i % 4 == 3:
                post[i + 3].append(f'v_add_f32_dpp v{b}, v{b}, v{b} quad_perm:[2,3,0,1] {DPPF}')
            if i % 8 == 7:
                c = T + 7 if i == 7 else T + 5
                post[i + 3].append(f'v_cndmask_b32 v{c}, v{T+5}, v{T+6}, s[{sM3}:{sM3+1}]')
                post[i + 4].append(f'v_add_f32_dpp v{c}, v{c}, v{c} quad_perm:[1,0,3,2] {DPPF}')
        return [dots[i] + post[i] for i in range(20)]
    def kfinal(T, dst):
        return f'v_cndmask_b32 v{dst}, v{T+7}, v{T+5}, s[{sM4}:{sM4+1}]'
    def ktail(stepsets):
        for s_ in range(16, 20):
            e('s_nop 2' if s_ == 16 else 's_nop 1')
            for st in stepsets:
                for op in st[s_]: e(op)

    sets = [kops(X0, vT), kops(X1, vT + 8), kops(X2, vT + 16)][:nbuf]
    for i in range(16):
        for op in sets[0][i]: e(op)
        e(f's_waitcnt vmcnt({DB-1})')
        issue(X0, i)
        for st in sets[1:]:
            for op in st[i]: e(op)
    ktail(sets)
    if nbuf == 3:
        e(kfinal(vT + 8, vS + 5)); e(kfinal(vT + 16, vS + 6)); e(kfinal(vT, vS + 7))
    else:
        e(kfinal(vT + 8, vS + 6)); e(kfinal(vT, vS + 7))
    make_tag(vTg)
    if nbuf == 3:
        e(f's_mov_b32 s4, s{sBv}'); e(f's_mov_b32 s5, s{sBv+1}')
        e(f's_add_u32 s{sOff}, s{sWb}, 0x180000')
    else:
        e(f's_add_u32 s{sOff}, s{sOff}, 0x20000')
    e(f's_mov_b32 s{sN}, {nbuf + 1}')
    e(f's_mov_b32 s{sSeg}, 2')
    e(f'v_mov_b32 v{vZz}, 0')
    m = mask64(vkind)
    e(f's_mov_b32 s{sVk}, 0x{m & 0xffffffff:08x}'); e(f's_mov_b32 s{sVk+1}, 0x{m >> 32:08x}')
    e(f's_mov_b32 s{sKK}, 0'); e(f's_mov_b32 s{sKV}, 0'); e(f's_mov_b32 s{sX}, 0')
    if rc:
        m = mask64(cks)
        e(f's_cmp_eq_u32 s{sW}, 0')
        e(f's_cselect_b32 s{sCk}, 0x{m & 0xffffffff:08x}, 0'); e(f's_cselect_b32 s{sCk+1}, 0x{m >> 32:08x}, 0')
        m = mask64(resets)
        e(f's_cselect_b32 s{sRs}, 0x{m & 0xffffffff:08x}, 0'); e(f's_cselect_b32 s{sRs+1}, 0x{m >> 32:08x}, 0')
        e(f's_lshl_b32 s{sRc}, s{sH}, 8'); e(f's_add_u32 s{sRc}, s{sRc}, {RC}')
        e(f's_mov_b32 s{sT3}, {lvl0}')
    stamp(3, 0)

    e('L_kbody:')
    ks = kops(X0, vT)
    body_begin('k')
    for i in range(16):
        for op in ks[i]: e(op)
        if i < 7: e(f'v_mov_b32 v{vS + i}, v{vS + i + 1}')
        throttle('k', i)
        issue(X0, i)
    ktail([ks])
    e(kfinal(vT, vS + 7))
    e(f's_bitcmp1_b64 s[{sHk}:{sHk+1}], s{sN}')
    e('s_cbranch_scc1 L_hooks')
    e(f's_add_u32 s{sOff}, s{sOff}, 0x20000')
    e(f's_add_u32 s{sN}, s{sN}, 1')
    e('s_branch L_kbody')

    e('L_vbody:')
    e(f'v_and_b32 v{vPd}, 0xffff, v{vP}')
    e(f'v_lshl_or_b32 v{vPd}, v{vPd}, 16, v{vPd}')
    for r in range(3):
        e(f'v_alignbit_b32 v{vP + r}, v{vP + r + 1}, v{vP + r}, 16')
    e(f'v_lshrrev_b32 v{vP+3}, 16, v{vP+3}')
    def vand(i):
        a = vS + 4 * (i & 1)
        for r in range(4):
            e(f'v_and_b32_dpp v{a + r}, v{vPd}, v{vMask + r} row_newbcast:{br4(i)} {DPPF}')
    if boost and not rc: e(f's_cmp_ge_u32 s{sN}, {40 - boost[0]}')
    body_begin('v')
    vand(0)
    for i in range(16):
        if i < 15: vand(i + 1)
        a = vS + 4 * (i & 1); v = X0 + 4 * i
        e(f'v_mfma_f32_16x16x32_bf16 v[{vAcc}:{vAcc+3}], v[{a}:{a+3}], v[{v}:{v+3}], v[{vAcc}:{vAcc+3}]')
        throttle('v', i)
        issue(X0, i)
    e(f's_bitcmp1_b64 s[{sHk}:{sHk+1}], s{sN}')
    e('s_cbranch_scc1 L_hooks')
    e(f's_add_u32 s{sOff}, s{sOff}, 0x20000')
    e(f's_add_u32 s{sN}, s{sN}, 1')
    e('s_branch L_vbody')

    e('L_hooks:')
    T = vT
    e(f's_cmp_eq_u32 s{sN}, 40'); e('s_cbranch_scc1 L_sfin')
    for n in (39, 7, 8, 22, 23, 26, 30, 31, 32, 3):
        e(f's_cmp_eq_u32 s{sN}, {n}'); e(f's_cbranch_scc1 L_h{n}')
    def kspin(off, dst):
        l = g.lab('ks')
        e(f's_mov_b32 s{sSpin}, {SPIN * 8}')
        e(f'{l}:')
        e(f'ds_read_b32 v{T}, v{vZz} offset:{off}')
        e(f's_sub_u32 s{sSpin}, s{sSpin}, 1')
        e(f's_cbranch_scc1 {l}x')
        e('s_waitcnt lgkmcnt(0)')
        e(f'v_cmp_eq_u32 vcc, -1, v{T}')
        e(f's_cbranch_vccnz {l}')
        e(f'{l}x:')
        e('s_waitcnt lgkmcnt(0)')
        e(f'v_readfirstlane_b32 s{dst}, v{T}')
        e(f's_and_b32 s{dst}, s{dst}, 1')
    def pcheck(regs, seg):
        l = g.lab('pc')
        e(f's_cmp_eq_u32 s{sX}, 0'); e(f's_cbranch_scc1 {l}x')
        e(f's_mov_b32 s{sSpin}, {SPIN}')
        e(f'{l}:')
        for r in range(4): e(f'v_xor_b32 v{regs + r}, v{regs + r}, v{vPat + r}')
        e(f'v_or3_b32 v{T}, v{regs}, v{regs+1}, v{regs+2}')
        e(f'v_or_b32 v{T}, v{T}, v{regs+3}')
        e(f'v_and_b32 v{T}, 0x80008000, v{T}')
        e(f'v_cmp_ne_u32 vcc, 0, v{T}')
        e(f's_cbranch_vccz {l}x')
        e(f's_sub_u32 s{sSpin}, s{sSpin}, 1')
        e(f's_cbranch_scc1 {l}x')
        pload(regs, seg)
        e('s_waitcnt vmcnt(0)')
        e(f's_branch {l}')
        e(f'{l}x:')
    def pload(regs, seg):
        e(f'buffer_load_dwordx4 v[{regs}:{regs+3}], v{vPPa + seg}, s[8:11], s{sPPb} offen {ppld}')
    for r in range(4): e(f'v_mov_b32 v{vP + r}, v{vPA + r}')
    e(f'v_max3_f32 v{T}, v{vS}, v{vS+1}, v{vS+2}')
    e(f'v_max3_f32 v{T+1}, v{vS+3}, v{vS+4}, v{vS+5}')
    e(f'v_max3_f32 v{T}, v{T}, v{vS+6}, v{vS+7}')
    e(f'v_max_f32 v{T}, v{T}, v{T+1}')
    def rowred(op, r):
        for ctl in ('quad_perm:[1,0,3,2]', 'quad_perm:[2,3,0,1]', 'row_half_mirror', 'row_mirror'):
            e('s_nop 1')
            e(f'{op}_dpp v{r}, v{r}, v{r} {ctl} {DPPF}')
    def allred(op, r, tmp):
        rowred(op, r)
        for sw in ('v_permlane16_swap_b32', 'v_permlane32_swap_b32'):
            e(f'v_mov_b32 v{tmp}, v{r}')
            e('s_nop 1')
            e(f'{sw} v{tmp}, v{r}')
            e('s_nop 1')
            e(f'{op} v{r}, v{r}, v{tmp}')
    allred('v_max_f32', T, T + 1)
    e(f'v_mul_f32 v{T+2}, s{sC}, v{T}')
    for r in range(8): e(f'v_fma_f32 v{vS + r}, v{vS + r}, s{sC}, -v{T+2}')
    for r in range(8): e(f'v_exp_f32 v{vS + r}, v{vS + r}')
    e(f'v_cmp_eq_u32 vcc, s{sSeg}, v0')
    for r in range(4): e(f'v_cvt_pk_bf16_f32 v{vPA + r}, v{vS + 2*r}, v{vS + 2*r + 1}')
    e(f'v_cndmask_b32 v{vMl}, v{vMl}, v{T+2}, vcc')
    for r in range(4): e(f'v_add_f32 v{vS + 2*r}, v{vS + 2*r}, v{vS + 2*r + 1}')
    e(f'v_add_f32 v{vS}, v{vS}, v{vS+2}')
    e(f'v_add_f32 v{vS+4}, v{vS+4}, v{vS+6}')
    e(f'v_add_f32 v{T}, v{vS}, v{vS+4}')
    allred('v_add_f32', T, T + 1)
    e(f'v_cndmask_b32 v{vMl+1}, v{vMl+1}, v{T}, vcc')
    e(f's_cmp_eq_u32 s{sN}, 4'); e('s_cbranch_scc0 L_finA')
    e(f'v_mov_b32 v{vP}, v{vPA+2}'); e(f'v_mov_b32 v{vP+1}, v{vPA+3}')
    e(f's_mov_b32 s{sSeg}, 0')
    e(f'ds_read_b128 v[{vQ}:{vQ+3}], v1 offset:{L_Q}')
    e('s_waitcnt lgkmcnt(0)')
    e('s_branch L_h_done')
    e('L_finA:')
    if numa:
        e(f's_cmp_eq_u32 s{sN}, 16'); e('s_cbranch_scc0 L_finA1')
        kspin(L_KAP + 4, sKV)
        if truth:
            e(f's_lshl_b32 s90, s{sKV}, 1'); e('s_or_b32 s89, s89, s90')
            e('v_writelane_b32 v254, s88, 13'); e('v_writelane_b32 v255, s89, 13')
            if truth == 2:
                e(f's_bfe_u32 s{sKV}, s88, 0x10001'); e(f's_xor_b32 s{sKV}, s{sKV}, s{sSide}')
        e(f's_xor_b32 s{sX}, s{sKK}, s{sKV}')
        if forcex is not None: e(f's_mov_b32 s{sX}, {forcex}')
        e('L_finA1:')
        e(f's_cmp_eq_u32 s{sX}, 0'); e('s_cbranch_scc1 L_nops')
        for r in range(4): e(f'v_and_or_b32 v{vPs + r}, v{vPA + r}, s{s7f}, v{vPat + r}')
        e(f's_lshl_b32 s{sT0}, s{sSeg}, 8')
        e(f'v_xor_b32 v{T}, s{sT0}, v{vPPa}')
        e(f'buffer_store_dwordx4 v[{vPs}:{vPs+3}], v{T}, s[8:11], s{sPPa} offen {ppst}')
        e('L_nops:')
    e(f's_mov_b32 s{sSeg}, 1')
    e(f's_cmp_eq_u32 s{sN}, 24'); e('s_cbranch_scc0 L_h_done')
    stamp(14, 0)
    e(f's_lshl_b32 s{sT0}, s2, 8'); e(f's_lshl_b32 s{sT1}, s{sW}, 6'); e(f's_add_u32 s{sT0}, s{sT0}, s{sT1}')
    e(f's_add_u32 s{sT0}, s{sT0}, {ST}')
    e(f'v_mov_b32 v{vMl+2}, s{sE}'); e(f'v_mov_b32 v{vMl+3}, s{sE}')
    if wgstat: e(f'v_add_u32 v{T}, s{sT1}, v{vL16}')
    e('s_mov_b64 exec, 15')
    if wgstat: e(f'ds_write_b128 v{T}, v[{vMl}:{vMl+3}] offset:{L_ST}')
    else: e(f'buffer_store_dwordx4 v[{vMl}:{vMl+3}], v{vL16}, s[8:11], s{sT0} offen sc1')
    e('s_mov_b64 exec, -1')
    e('s_branch L_h_done')
    e('L_h8:')
    for r in range(4): e(f'v_mov_b32_dpp v{vMask + r}, v{vMask + r} row_ror:8 {DPPF}')
    for r in range(4): e(f'v_mov_b32 v{vAccB + r}, v{vAcc + r}')
    for r in range(4): e(f'v_mov_b32 v{vAcc + r}, 0')
    if numa:
        e(f'v_mul_u32_u24 v{T}, 37, v0')
        e(f'v_xor_b32 v{T}, s{sTag}, v{T}')
        for r in range(4):
            e(f'v_bfe_u32 v{T+1}, v{T}, {2*r}, 1')
            e(f'v_bfe_u32 v{T+2}, v{T}, {2*r+1}, 1')
            e(f'v_lshlrev_b32 v{T+1}, 15, v{T+1}')
            e(f'v_lshl_or_b32 v{vPat + r}, v{T+2}, 31, v{T+1}')
        e(f's_mov_b32 s{s7f}, 0x7fff7fff')
        e(f'v_lshrrev_b32 v{T}, 4, v0')
        e(f'v_lshl_add_u32 v{vPPa}, v{T}, 15, v{vL16}')
        e(f's_and_b32 s{sT0}, s{sW}, 1'); e(f's_lshl_b32 s{sT0}, s{sT0}, 9')
        e(f'v_xor_b32 v{vPPa}, s{sT0}, v{vPPa}')
        e(f'v_xor_b32 v{vPPb}, 0x100, v{vPPa}')
        e(f's_lshr_b32 s{sT0}, s{sW}, 1'); e(f's_lshl_b32 s{sT0}, s{sT0}, 10')
        e(f's_and_b32 s{sT1}, s2, 15'); e(f's_lshl_b32 s{sT1}, s{sT1}, 11'); e(f's_add_u32 s{sT0}, s{sT0}, s{sT1}')
        e(f's_lshr_b32 s{sT1}, s2, 4'); e(f's_lshl_b32 s{sT1}, s{sT1}, 17'); e(f's_add_u32 s{sT0}, s{sT0}, s{sT1}')
        e(f's_add_u32 s{sPPa}, s{sT0}, {PP}')
        e(f's_xor_b32 s{sPPb}, s{sPPa}, 0x2000')
    e('s_branch L_h_done')
    e('L_h32:')
    for r in range(4): e(f'v_mov_b32_dpp v{vMask + r}, v{vMask + r} row_ror:8 {DPPF}')
    for r in range(4): e(f'v_mov_b32 v{vP + r}, v{vPA + r}')
    e('s_branch L_h_done')
    e('L_h3:')
    e(f's_mov_b32 s4, s{sBv}'); e(f's_mov_b32 s5, s{sBv+1}')
    e(f's_add_u32 s{sOff}, s{sWb}, {0x180000 - 0x20000}')
    e('s_branch L_h_done')
    e('L_h7:')
    stamp(15, 0)
    if numa:
        kspin(L_KAP, sKK)
        if truth:
            e(f's_lshr_b32 s88, s{sSlab}, 19'); e('s_add_u32 s88, s88, 0x600000')
            e(f's_load_dword s88, s[{sWs}:{sWs+1}], s88')
            e('s_waitcnt lgkmcnt(0)')
            e(f's_mov_b32 s89, s{sKK}')
            if truth == 2:
                e(f's_and_b32 s{sKK}, s88, 1'); e(f's_xor_b32 s{sKK}, s{sKK}, s{sSide}')
        for j in range(4): e(f'v_and_b32 v{vOff + j}, 0xffffdfff, v{vOff + j}')
    e(f's_mov_b32 s4, s{sAk}'); e(f's_mov_b32 s5, s{sAk+1}')
    e(f's_lshl_b32 s{sT0}, s{sKK}, 13'); e(f's_add_u32 s{sOff}, s{sWb}, s{sT0}')
    e(f's_sub_u32 s{sOff}, s{sOff}, 0x20000')
    e('s_branch L_h_done')
    e('L_h26:')
    e(f's_cmp_lg_u32 s{sW}, 0'); e('s_cbranch_scc1 L_h_done')
    e('s_mov_b64 exec, 0xffff')
    e(f's_mov_b32 s{sSpin}, {SPIN * 8}')
    e('L_h26s:')
    e(f'ds_read_b128 v[{vMl}:{vMl+3}], v{vL16} offset:{L_ST}')
    e(f's_sub_u32 s{sSpin}, s{sSpin}, 1'); e('s_cbranch_scc1 L_h26x')
    e('s_waitcnt lgkmcnt(0)')
    e(f'v_cmp_ne_u32 vcc, s{sE}, v{vMl+2}')
    e('s_cbranch_vccnz L_h26s')
    e('L_h26x:')
    e('s_waitcnt lgkmcnt(0)')
    e(f's_lshl_b32 s{sT0}, s2, 8'); e(f's_add_u32 s{sT0}, s{sT0}, {ST}')
    e(f'buffer_store_dwordx4 v[{vMl}:{vMl+3}], v{vL16}, s[8:11], s{sT0} offen sc1')
    e('s_mov_b64 exec, -1')
    e('s_branch L_h_done')
    e('L_h22:')
    if numa:
        e(f's_cmp_eq_u32 s{sX}, 0'); e('s_cbranch_scc1 L_h_done')
        pload(vPA, 0)
    e('s_branch L_h_done')
    e('L_h23:')
    if numa: pcheck(vPA, 0)
    e(f's_mov_b32 s4, s{sAv}'); e(f's_mov_b32 s5, s{sAv+1}')
    e(f's_lshl_b32 s{sT0}, s{sKV}, 13'); e(f's_add_u32 s{sOff}, s{sWb}, s{sT0}')
    e(f's_sub_u32 s{sOff}, s{sOff}, 0x20000')
    e('s_branch L_h_done')
    e('L_h39:')
    e('s_mov_b32 s6, 0')
    e('s_branch L_h_done')
    e('L_h30:')
    e(f'v_and_b32 v{T}, 3, v0')
    e(f'v_lshlrev_b32 v{vStA}, 6, v{T}')
    e(f'v_bfe_u32 v{T}, v0, 2, 1')
    e(f'v_lshl_add_u32 v{vStA}, v{T}, 10, v{vStA}')
    e(f'v_lshrrev_b32 v{T}, 3, v0')
    e(f'v_min_u32 v{T}, 2, v{T}')
    e(f'v_lshl_add_u32 v{vStA}, v{T}, 4, v{vStA}')
    e(f's_and_b32 s{sT0}, s2, 0xfb'); e(f's_lshl_b32 s{sT0}, s{sT0}, 8'); e(f's_add_u32 s{sT0}, s{sT0}, {ST}')
    e(f'v_add_u32 v{vStA}, s{sT0}, v{vStA}')
    e(f'buffer_load_dwordx4 v[{vSt}:{vSt+3}], v{vStA}, s[8:11], 0 offen sc1')
    if numa:
        e(f's_cmp_eq_u32 s{sX}, 0'); e('s_cbranch_scc1 L_h_done')
        pload(vPA, 1)
    e('s_branch L_h_done')
    e('L_h31:')
    if numa: pcheck(vPA, 1)
    e(f's_mov_b32 s{sSpin}, {SPIN}')
    e('L_h31s:')
    e(f'v_cmp_ne_u32 vcc, s{sE}, v{vSt+2}')
    e('s_cbranch_vccz L_h31k')
    e(f's_sub_u32 s{sSpin}, s{sSpin}, 1')
    e('s_cbranch_scc1 L_h31k')
    e(f'buffer_load_dwordx4 v[{vSt}:{vSt+3}], v{vStA}, s[8:11], 0 offen sc1')
    e('s_waitcnt vmcnt(0)')
    e('s_branch L_h31s')
    e('L_h31k:')
    e(f'v_mov_b32 v{T}, v{vSt}')
    rowred('v_max_f32', T)
    e(f'v_sub_f32 v{T}, v{vSt}, v{T}')
    e(f'v_exp_f32 v{T}, v{T}')
    e('s_nop 0')
    e(f'v_mul_f32 v{T+1}, v{T}, v{vSt+1}')
    rowred('v_add_f32', T + 1)
    e(f'v_rcp_f32 v{T+1}, v{T+1}')
    e('s_nop 0')
    e(f'v_mul_f32 v{T}, v{T}, v{T+1}')
    e(f's_lshl_b32 s{sT0}, s{sSide}, 2'); e(f's_add_u32 s{sT0}, s{sT0}, s{sW}')
    e(f's_add_u32 s{sT2}, s{sT0}, 16')
    e(f's_lshl_b32 s{sT1}, s{sX}, 2'); e(f's_xor_b32 s{sT0}, s{sT0}, s{sT1}')
    e(f's_add_u32 s{sT1}, s{sT0}, 8')
    e(f'v_readlane_b32 s{sFA0}, v{T}, s{sT0}')
    e(f'v_readlane_b32 s{sFA1}, v{T}, s{sT1}')
    e(f'v_readlane_b32 s{sFB}, v{T}, s{sT2}')
    e('v_cmp_gt_u32 vcc, 32, v0')
    e(f'v_mov_b32 v{T}, s{sFA0}')
    e(f'v_mov_b32 v{T+1}, s{sFA1}')
    e(f'v_cndmask_b32 v{vF}, v{T+1}, v{T}, vcc')
    e(f'v_mov_b32 v{T}, s{sFB}')
    e(f'v_add_f32 v{T}, v{T}, v{T}')
    for r in range(4): e(f'v_mul_f32 v{vAccB + r}, v{T}, v{vAccB + r}')
    e(f'v_lshrrev_b32 v{T}, 5, v0')
    e(f'v_lshlrev_b32 v1, 9, v{T}')
    e(f'v_and_b32 v{T}, 15, v0')
    e(f'v_lshl_add_u32 v1, v{T}, 5, v1')
    e(f'v_and_b32 v{T}, 16, v0')
    e(f'v_add_u32 v1, v{T}, v1')
    e(f's_lshl_b32 s{sT0}, s{sW}, 10')
    e(f'v_add_u32 v1, s{sT0}, v1')
    e('L_h_done:')
    e(f's_add_u32 s{sOff}, s{sOff}, 0x20000')
    e(f's_add_u32 s{sN}, s{sN}, 1')
    e(f's_bitcmp1_b64 s[{sVk}:{sVk+1}], s{sN}')
    e('s_cbranch_scc1 L_vbody')
    e('s_branch L_kbody')
    e('L_sfin:')
    e('s_nop 1')
    for r in range(4): e(f'v_mul_f32 v{vAcc + r}, v{vF}, v{vAcc + r}')
    for r in range(4): e(f'v_permlane32_swap_b32 v{vAcc + r}, v{vAccB + r}')
    for r in range(4): e(f'v_add_f32 v{vAcc + r}, v{vAcc + r}, v{vAccB + r}')
    e(f'ds_write_b128 v1, v[{vAcc}:{vAcc+3}] offset:{L_O}')
    e('s_waitcnt lgkmcnt(0)')
    e('s_barrier')
    if diag:
        e(f's_cmp_lg_u32 s{sW}, 0'); e('s_cbranch_scc1 L_end')
        stamp(4)
        e('s_barrier')
    flush_stamps([0, 1, 2, 3, 4, 13, 14, 15])
    if diag:
        e('s_mov_b64 exec, -1')
        e('s_lshl_b32 s84, s2, 8'); e(f's_add_u32 s84, s84, {STAMP + 0x8000}')
        e('v_lshlrev_b32 v253, 2, v0')
        e('buffer_store_dword v252, v253, s[8:11], s84 offen')
    e('s_endpgm')

    def tlbpf():
        e(f's_lshl_b32 s{sT0}, s{sB}, 5'); e(f's_add_u32 s{sT0}, s{sT0}, s{sH}'); e(f's_lshl_b32 s{sT0}, s{sT0}, 21')
        e(f's_load_dword s77, s[{sAk}:{sAk+1}], s{sT0}')
        e(f's_load_dword s78, s[{sBv}:{sBv+1}], s{sT0}')
        e(f's_load_dword s79, s[{sAv}:{sAv+1}], s{sT0}')
        e(f's_load_dword s60, s[{sOut}:{sOut+1}], 0')
    e('L_service:')
    sU = sB; sBeta = sSide
    sIt, sDst = 53, 54
    vG = 2; vC = 3; vA = 4; vA2 = 5; vL = 6; vZ = 7
    vXA = 8; vWt = 16; vSel = 48; vOpA = 56; vD = 64; vR = 72
    vA3 = 104; vTg = 105; vX3 = 108; vX4 = 109; vOut = 110
    e(f's_sub_u32 s{sW}, s{sW}, 4')
    e(f'v_lshrrev_b32 v{vG}, 4, v0')
    e(f'v_and_b32 v{vC}, 15, v0')
    e(f'v_mov_b32 v{vZ}, 0')
    e(f'ds_write_b32 v{vZ}, v{vZ} offset:{L_CNT}')
    e(f'ds_write_b32 v{vZ}, v{vZ} offset:{L_CN3}')
    if rc:
        e(f'v_mov_b32 v{vA}, {lvl0}')
        e(f'ds_write_b32 v{vZ}, v{vA} offset:{L_LVL}')
    if numa:
        e(f'v_mov_b32 v{vL}, 0')
        e(f'ds_write_b64 v{vZ}, v[{vL}:{vL+1}] offset:{L_CN2}')
        for r in range(4): e(f'v_mov_b32 v{vR + r}, -1')
        e(f'ds_write_b128 v{vZ}, v[{vR}:{vR+3}] offset:{L_EV}')
        e(f'ds_write_b64 v{vZ}, v[{vR}:{vR+1}] offset:{L_KAP}')
    e(f'v_lshlrev_b32 v{vA}, 16, v{vG}')
    e(f'v_lshl_add_u32 v{vA}, v{vC}, 4, v{vA}')
    e(f'v_lshrrev_b32 v{vA2}, 3, v{vC}')
    e(f'v_lshlrev_b32 v{vA2}, 10, v{vA2}')
    e(f'v_lshl_add_u32 v{vA2}, v{vG}, 4, v{vA2}')
    e(f's_lshl_b32 s{sT0}, s{sU}, 7')
    e(f's_lshl_b32 s{sT1}, s{sW}, 5')
    e(f's_add_u32 s{sT0}, s{sT0}, s{sT1}')
    e(f's_lshl_b32 s{sT1}, s{sT0}, 1')
    e(f's_lshl_b32 s{sT0}, s{sT0}, 13')
    e(f's_lshl_b32 s{sT2}, s{sH}, 8')
    e(f's_add_u32 s{sT0}, s{sT0}, s{sT2}')
    e('s_mov_b32 s6, 0x400000')
    e('s_mov_b32 s14, 4096')
    e('s_mov_b32 s15, 0x20000')
    e(f's_cmp_eq_u32 s{sBeta}, 0')
    e('s_waitcnt lgkmcnt(0)')
    e(f's_cselect_b64 s[4:5], s[{sAwq}:{sAwq+1}], s[{sBwq}:{sBwq+1}]')
    e(f's_cselect_b64 s[12:13], s[{sAx}:{sAx+1}], s[{sBx}:{sBx+1}]')
    if diag: e('s_memrealtime s[92:93]')
    for m in range(2):
        e(f'buffer_load_dwordx4 v[{vXA + 4*m}:{vXA + 4*m + 3}], v{vA2}, s[12:15], s{sT1} offen offset:{2048*m}')
    vWo = 112
    def wo_addr(va):
        e(f'v_lshlrev_b32 v{va}, 13, v{vG}')
        e(f'v_lshl_add_u32 v{va}, v{vC}, 4, v{va}')
        e(f's_lshl_b32 s{sT0}, s{sH}, 17')
        e(f's_lshl_b32 s{sT1}, s{sW}, 15')
        e(f's_add_u32 s{sT0}, s{sT0}, s{sT1}')
        e(f's_lshl_b32 s{sT1}, s{sU}, 8')
        e(f's_add_u32 s{sT0}, s{sT0}, s{sT1}')
        e(f's_add_u32 s{sT1}, s{sT0}, 4096')
        e(f's_cmp_eq_u32 s{sBeta}, 0')
        e(f's_cselect_b64 s[4:5], s[{sAwo}:{sAwo+1}], s[{sBwo}:{sBwo+1}]')
    for i in range(8):
        if wfirst and i >= DW: e(f's_waitcnt vmcnt({DW-1})')
        if diag and i == DW: e('s_memrealtime s[94:95]')
        e(f'buffer_load_dwordx4 v[{vWt + 4*i}:{vWt + 4*i + 3}], v{vA}, s[4:7], s{sT0} offen {pol}')
        if i < 7: e(f's_add_u32 s{sT0}, s{sT0}, 8192')
        if i == min(DW, 8) - 1: load_epoch()
    if wfirst == 2:
        wo_addr(vR)
        for i in range(8):
            if 8 + i >= DW: e(f's_waitcnt vmcnt({DW-1})')
            e(f'buffer_load_dwordx4 v[{vWo + 4*i}:{vWo + 4*i + 3}], v{vR}, s[4:7], s{sT0 if i < 4 else sT1} offen offset:{(i & 3) * 1024} {pol}')
    e('s_barrier')
    e(f's_mov_b32 s8, s{sWs}'); e(f's_mov_b32 s9, s{sWs+1}')
    e(f'v_lshlrev_b32 v{vL}, 4, v0')
    e(f'v_mov_b32 v{vX4}, 0'); e(f'v_mov_b32 v{vOut}, 0')
    if rc:
        assert wfirst != 2 and len(cks) <= 16
        e(f's_lshl_b32 s{sT0}, s{sW}, 3'); e(f's_add_u32 s{sT0}, s{sT0}, s{sJ}')
        e(f's_cmp_ge_u32 s{sT0}, {len(cks)}'); e('s_cbranch_scc1 L_norc')
        e(f's_lshl_b32 s{sT0}, s{sT0}, 5'); e(f's_add_u32 s{sT0}, s{sT0}, s{sH}'); e(f's_lshl_b32 s{sT0}, s{sT0}, 8'); e(f's_add_u32 s{sT0}, s{sT0}, {RC}')
        e('s_mov_b64 exec, 0xffff')
        e(f'v_lshlrev_b32 v{vR}, 2, v0')
        e(f'buffer_store_dword v{vZ}, v{vR}, s[8:11], s{sT0} offen sc1')
        e('s_mov_b64 exec, -1')
        e('L_norc:')
    e(f'v_and_b32 v{vR}, 7, v0')
    e(f'v_and_b32 v{vR+1}, 1, v0')
    e(f'v_lshlrev_b32 v{vR+1}, 4, v{vR+1}')
    e(f'v_mov_b32 v{vR+2}, 0xffff')
    e(f'v_lshlrev_b32 v{vR+2}, v{vR+1}, v{vR+2}')
    e(f'v_lshrrev_b32 v{vR}, 1, v{vR}')
    e(f'v_mov_b32 v{vR+4}, 0x0c0c0c0c')
    e(f's_mov_b32 s{sT0}, 0x01000100')
    e(f's_mov_b32 s{sT1}, 0x03020302')
    for r in range(4):
        e(f'v_cmp_eq_u32 vcc, {r}, v{vR}')
        e('s_nop 1')
        e(f'v_cndmask_b32 v{vR+3}, 0, v{vR+2}, vcc')
        e(f'v_bfi_b32 v{vSel + r}, v{vR+3}, s{sT0}, v{vR+4}')
        e(f'v_bfi_b32 v{vSel + 4 + r}, v{vR+3}, s{sT1}, v{vR+4}')
    e(f'v_lshrrev_b32 v{vR}, 5, v0')
    e(f'v_lshlrev_b32 v{vA}, 9, v{vR}')
    e(f'v_lshl_add_u32 v{vA}, v{vC}, 5, v{vA}')
    e(f'v_and_b32 v{vR}, 16, v0')
    e(f's_lshl_b32 s{sT0}, s{sW}, 11')
    e(f'v_add3_u32 v{vA}, v{vA}, v{vR}, s{sT0}')
    e(f'v_lshl_add_u32 v{vA2}, v{vG}, 15, v{vL}')
    e(f's_lshl_b32 s{sT0}, s2, 1'); e(f's_and_b32 s{sT0}, s{sT0}, 127'); e(f's_lshl_b32 s{sT0}, s{sT0}, 8')
    e(f'v_xor_b32 v{vA2}, s{sT0}, v{vA2}')
    e(f'v_xor_b32 v{vA3}, 0x100, v{vA2}')
    e(f's_lshr_b32 s{sDst}, s2, 6'); e(f's_lshl_b32 s{sDst}, s{sDst}, 17')
    if QP: e(f's_add_u32 s{sDst}, s{sDst}, {QP}')
    e('s_waitcnt lgkmcnt(0)')
    make_tag(vTg)
    e(f's_waitcnt vmcnt({8 if wfirst == 2 else 0})')
    stamp(5, 0)
    e('L_gemv:')
    seq = [(i, m) for i in range(8) for m in range(2)]
    def perms(k):
        i, m = seq[k]
        a = vOpA + 4 * (k & 1); x = vXA + 4 * m + (i >> 1)
        for r in range(4):
            e(f'v_perm_b32 v{a + r}, v{x}, v{x}, v{vSel + 4 * (i & 1) + r}')
    perms(0)
    for k, (i, m) in enumerate(seq):
        if k < 15: perms(k + 1)
        else: e('s_nop 0')
        a = vOpA + 4 * (k & 1); d = vD + 4 * m; w = vWt + 4 * i
        c = f'v[{d}:{d+3}]' if i > 0 else '0'
        e(f'v_mfma_f32_16x16x32_bf16 v[{d}:{d+3}], v[{a}:{a+3}], v[{w}:{w+3}], {c}')
    e(f'v_mov_b32 v{vR}, 1')
    e('s_nop 5')
    e(f'ds_write_b128 v{vA}, v[{vD}:{vD+3}] offset:{L_RED}')
    e(f'ds_write_b128 v{vA}, v[{vD+4}:{vD+7}] offset:{L_RED + 1024}')
    e('s_mov_b64 exec, 1')
    e(f'ds_add_u32 v{vZ}, v{vR} offset:{L_CNT}')
    e('s_mov_b64 exec, -1')
    e(f's_cmp_lg_u32 s{sW}, 0')
    e('s_cbranch_scc1 L_notleader')
    e(f's_mov_b32 s{sSpin}, {SPIN * 8}')
    e('L_cspin:')
    e(f'ds_read_b32 v{vR}, v{vZ} offset:{L_CNT}')
    e(f's_sub_u32 s{sSpin}, s{sSpin}, 1')
    e('s_cbranch_scc1 L_cout')
    e('s_waitcnt lgkmcnt(0)')
    e(f'v_cmp_eq_u32 vcc, 4, v{vR}')
    e('s_cbranch_vccz L_cspin')
    e('L_cout:')
    for m in range(2):
        e(f'ds_read_b128 v[{vD + 4*m}:{vD + 4*m + 3}], v{vL} offset:{L_RED + m * 1024}')
    for w in range(1, 4):
        for m in range(2):
            r = vR + ((w - 1) * 2 + m) * 4
            e(f'ds_read_b128 v[{r}:{r+3}], v{vL} offset:{L_RED + w * 2048 + m * 1024}')
    e('s_waitcnt lgkmcnt(4)')
    for r in range(8): e(f'v_add_f32 v{vD + r}, v{vD + r}, v{vR + r}')
    e('s_waitcnt lgkmcnt(0)')
    for r in range(8): e(f'v_add_f32 v{vR + 8 + r}, v{vR + 8 + r}, v{vR + 16 + r}')
    for r in range(8): e(f'v_add_f32 v{vD + r}, v{vD + r}, v{vR + 8 + r}')
    for r in range(8): tag(vD + r, vTg)
    e(f'buffer_store_dwordx4 v[{vD}:{vD+3}], v{vA2}, s[8:11], s{sDst} offen {stp}')
    e(f'buffer_store_dwordx4 v[{vD+4}:{vD+7}], v{vA3}, s[8:11], s{sDst} offen {stp}')
    stamp(6)
    e(f'v_bfe_u32 v{vR}, v0, 4, 1')
    e(f's_and_b32 s{sT0}, s{sB}, 1'); e(f's_lshl_b32 s{sT0}, s{sT0}, 1')
    e(f'v_or_b32 v{vR}, s{sT0}, v{vR}')
    e(f'v_lshrrev_b32 v{vR+1}, 5, v0')
    e(f'v_lshlrev_b32 v{vR+1}, 3, v{vR+1}')
    e(f's_and_b32 s{sT0}, s{sH}, 7'); e(f's_lshl_b32 s{sT0}, s{sT0}, 4'); e(f's_lshr_b32 s{sT1}, s{sB}, 1'); e(f's_or_b32 s{sT0}, s{sT0}, s{sT1}')
    e(f'v_or_b32 v{vR+1}, s{sT0}, v{vR+1}')
    e(f'v_xor_b32 v{vR+1}, v{vR+1}, v{vR}')
    e(f'v_lshlrev_b32 v{vR+1}, 8, v{vR+1}')
    e(f'v_lshl_add_u32 v{vR+1}, v{vR}, 15, v{vR+1}')
    e(f'v_lshl_add_u32 v{vR}, v{vC}, 4, v{vR+1}')
    e(f'v_xor_b32 v{vR+1}, 0x200, v{vR}')
    e(f's_mov_b32 s{sSpin}, {SPIN}')
    e('L_x1spin:')
    for r in range(4):
        d = vR + 4 + 4 * r
        e(f'buffer_load_dwordx4 v[{d}:{d+3}], v{vR + (r & 1)}, s[8:11], s{sDst} offen offset:{(r >> 1) * 1024} sc1')
    e(f's_sub_u32 s{sSpin}, s{sSpin}, 1')
    e('s_cbranch_scc1 L_x1out')
    e('s_waitcnt vmcnt(0)')
    check(list(range(vR + 4, vR + 20)), vR + 2, vTg)
    e('s_cbranch_vccnz L_x1spin')
    e('L_x1out:')
    e('s_waitcnt vmcnt(0)')
    if diag:
        e('v_writelane_b32 v254, s92, 7'); e('v_writelane_b32 v255, s93, 7'); e('v_writelane_b32 v254, s94, 9'); e('v_writelane_b32 v255, s95, 9')
    e(f'v_lshlrev_b32 v{vR+1}, 3, v0')
    for r in range(4):
        e(f'v_add_f32 v{vR + 4 + r}, v{vR + 4 + r}, v{vR + 8 + r}')
        e(f'v_add_f32 v{vR + 12 + r}, v{vR + 12 + r}, v{vR + 16 + r}')
    for r in range(4): e(f'v_add_f32 v{vR + 4 + r}, v{vR + 4 + r}, v{vR + 12 + r}')
    e(f'v_cvt_pk_bf16_f32 v{vR+4}, v{vR+4}, v{vR+5}')
    e(f'v_cvt_pk_bf16_f32 v{vR+5}, v{vR+6}, v{vR+7}')
    e(f'ds_write_b64 v{vR+1}, v[{vR+4}:{vR+5}] offset:{L_Q}')
    if wgstat:
        e(f's_xor_b32 s{sT0}, s{sE}, 1')
        e(f'v_mov_b32 v{vR+2}, s{sT0}')
        e(f'v_lshlrev_b32 v{vR+3}, 2, v0')
        e(f'ds_write_b32 v{vR+3}, v{vR+2} offset:{L_ST}')
    e('s_waitcnt lgkmcnt(0)')
    stamp(8)
    e('L_notleader:')
    sE0, sE1, sPa, sCnt, sTm, sRd, sPr = 56, 57, 58, 59, 60, 64, 65
    def probe_setup(ptr):
        e(f's_mov_b32 s12, s{ptr}'); e(f's_mov_b32 s13, s{ptr+1}'); e('s_mov_b32 s14, 0x10000000')
        e(f's_lshl_b32 s{sT0}, s{sB}, 5'); e(f's_add_u32 s{sT0}, s{sT0}, s{sH}'); e(f's_lshl_b32 s{sPa}, s{sT0}, 21')
        e(f's_lshl_b32 s{sT0}, s{sSide}, {pside}'); e(f's_add_u32 s{sPa}, s{sPa}, s{sT0}')
        e(f's_mul_i32 s{sT0}, s{sW}, 0x83000'); e(f's_and_b32 s{sT0}, s{sT0}, 0x183000'); e(f's_add_u32 s{sPa}, s{sPa}, s{sT0}')
        e(f's_mov_b32 s{sE0}, -1'); e(f's_mov_b32 s{sE1}, -1')
    def probe_loop():
        l = g.lab('pr')
        e(f'{l}:')
        e(f's_memtime s[{sTm}:{sTm+1}]')
        e('s_waitcnt lgkmcnt(0)')
        e(f's_buffer_load_dword s{sPr}, s[12:15], s{sPa}')
        e('s_waitcnt lgkmcnt(0)')
        e(f's_memtime s[{sTm+2}:{sTm+3}]')
        e('s_waitcnt lgkmcnt(0)')
        e(f's_sub_u32 s{sT0}, s{sTm+2}, s{sTm}')
        e(f's_bitcmp1_b32 s{sPa}, 13')
        e(f's_cselect_b32 s{sT1}, -1, s{sT0}')
        e(f's_cselect_b32 s{sT0}, s{sT0}, -1')
        e(f's_min_u32 s{sE0}, s{sE0}, s{sT1}')
        e(f's_min_u32 s{sE1}, s{sE1}, s{sT0}')
        e(f's_xor_b32 s{sPa}, s{sPa}, 0x2000')
        e(f's_bitcmp1_b32 s{sCnt}, 0')
        e(f's_cselect_b32 s{sT0}, 0x4100, 0')
        e(f's_add_u32 s{sPa}, s{sPa}, s{sT0}')
        e(f's_sub_u32 s{sCnt}, s{sCnt}, 1')
        e(f's_cmp_lg_u32 s{sCnt}, 0')
        e(f's_cbranch_scc1 {l}')
    if numa:
        assert shA % 2 == 0 and shB % 2 == 0 and shV % 2 == 0 and (shA + shB) <= 30 and shV <= 30
        probe_setup(sAk)
        if shA:
            e(f's_cmp_eq_u32 s{sW}, 0'); e('s_cbranch_scc1 L_nopre')
            e(f's_mov_b32 s{sCnt}, {shA}')
            probe_loop()
            e('L_nopre:')
    e('s_barrier')
    if numa:
        e(f's_mov_b32 s{sRd}, 0')
        e(f's_mov_b32 s{sCnt}, {shB}')
        e('L_round:')
        probe_loop()
        e(f's_lshl_b32 s{sT0}, s{sRd}, 3'); e(f's_lshl_b32 s{sT1}, s{sRd}, 2')
        e('s_mov_b64 exec, 1')
        e(f'v_mov_b32 v{vR}, s{sT0}'); e(f'v_mov_b32 v{vR+1}, s{sT1}')
        e(f's_sub_i32 s{sE0}, s{sE0}, s{sE1}'); e(f's_min_i32 s{sE0}, s{sE0}, {clip}'); e(f's_max_i32 s{sE0}, s{sE0}, {-clip}')
        e(f'v_mov_b32 v{vR+2}, s{sE0}'); e(f'v_mov_b32 v{vR+4}, 1')
        e(f'ds_add_u32 v{vR}, v{vR+2} offset:{L_EV}')
        e(f'ds_add_u32 v{vR+1}, v{vR+4} offset:{L_CN2}')
        e(f's_cmp_lg_u32 s{sW}, 0'); e('s_cbranch_scc1 L_rnext')
        e(f's_mov_b32 s{sSpin}, {SPIN * 8}')
        e('L_rspin:')
        e(f'ds_read_b32 v{vR+4}, v{vR+1} offset:{L_CN2}')
        e(f's_sub_u32 s{sSpin}, s{sSpin}, 1'); e('s_cbranch_scc1 L_rout')
        e('s_waitcnt lgkmcnt(0)')
        e(f'v_cmp_eq_u32 vcc, 4, v{vR+4}')
        e('s_cbranch_vccz L_rspin')
        e('L_rout:')
        e(f'ds_read_b64 v[{vR+2}:{vR+3}], v{vR} offset:{L_EV}')
        e(f's_lshl_b32 s{sT0}, s2, 8'); e(f's_add_u32 s{sT0}, s{sT0}, {EV}'); e(f's_xor_b32 s{sT1}, s{sT0}, 0x400')
        e('s_waitcnt lgkmcnt(0)')
        if diag:
            e(f's_lshl_b32 s84, s2, 4'); e(f's_add_u32 s84, s84, {STAMP + 0x18000}')
            e(f'buffer_store_dwordx2 v[{vR+2}:{vR+3}], v{vR}, s[8:11], s84 offen')
            e('s_nop 1')
        e(f'v_sub_u32 v{vR+2}, v{vR+2}, v{vR+3}')
        e(f'v_mov_b32 v{vR+3}, s{sE}')
        e(f'buffer_store_dwordx2 v[{vR+2}:{vR+3}], v{vR}, s[8:11], s{sT0} offen sc1')
        e(f's_mov_b32 s{sSpin}, {SPIN}')
        e('L_espin:')
        e(f'buffer_load_dwordx2 v[{vR+4}:{vR+5}], v{vR}, s[8:11], s{sT1} offen sc1')
        e(f's_sub_u32 s{sSpin}, s{sSpin}, 1'); e('s_cbranch_scc1 L_eout')
        e('s_waitcnt vmcnt(0)')
        e(f'v_cmp_eq_u32 vcc, s{sE}, v{vR+5}')
        e('s_cbranch_vccz L_espin')
        e('L_eout:')
        e('s_waitcnt vmcnt(0)')
        e(f'v_sub_u32 v{vR+6}, v{vR+2}, v{vR+4}')
        e(f'v_sub_u32 v{vR+7}, v{vR+4}, v{vR+2}')
        e(f's_cmp_eq_u32 s{sSide}, 0')
        e('s_cselect_b64 vcc, -1, 0')
        e(f'v_cndmask_b32 v{vR+6}, v{vR+7}, v{vR+6}, vcc')
        e(f'v_cmp_lt_i32 vcc, 0, v{vR+6}')
        e('s_nop 1')
        e(f'v_cndmask_b32 v{vR+6}, 0, 1, vcc')
        e(f'v_xor_b32 v{vR+6}, s{sSide}, v{vR+6}')
        e(f'ds_write_b32 v{vR+1}, v{vR+6} offset:{L_KAP}')
        if diag:
            e(f's_cmp_lg_u32 s{sRd}, 0'); e('s_cbranch_scc1 L_rnext')
            stamp(6)
        e('L_rnext:')
        e('s_mov_b64 exec, -1')
        e(f's_cmp_lg_u32 s{sRd}, 0'); e('s_cbranch_scc1 L_rdone')
        probe_setup(sAv)
        e(f's_mov_b32 s{sRd}, 1')
        e(f's_mov_b32 s{sCnt}, {shV}')
        e('s_branch L_round')
        e('L_rdone:')
    if wfirst == 2:
        e('s_waitcnt vmcnt(0)')
        for r in range(32): e(f'v_mov_b32 v{vWt + r}, v{vWo + r}')
    else:
        wo_addr(vR)
        for i in range(8):
            e(f'buffer_load_dwordx4 v[{vWt + 4*i}:{vWt + 4*i + 3}], v{vR}, s[4:7], s{sT0 if i < 4 else sT1} offen offset:{(i & 3) * 1024} {pol}')
            e('s_waitcnt vmcnt(0)')
    vB = 112; vYa = 106; vTg2 = 107; vX3b = 111
    e(f's_lshl_b32 s{sT0}, s{sW}, 2')
    e(f'v_add_u32 v{vR}, s{sT0}, v{vG}')
    e(f'v_mul_u32_u24 v{vR}, {8 * WROW}, v{vR}')
    e(f'v_lshl_add_u32 v{vR}, v{vC}, 4, v{vR}')
    for i in range(8):
        e(f'ds_write_b128 v{vR}, v[{vWt + 4*i}:{vWt + 4*i + 3}] offset:{L_W + i * WROW}')
    e(f'v_mov_b32 v{vR+1}, 1')
    e('s_mov_b64 exec, 1')
    e(f'ds_add_u32 v{vZ}, v{vR+1} offset:{L_CN3}')
    e('s_mov_b64 exec, -1')
    e(f's_mov_b32 s{sSpin}, {SPIN * 8}')
    e('L_wspin:')
    e(f'ds_read_b32 v{vR+1}, v{vZ} offset:{L_CN3}')
    e(f's_sub_u32 s{sSpin}, s{sSpin}, 1'); e('s_cbranch_scc1 L_wout')
    e('s_waitcnt lgkmcnt(0)')
    e(f'v_cmp_eq_u32 vcc, 4, v{vR+1}')
    e('s_cbranch_vccz L_wspin')
    e('L_wout:')
    e(f'v_mul_u32_u24 v{vR}, {8 * WROW}, v{vG}')
    e(f'v_lshl_add_u32 v{vR}, v{vC}, 2, v{vR}')
    e(f's_lshl_b32 s{sT0}, s{sW}, 6')
    e(f'v_add_u32 v{vR}, s{sT0}, v{vR}')
    e(f's_mov_b32 s{sT0}, 0x05040100'); e(f's_mov_b32 s{sT1}, 0x07060302')
    for ks in range(4):
        for r in range(8):
            e(f'ds_read_b32 v{vR + 4 + r}, v{vR} offset:{L_W + (ks * 32 + r) * WROW}')
        e('s_waitcnt lgkmcnt(0)')
        for t in range(2):
            for r in range(4):
                e(f'v_perm_b32 v{vB + (t * 4 + ks) * 4 + r}, v{vR + 5 + 2*r}, v{vR + 4 + 2*r}, s{sT0 + t}')
    sX3 = 64
    e(f'v_and_b32 v{vR}, 1, v{vG}')
    e(f's_lshl_b32 s{sT0}, s{sBeta}, 1')
    e(f'v_or_b32 v{vR}, s{sT0}, v{vR}')
    e(f'v_xor_b32 v{vR+1}, s{sW}, v{vR}')
    e(f'v_lshlrev_b32 v{vX3}, 8, v{vR+1}')
    e(f'v_lshl_add_u32 v{vX3}, v{vR}, 15, v{vX3}')
    e(f'v_lshrrev_b32 v{vR+1}, 5, v0')
    e(f'v_lshl_add_u32 v{vX3}, v{vR+1}, 10, v{vX3}')
    e(f'v_lshl_add_u32 v{vX3}, v{vC}, 4, v{vX3}')
    e(f'v_and_b32 v{vR}, 31, v0')
    e(f'v_lshlrev_b32 v{vA}, 3, v{vR}')
    e(f'v_lshl_add_u32 v{vA}, v{vR+1}, 2, v{vA}')
    e(f's_lshl_b32 s{sT0}, s{sW}, 8')
    e(f'v_add_u32 v{vA}, s{sT0}, v{vA}')
    e(f'v_lshlrev_b32 v{vA2}, 6, v{vC}')
    e(f'v_lshl_add_u32 v{vA2}, v{vG}, 4, v{vA2}')
    e(f's_and_b32 s{sT1}, s{sH}, 15'); e(f's_lshl_b32 s{sX3}, s{sT1}, 11')
    e(f's_lshr_b32 s{sT1}, s{sH}, 4'); e(f's_lshl_b32 s{sT1}, s{sT1}, 17'); e(f's_add_u32 s{sX3}, s{sX3}, s{sT1}')
    e(f's_add_u32 s{sX3}, s{sX3}, {OP}')
    e(f's_and_b32 s{sT0}, s{sW}, 1'); e(f's_lshl_b32 s{sT0}, s{sT0}, 1')
    e(f'v_lshrrev_b32 v{vR}, 5, v0')
    e(f'v_or_b32 v{vR}, s{sT0}, v{vR}')
    e(f's_lshl_b32 s{sT0}, s2, 1'); e(f's_and_b32 s{sT0}, s{sT0}, 127'); e(f's_lshr_b32 s{sT1}, s{sW}, 1'); e(f's_or_b32 s{sT0}, s{sT0}, s{sT1}')
    e(f'v_xor_b32 v{vR+1}, s{sT0}, v{vR}')
    e(f'v_lshlrev_b32 v{vYa}, 8, v{vR+1}')
    e(f'v_lshl_add_u32 v{vYa}, v{vR}, 15, v{vYa}')
    e(f'v_and_b32 v{vR}, 31, v0')
    e(f'v_lshl_add_u32 v{vYa}, v{vR}, 3, v{vYa}')
    e(f's_add_u32 s{sE}, s{sE}, 1'); e(f's_and_b32 s{sT0}, s{sE}, 0xff')
    e(f'v_mov_b32 v{vTg2}, s{sT0}')
    if not fin1: x4_setup(vR, vX4, vOut)
    e(f's_mov_b32 s{sSpin}, {SPIN}')
    e(f'v_lshl_add_u32 v{vA3}, v{vG}, 15, v{vL}')
    e(f's_and_b32 s{sT0}, s2, 127'); e(f's_lshl_b32 s{sT0}, s{sT0}, 8')
    e(f'v_xor_b32 v{vA3}, s{sT0}, v{vA3}')
    e(f's_lshr_b32 s{sT0}, s2, 7'); e(f's_lshl_b32 s{sT0}, s{sT0}, 17'); e(f's_add_u32 s{sT0}, s{sT0}, {OP}')
    e(f'v_add_u32 v{vA3}, s{sT0}, v{vA3}')
    if pretouch:
        e(f's_cmp_lg_u32 s{sW}, s{sB}'); e('s_cbranch_scc1 L_nopt0')
        e(f'buffer_load_dwordx4 v[{vR}:{vR+3}], v{vA3}, s[8:11], 0 offen sc1')
        e('s_waitcnt vmcnt(0)')
        e('L_nopt0:')
    if cpre:
        if cpre & 1:
            e(f'buffer_load_dwordx4 v[{vR}:{vR+3}], v{vX3}, s[8:11], s{sX3} offen {ldp}')
        e(f's_cmp_lg_u32 s{sW}, 0'); e('s_cbranch_scc1 L_nopt')
        if cpre & 2:
            for k in range(2):
                e(f'buffer_load_dwordx4 v[{vR + 8 + 4*k}:{vR + 4*k + 11}], v{vX4}, s[8:11], s{sX4a + k} offen {ldp}')
        e('L_nopt:')
        e('s_waitcnt vmcnt(0)')
    e(f's_cmp_lg_u32 s{sW}, s{sB}')
    e('s_barrier')
    e('s_cbranch_scc1 L_x3spin')
    for w in range(4):
        e(f'ds_read_b128 v[{vR + 4*w}:{vR + 4*w + 3}], v{vL} offset:{L_O + w * 1024}')
    e('s_waitcnt lgkmcnt(2)')
    for r in range(4): e(f'v_add_f32 v{vD + r}, v{vR + r}, v{vR + 4 + r}')
    e('s_waitcnt lgkmcnt(0)')
    for r in range(4): e(f'v_add_f32 v{vR + 8 + r}, v{vR + 8 + r}, v{vR + 12 + r}')
    for r in range(4): e(f'v_add_f32 v{vD + r}, v{vD + r}, v{vR + 8 + r}')
    for r in range(4): tag(vD + r, vTg)
    e(f'buffer_store_dwordx4 v[{vD}:{vD+3}], v{vA3}, s[8:11], 0 offen {stp}')
    e('L_x3spin:')
    e(f'buffer_load_dwordx4 v[{vR}:{vR+3}], v{vX3}, s[8:11], s{sX3} offen {ldp}')
    e(f's_sub_u32 s{sSpin}, s{sSpin}, 1')
    e('s_cbranch_scc1 L_x3out')
    e('s_waitcnt vmcnt(0)')
    check(range(vR, vR + 4), vR + 4, vTg)
    if mretry:
        e('s_and_b64 exec, exec, vcc')
        e('s_cbranch_scc1 L_x3spin')
    else:
        e('s_cbranch_vccnz L_x3spin')
    e('L_x3out:')
    e('s_mov_b64 exec, -1')
    e('s_waitcnt vmcnt(0)')
    e(f'v_permlane32_swap_b32 v{vR}, v{vR+2}')
    e(f'v_permlane32_swap_b32 v{vR+1}, v{vR+3}')
    e('s_nop 0')
    e(f'v_add_f32 v{vR}, v{vR}, v{vR+2}')
    e(f'v_add_f32 v{vR+1}, v{vR+1}, v{vR+3}')
    e(f'v_cvt_pk_bf16_f32 v{vR}, v{vR}, v{vR+1}')
    e(f'ds_write_b32 v{vA}, v{vR} offset:{L_RED}')
    e('s_waitcnt lgkmcnt(0)')
    e('s_barrier')
    vAo = 16
    e(f'ds_read_b128 v[{vAo}:{vAo+3}], v{vA2} offset:{L_RED}')
    stamp(10, 0)
    e('s_waitcnt lgkmcnt(0)')
    vDD = 20
    e(f's_cmp_lg_u32 s{sW}, 0')
    for ks in range(4):
        for t in range(2):
            d = vDD + (ks * 2 + t) * 4; b_ = vB + (t * 4 + ks) * 4
            e(f'v_mfma_f32_16x16x32_bf16 v[{d}:{d+3}], v[{vAo}:{vAo+3}], v[{b_}:{b_+3}], 0')
    val = lambda ks, t: vDD + (ks * 2 + t) * 4 + ks
    e('s_nop 2')
    e(f'v_add_f32 v{vD}, v{val(0,0)}, v{val(1,0)}')
    e(f'v_add_f32 v{vD+1}, v{val(0,1)}, v{val(1,1)}')
    e(f'v_add_f32 v{vD}, v{vD}, v{val(2,0)}')
    e(f'v_add_f32 v{vD+1}, v{vD+1}, v{val(2,1)}')
    e(f'v_add_f32 v{vD}, v{vD}, v{val(3,0)}')
    e(f'v_add_f32 v{vD+1}, v{vD+1}, v{val(3,1)}')
    for r in range(2): tag(vD + r, vTg2)
    e(f'buffer_store_dwordx2 v[{vD}:{vD+1}], v{vYa}, s[8:11], s{sDst} offen {stp}')
    e('s_cbranch_scc1 L_end')
    e('s_mov_b64 exec, -1')
    stamp(11)
    if fin1: flush_stamps([5, 6, 7, 8, 9, 10, 11])
    else: x4_code(vR, vX4, vOut, vTg2)
    e('L_end:')
    e('s_endpgm')
    e('.section .rodata,"a"')
    e('.p2align 6')
    e(f'.amdhsa_kernel {NAME}_kernel')
    e('  .amdhsa_next_free_vgpr 256')
    e('  .amdhsa_next_free_sgpr 96')
    e('  .amdhsa_accum_offset 256')
    e('  .amdhsa_group_segment_fixed_size 0')
    e('  .amdhsa_kernarg_size 104')
    e('  .amdhsa_user_sgpr_count 2')
    e('  .amdhsa_user_sgpr_kernarg_segment_ptr 1')
    e('  .amdhsa_system_sgpr_workgroup_id_x 1')
    e('  .amdhsa_float_denorm_mode_32 3')
    e('.end_amdhsa_kernel')
    if truth:
        import gen_numa
        e('.p2align 6')
        gen_numa.kd(e, 'probe_kernel', 8)
    return '\n'.join(g.L) + '\n'

if __name__ == '__main__':
    import ast
    for spec in sys.argv[1:]:
        name, _, opts = spec.partition(':')
        kw = {}
        for o in filter(None, opts.split(',')):
            k_, v_ = o.split('=')
            v_ = v_.replace('/', ',')
            try: kw[k_] = ast.literal_eval(v_)
            except Exception: kw[k_] = v_
        open(name, 'w').write(gen(**kw))
```

```python
import sys, math, struct
NAME = 'concat_heads__gqa_block_cached__sliding_block_cached__decode'

def f32(x):
    return '0x%08x' % struct.unpack('<I', struct.pack('<f', x))[0]
def br4(i):
    return ((i & 1) << 3) | ((i & 2) << 1) | ((i & 4) >> 1) | ((i & 8) >> 3)

QP = 0x000000
YP = QP
OP = 0x100000
ST = 0x140000
EP = 0x150000
RC = 0x160000
EV = 0x180000
PP = 0x200000
WS_USED = 0x400000
STAMP = 0x40000000

L_Q = 0
L_CNT = 512
L_LVL = 516
L_CN2 = 520
L_EV = 528
L_KAP = 544
L_CN3 = 552
L_RED = 1024
L_O = 1024 + 8192
L_ST = 768
L_W = L_O + 4096
WROW = 272
LDS_BYTES = L_W + 128 * WROW
SPIN = 1 << 17
DPPF = 'row_mask:0xf bank_mask:0xf'

class G:
    def __init__(s): s.L = []; s.n = 0
    def e(s, x): s.L.append(x)
    def lab(s, p):
        s.n += 1
        return f'L_{p}{s.n}'

def gen(D=5, DB=6, diag=False, pol='nt', wqfirst=False, hdiag=False, probe_t=None, tlb=0, boost=(2, 8), wfirst=1, early=3, DW=8, nbuf=3, slp3=0, slp4=0, stp='sc1', ldp='sc1', pretouch=0, outp='', rc=(5, 6, 7), endb=2, dmax=15, rordir=1, wgstat=0, cpre=0, light=0, bar3=1, mretry=1, fin1=0, th=(3, 6), cks=(8,12,16,20,24,28,31,34,37), rcat=7, pat=1, numa=1, shA=6, shB=6, shV=10, truth=0, forcex=None, lvl0=1, resets=(), rcg=1, pside=18, clip=200, rcv=(4.5, 5, 6), ppst='sc1', ppld='sc1', chan=None, prand=1, pmin=400, pads=1, preb=1, prek=2, pplin=0, nold=0, nost=0, emap=None, efrom=38):
    ppst = ppst.replace('_', ' '); ppld = ppld.replace('_', ' ')
    stp = stp.replace('_', ' '); ldp = ldp.replace('_', ' '); outp = outp.replace('_', ' ')
    DB = DB or D
    g = G(); e = g.e
    if truth:
        e('; @launch kernel=probe_kernel grid=(128,1,1) block=(64,1,1) lds=0')
        e(f'; @launch kernel={NAME}_kernel grid=(256,1,1) block=(512,1,1) lds={LDS_BYTES}')
    else:
        e(f'; @launch grid=(256,1,1) block=(512,1,1) lds={LDS_BYTES}')
    e('.amdgcn_target "amdgcn-amd-amdhsa--gfx950"')
    if truth:
        import gen_numa2
        gen_numa2.probe(lambda x: e(x + ('\ns_add_u32 s13, s13, 0x600000' if x == 's_lshl_b32 s13, s2, 2' else '')))
    e('.text')
    e(f'.globl {NAME}_kernel')
    e('.p2align 8')
    e(f'.type {NAME}_kernel,@function')
    e(f'{NAME}_kernel:')
    sAx, sAk, sAv, sAwq, sAwo, sBx, sBk, sBv = 16, 18, 20, 22, 24, 26, 28, 30
    sBwq, sBwo, sOut, sDbg, sWs = 32, 34, 36, 38, 40
    sW, sH, sJ, sB, sSide = 42, 43, 44, 45, 46
    sT0, sT1, sT2, sT3 = 47, 48, 49, 50
    sSlab, sSpin = 51, 52
    sE, sTag, sNF = 74, 75, 76
    e('s_cmp_ge_u32 s2, 256')
    e('s_cbranch_scc1 L_end')
    e('s_load_dwordx16 s[16:31], s[0:1], 0')
    e('s_load_dwordx8 s[32:39], s[0:1], 64')
    e('s_load_dwordx2 s[40:41], s[0:1], 96')
    if diag or hdiag or probe_t is not None or chan: e('s_memrealtime s[80:81]')
    e('v_lshrrev_b32 v1, 6, v0')
    e('v_and_b32 v0, 63, v0')
    e(f'v_readfirstlane_b32 s{sW}, v1')
    e(f's_lshr_b32 s{sH}, s2, 3')
    e(f's_and_b32 s{sJ}, s2, 7')
    e(f's_and_b32 s{sB}, s2, 3')
    e(f's_lshr_b32 s{sSide}, s{sJ}, 2')
    e('s_mov_b32 s7, 0x20000')
    e('s_mov_b32 s11, 0x20000')
    e(f's_mov_b32 s10, {WS_USED if not diag else 0x41000000}')
    e(f's_mov_b32 s{sNF}, 0xffffff00')
    e(f's_cmp_ge_u32 s{sW}, 4')
    e('s_cbranch_scc1 L_service')

    def stamp(idx, only_wave=None):
        if probe_t == idx:
            e('s_memrealtime s[86:87]'); e('s_waitcnt lgkmcnt(0)')
        if not diag: return
        l = g.lab('st')
        if only_wave is not None:
            e(f's_cmp_lg_u32 s{sW}, {only_wave}')
            e(f's_cbranch_scc1 {l}')
        e(f's_memrealtime s[82:83]')
        e('s_waitcnt lgkmcnt(0)')
        e(f'v_writelane_b32 v254, s82, {idx}')
        e(f'v_writelane_b32 v255, s83, {idx}')
        e(f'{l}:')
    def flush_stamps(idxs):
        if probe_t in idxs:
            l = g.lab('pt')
            e('s_cmp_lg_u32 s2, 0'); e(f's_cbranch_scc1 {l}x')
            if probe_t == 0: e('s_mov_b32 s86, s80')
            e('s_sub_u32 s86, s86, s80'); e('s_mul_i32 s86, s86, 10'); e('s_add_u32 s86, s86, 20000')
            e(f'{l}:'); e('s_memrealtime s[82:83]'); e('s_waitcnt lgkmcnt(0)'); e('s_sub_u32 s82, s82, s80')
            e('s_cmp_lt_u32 s82, s86'); e(f's_cbranch_scc1 {l}')
            e(f'{l}x:')
        if not diag: return
        l = g.lab('fw')
        e(f'{l}:'); e('s_sleep 32'); e('s_memrealtime s[82:83]'); e('s_waitcnt lgkmcnt(0)'); e('s_sub_u32 s82, s82, s80')
        e('s_cmp_lt_u32 s82, 11000'); e(f's_cbranch_scc1 {l}')
        m = sum(1 << i for i in idxs)
        e('s_lshl_b32 s84, s2, 7'); e(f's_add_u32 s84, s84, {STAMP}')
        e('s_mov_b64 exec, -1')
        e('v_lshlrev_b32 v253, 3, v0')
        e(f's_mov_b64 exec, {m}')
        e('buffer_store_dwordx2 v[254:255], v253, s[8:11], s84 offen')
    def load_epoch():
        e(f's_mov_b32 s{sE}, {EP}')
        e(f's_load_dword s{sE}, s[{sWs}:{sWs+1}], s{sE}')
    def make_tag(vTag):
        e(f's_add_u32 s{sE}, s{sE}, 1')
        e(f's_and_b32 s{sTag}, s{sE}, 0xff')
        e(f'v_mov_b32 v{vTag}, s{sTag}')
    def tag(r, vTag):
        e(f'v_and_or_b32 v{r}, v{r}, s{sNF}, v{vTag}')
    def check(regs, t, vTag):
        regs = list(regs)
        for r in regs: e(f'v_xor_b32 v{r}, v{r}, v{vTag}')
        e(f'v_or3_b32 v{t}, v{regs[0]}, v{regs[1]}, v{regs[2]}')
        rest = regs[3:]
        while len(rest) >= 2:
            e(f'v_or3_b32 v{t}, v{t}, v{rest[0]}, v{rest[1]}'); rest = rest[2:]
        e(f'v_bitop3_b32 v{t}, v{t}, v{rest[0]}, s{sNF} bitop3:0x54')
        e(f'v_cmp_ne_u32 vcc, 0, v{t}')

    sX4a, sX4b, sOo = 90, 91, 85
    def x4_setup(vR, vX4, vOut):
        e(f'v_bfe_u32 v{vR}, v0, 2, 3')
        e(f'v_lshlrev_b32 v{vX4}, 12, v{vR}')
        e(f'v_lshrrev_b32 v{vR}, 5, v0')
        e(f'v_lshl_add_u32 v{vX4}, v{vR}, 17, v{vX4}')
        e(f'v_and_b32 v{vR}, 3, v0')
        e(f'v_lshl_add_u32 v{vX4}, v{vR}, 4, v{vX4}')
        e(f'v_lshlrev_b32 v{vOut}, 3, v{vR}')
        e(f'v_bfe_u32 v{vR}, v0, 2, 2')
        e(f'v_lshl_add_u32 v{vOut}, v{vR}, 1, v{vOut}')
        e(f's_bfe_u32 s{sT0}, s{sH}, 0x20002')
        e(f's_lshl_b32 s{sT1}, s{sJ}, 1'); e(f's_lshr_b32 s{sT2}, s{sH}, 4'); e(f's_or_b32 s{sT1}, s{sT1}, s{sT2}')
        e(f's_xor_b32 s{sT1}, s{sT1}, s{sT0}'); e(f's_lshl_b32 s{sT1}, s{sT1}, 8')
        e(f's_lshl_b32 s{sT0}, s{sT0}, 15'); e(f's_add_u32 s{sT0}, s{sT0}, s{sT1}')
        e(f's_and_b32 s{sT1}, s{sH}, 3'); e(f's_lshl_b32 s{sT1}, s{sT1}, 6'); e(f's_add_u32 s{sT0}, s{sT0}, s{sT1}')
        e(f's_add_u32 s{sX4a}, s{sT0}, {YP}')
        e(f's_add_u32 s{sX4b}, s{sX4a}, 0x40000')
        e(f's_lshl_b32 s{sT0}, s{sJ}, 8'); e(f's_bfe_u32 s{sT1}, s{sH}, 0x20001'); e(f's_lshl_b32 s{sT1}, s{sT1}, 11'); e(f's_add_u32 s{sOo}, s{sT0}, s{sT1}')
        e(f's_lshr_b32 s{sT1}, s{sH}, 3'); e(f's_lshl_b32 s{sT1}, s{sT1}, 6'); e(f's_add_u32 s{sOo}, s{sOo}, s{sT1}')
        e(f's_and_b32 s{sT1}, s{sH}, 1'); e(f's_lshl_b32 s{sT1}, s{sT1}, 5'); e(f's_add_u32 s{sOo}, s{sOo}, s{sT1}')
        e(f's_mov_b32 s12, s{sOut}'); e(f's_mov_b32 s13, s{sOut+1}'); e('s_mov_b32 s14, 8192')
        e('s_mov_b32 s15, 0x20000')
    def x4_code(vR, vX4, vOut, vTg2):
        e(f's_mov_b32 s{sSpin}, {SPIN}')
        e('L_x4spin:')
        for k in range(2):
            e(f'buffer_load_dwordx4 v[{vR + 4*k}:{vR + 4*k + 3}], v{vX4}, s[8:11], s{sX4a + k} offen {ldp}')
        e(f's_sub_u32 s{sSpin}, s{sSpin}, 1')
        e('s_cbranch_scc1 L_x4out')
        e('s_waitcnt vmcnt(0)')
        check(range(vR, vR + 8), vR + 8, vTg2)
        if mretry:
            e('s_and_b64 exec, exec, vcc')
            e('s_cbranch_scc1 L_x4spin')
        else:
            e('s_cbranch_vccnz L_x4spin')
        e('L_x4out:')
        e('s_mov_b64 exec, -1')
        e('s_waitcnt vmcnt(0)')
        for r in range(4): e(f'v_add_f32 v{vR + r}, v{vR + r}, v{vR + 4 + r}')
        e(f'v_add_f32_dpp v{vR+4}, v{vR}, v{vR} row_ror:8 row_mask:0xf bank_mask:0x3')
        e(f'v_add_f32_dpp v{vR+5}, v{vR+1}, v{vR+1} row_ror:8 row_mask:0xf bank_mask:0x3')
        e(f'v_add_f32_dpp v{vR+4}, v{vR+2}, v{vR+2} row_ror:8 row_mask:0xf bank_mask:0xc')
        e(f'v_add_f32_dpp v{vR+5}, v{vR+3}, v{vR+3} row_ror:8 row_mask:0xf bank_mask:0xc')
        e('s_nop 0')
        e(f'v_add_f32_dpp v{vR}, v{vR+4}, v{vR+4} row_shl:4 row_mask:0xf bank_mask:0x5')
        e(f'v_add_f32_dpp v{vR}, v{vR+5}, v{vR+5} row_shr:4 row_mask:0xf bank_mask:0xa')
        for sw in ('v_permlane16_swap_b32', 'v_permlane32_swap_b32'):
            e(f'v_mov_b32 v{vR+1}, v{vR}')
            e('s_nop 1')
            e(f'{sw} v{vR+1}, v{vR}')
            e('s_nop 0')
            e(f'v_add_f32 v{vR}, v{vR}, v{vR+1}')
        e(f'v_cvt_pk_bf16_f32 v{vR}, v{vR}, v{vR}')
        e('s_mov_b64 exec, 0xffff')
        e(f'buffer_store_short v{vR}, v{vOut}, s[12:15], s{sOo} offen {outp}')
        stamp(12)
        flush_stamps([12] if fin1 else [5, 6, 7, 8, 9, 10, 11, 12])
        if chan:
            if chan == 'xcc':
                e('s_getreg_b32 s86, hwreg(HW_REG_XCC_ID)'); e('s_sub_u32 s86, s86, s2'); e('s_and_b32 s86, s86, 7'); e('s_mul_i32 s86, s86, 10000')
            elif chan == 'xccn':
                e('s_getreg_b32 s86, hwreg(HW_REG_XCC_ID)'); e('s_sub_u32 s86, s86, s2'); e('s_and_b32 s86, s86, 7'); e('s_sub_u32 s86, 7, s86'); e('s_mul_i32 s86, s86, 10000')
            elif chan in ('mK', 'mV'):
                e('s_sub_u32 s86, 1600, s88'); e('s_mul_i32 s86, s86, 10')
            elif chan[0] == 'c':
                k = int(chan[1:])
                e('s_mov_b32 s86, 0'); e('s_cmp_lg_u32 s2, 0'); e('s_cbranch_scc1 L_end')
                e(f's_atomic_or s86, s[{sDbg}:{sDbg+1}], {4 * k} glc'); e('s_waitcnt lgkmcnt(0)')
                if k & 1: e('s_lshr_b32 s86, s86, 8'); e('s_mul_i32 s86, s86, 10')
                else: e('s_mul_i32 s86, s86, 100')
                e('s_min_u32 s86, s86, 100000')
            elif chan == 'end':
                e('s_memrealtime s[86:87]'); e('s_waitcnt lgkmcnt(0)'); e('s_sub_u32 s86, s86, s80'); e('s_mul_i32 s86, s86, 10')
            e('s_add_u32 s86, s86, 20000')
            e('L_chan:'); e('s_memrealtime s[82:83]'); e('s_waitcnt lgkmcnt(0)'); e('s_sub_u32 s82, s82, s80')
            e('s_cmp_lt_u32 s82, s86'); e('s_cbranch_scc1 L_chan')
        e('s_cmp_lg_u32 s2, 0')
        e('s_cbranch_scc1 L_end')
        e('s_mov_b64 exec, 1')
        e(f'v_mov_b32 v{vR+2}, s{sE}')
        e(f's_mov_b32 s{sT0}, {EP}')
        e(f'buffer_store_dword v{vR+2}, off, s[8:11], s{sT0}')
        if hdiag:
            e('s_memrealtime s[82:83]'); e('s_waitcnt lgkmcnt(0)'); e('s_sub_u32 s82, s82, s80')
            e(f's_mov_b32 s12, s{sDbg}'); e(f's_mov_b32 s13, s{sDbg+1}'); e('s_mov_b32 s14, 256')
            e(f'v_mov_b32 v{vR+3}, s82')
            e(f'buffer_store_dword v{vR+3}, off, s[12:15], 0')

    X0, X1, X2 = 60, 124, 188
    vOff = 2; vL16 = 6; vPd = 7; vQ = 8; vS = 12; vT = 20; vMask = 44; vAcc = 48; vAccB = 52; vP = 56
    vPA = 124
    vSt = 132; vMl = 136; vR2 = 140; vStA = 152; vTg = 153; vF = 154; vOa = 155
    sOff, sN = 53, 54
    sM3, sM4 = 60, 62
    sC = 64
    sFA0, sFA1, sFB = 67, 68, 69
    sWb, sSeg = 72, 73
    sHk = 70
    sVk = 78; sKK = 55; sKV = 66; sX = 77; sPPa = 14; sPPb = 15; s7f = 13
    vPat = 160; vPs = 164; vPPa = 168; vPPb = 169
    e(f's_lshl_b32 s{sT0}, s{sB}, 5')
    e(f's_add_u32 s{sT0}, s{sT0}, s{sH}')
    e(f's_lshl_b32 s{sSlab}, s{sT0}, 21')
    e(f'v_lshlrev_b32 v{vL16}, 4, v0')
    e(f'v_bfe_u32 v{vOff+1}, v0, 4, 1')
    e(f'v_lshl_add_u32 v{vOff}, v{vOff+1}, 15, v{vL16}')
    e(f'v_lshrrev_b32 v{vOff+1}, 5, v0')
    e(f'v_lshl_add_u32 v{vOff}, v{vOff+1}, 13, v{vOff}')
    e(f's_lshl_b32 s{sT0}, s{sW}, 8')
    e(f'v_xor_b32 v{vOff}, s{sT0}, v{vOff}')
    if pat == 1:
        e(f's_lshl_b32 s{sT0}, s{sSide}, 13')
        e(f'v_xor_b32 v{vOff}, s{sT0}, v{vOff}')
    for j in range(1, 4):
        e(f'v_xor_b32 v{vOff+j}, {(j << 8) | ((j >> 1) << 16 if pat == 1 else 0)}, v{vOff}')
    e(f's_and_b32 s{sT0}, s{sW}, 1')
    e(f's_lshl_b32 s{sT0}, s{sT0}, 12')
    e(f's_add_u32 s{sWb}, s{sSlab}, s{sT0}')
    e(f's_lshr_b32 s{sT0}, s{sW}, 1')
    e(f's_lshl_b32 s{sT0}, s{sT0}, 14')
    e(f's_add_u32 s{sWb}, s{sWb}, s{sT0}')
    if pat == 0:
        e(f's_lshl_b32 s{sT0}, s{sSide}, 16')
        e(f's_add_u32 s{sWb}, s{sWb}, s{sT0}')
    e(f's_add_u32 s{sOff}, s{sWb}, 0x180000')
    e('s_mov_b32 s6, 0x10000000')
    e('s_waitcnt lgkmcnt(0)')
    e(f's_mov_b32 s4, s{sBk}'); e(f's_mov_b32 s5, s{sBk+1}')
    if diag: e('s_memrealtime s[92:93]')
    def issue(buf, i):
        v = buf + 4 * i
        e(f'buffer_load_dwordx4 v[{v}:{v+3}], v{vOff + (i >> 2)}, s[4:7], s{sOff} offen offset:{(i & 3) * 1024} {pol}')
    allhooks = [3, 4, 7, 8, 16, 22, 23, 24, 30, 31, 32, 39, 40] + ([26] if wgstat else [])
    vkind = list(range(5, 9)) + list(range(25, 41))
    def mask64(ns): return sum(1 << n for n in ns)
    def setup():
        load_epoch()
        e(f's_mov_b32 s8, s{sWs}'); e(f's_mov_b32 s9, s{sWs+1}')
        if diag:
            e('v_writelane_b32 v254, s80, 0'); e('v_writelane_b32 v255, s81, 0')
        e(f's_mov_b32 s{sM3}, 0xcccccccc'); e(f's_mov_b32 s{sM3+1}, 0xcccccccc')
        e(f's_mov_b32 s{sM4}, 0xaaaaaaaa'); e(f's_mov_b32 s{sM4+1}, 0xaaaaaaaa')
        e(f's_mov_b32 s{sC}, {f32(128 ** -0.5 * math.log2(math.e))}')
        m = mask64(allhooks)
        e(f's_mov_b32 s{sHk}, 0x{m & 0xffffffff:08x}'); e(f's_mov_b32 s{sHk+1}, 0x{m >> 32:08x}')
        e(f'v_and_b32 v{vT}, 15, v0')
        e(f'v_lshlrev_b32 v1, 4, v{vT}')
        e(f'v_and_b32 v{vT+1}, 1, v0')
        e(f'v_lshlrev_b32 v{vT+1}, 4, v{vT+1}')
        e(f'v_mov_b32 v{vT+2}, 0xffff')
        e(f'v_lshlrev_b32 v{vT+2}, v{vT+1}, v{vT+2}')
        e(f'v_lshrrev_b32 v{vT}, 1, v{vT}')
        for r in range(4):
            e(f'v_cmp_eq_u32 vcc, {4 + r}, v{vT}')
            e(f'v_mov_b32 v{vAcc + r}, 0')
            e(f'v_mov_b32 v{vS + r}, 0xff800000')
            e(f'v_cndmask_b32 v{vMask + r}, 0, v{vT+2}, vcc')
        e(f'v_mov_b32 v{vS + 4}, 0xff800000'); e(f'v_mov_b32 v{vS + 5}, 0xff800000')
    k = 0
    kbar = early if wfirst else DB
    bufs = (X1, X2, X0) if nbuf == 3 else (X1, X0)
    if kbar == 0:
        setup(); e('s_barrier')
    for buf in bufs:
        for i in range(16):
            if k >= DB: e(f's_waitcnt vmcnt({DB-1})')
            issue(buf, i)
            k += 1
            if k == kbar:
                if wfirst: setup()
                e('s_barrier')
                if diag: e('s_memrealtime s[94:95]')
                if not wfirst: setup()
        e(f's_add_u32 s{sOff}, s{sOff}, 0x20000')
    stamp(1, 0)
    e('s_barrier')
    e(f'ds_read_b128 v[{vQ}:{vQ+3}], v1 offset:{L_Q + 256}')
    e('s_waitcnt lgkmcnt(0)')
    stamp(2, 0)
    if diag:
        e('v_writelane_b32 v252, s80, 44'); e('v_writelane_b32 v252, s92, 45'); e('v_writelane_b32 v252, s94, 46')

    sCk, sRc, sRk, sIsC = 56, 58, 59, 65
    vLv = 156; vZz = 157; sRs = 86; sLh = 96
    def body_begin(tagn):
        if diag:
            e('s_memrealtime s[82:83]'); e('s_mov_b32 m0, s%d' % sN); e('s_waitcnt lgkmcnt(0)')
            e('v_writelane_b32 v252, s82, m0')
        if not rc: return
        e(f's_bitcmp1_b64 s[{sCk}:{sCk+1}], s{sN}')
        e(f's_cselect_b32 s{sIsC}, 1, 0')
        e(f's_cbranch_scc0 L_nt{tagn}')
        e(f's_mov_b32 s{sRk}, 1')
        e(f's_atomic_add s{sRk}, s[{sWs}:{sWs+1}], s{sRc} glc')
        e(f's_add_u32 s{sRc}, s{sRc}, 8192')
        e(f'L_nt{tagn}:')
        setflags()
    def setflags():
        if endb:
            e(f's_cmp_ge_u32 s{sN}, {41 - endb}')
            e(f's_cselect_b32 s{sT3}, 3, s{sT3}')
        e(f's_bitcmp0_b32 s{sT3}, 0')
        e('s_cselect_b64 vcc, -1, 0')
        e(f's_cmp_ge_u32 s{sT3}, 2')
    def throttle(tagn, i):
        if not rc:
            if boost and tagn == 'v':
                e(f's_cbranch_scc1 L_vb{i}')
                e(f's_waitcnt vmcnt({D-1})')
                e(f'L_vb{i}:')
                e(f's_waitcnt vmcnt({boost[1]-1})')
            else:
                e(f's_waitcnt vmcnt({D-1})')
            return
        if i == rcat:
            e(f's_cmp_eq_u32 s{sIsC}, 0')
            e(f's_cbranch_scc1 L_nu{tagn}')
            e('s_waitcnt lgkmcnt(0)')
            e(f's_cmp_ge_u32 s{sRk}, {th[0]}'); e(f's_cselect_b32 s{sT0}, 1, 0')
            e(f's_cmp_ge_u32 s{sRk}, {th[1]}'); e(f's_cselect_b32 s{sT0}, 2, s{sT0}')
            if emap and tagn == 'v':
                tab = sum(v << (2 * r) for r, v in enumerate(emap))
                e(f's_and_b32 s{sT1}, s{sRk}, 7'); e(f's_lshl_b32 s{sT1}, s{sT1}, 1'); e(f's_lshr_b32 s{sT1}, {tab}, s{sT1}'); e(f's_and_b32 s{sT1}, s{sT1}, 3')
                e(f's_cmp_ge_u32 s{sN}, {efrom}'); e(f's_cselect_b32 s{sT0}, s{sT1}, s{sT0}')
            e(f'v_mov_b32 v{vLv}, s{sT0}')
            e(f'ds_write_b32 v{vZz}, v{vLv} offset:{L_LVL}')
            e(f'L_nu{tagn}:')
            if resets:
                e(f's_bitcmp1_b64 s[{sRs}:{sRs+1}], s{sN}')
                e(f's_cbranch_scc0 L_nv{tagn}')
                e(f'v_mov_b32 v{vLv}, 1')
                e(f'ds_write_b32 v{vZz}, v{vLv} offset:{L_LVL}')
                e(f'L_nv{tagn}:')
            e(f's_cmp_ge_u32 s{sT3}, 2')
        if i == rcat + 2:
            e(f'ds_read_b32 v{vLv}, v{vZz} offset:{L_LVL}')
        if i == rcat + 3:
            e('s_waitcnt lgkmcnt(0)')
            e(f'v_readfirstlane_b32 s{sT3}, v{vLv}')
            setflags()
        if preb and i == 16 - prek:
            e(f's_bitcmp1_b64 s[{sLh}:{sLh+1}], s{sN}')
            e('s_cselect_b64 vcc, 0, vcc')
            e(f's_cselect_b32 s{sT0}, 3, s{sT3}')
            e(f's_cmp_ge_u32 s{sT0}, 2')
        fr = (0, 0.5, 0.25, 0.75)[i & 3]
        dd = [int(x + fr) for x in (rcv if (rcv and tagn == 'v') else rc)]
        if (endb and tagn == 'v') or (preb and i >= 16 - prek):
            e(f's_waitcnt vmcnt({dmax-1})')
            e(f's_cbranch_scc0 L_lo{tagn}{i}')
            e(f's_cbranch_vccz L_go{tagn}{i}')
            e(f'L_lo{tagn}{i}:')
        e(f's_waitcnt vmcnt({dd[2]-1})')
        e(f's_cbranch_scc1 L_go{tagn}{i}')
        e(f's_waitcnt vmcnt({dd[1]-1})')
        if dd[0] != dd[1]:
            e(f's_cbranch_vccz L_go{tagn}{i}')
            e(f's_waitcnt vmcnt({dd[0]-1})')
        e(f'L_go{tagn}{i}:')
    def kops(buf, T):
        dots = [[] for _ in range(20)]
        post = [[] for _ in range(20)]
        d = [T, T + 1, T + 2]
        for i in range(16):
            t = d[i % 3]; kk = buf + 4 * i
            dots[i].append(f'v_dot2_f32_bf16 v{t}, v{kk}, v{vQ}, 0')
            for r in range(1, 4):
                dots[i].append(f'v_dot2_f32_bf16 v{t}, v{kk + r}, v{vQ + r}, v{t}')
            a = T + 3 + ((i >> 1) & 1)
            b = T + 5 + ((i >> 2) & 1)
            bm1 = '0x3' if i % 2 == 0 else '0xc'
            bm2 = '0x5' if (i >> 1) % 2 == 0 else '0xa'
            post[i + 1].append(f'v_add_f32_dpp v{a}, v{t}, v{t} row_ror:8 row_mask:0xf bank_mask:{bm1}')
            if i % 2 == 1:
                post[i + 2].append(f'v_add_f32_dpp v{b}, v{a}, v{a} row_half_mirror row_mask:0xf bank_mask:{bm2}')
            if i % 4 == 3:
                post[i + 3].append(f'v_add_f32_dpp v{b}, v{b}, v{b} quad_perm:[2,3,0,1] {DPPF}')
            if i % 8 == 7:
                c = T + 7 if i == 7 else T + 5
                post[i + 3].append(f'v_cndmask_b32 v{c}, v{T+5}, v{T+6}, s[{sM3}:{sM3+1}]')
                post[i + 4].append(f'v_add_f32_dpp v{c}, v{c}, v{c} quad_perm:[1,0,3,2] {DPPF}')
        return [dots[i] + post[i] for i in range(20)]
    def kfinal(T, dst):
        return f'v_cndmask_b32 v{dst}, v{T+7}, v{T+5}, s[{sM4}:{sM4+1}]'
    def ktail(stepsets):
        for s_ in range(16, 20):
            e('s_nop 2' if s_ == 16 else 's_nop 1')
            for st in stepsets:
                for op in st[s_]: e(op)

    sets = [kops(X0, vT), kops(X1, vT + 8), kops(X2, vT + 16)][:nbuf]
    for i in range(16):
        for op in sets[0][i]: e(op)
        e(f's_waitcnt vmcnt({DB-1})')
        issue(X0, i)
        for st in sets[1:]:
            for op in st[i]: e(op)
    ktail(sets)
    if nbuf == 3:
        e(kfinal(vT + 8, vS + 5)); e(kfinal(vT + 16, vS + 6)); e(kfinal(vT, vS + 7))
    else:
        e(kfinal(vT + 8, vS + 6)); e(kfinal(vT, vS + 7))
    make_tag(vTg)
    if nbuf == 3:
        e(f's_mov_b32 s4, s{sBv}'); e(f's_mov_b32 s5, s{sBv+1}')
        e(f's_add_u32 s{sOff}, s{sWb}, 0x180000')
    else:
        e(f's_add_u32 s{sOff}, s{sOff}, 0x20000')
    e(f's_mov_b32 s{sN}, {nbuf + 1}')
    e(f's_mov_b32 s{sSeg}, 2')
    e(f'v_mov_b32 v{vZz}, 0')
    m = mask64(vkind)
    e(f's_mov_b32 s{sVk}, 0x{m & 0xffffffff:08x}'); e(f's_mov_b32 s{sVk+1}, 0x{m >> 32:08x}')
    e(f's_mov_b32 s{sKK}, 0'); e(f's_mov_b32 s{sKV}, 0'); e(f's_mov_b32 s{sX}, 0')
    if rc:
        m = mask64(cks)
        e(f's_cmp_eq_u32 s{sW}, 0')
        e(f's_cselect_b32 s{sCk}, 0x{m & 0xffffffff:08x}, 0'); e(f's_cselect_b32 s{sCk+1}, 0x{m >> 32:08x}, 0')
        m = mask64([4, 16, 24, 31, 8])
        e(f's_mov_b32 s{sLh}, 0x{m & 0xffffffff:08x}'); e(f's_mov_b32 s{sLh+1}, 0x{m >> 32:08x}')
        m = mask64(resets)
        e(f's_cselect_b32 s{sRs}, 0x{m & 0xffffffff:08x}, 0'); e(f's_cselect_b32 s{sRs+1}, 0x{m >> 32:08x}, 0')
        e(f's_lshl_b32 s{sRc}, s{sH}, 8'); e(f's_add_u32 s{sRc}, s{sRc}, {RC}')
        e(f's_mov_b32 s{sT3}, {lvl0}')
    stamp(3, 0)

    e('L_kbody:')
    ks = kops(X0, vT)
    body_begin('k')
    for i in range(16):
        for op in ks[i]: e(op)
        if i < 7: e(f'v_mov_b32 v{vS + i}, v{vS + i + 1}')
        throttle('k', i)
        issue(X0, i)
    ktail([ks])
    e(kfinal(vT, vS + 7))
    e(f's_bitcmp1_b64 s[{sHk}:{sHk+1}], s{sN}')
    e('s_cbranch_scc1 L_hooks')
    e(f's_add_u32 s{sOff}, s{sOff}, 0x20000')
    e(f's_add_u32 s{sN}, s{sN}, 1')
    e('s_branch L_kbody')

    e('L_vbody:')
    e(f'v_and_b32 v{vPd}, 0xffff, v{vP}')
    e(f'v_lshl_or_b32 v{vPd}, v{vPd}, 16, v{vPd}')
    for r in range(3):
        e(f'v_alignbit_b32 v{vP + r}, v{vP + r + 1}, v{vP + r}, 16')
    e(f'v_lshrrev_b32 v{vP+3}, 16, v{vP+3}')
    def vand(i):
        a = vS + 4 * (i & 1)
        for r in range(4):
            e(f'v_and_b32_dpp v{a + r}, v{vPd}, v{vMask + r} row_newbcast:{br4(i)} {DPPF}')
    if boost and not rc: e(f's_cmp_ge_u32 s{sN}, {40 - boost[0]}')
    body_begin('v')
    vand(0)
    for i in range(16):
        if i < 15: vand(i + 1)
        a = vS + 4 * (i & 1); v = X0 + 4 * i
        e(f'v_mfma_f32_16x16x32_bf16 v[{vAcc}:{vAcc+3}], v[{a}:{a+3}], v[{v}:{v+3}], v[{vAcc}:{vAcc+3}]')
        throttle('v', i)
        issue(X0, i)
    e(f's_bitcmp1_b64 s[{sHk}:{sHk+1}], s{sN}')
    e('s_cbranch_scc1 L_hooks')
    e(f's_add_u32 s{sOff}, s{sOff}, 0x20000')
    e(f's_add_u32 s{sN}, s{sN}, 1')
    e('s_branch L_vbody')

    e('L_hooks:')
    T = vT
    e(f's_cmp_eq_u32 s{sN}, 40'); e('s_cbranch_scc1 L_sfin')
    for n in (39, 7, 8, 22, 23, 26, 30, 31, 32, 3):
        e(f's_cmp_eq_u32 s{sN}, {n}'); e(f's_cbranch_scc1 L_h{n}')
    def kspin(off, dst):
        l = g.lab('ks')
        e(f's_mov_b32 s{sSpin}, {SPIN * 8}')
        e(f'{l}:')
        e(f'ds_read_b32 v{T}, v{vZz} offset:{off}')
        e(f's_sub_u32 s{sSpin}, s{sSpin}, 1')
        e(f's_cbranch_scc1 {l}x')
        e('s_waitcnt lgkmcnt(0)')
        e(f'v_cmp_eq_u32 vcc, -1, v{T}')
        e(f's_cbranch_vccnz {l}')
        e(f'{l}x:')
        e('s_waitcnt lgkmcnt(0)')
        e(f'v_readfirstlane_b32 s{dst}, v{T}')
        e(f's_and_b32 s{dst}, s{dst}, 1')
    def pcheck(regs, seg):
        l = g.lab('pc')
        e(f's_cmp_eq_u32 s{sX}, 0'); e(f's_cbranch_scc1 {l}x')
        e(f's_mov_b32 s{sSpin}, {0 if (nold or nost) else SPIN}')
        e(f'{l}:')
        for r in range(4): e(f'v_xor_b32 v{regs + r}, v{regs + r}, v{vPat + r}')
        e(f'v_or3_b32 v{T}, v{regs}, v{regs+1}, v{regs+2}')
        e(f'v_or_b32 v{T}, v{T}, v{regs+3}')
        e(f'v_and_b32 v{T}, 0x80008000, v{T}')
        e(f'v_cmp_ne_u32 vcc, 0, v{T}')
        e(f's_cbranch_vccz {l}x')
        e(f's_sub_u32 s{sSpin}, s{sSpin}, 1')
        e(f's_cbranch_scc1 {l}x')
        pload(regs, seg)
        e('s_waitcnt vmcnt(0)')
        e(f's_branch {l}')
        e(f'{l}x:')
    def pload(regs, seg):
        if not nold: e(f'buffer_load_dwordx4 v[{regs}:{regs+3}], v{vPPa + seg}, s[8:11], s{sPPb} offen {ppld}')
    for r in range(4): e(f'v_mov_b32 v{vP + r}, v{vPA + r}')
    e(f'v_max3_f32 v{T}, v{vS}, v{vS+1}, v{vS+2}')
    e(f'v_max3_f32 v{T+1}, v{vS+3}, v{vS+4}, v{vS+5}')
    e(f'v_max3_f32 v{T}, v{T}, v{vS+6}, v{vS+7}')
    e(f'v_max_f32 v{T}, v{T}, v{T+1}')
    def rowred(op, r):
        for ctl in ('quad_perm:[1,0,3,2]', 'quad_perm:[2,3,0,1]', 'row_half_mirror', 'row_mirror'):
            e('s_nop 1')
            e(f'{op}_dpp v{r}, v{r}, v{r} {ctl} {DPPF}')
    def allred(op, r, tmp):
        rowred(op, r)
        for sw in ('v_permlane16_swap_b32', 'v_permlane32_swap_b32'):
            e(f'v_mov_b32 v{tmp}, v{r}')
            e('s_nop 1')
            e(f'{sw} v{tmp}, v{r}')
            e('s_nop 1')
            e(f'{op} v{r}, v{r}, v{tmp}')
    allred('v_max_f32', T, T + 1)
    e(f'v_mul_f32 v{T+2}, s{sC}, v{T}')
    for r in range(8): e(f'v_fma_f32 v{vS + r}, v{vS + r}, s{sC}, -v{T+2}')
    for r in range(8): e(f'v_exp_f32 v{vS + r}, v{vS + r}')
    e(f'v_cmp_eq_u32 vcc, s{sSeg}, v0')
    for r in range(4): e(f'v_cvt_pk_bf16_f32 v{vPA + r}, v{vS + 2*r}, v{vS + 2*r + 1}')
    e(f'v_cndmask_b32 v{vMl}, v{vMl}, v{T+2}, vcc')
    for r in range(4): e(f'v_add_f32 v{vS + 2*r}, v{vS + 2*r}, v{vS + 2*r + 1}')
    e(f'v_add_f32 v{vS}, v{vS}, v{vS+2}')
    e(f'v_add_f32 v{vS+4}, v{vS+4}, v{vS+6}')
    e(f'v_add_f32 v{T}, v{vS}, v{vS+4}')
    allred('v_add_f32', T, T + 1)
    e(f'v_cndmask_b32 v{vMl+1}, v{vMl+1}, v{T}, vcc')
    e(f's_cmp_eq_u32 s{sN}, 4'); e('s_cbranch_scc0 L_finA')
    e(f'v_mov_b32 v{vP}, v{vPA+2}'); e(f'v_mov_b32 v{vP+1}, v{vPA+3}')
    e(f's_mov_b32 s{sSeg}, 0')
    e(f'ds_read_b128 v[{vQ}:{vQ+3}], v1 offset:{L_Q}')
    e('s_waitcnt lgkmcnt(0)')
    e('s_branch L_h_done')
    e('L_finA:')
    if numa:
        e(f's_cmp_eq_u32 s{sN}, 16'); e('s_cbranch_scc0 L_finA1')
        kspin(L_KAP + 4, sKV)
        if truth:
            e(f's_lshl_b32 s90, s{sKV}, 1'); e('s_or_b32 s89, s89, s90')
            e('v_writelane_b32 v254, s88, 13'); e('v_writelane_b32 v255, s89, 13')
            if truth == 2:
                e(f's_bfe_u32 s{sKV}, s88, 0x10001'); e(f's_xor_b32 s{sKV}, s{sKV}, s{sSide}')
        e(f's_xor_b32 s{sX}, s{sKK}, s{sKV}')
        if forcex is not None: e(f's_mov_b32 s{sX}, {forcex}')
        e('L_finA1:')
        e(f's_cmp_eq_u32 s{sX}, 0'); e('s_cbranch_scc1 L_nops')
        for r in range(4): e(f'v_and_or_b32 v{vPs + r}, v{vPA + r}, s{s7f}, v{vPat + r}')
        e(f's_lshl_b32 s{sT0}, s{sSeg}, 8')
        e(f'v_xor_b32 v{T}, s{sT0}, v{vPPa}')
        if not nost: e(f'buffer_store_dwordx4 v[{vPs}:{vPs+3}], v{T}, s[8:11], s{sPPa} offen {ppst}')
        e('L_nops:')
    e(f's_mov_b32 s{sSeg}, 1')
    e(f's_cmp_eq_u32 s{sN}, 24'); e('s_cbranch_scc0 L_h_done')
    stamp(14, 0)
    e(f's_lshl_b32 s{sT0}, s2, 8'); e(f's_lshl_b32 s{sT1}, s{sW}, 6'); e(f's_add_u32 s{sT0}, s{sT0}, s{sT1}')
    e(f's_add_u32 s{sT0}, s{sT0}, {ST}')
    e(f'v_mov_b32 v{vMl+2}, s{sE}'); e(f'v_mov_b32 v{vMl+3}, s{sE}')
    if wgstat: e(f'v_add_u32 v{T}, s{sT1}, v{vL16}')
    e('s_mov_b64 exec, 15')
    if wgstat: e(f'ds_write_b128 v{T}, v[{vMl}:{vMl+3}] offset:{L_ST}')
    else: e(f'buffer_store_dwordx4 v[{vMl}:{vMl+3}], v{vL16}, s[8:11], s{sT0} offen sc1')
    e('s_mov_b64 exec, -1')
    e('s_branch L_h_done')
    e('L_h8:')
    for r in range(4): e(f'v_mov_b32_dpp v{vMask + r}, v{vMask + r} row_ror:8 {DPPF}')
    for r in range(4): e(f'v_mov_b32 v{vAccB + r}, v{vAcc + r}')
    for r in range(4): e(f'v_mov_b32 v{vAcc + r}, 0')
    if numa:
        e(f'v_mul_u32_u24 v{T}, 37, v0')
        e(f'v_xor_b32 v{T}, s{sTag}, v{T}')
        for r in range(4):
            e(f'v_bfe_u32 v{T+1}, v{T}, {2*r}, 1')
            e(f'v_bfe_u32 v{T+2}, v{T}, {2*r+1}, 1')
            e(f'v_lshlrev_b32 v{T+1}, 15, v{T+1}')
            e(f'v_lshl_or_b32 v{vPat + r}, v{T+2}, 31, v{T+1}')
        e(f's_mov_b32 s{s7f}, 0x7fff7fff')
        e(f'v_lshrrev_b32 v{T}, 4, v0')
        e(f'v_lshl_add_u32 v{vPPa}, v{T}, 15, v{vL16}')
        if pplin == 1: e(f'v_and_b32 v{vPPa}, 0xfffffdff, v{vPPa}')
        if pplin == 2: e(f'v_and_b32 v{vPPa}, 0xfffffcff, v{vPPa}')
        e(f's_and_b32 s{sT0}, s{sW}, 1'); e(f's_lshl_b32 s{sT0}, s{sT0}, 9')
        e(f'v_xor_b32 v{vPPa}, s{sT0}, v{vPPa}')
        e(f'v_xor_b32 v{vPPb}, 0x100, v{vPPa}')
        e(f's_lshr_b32 s{sT0}, s{sW}, 1'); e(f's_lshl_b32 s{sT0}, s{sT0}, 10')
        e(f's_and_b32 s{sT1}, s2, 15'); e(f's_lshl_b32 s{sT1}, s{sT1}, 11'); e(f's_add_u32 s{sT0}, s{sT0}, s{sT1}')
        e(f's_lshr_b32 s{sT1}, s2, 4'); e(f's_lshl_b32 s{sT1}, s{sT1}, 17'); e(f's_add_u32 s{sT0}, s{sT0}, s{sT1}')
        e(f's_add_u32 s{sPPa}, s{sT0}, {PP}')
        e(f's_xor_b32 s{sPPb}, s{sPPa}, 0x2000')
    e('s_branch L_h_done')
    e('L_h32:')
    for r in range(4): e(f'v_mov_b32_dpp v{vMask + r}, v{vMask + r} row_ror:8 {DPPF}')
    for r in range(4): e(f'v_mov_b32 v{vP + r}, v{vPA + r}')
    e('s_branch L_h_done')
    e('L_h3:')
    e(f's_mov_b32 s4, s{sBv}'); e(f's_mov_b32 s5, s{sBv+1}')
    e(f's_add_u32 s{sOff}, s{sWb}, {0x180000 - 0x20000}')
    e('s_branch L_h_done')
    e('L_h7:')
    stamp(15, 0)
    if numa:
        kspin(L_KAP, sKK)
        if truth:
            e(f's_lshr_b32 s88, s{sSlab}, 19'); e('s_add_u32 s88, s88, 0x600000')
            e(f's_load_dword s88, s[{sWs}:{sWs+1}], s88')
            e('s_waitcnt lgkmcnt(0)')
            e(f's_mov_b32 s89, s{sKK}')
            if truth == 2:
                e(f's_and_b32 s{sKK}, s88, 1'); e(f's_xor_b32 s{sKK}, s{sKK}, s{sSide}')
        for j in range(4): e(f'v_and_b32 v{vOff + j}, 0xffffdfff, v{vOff + j}')
    e(f's_mov_b32 s4, s{sAk}'); e(f's_mov_b32 s5, s{sAk+1}')
    e(f's_lshl_b32 s{sT0}, s{sKK}, 13'); e(f's_add_u32 s{sOff}, s{sWb}, s{sT0}')
    e(f's_sub_u32 s{sOff}, s{sOff}, 0x20000')
    e('s_branch L_h_done')
    e('L_h26:')
    e(f's_cmp_lg_u32 s{sW}, 0'); e('s_cbranch_scc1 L_h_done')
    e('s_mov_b64 exec, 0xffff')
    e(f's_mov_b32 s{sSpin}, {SPIN * 8}')
    e('L_h26s:')
    e(f'ds_read_b128 v[{vMl}:{vMl+3}], v{vL16} offset:{L_ST}')
    e(f's_sub_u32 s{sSpin}, s{sSpin}, 1'); e('s_cbranch_scc1 L_h26x')
    e('s_waitcnt lgkmcnt(0)')
    e(f'v_cmp_ne_u32 vcc, s{sE}, v{vMl+2}')
    e('s_cbranch_vccnz L_h26s')
    e('L_h26x:')
    e('s_waitcnt lgkmcnt(0)')
    e(f's_lshl_b32 s{sT0}, s2, 8'); e(f's_add_u32 s{sT0}, s{sT0}, {ST}')
    e(f'buffer_store_dwordx4 v[{vMl}:{vMl+3}], v{vL16}, s[8:11], s{sT0} offen sc1')
    e('s_mov_b64 exec, -1')
    e('s_branch L_h_done')
    e('L_h22:')
    if numa:
        e(f's_cmp_eq_u32 s{sX}, 0'); e('s_cbranch_scc1 L_h_done')
        pload(vPA, 0)
    e('s_branch L_h_done')
    e('L_h23:')
    if numa: pcheck(vPA, 0)
    e(f's_mov_b32 s4, s{sAv}'); e(f's_mov_b32 s5, s{sAv+1}')
    e(f's_lshl_b32 s{sT0}, s{sKV}, 13'); e(f's_add_u32 s{sOff}, s{sWb}, s{sT0}')
    e(f's_sub_u32 s{sOff}, s{sOff}, 0x20000')
    e('s_branch L_h_done')
    e('L_h39:')
    e('s_mov_b32 s6, 0')
    e('s_branch L_h_done')
    e('L_h30:')
    e(f'v_and_b32 v{T}, 3, v0')
    e(f'v_lshlrev_b32 v{vStA}, 6, v{T}')
    e(f'v_bfe_u32 v{T}, v0, 2, 1')
    e(f'v_lshl_add_u32 v{vStA}, v{T}, 10, v{vStA}')
    e(f'v_lshrrev_b32 v{T}, 3, v0')
    e(f'v_min_u32 v{T}, 2, v{T}')
    e(f'v_lshl_add_u32 v{vStA}, v{T}, 4, v{vStA}')
    e(f's_and_b32 s{sT0}, s2, 0xfb'); e(f's_lshl_b32 s{sT0}, s{sT0}, 8'); e(f's_add_u32 s{sT0}, s{sT0}, {ST}')
    e(f'v_add_u32 v{vStA}, s{sT0}, v{vStA}')
    e(f'buffer_load_dwordx4 v[{vSt}:{vSt+3}], v{vStA}, s[8:11], 0 offen sc1')
    if numa:
        e(f's_cmp_eq_u32 s{sX}, 0'); e('s_cbranch_scc1 L_h_done')
        pload(vPA, 1)
    e('s_branch L_h_done')
    e('L_h31:')
    if numa: pcheck(vPA, 1)
    e(f's_mov_b32 s{sSpin}, {SPIN}')
    e('L_h31s:')
    e(f'v_cmp_ne_u32 vcc, s{sE}, v{vSt+2}')
    e('s_cbranch_vccz L_h31k')
    e(f's_sub_u32 s{sSpin}, s{sSpin}, 1')
    e('s_cbranch_scc1 L_h31k')
    e(f'buffer_load_dwordx4 v[{vSt}:{vSt+3}], v{vStA}, s[8:11], 0 offen sc1')
    e('s_waitcnt vmcnt(0)')
    e('s_branch L_h31s')
    e('L_h31k:')
    e(f'v_mov_b32 v{T}, v{vSt}')
    rowred('v_max_f32', T)
    e(f'v_sub_f32 v{T}, v{vSt}, v{T}')
    e(f'v_exp_f32 v{T}, v{T}')
    e('s_nop 0')
    e(f'v_mul_f32 v{T+1}, v{T}, v{vSt+1}')
    rowred('v_add_f32', T + 1)
    e(f'v_rcp_f32 v{T+1}, v{T+1}')
    e('s_nop 0')
    e(f'v_mul_f32 v{T}, v{T}, v{T+1}')
    e(f's_lshl_b32 s{sT0}, s{sSide}, 2'); e(f's_add_u32 s{sT0}, s{sT0}, s{sW}')
    e(f's_add_u32 s{sT2}, s{sT0}, 16')
    e(f's_lshl_b32 s{sT1}, s{sX}, 2'); e(f's_xor_b32 s{sT0}, s{sT0}, s{sT1}')
    e(f's_add_u32 s{sT1}, s{sT0}, 8')
    e(f'v_readlane_b32 s{sFA0}, v{T}, s{sT0}')
    e(f'v_readlane_b32 s{sFA1}, v{T}, s{sT1}')
    e(f'v_readlane_b32 s{sFB}, v{T}, s{sT2}')
    e('v_cmp_gt_u32 vcc, 32, v0')
    e(f'v_mov_b32 v{T}, s{sFA0}')
    e(f'v_mov_b32 v{T+1}, s{sFA1}')
    e(f'v_cndmask_b32 v{vF}, v{T+1}, v{T}, vcc')
    e(f'v_mov_b32 v{T}, s{sFB}')
    e(f'v_add_f32 v{T}, v{T}, v{T}')
    for r in range(4): e(f'v_mul_f32 v{vAccB + r}, v{T}, v{vAccB + r}')
    e(f'v_lshrrev_b32 v{T}, 5, v0')
    e(f'v_lshlrev_b32 v1, 9, v{T}')
    e(f'v_and_b32 v{T}, 15, v0')
    e(f'v_lshl_add_u32 v1, v{T}, 5, v1')
    e(f'v_and_b32 v{T}, 16, v0')
    e(f'v_add_u32 v1, v{T}, v1')
    e(f's_lshl_b32 s{sT0}, s{sW}, 10')
    e(f'v_add_u32 v1, s{sT0}, v1')
    e('L_h_done:')
    e(f's_add_u32 s{sOff}, s{sOff}, 0x20000')
    e(f's_add_u32 s{sN}, s{sN}, 1')
    e(f's_bitcmp1_b64 s[{sVk}:{sVk+1}], s{sN}')
    e('s_cbranch_scc1 L_vbody')
    e('s_branch L_kbody')
    e('L_sfin:')
    e('s_nop 1')
    for r in range(4): e(f'v_mul_f32 v{vAcc + r}, v{vF}, v{vAcc + r}')
    for r in range(4): e(f'v_permlane32_swap_b32 v{vAcc + r}, v{vAccB + r}')
    for r in range(4): e(f'v_add_f32 v{vAcc + r}, v{vAcc + r}, v{vAccB + r}')
    e(f'ds_write_b128 v1, v[{vAcc}:{vAcc+3}] offset:{L_O}')
    e('s_waitcnt lgkmcnt(0)')
    e('s_barrier')
    if diag:
        e(f's_cmp_lg_u32 s{sW}, 0'); e('s_cbranch_scc1 L_end')
        stamp(4)
        e('s_barrier')
    flush_stamps([0, 1, 2, 3, 4, 13, 14, 15])
    if diag:
        e('s_mov_b64 exec, -1')
        e('s_lshl_b32 s84, s2, 8'); e(f's_add_u32 s84, s84, {STAMP + 0x8000}')
        e('v_lshlrev_b32 v253, 2, v0')
        e('buffer_store_dword v252, v253, s[8:11], s84 offen')
    e('s_endpgm')

    def tlbpf():
        e(f's_lshl_b32 s{sT0}, s{sB}, 5'); e(f's_add_u32 s{sT0}, s{sT0}, s{sH}'); e(f's_lshl_b32 s{sT0}, s{sT0}, 21')
        e(f's_load_dword s77, s[{sAk}:{sAk+1}], s{sT0}')
        e(f's_load_dword s78, s[{sBv}:{sBv+1}], s{sT0}')
        e(f's_load_dword s79, s[{sAv}:{sAv+1}], s{sT0}')
        e(f's_load_dword s60, s[{sOut}:{sOut+1}], 0')
    e('L_service:')
    sU = sB; sBeta = sSide
    sIt, sDst = 53, 54
    vG = 2; vC = 3; vA = 4; vA2 = 5; vL = 6; vZ = 7
    vXA = 8; vWt = 16; vSel = 48; vOpA = 56; vD = 64; vR = 72
    vA3 = 104; vTg = 105; vX3 = 108; vX4 = 109; vOut = 110
    e(f's_sub_u32 s{sW}, s{sW}, 4')
    e(f'v_lshrrev_b32 v{vG}, 4, v0')
    e(f'v_and_b32 v{vC}, 15, v0')
    e(f'v_mov_b32 v{vZ}, 0')
    e(f'ds_write_b32 v{vZ}, v{vZ} offset:{L_CNT}')
    e(f'ds_write_b32 v{vZ}, v{vZ} offset:{L_CN3}')
    if rc:
        e(f'v_mov_b32 v{vA}, {lvl0}')
        e(f'ds_write_b32 v{vZ}, v{vA} offset:{L_LVL}')
    if numa:
        e(f'v_mov_b32 v{vL}, 0')
        e(f'ds_write_b64 v{vZ}, v[{vL}:{vL+1}] offset:{L_CN2}')
        for r in range(4): e(f'v_mov_b32 v{vR + r}, -1')
        e(f'ds_write_b128 v{vZ}, v[{vR}:{vR+3}] offset:{L_EV}')
        e(f'ds_write_b64 v{vZ}, v[{vR}:{vR+1}] offset:{L_KAP}')
    e(f'v_lshlrev_b32 v{vA}, 16, v{vG}')
    e(f'v_lshl_add_u32 v{vA}, v{vC}, 4, v{vA}')
    e(f'v_lshrrev_b32 v{vA2}, 3, v{vC}')
    e(f'v_lshlrev_b32 v{vA2}, 10, v{vA2}')
    e(f'v_lshl_add_u32 v{vA2}, v{vG}, 4, v{vA2}')
    e(f's_lshl_b32 s{sT0}, s{sU}, 7')
    e(f's_lshl_b32 s{sT1}, s{sW}, 5')
    e(f's_add_u32 s{sT0}, s{sT0}, s{sT1}')
    e(f's_lshl_b32 s{sT1}, s{sT0}, 1')
    e(f's_lshl_b32 s{sT0}, s{sT0}, 13')
    e(f's_lshl_b32 s{sT2}, s{sH}, 8')
    e(f's_add_u32 s{sT0}, s{sT0}, s{sT2}')
    e('s_mov_b32 s6, 0x400000')
    e('s_mov_b32 s14, 4096')
    e('s_mov_b32 s15, 0x20000')
    e(f's_cmp_eq_u32 s{sBeta}, 0')
    e('s_waitcnt lgkmcnt(0)')
    e(f's_cselect_b64 s[4:5], s[{sAwq}:{sAwq+1}], s[{sBwq}:{sBwq+1}]')
    e(f's_cselect_b64 s[12:13], s[{sAx}:{sAx+1}], s[{sBx}:{sBx+1}]')
    if diag: e('s_memrealtime s[92:93]')
    for m in range(2):
        e(f'buffer_load_dwordx4 v[{vXA + 4*m}:{vXA + 4*m + 3}], v{vA2}, s[12:15], s{sT1} offen offset:{2048*m}')
    vWo = 112
    def wo_addr(va):
        e(f'v_lshlrev_b32 v{va}, 13, v{vG}')
        e(f'v_lshl_add_u32 v{va}, v{vC}, 4, v{va}')
        e(f's_lshl_b32 s{sT0}, s{sH}, 17')
        e(f's_lshl_b32 s{sT1}, s{sW}, 15')
        e(f's_add_u32 s{sT0}, s{sT0}, s{sT1}')
        e(f's_lshl_b32 s{sT1}, s{sU}, 8')
        e(f's_add_u32 s{sT0}, s{sT0}, s{sT1}')
        e(f's_add_u32 s{sT1}, s{sT0}, 4096')
        e(f's_cmp_eq_u32 s{sBeta}, 0')
        e(f's_cselect_b64 s[4:5], s[{sAwo}:{sAwo+1}], s[{sBwo}:{sBwo+1}]')
    for i in range(8):
        if wfirst and i >= DW: e(f's_waitcnt vmcnt({DW-1})')
        if diag and i == DW: e('s_memrealtime s[94:95]')
        e(f'buffer_load_dwordx4 v[{vWt + 4*i}:{vWt + 4*i + 3}], v{vA}, s[4:7], s{sT0} offen {pol}')
        if i < 7: e(f's_add_u32 s{sT0}, s{sT0}, 8192')
        if i == min(DW, 8) - 1: load_epoch()
    if wfirst == 2:
        wo_addr(vR)
        for i in range(8):
            if 8 + i >= DW: e(f's_waitcnt vmcnt({DW-1})')
            e(f'buffer_load_dwordx4 v[{vWo + 4*i}:{vWo + 4*i + 3}], v{vR}, s[4:7], s{sT0 if i < 4 else sT1} offen offset:{(i & 3) * 1024} {pol}')
    e('s_barrier')
    e(f's_mov_b32 s8, s{sWs}'); e(f's_mov_b32 s9, s{sWs+1}')
    e(f'v_lshlrev_b32 v{vL}, 4, v0')
    e(f'v_mov_b32 v{vX4}, 0'); e(f'v_mov_b32 v{vOut}, 0')
    if rc:
        assert wfirst != 2 and len(cks) <= 16
        e(f's_lshl_b32 s{sT0}, s{sW}, 3'); e(f's_add_u32 s{sT0}, s{sT0}, s{sJ}')
        e(f's_cmp_ge_u32 s{sT0}, {len(cks)}'); e('s_cbranch_scc1 L_norc')
        e(f's_lshl_b32 s{sT0}, s{sT0}, 5'); e(f's_add_u32 s{sT0}, s{sT0}, s{sH}'); e(f's_lshl_b32 s{sT0}, s{sT0}, 8'); e(f's_add_u32 s{sT0}, s{sT0}, {RC}')
        e('s_mov_b64 exec, 0xffff')
        e(f'v_lshlrev_b32 v{vR}, 2, v0')
        e(f'buffer_store_dword v{vZ}, v{vR}, s[8:11], s{sT0} offen sc1')
        e('s_mov_b64 exec, -1')
        e('L_norc:')
    e(f'v_and_b32 v{vR}, 7, v0')
    e(f'v_and_b32 v{vR+1}, 1, v0')
    e(f'v_lshlrev_b32 v{vR+1}, 4, v{vR+1}')
    e(f'v_mov_b32 v{vR+2}, 0xffff')
    e(f'v_lshlrev_b32 v{vR+2}, v{vR+1}, v{vR+2}')
    e(f'v_lshrrev_b32 v{vR}, 1, v{vR}')
    e(f'v_mov_b32 v{vR+4}, 0x0c0c0c0c')
    e(f's_mov_b32 s{sT0}, 0x01000100')
    e(f's_mov_b32 s{sT1}, 0x03020302')
    for r in range(4):
        e(f'v_cmp_eq_u32 vcc, {r}, v{vR}')
        e('s_nop 1')
        e(f'v_cndmask_b32 v{vR+3}, 0, v{vR+2}, vcc')
        e(f'v_bfi_b32 v{vSel + r}, v{vR+3}, s{sT0}, v{vR+4}')
        e(f'v_bfi_b32 v{vSel + 4 + r}, v{vR+3}, s{sT1}, v{vR+4}')
    e(f'v_lshrrev_b32 v{vR}, 5, v0')
    e(f'v_lshlrev_b32 v{vA}, 9, v{vR}')
    e(f'v_lshl_add_u32 v{vA}, v{vC}, 5, v{vA}')
    e(f'v_and_b32 v{vR}, 16, v0')
    e(f's_lshl_b32 s{sT0}, s{sW}, 11')
    e(f'v_add3_u32 v{vA}, v{vA}, v{vR}, s{sT0}')
    e(f'v_lshl_add_u32 v{vA2}, v{vG}, 15, v{vL}')
    e(f's_lshl_b32 s{sT0}, s2, 1'); e(f's_and_b32 s{sT0}, s{sT0}, 127'); e(f's_lshl_b32 s{sT0}, s{sT0}, 8')
    e(f'v_xor_b32 v{vA2}, s{sT0}, v{vA2}')
    e(f'v_xor_b32 v{vA3}, 0x100, v{vA2}')
    e(f's_lshr_b32 s{sDst}, s2, 6'); e(f's_lshl_b32 s{sDst}, s{sDst}, 17')
    if QP: e(f's_add_u32 s{sDst}, s{sDst}, {QP}')
    e('s_waitcnt lgkmcnt(0)')
    make_tag(vTg)
    if pads:
        for w in range(3):
            e(f's_cmp_eq_u32 s{sW}, {w}'); e(f's_cbranch_scc1 L_pad{w}')
        e('s_branch L_pad3')
        e('L_padret:')
    e(f's_waitcnt vmcnt({8 if wfirst == 2 else 0})')
    stamp(5, 0)
    e('L_gemv:')
    seq = [(i, m) for i in range(8) for m in range(2)]
    def perms(k):
        i, m = seq[k]
        a = vOpA + 4 * (k & 1); x = vXA + 4 * m + (i >> 1)
        for r in range(4):
            e(f'v_perm_b32 v{a + r}, v{x}, v{x}, v{vSel + 4 * (i & 1) + r}')
    perms(0)
    for k, (i, m) in enumerate(seq):
        if k < 15: perms(k + 1)
        else: e('s_nop 0')
        a = vOpA + 4 * (k & 1); d = vD + 4 * m; w = vWt + 4 * i
        c = f'v[{d}:{d+3}]' if i > 0 else '0'
        e(f'v_mfma_f32_16x16x32_bf16 v[{d}:{d+3}], v[{a}:{a+3}], v[{w}:{w+3}], {c}')
    e(f'v_mov_b32 v{vR}, 1')
    e('s_nop 5')
    e(f'ds_write_b128 v{vA}, v[{vD}:{vD+3}] offset:{L_RED}')
    e(f'ds_write_b128 v{vA}, v[{vD+4}:{vD+7}] offset:{L_RED + 1024}')
    e('s_mov_b64 exec, 1')
    e(f'ds_add_u32 v{vZ}, v{vR} offset:{L_CNT}')
    e('s_mov_b64 exec, -1')
    e(f's_cmp_lg_u32 s{sW}, 0')
    e('s_cbranch_scc1 L_notleader')
    e(f's_mov_b32 s{sSpin}, {SPIN * 8}')
    e('L_cspin:')
    e(f'ds_read_b32 v{vR}, v{vZ} offset:{L_CNT}')
    e(f's_sub_u32 s{sSpin}, s{sSpin}, 1')
    e('s_cbranch_scc1 L_cout')
    e('s_waitcnt lgkmcnt(0)')
    e(f'v_cmp_eq_u32 vcc, 4, v{vR}')
    e('s_cbranch_vccz L_cspin')
    e('L_cout:')
    for m in range(2):
        e(f'ds_read_b128 v[{vD + 4*m}:{vD + 4*m + 3}], v{vL} offset:{L_RED + m * 1024}')
    for w in range(1, 4):
        for m in range(2):
            r = vR + ((w - 1) * 2 + m) * 4
            e(f'ds_read_b128 v[{r}:{r+3}], v{vL} offset:{L_RED + w * 2048 + m * 1024}')
    e('s_waitcnt lgkmcnt(4)')
    for r in range(8): e(f'v_add_f32 v{vD + r}, v{vD + r}, v{vR + r}')
    e('s_waitcnt lgkmcnt(0)')
    for r in range(8): e(f'v_add_f32 v{vR + 8 + r}, v{vR + 8 + r}, v{vR + 16 + r}')
    for r in range(8): e(f'v_add_f32 v{vD + r}, v{vD + r}, v{vR + 8 + r}')
    for r in range(8): tag(vD + r, vTg)
    e(f'buffer_store_dwordx4 v[{vD}:{vD+3}], v{vA2}, s[8:11], s{sDst} offen {stp}')
    e(f'buffer_store_dwordx4 v[{vD+4}:{vD+7}], v{vA3}, s[8:11], s{sDst} offen {stp}')
    stamp(6)
    e(f'v_bfe_u32 v{vR}, v0, 4, 1')
    e(f's_and_b32 s{sT0}, s{sB}, 1'); e(f's_lshl_b32 s{sT0}, s{sT0}, 1')
    e(f'v_or_b32 v{vR}, s{sT0}, v{vR}')
    e(f'v_lshrrev_b32 v{vR+1}, 5, v0')
    e(f'v_lshlrev_b32 v{vR+1}, 3, v{vR+1}')
    e(f's_and_b32 s{sT0}, s{sH}, 7'); e(f's_lshl_b32 s{sT0}, s{sT0}, 4'); e(f's_lshr_b32 s{sT1}, s{sB}, 1'); e(f's_or_b32 s{sT0}, s{sT0}, s{sT1}')
    e(f'v_or_b32 v{vR+1}, s{sT0}, v{vR+1}')
    e(f'v_xor_b32 v{vR+1}, v{vR+1}, v{vR}')
    e(f'v_lshlrev_b32 v{vR+1}, 8, v{vR+1}')
    e(f'v_lshl_add_u32 v{vR+1}, v{vR}, 15, v{vR+1}')
    e(f'v_lshl_add_u32 v{vR}, v{vC}, 4, v{vR+1}')
    e(f'v_xor_b32 v{vR+1}, 0x200, v{vR}')
    e(f's_mov_b32 s{sSpin}, {SPIN}')
    e('L_x1spin:')
    for r in range(4):
        d = vR + 4 + 4 * r
        e(f'buffer_load_dwordx4 v[{d}:{d+3}], v{vR + (r & 1)}, s[8:11], s{sDst} offen offset:{(r >> 1) * 1024} sc1')
    e(f's_sub_u32 s{sSpin}, s{sSpin}, 1')
    e('s_cbranch_scc1 L_x1out')
    e('s_waitcnt vmcnt(0)')
    check(list(range(vR + 4, vR + 20)), vR + 2, vTg)
    e('s_cbranch_vccnz L_x1spin')
    e('L_x1out:')
    e('s_waitcnt vmcnt(0)')
    if diag:
        e('v_writelane_b32 v254, s92, 7'); e('v_writelane_b32 v255, s93, 7'); e('v_writelane_b32 v254, s94, 9'); e('v_writelane_b32 v255, s95, 9')
    e(f'v_lshlrev_b32 v{vR+1}, 3, v0')
    for r in range(4):
        e(f'v_add_f32 v{vR + 4 + r}, v{vR + 4 + r}, v{vR + 8 + r}')
        e(f'v_add_f32 v{vR + 12 + r}, v{vR + 12 + r}, v{vR + 16 + r}')
    for r in range(4): e(f'v_add_f32 v{vR + 4 + r}, v{vR + 4 + r}, v{vR + 12 + r}')
    e(f'v_cvt_pk_bf16_f32 v{vR+4}, v{vR+4}, v{vR+5}')
    e(f'v_cvt_pk_bf16_f32 v{vR+5}, v{vR+6}, v{vR+7}')
    e(f'ds_write_b64 v{vR+1}, v[{vR+4}:{vR+5}] offset:{L_Q}')
    if wgstat:
        e(f's_xor_b32 s{sT0}, s{sE}, 1')
        e(f'v_mov_b32 v{vR+2}, s{sT0}')
        e(f'v_lshlrev_b32 v{vR+3}, 2, v0')
        e(f'ds_write_b32 v{vR+3}, v{vR+2} offset:{L_ST}')
    e('s_waitcnt lgkmcnt(0)')
    stamp(8)
    e('L_notleader:')
    sE0, sE1, sPa, sCnt, sTm, sRd, sPr = 56, 57, 58, 59, 60, 64, 65
    def probe_setup(ptr):
        e(f's_mov_b32 s12, s{ptr}'); e(f's_mov_b32 s13, s{ptr+1}'); e('s_mov_b32 s14, 0x10000000')
        e(f's_lshl_b32 s{sT0}, s{sB}, 5'); e(f's_add_u32 s{sT0}, s{sT0}, s{sH}'); e(f's_lshl_b32 s{sPa}, s{sT0}, 21')
        e(f's_lshl_b32 s{sT0}, s{sSide}, {pside}'); e(f's_add_u32 s{sPa}, s{sPa}, s{sT0}')
        e(f's_mul_i32 s{sT0}, s{sW}, 0x83000'); e(f's_and_b32 s{sT0}, s{sT0}, 0x183000'); e(f's_add_u32 s{sPa}, s{sPa}, s{sT0}')
        e(f's_mov_b32 s{sE0}, 0x10000'); e(f's_mov_b32 s{sE1}, 0x10000')
    sRn = 66
    def probe_loop():
        l = g.lab('pr')
        e(f'{l}:')
        e(f's_memtime s[{sTm}:{sTm+1}]')
        e(f's_and_b32 s{sT2}, s{sRn}, 0x3df80')
        e(f's_xor_b32 s{sT2}, s{sT2}, s{sPa}')
        e('s_waitcnt lgkmcnt(0)')
        e(f's_buffer_load_dword s{sPr}, s[12:15], s{sT2}')
        e('s_waitcnt lgkmcnt(0)')
        e(f's_memtime s[{sTm+2}:{sTm+3}]')
        e('s_waitcnt lgkmcnt(0)')
        e(f's_sub_u32 s{sT0}, s{sTm+2}, s{sTm}')
        if pmin:
            e(f's_cmp_lt_u32 s{sT0}, {pmin}')
            e(f's_cselect_b32 s{sT0}, 0x10000, s{sT0}')
        e(f's_bitcmp1_b32 s{sPa}, 13')
        e(f's_cselect_b32 s{sT1}, 0x10000, s{sT0}')
        e(f's_cselect_b32 s{sT0}, s{sT0}, 0x10000')
        e(f's_min_u32 s{sE0}, s{sE0}, s{sT1}')
        e(f's_min_u32 s{sE1}, s{sE1}, s{sT0}')
        e(f's_xor_b32 s{sPa}, s{sPa}, 0x2000')
        if prand: e(f's_add_u32 s{sRn}, s{sRn}, s{sTm+2}')
        e(f's_mul_i32 s{sRn}, s{sRn}, 0x9e3779b1')
        e(f's_lshr_b32 s{sT0}, s{sRn}, 14')
        e(f's_xor_b32 s{sRn}, s{sRn}, s{sT0}')
        e(f's_sub_u32 s{sCnt}, s{sCnt}, 1')
        e(f's_cmp_lg_u32 s{sCnt}, 0')
        e(f's_cbranch_scc1 {l}')
    if numa:
        assert shA % 2 == 0 and shB % 2 == 0 and shV % 2 == 0 and (shA + shB) <= 30 and shV <= 30
        probe_setup(sAk)
        if prand:
            e(f's_memtime s[{sTm}:{sTm+1}]'); e('s_waitcnt lgkmcnt(0)')
            e(f's_mul_i32 s{sRn}, s{sTm}, 0x9e3779b1'); e(f's_lshr_b32 s{sRn}, s{sRn}, 9')
        else:
            e(f's_mov_b32 s{sRn}, 0x12345')
        if shA:
            e(f's_cmp_eq_u32 s{sW}, 0'); e('s_cbranch_scc1 L_nopre')
            e(f's_mov_b32 s{sCnt}, {shA}')
            probe_loop()
            e('L_nopre:')
    e('s_barrier')
    if numa:
        e(f's_mov_b32 s{sRd}, 0')
        e(f's_mov_b32 s{sCnt}, {shB}')
        e('L_round:')
        probe_loop()
        e(f's_lshl_b32 s{sT0}, s{sRd}, 3'); e(f's_lshl_b32 s{sT1}, s{sRd}, 2')
        e('s_mov_b64 exec, 1')
        e(f'v_mov_b32 v{vR}, s{sT0}'); e(f'v_mov_b32 v{vR+1}, s{sT1}')
        e(f's_sub_i32 s{sE0}, s{sE0}, s{sE1}'); e(f's_min_i32 s{sE0}, s{sE0}, {clip}'); e(f's_max_i32 s{sE0}, s{sE0}, {-clip}')
        e(f'v_mov_b32 v{vR+2}, s{sE0}'); e(f'v_mov_b32 v{vR+4}, 1')
        e(f'ds_add_u32 v{vR}, v{vR+2} offset:{L_EV}')
        e(f'ds_add_u32 v{vR+1}, v{vR+4} offset:{L_CN2}')
        e(f's_cmp_lg_u32 s{sW}, 0'); e('s_cbranch_scc1 L_rnext')
        e(f's_mov_b32 s{sSpin}, {SPIN * 8}')
        e('L_rspin:')
        e(f'ds_read_b32 v{vR+4}, v{vR+1} offset:{L_CN2}')
        e(f's_sub_u32 s{sSpin}, s{sSpin}, 1'); e('s_cbranch_scc1 L_rout')
        e('s_waitcnt lgkmcnt(0)')
        e(f'v_cmp_eq_u32 vcc, 4, v{vR+4}')
        e('s_cbranch_vccz L_rspin')
        e('L_rout:')
        e(f'ds_read_b64 v[{vR+2}:{vR+3}], v{vR} offset:{L_EV}')
        e(f's_lshl_b32 s{sT0}, s2, 8'); e(f's_add_u32 s{sT0}, s{sT0}, {EV}'); e(f's_xor_b32 s{sT1}, s{sT0}, 0x400')
        e('s_waitcnt lgkmcnt(0)')
        if diag and truth:
            e(f's_lshl_b32 s84, s2, 4'); e(f's_add_u32 s84, s84, {STAMP + 0x18000}')
            e(f'buffer_store_dwordx2 v[{vR+2}:{vR+3}], v{vR}, s[8:11], s84 offen')
            e('s_nop 1')
        e(f'v_sub_u32 v{vR+2}, v{vR+2}, v{vR+3}')
        e(f'v_mov_b32 v{vR+3}, s{sE}')
        e(f'buffer_store_dwordx2 v[{vR+2}:{vR+3}], v{vR}, s[8:11], s{sT0} offen sc1')
        e(f's_mov_b32 s{sSpin}, {SPIN}')
        e('L_espin:')
        e(f'buffer_load_dwordx2 v[{vR+4}:{vR+5}], v{vR}, s[8:11], s{sT1} offen sc1')
        e(f's_sub_u32 s{sSpin}, s{sSpin}, 1'); e('s_cbranch_scc1 L_eout')
        e('s_waitcnt vmcnt(0)')
        e(f'v_cmp_eq_u32 vcc, s{sE}, v{vR+5}')
        e('s_cbranch_vccz L_espin')
        e('L_eout:')
        e('s_waitcnt vmcnt(0)')
        e(f'v_sub_u32 v{vR+6}, v{vR+2}, v{vR+4}')
        e(f'v_sub_u32 v{vR+7}, v{vR+4}, v{vR+2}')
        e(f's_cmp_eq_u32 s{sSide}, 0')
        e('s_cselect_b64 vcc, -1, 0')
        e(f'v_cndmask_b32 v{vR+6}, v{vR+7}, v{vR+6}, vcc')
        if chan and chan[0] == 'c':
            e('s_nop 0')
            e(f'v_readfirstlane_b32 s88, v{vR+6}')
            e(f's_lshl_b32 s92, s{sRd}, 4')
            e('s_cmp_gt_i32 s88, 0'); e('s_cselect_b32 s89, 1, 0'); e(f's_xor_b32 s89, s89, s{sH}'); e('s_and_b32 s89, s89, 1')
            e('s_add_u32 s93, s92, 8'); e(f's_atomic_add s89, s[{sDbg}:{sDbg+1}], s93'); e('s_waitcnt lgkmcnt(0)')
            e('s_abs_i32 s88, s88'); e('s_cmp_lt_u32 s88, 300'); e('s_cselect_b32 s89, 1, 0')
            e(f's_atomic_add s89, s[{sDbg}:{sDbg+1}], s92'); e('s_waitcnt lgkmcnt(0)')
            e('s_add_u32 s93, s92, 4'); e(f's_atomic_add s88, s[{sDbg}:{sDbg+1}], s93'); e('s_waitcnt lgkmcnt(0)')
            e(f's_mov_b32 s89, s{sE1}'); e('s_add_u32 s93, s92, 12'); e(f's_atomic_add s89, s[{sDbg}:{sDbg+1}], s93'); e('s_waitcnt lgkmcnt(0)')
        if chan in ('mK', 'mV'):
            e(f's_cmp_lg_u32 s{sRd}, {int(chan[1] == chr(86))}'); e('s_cbranch_scc1 L_nocap')
            e(f'v_readfirstlane_b32 s88, v{vR+6}'); e('s_abs_i32 s88, s88')
            e('L_nocap:')
        e(f'v_cmp_lt_i32 vcc, 0, v{vR+6}')
        e('s_nop 1')
        e(f'v_cndmask_b32 v{vR+6}, 0, 1, vcc')
        e(f'v_xor_b32 v{vR+6}, s{sSide}, v{vR+6}')
        e(f'ds_write_b32 v{vR+1}, v{vR+6} offset:{L_KAP}')
        if diag:
            e(f's_cmp_lg_u32 s{sRd}, 0'); e('s_cbranch_scc1 L_rnext')
            stamp(6)
        e('L_rnext:')
        e('s_mov_b64 exec, -1')
        e(f's_cmp_lg_u32 s{sRd}, 0'); e('s_cbranch_scc1 L_rdone')
        probe_setup(sAv)
        e(f's_mov_b32 s{sRd}, 1')
        e(f's_mov_b32 s{sCnt}, {shV}')
        e('s_branch L_round')
        e('L_rdone:')
    if wfirst == 2:
        e('s_waitcnt vmcnt(0)')
        for r in range(32): e(f'v_mov_b32 v{vWt + r}, v{vWo + r}')
    else:
        wo_addr(vR)
        for i in range(8):
            e(f'buffer_load_dwordx4 v[{vWt + 4*i}:{vWt + 4*i + 3}], v{vR}, s[4:7], s{sT0 if i < 4 else sT1} offen offset:{(i & 3) * 1024} {pol}')
            e('s_waitcnt vmcnt(0)')
    vB = 112; vYa = 106; vTg2 = 107; vX3b = 111
    e(f's_lshl_b32 s{sT0}, s{sW}, 2')
    e(f'v_add_u32 v{vR}, s{sT0}, v{vG}')
    e(f'v_mul_u32_u24 v{vR}, {8 * WROW}, v{vR}')
    e(f'v_lshl_add_u32 v{vR}, v{vC}, 4, v{vR}')
    for i in range(8):
        e(f'ds_write_b128 v{vR}, v[{vWt + 4*i}:{vWt + 4*i + 3}] offset:{L_W + i * WROW}')
    e(f'v_mov_b32 v{vR+1}, 1')
    e('s_mov_b64 exec, 1')
    e(f'ds_add_u32 v{vZ}, v{vR+1} offset:{L_CN3}')
    e('s_mov_b64 exec, -1')
    e(f's_mov_b32 s{sSpin}, {SPIN * 8}')
    e('L_wspin:')
    e(f'ds_read_b32 v{vR+1}, v{vZ} offset:{L_CN3}')
    e(f's_sub_u32 s{sSpin}, s{sSpin}, 1'); e('s_cbranch_scc1 L_wout')
    e('s_waitcnt lgkmcnt(0)')
    e(f'v_cmp_eq_u32 vcc, 4, v{vR+1}')
    e('s_cbranch_vccz L_wspin')
    e('L_wout:')
    e(f'v_mul_u32_u24 v{vR}, {8 * WROW}, v{vG}')
    e(f'v_lshl_add_u32 v{vR}, v{vC}, 2, v{vR}')
    e(f's_lshl_b32 s{sT0}, s{sW}, 6')
    e(f'v_add_u32 v{vR}, s{sT0}, v{vR}')
    e(f's_mov_b32 s{sT0}, 0x05040100'); e(f's_mov_b32 s{sT1}, 0x07060302')
    for ks in range(4):
        for r in range(8):
            e(f'ds_read_b32 v{vR + 4 + r}, v{vR} offset:{L_W + (ks * 32 + r) * WROW}')
        e('s_waitcnt lgkmcnt(0)')
        for t in range(2):
            for r in range(4):
                e(f'v_perm_b32 v{vB + (t * 4 + ks) * 4 + r}, v{vR + 5 + 2*r}, v{vR + 4 + 2*r}, s{sT0 + t}')
    sX3 = 64
    e(f'v_and_b32 v{vR}, 1, v{vG}')
    e(f's_lshl_b32 s{sT0}, s{sBeta}, 1')
    e(f'v_or_b32 v{vR}, s{sT0}, v{vR}')
    e(f'v_xor_b32 v{vR+1}, s{sW}, v{vR}')
    e(f'v_lshlrev_b32 v{vX3}, 8, v{vR+1}')
    e(f'v_lshl_add_u32 v{vX3}, v{vR}, 15, v{vX3}')
    e(f'v_lshrrev_b32 v{vR+1}, 5, v0')
    e(f'v_lshl_add_u32 v{vX3}, v{vR+1}, 10, v{vX3}')
    e(f'v_lshl_add_u32 v{vX3}, v{vC}, 4, v{vX3}')
    e(f'v_and_b32 v{vR}, 31, v0')
    e(f'v_lshlrev_b32 v{vA}, 3, v{vR}')
    e(f'v_lshl_add_u32 v{vA}, v{vR+1}, 2, v{vA}')
    e(f's_lshl_b32 s{sT0}, s{sW}, 8')
    e(f'v_add_u32 v{vA}, s{sT0}, v{vA}')
    e(f'v_lshlrev_b32 v{vA2}, 6, v{vC}')
    e(f'v_lshl_add_u32 v{vA2}, v{vG}, 4, v{vA2}')
    e(f's_and_b32 s{sT1}, s{sH}, 15'); e(f's_lshl_b32 s{sX3}, s{sT1}, 11')
    e(f's_lshr_b32 s{sT1}, s{sH}, 4'); e(f's_lshl_b32 s{sT1}, s{sT1}, 17'); e(f's_add_u32 s{sX3}, s{sX3}, s{sT1}')
    e(f's_add_u32 s{sX3}, s{sX3}, {OP}')
    e(f's_and_b32 s{sT0}, s{sW}, 1'); e(f's_lshl_b32 s{sT0}, s{sT0}, 1')
    e(f'v_lshrrev_b32 v{vR}, 5, v0')
    e(f'v_or_b32 v{vR}, s{sT0}, v{vR}')
    e(f's_lshl_b32 s{sT0}, s2, 1'); e(f's_and_b32 s{sT0}, s{sT0}, 127'); e(f's_lshr_b32 s{sT1}, s{sW}, 1'); e(f's_or_b32 s{sT0}, s{sT0}, s{sT1}')
    e(f'v_xor_b32 v{vR+1}, s{sT0}, v{vR}')
    e(f'v_lshlrev_b32 v{vYa}, 8, v{vR+1}')
    e(f'v_lshl_add_u32 v{vYa}, v{vR}, 15, v{vYa}')
    e(f'v_and_b32 v{vR}, 31, v0')
    e(f'v_lshl_add_u32 v{vYa}, v{vR}, 3, v{vYa}')
    e(f's_add_u32 s{sE}, s{sE}, 1'); e(f's_and_b32 s{sT0}, s{sE}, 0xff')
    e(f'v_mov_b32 v{vTg2}, s{sT0}')
    if not fin1: x4_setup(vR, vX4, vOut)
    e(f's_mov_b32 s{sSpin}, {SPIN}')
    e(f'v_lshl_add_u32 v{vA3}, v{vG}, 15, v{vL}')
    e(f's_and_b32 s{sT0}, s2, 127'); e(f's_lshl_b32 s{sT0}, s{sT0}, 8')
    e(f'v_xor_b32 v{vA3}, s{sT0}, v{vA3}')
    e(f's_lshr_b32 s{sT0}, s2, 7'); e(f's_lshl_b32 s{sT0}, s{sT0}, 17'); e(f's_add_u32 s{sT0}, s{sT0}, {OP}')
    e(f'v_add_u32 v{vA3}, s{sT0}, v{vA3}')
    if pretouch:
        e(f's_cmp_lg_u32 s{sW}, s{sB}'); e('s_cbranch_scc1 L_nopt0')
        e(f'buffer_load_dwordx4 v[{vR}:{vR+3}], v{vA3}, s[8:11], 0 offen sc1')
        e('s_waitcnt vmcnt(0)')
        e('L_nopt0:')
    if cpre:
        if cpre & 1:
            e(f'buffer_load_dwordx4 v[{vR}:{vR+3}], v{vX3}, s[8:11], s{sX3} offen {ldp}')
        e(f's_cmp_lg_u32 s{sW}, 0'); e('s_cbranch_scc1 L_nopt')
        if cpre & 2:
            for k in range(2):
                e(f'buffer_load_dwordx4 v[{vR + 8 + 4*k}:{vR + 4*k + 11}], v{vX4}, s[8:11], s{sX4a + k} offen {ldp}')
        e('L_nopt:')
        e('s_waitcnt vmcnt(0)')
    e(f's_cmp_lg_u32 s{sW}, s{sB}')
    e('s_barrier')
    e('s_cbranch_scc1 L_x3spin')
    for w in range(4):
        e(f'ds_read_b128 v[{vR + 4*w}:{vR + 4*w + 3}], v{vL} offset:{L_O + w * 1024}')
    e('s_waitcnt lgkmcnt(2)')
    for r in range(4): e(f'v_add_f32 v{vD + r}, v{vR + r}, v{vR + 4 + r}')
    e('s_waitcnt lgkmcnt(0)')
    for r in range(4): e(f'v_add_f32 v{vR + 8 + r}, v{vR + 8 + r}, v{vR + 12 + r}')
    for r in range(4): e(f'v_add_f32 v{vD + r}, v{vD + r}, v{vR + 8 + r}')
    for r in range(4): tag(vD + r, vTg)
    e(f'buffer_store_dwordx4 v[{vD}:{vD+3}], v{vA3}, s[8:11], 0 offen {stp}')
    e('L_x3spin:')
    e(f'buffer_load_dwordx4 v[{vR}:{vR+3}], v{vX3}, s[8:11], s{sX3} offen {ldp}')
    e(f's_sub_u32 s{sSpin}, s{sSpin}, 1')
    e('s_cbranch_scc1 L_x3out')
    e('s_waitcnt vmcnt(0)')
    check(range(vR, vR + 4), vR + 4, vTg)
    if mretry:
        e('s_and_b64 exec, exec, vcc')
        e('s_cbranch_scc1 L_x3spin')
    else:
        e('s_cbranch_vccnz L_x3spin')
    e('L_x3out:')
    e('s_mov_b64 exec, -1')
    e('s_waitcnt vmcnt(0)')
    e(f'v_permlane32_swap_b32 v{vR}, v{vR+2}')
    e(f'v_permlane32_swap_b32 v{vR+1}, v{vR+3}')
    e('s_nop 0')
    e(f'v_add_f32 v{vR}, v{vR}, v{vR+2}')
    e(f'v_add_f32 v{vR+1}, v{vR+1}, v{vR+3}')
    e(f'v_cvt_pk_bf16_f32 v{vR}, v{vR}, v{vR+1}')
    e(f'ds_write_b32 v{vA}, v{vR} offset:{L_RED}')
    e('s_waitcnt lgkmcnt(0)')
    e('s_barrier')
    vAo = 16
    e(f'ds_read_b128 v[{vAo}:{vAo+3}], v{vA2} offset:{L_RED}')
    stamp(10, 0)
    e('s_waitcnt lgkmcnt(0)')
    vDD = 20
    e(f's_cmp_lg_u32 s{sW}, 0')
    for ks in range(4):
        for t in range(2):
            d = vDD + (ks * 2 + t) * 4; b_ = vB + (t * 4 + ks) * 4
            e(f'v_mfma_f32_16x16x32_bf16 v[{d}:{d+3}], v[{vAo}:{vAo+3}], v[{b_}:{b_+3}], 0')
    val = lambda ks, t: vDD + (ks * 2 + t) * 4 + ks
    e('s_nop 2')
    e(f'v_add_f32 v{vD}, v{val(0,0)}, v{val(1,0)}')
    e(f'v_add_f32 v{vD+1}, v{val(0,1)}, v{val(1,1)}')
    e(f'v_add_f32 v{vD}, v{vD}, v{val(2,0)}')
    e(f'v_add_f32 v{vD+1}, v{vD+1}, v{val(2,1)}')
    e(f'v_add_f32 v{vD}, v{vD}, v{val(3,0)}')
    e(f'v_add_f32 v{vD+1}, v{vD+1}, v{val(3,1)}')
    for r in range(2): tag(vD + r, vTg2)
    e(f'buffer_store_dwordx2 v[{vD}:{vD+1}], v{vYa}, s[8:11], s{sDst} offen {stp}')
    e('s_cbranch_scc1 L_end')
    e('s_mov_b64 exec, -1')
    stamp(11)
    if fin1: flush_stamps([5, 6, 7, 8, 9, 10, 11])
    else: x4_code(vR, vX4, vOut, vTg2)
    e('L_end:')
    e('s_endpgm')
    e('.section .rodata,"a"')
    e('.p2align 6')
    e(f'.amdhsa_kernel {NAME}_kernel')
    e('  .amdhsa_next_free_vgpr 256')
    e('  .amdhsa_next_free_sgpr 100')
    e('  .amdhsa_accum_offset 256')
    e('  .amdhsa_group_segment_fixed_size 0')
    e('  .amdhsa_kernarg_size 104')
    e('  .amdhsa_user_sgpr_count 2')
    e('  .amdhsa_user_sgpr_kernarg_segment_ptr 1')
    e('  .amdhsa_system_sgpr_workgroup_id_x 1')
    e('  .amdhsa_float_denorm_mode_32 3')
    e('.end_amdhsa_kernel')
    if truth:
        import gen_numa
        e('.p2align 6')
        gen_numa.kd(e, 'probe_kernel', 8)
    L = g.L
    if pads:
        i0 = L.index('L_kbody:'); i1 = L.index('L_service:')
        spots = [i for i in range(i0, i1) if L[i].startswith('s_branch ')]
        n = len(spots)
        out = []
        for i, x in enumerate(L):
            out.append(x)
            if i in spots:
                k = spots.index(i)
                out.append(f'L_pad{k}:')
                out.append(f's_branch L_pad{k + 4}' if k + 4 < n else 's_branch L_padret')
        L = out
    return '\n'.join(L) + '\n'

if __name__ == '__main__':
    import ast
    for spec in sys.argv[1:]:
        name, _, opts = spec.partition(':')
        kw = {}
        for o in filter(None, opts.split(',')):
            k_, v_ = o.split('=')
            v_ = v_.replace('/', ',')
            try: kw[k_] = ast.literal_eval(v_)
            except Exception: kw[k_] = v_
        open(name, 'w').write(gen(**kw))
```

```python
import sys, math, struct
NAME = 'concat_heads__gqa_block_cached__sliding_block_cached__decode'

def f32(x):
    return '0x%08x' % struct.unpack('<I', struct.pack('<f', x))[0]
def br4(i):
    return ((i & 1) << 3) | ((i & 2) << 1) | ((i & 4) >> 1) | ((i & 8) >> 3)

QP = 0x000000
YP = QP
OP = 0x100000
ST = 0x140000
EP = 0x150000
RC = 0x160000
EV = 0x180000
PP = 0x200000
WS_USED = 0x400000
STAMP = 0x40000000

L_Q = 0
L_CNT = 512
L_LVL = 516
L_CN2 = 520
L_EV = 528
L_KAP = 544
L_CN3 = 552
L_RED = 1024
L_O = 1024 + 8192
L_ST = 768
L_Y = L_O + 4096
L_Z = 576
LDS_BYTES = L_Y + 8192
SPIN = 1 << 17
DPPF = 'row_mask:0xf bank_mask:0xf'

class G:
    def __init__(s): s.L = []; s.n = 0
    def e(s, x): s.L.append(x)
    def lab(s, p):
        s.n += 1
        return f'L_{p}{s.n}'

def gen(D=5, DB=6, diag=False, pol='nt', wqfirst=False, hdiag=False, probe_t=None, tlb=0, boost=(2, 8), wfirst=1, early=3, DW=8, nbuf=3, slp3=0, slp4=0, stp='sc1', ldp='sc1', pretouch=0, outp='', rc=(5, 6, 7), endb=2, dmax=15, rordir=1, wgstat=0, cpre=0, light=0, bar3=1, mretry=1, fin1=0, th=(3, 6), cks=(8,12,16,20,24,28,31,34,37), rcat=7, pat=1, numa=1, shA=6, shB=6, shV=10, truth=0, forcex=None, lvl0=0, resets=(), rcg=1, pside=18, clip=200, rcv=(5, 6, 7), ppst='sc1', ppld='sc1', chan=None, prand=1, pmin=400, pads=1, preb=1, prek=2, pplin=0, nold=0, nost=0, emap=None, efrom=38, woser=0, wod=1, wopol=None, nowo=0, wlate=4, selfo=1, wpre=0, afirst=1, cls=(8, 1), xlo=4, xlov=None, nmap=(4, 0, 1)):
    wopol = pol if wopol is None else wopol.replace('_', ' ')
    ppst = ppst.replace('_', ' '); ppld = ppld.replace('_', ' ')
    stp = stp.replace('_', ' '); ldp = ldp.replace('_', ' '); outp = outp.replace('_', ' ')
    DB = DB or D
    g = G(); e = g.e
    if truth:
        e('; @launch kernel=probe_kernel grid=(128,1,1) block=(64,1,1) lds=0')
        e(f'; @launch kernel={NAME}_kernel grid=(256,1,1) block=(512,1,1) lds={LDS_BYTES}')
    else:
        e(f'; @launch grid=(256,1,1) block=(512,1,1) lds={LDS_BYTES}')
    e('.amdgcn_target "amdgcn-amd-amdhsa--gfx950"')
    if truth:
        import gen_numa2
        gen_numa2.probe(lambda x: e(x + ('\ns_add_u32 s13, s13, 0x600000' if x == 's_lshl_b32 s13, s2, 2' else '')))
    e('.text')
    e(f'.globl {NAME}_kernel')
    e('.p2align 8')
    e(f'.type {NAME}_kernel,@function')
    e(f'{NAME}_kernel:')
    sAx, sAk, sAv, sAwq, sAwo, sBx, sBk, sBv = 16, 18, 20, 22, 24, 26, 28, 30
    sBwq, sBwo, sOut, sDbg, sWs = 32, 34, 36, 38, 40
    sW, sH, sJ, sB, sSide = 42, 43, 44, 45, 46
    sT0, sT1, sT2, sT3 = 47, 48, 49, 50
    sSlab, sSpin = 51, 52
    sE, sTag, sNF = 74, 75, 76
    e('s_cmp_ge_u32 s2, 256')
    e('s_cbranch_scc1 L_end')
    e('s_load_dwordx16 s[16:31], s[0:1], 0')
    e('s_load_dwordx8 s[32:39], s[0:1], 64')
    e('s_load_dwordx2 s[40:41], s[0:1], 96')
    if diag or hdiag or probe_t is not None or chan: e('s_memrealtime s[80:81]')
    e('v_lshrrev_b32 v1, 6, v0')
    e('v_and_b32 v0, 63, v0')
    e(f'v_readfirstlane_b32 s{sW}, v1')
    e(f's_lshr_b32 s{sH}, s2, 3')
    e(f's_and_b32 s{sJ}, s2, 7')
    e(f's_and_b32 s{sB}, s2, 3')
    e(f's_lshr_b32 s{sSide}, s{sJ}, 2')
    e('s_mov_b32 s7, 0x20000')
    e('s_mov_b32 s11, 0x20000')
    e(f's_mov_b32 s10, {WS_USED if not diag else 0x41000000}')
    e(f's_mov_b32 s{sNF}, 0xffffff00')
    e(f's_cmp_ge_u32 s{sW}, 4')
    e('s_cbranch_scc1 L_service')

    def stamp(idx, only_wave=None):
        if probe_t == idx:
            e('s_memrealtime s[86:87]'); e('s_waitcnt lgkmcnt(0)')
        if not diag: return
        l = g.lab('st')
        if only_wave is not None:
            e(f's_cmp_lg_u32 s{sW}, {only_wave}')
            e(f's_cbranch_scc1 {l}')
        e(f's_memrealtime s[82:83]')
        e('s_waitcnt lgkmcnt(0)')
        e(f'v_writelane_b32 v254, s82, {idx}')
        e(f'v_writelane_b32 v255, s83, {idx}')
        e(f'{l}:')
    def flush_stamps(idxs):
        if probe_t in idxs:
            l = g.lab('pt')
            e('s_cmp_lg_u32 s2, 0'); e(f's_cbranch_scc1 {l}x')
            if probe_t == 0: e('s_mov_b32 s86, s80')
            e('s_sub_u32 s86, s86, s80'); e('s_mul_i32 s86, s86, 10'); e('s_add_u32 s86, s86, 20000')
            e(f'{l}:'); e('s_memrealtime s[82:83]'); e('s_waitcnt lgkmcnt(0)'); e('s_sub_u32 s82, s82, s80')
            e('s_cmp_lt_u32 s82, s86'); e(f's_cbranch_scc1 {l}')
            e(f'{l}x:')
        if not diag: return
        l = g.lab('fw')
        e(f'{l}:'); e('s_sleep 32'); e('s_memrealtime s[82:83]'); e('s_waitcnt lgkmcnt(0)'); e('s_sub_u32 s82, s82, s80')
        e('s_cmp_lt_u32 s82, 11000'); e(f's_cbranch_scc1 {l}')
        m = sum(1 << i for i in idxs)
        e('s_lshl_b32 s84, s2, 7'); e(f's_add_u32 s84, s84, {STAMP}')
        e('s_mov_b64 exec, -1')
        e('v_lshlrev_b32 v253, 3, v0')
        e(f's_mov_b64 exec, {m}')
        e('buffer_store_dwordx2 v[254:255], v253, s[8:11], s84 offen')
    def not_class(target):
        if not cls: return
        e(f's_mul_i32 s{sT0}, s{sB}, {max(1, cls[0] // 4)}'); e(f's_add_u32 s{sT0}, s{sT0}, s{sH}')
        e(f's_and_b32 s{sT0}, s{sT0}, {cls[0] - 1}')
        e(f's_cmp_ge_u32 s{sT0}, {cls[1]}')
        e(f's_cbranch_scc1 {target}')
    def load_epoch():
        e(f's_mov_b32 s{sE}, {EP}')
        e(f's_load_dword s{sE}, s[{sWs}:{sWs+1}], s{sE}')
    def make_tag(vTag):
        e(f's_add_u32 s{sE}, s{sE}, 1')
        e(f's_and_b32 s{sTag}, s{sE}, 0xff')
        e(f'v_mov_b32 v{vTag}, s{sTag}')
    def tag(r, vTag):
        e(f'v_and_or_b32 v{r}, v{r}, s{sNF}, v{vTag}')
    def check(regs, t, vTag):
        regs = list(regs)
        for r in regs: e(f'v_xor_b32 v{r}, v{r}, v{vTag}')
        e(f'v_or3_b32 v{t}, v{regs[0]}, v{regs[1]}, v{regs[2]}')
        rest = regs[3:]
        while len(rest) >= 2:
            e(f'v_or3_b32 v{t}, v{t}, v{rest[0]}, v{rest[1]}'); rest = rest[2:]
        e(f'v_bitop3_b32 v{t}, v{t}, v{rest[0]}, s{sNF} bitop3:0x54')
        e(f'v_cmp_ne_u32 vcc, 0, v{t}')

    sX4a, sX4b, sOo = 90, 91, 85
    def x4_setup(vR, vX4, vOut):
        e(f'v_bfe_u32 v{vR}, v0, 2, 3')
        e(f'v_lshlrev_b32 v{vX4}, 12, v{vR}')
        e(f'v_lshrrev_b32 v{vR}, 5, v0')
        e(f'v_lshl_add_u32 v{vX4}, v{vR}, 17, v{vX4}')
        e(f'v_and_b32 v{vR}, 3, v0')
        e(f'v_lshl_add_u32 v{vX4}, v{vR}, 4, v{vX4}')
        e(f'v_lshlrev_b32 v{vOut}, 4, v{vR}')
        e(f'v_bfe_u32 v{vR}, v0, 2, 2')
        e(f'v_lshl_add_u32 v{vOut}, v{vR}, 11, v{vOut}')
        e(f's_bfe_u32 s{sT0}, s{sH}, 0x20002')
        e(f's_lshl_b32 s{sT1}, s{sJ}, 1'); e(f's_lshr_b32 s{sT2}, s{sH}, 4'); e(f's_or_b32 s{sT1}, s{sT1}, s{sT2}')
        e(f's_xor_b32 s{sT1}, s{sT1}, s{sT0}'); e(f's_lshl_b32 s{sT1}, s{sT1}, 8')
        e(f's_lshl_b32 s{sT0}, s{sT0}, 15'); e(f's_add_u32 s{sT0}, s{sT0}, s{sT1}')
        e(f's_and_b32 s{sT1}, s{sH}, 3'); e(f's_lshl_b32 s{sT1}, s{sT1}, 6'); e(f's_add_u32 s{sT0}, s{sT0}, s{sT1}')
        e(f's_add_u32 s{sX4a}, s{sT0}, {YP}')
        e(f's_add_u32 s{sX4b}, s{sX4a}, 0x40000')
        e(f's_lshl_b32 s{sOo}, s{sJ}, 8')
        e(f's_and_b32 s{sT1}, s{sH}, 3'); e(f's_lshl_b32 s{sT1}, s{sT1}, 6'); e(f's_add_u32 s{sOo}, s{sOo}, s{sT1}')
        e(f's_bfe_u32 s{sT1}, s{sH}, 0x20002'); e(f's_lshl_b32 s{sT1}, s{sT1}, 2'); e(f's_add_u32 s{sOo}, s{sOo}, s{sT1}')
        e(f's_lshr_b32 s{sT1}, s{sH}, 4'); e(f's_lshl_b32 s{sT1}, s{sT1}, 1'); e(f's_add_u32 s{sOo}, s{sOo}, s{sT1}')
        e(f's_mov_b32 s12, s{sOut}'); e(f's_mov_b32 s13, s{sOut+1}'); e('s_mov_b32 s14, 8192')
        e('s_mov_b32 s15, 0x20000')
    def x4_code(vR, vX4, vOut, vTg2):
        e(f's_mov_b32 s{sSpin}, {SPIN}')
        e('L_x4spin:')
        for k in range(2):
            e(f'buffer_load_dwordx4 v[{vR + 4*k}:{vR + 4*k + 3}], v{vX4}, s[8:11], s{sX4a + k} offen {ldp}')
        e(f's_sub_u32 s{sSpin}, s{sSpin}, 1')
        e('s_cbranch_scc1 L_x4out')
        e('s_waitcnt vmcnt(0)')
        check(range(vR, vR + 8), vR + 8, vTg2)
        if mretry:
            e('s_and_b64 exec, exec, vcc')
            e('s_cbranch_scc1 L_x4spin')
        else:
            e('s_cbranch_vccnz L_x4spin')
        e('L_x4out:')
        e('s_mov_b64 exec, -1')
        e('s_waitcnt vmcnt(0)')
        for r in range(4): e(f'v_add_f32 v{vR + r}, v{vR + r}, v{vR + 4 + r}')
        e(f'v_add_f32_dpp v{vR+4}, v{vR}, v{vR} row_ror:8 row_mask:0xf bank_mask:0x3')
        e(f'v_add_f32_dpp v{vR+5}, v{vR+1}, v{vR+1} row_ror:8 row_mask:0xf bank_mask:0x3')
        e('s_nop 0')
        e(f'v_add_f32_dpp v{vR+4}, v{vR+2}, v{vR+2} row_ror:8 row_mask:0xf bank_mask:0xc')
        e(f'v_add_f32_dpp v{vR+5}, v{vR+3}, v{vR+3} row_ror:8 row_mask:0xf bank_mask:0xc')
        e('s_nop 0')
        e(f'v_add_f32_dpp v{vR}, v{vR+4}, v{vR+4} row_shl:4 row_mask:0xf bank_mask:0x5')
        e('s_nop 1')
        e(f'v_add_f32_dpp v{vR}, v{vR+5}, v{vR+5} row_shr:4 row_mask:0xf bank_mask:0xa')
        for sw in ('v_permlane16_swap_b32', 'v_permlane32_swap_b32'):
            e(f'v_mov_b32 v{vR+1}, v{vR}')
            e('s_nop 1')
            e(f'{sw} v{vR+1}, v{vR}')
            e('s_nop 0')
            e(f'v_add_f32 v{vR}, v{vR}, v{vR+1}')
        e(f'v_cvt_pk_bf16_f32 v{vR}, v{vR}, v{vR}')
        e('s_mov_b64 exec, 0xffff')
        e(f'buffer_store_short v{vR}, v{vOut}, s[12:15], s{sOo} offen {outp}')
        stamp(12)
        flush_stamps([12] if fin1 else [5, 6, 7, 8, 10, 12])
        if chan:
            if chan == 'xcc':
                e('s_getreg_b32 s86, hwreg(HW_REG_XCC_ID)'); e('s_sub_u32 s86, s86, s2'); e('s_and_b32 s86, s86, 7'); e('s_mul_i32 s86, s86, 10000')
            elif chan == 'xccn':
                e('s_getreg_b32 s86, hwreg(HW_REG_XCC_ID)'); e('s_sub_u32 s86, s86, s2'); e('s_and_b32 s86, s86, 7'); e('s_sub_u32 s86, 7, s86'); e('s_mul_i32 s86, s86, 10000')
            elif chan in ('mK', 'mV'):
                e('s_sub_u32 s86, 1600, s88'); e('s_mul_i32 s86, s86, 10')
            elif chan[0] == 'c':
                k = int(chan[1:])
                e('s_mov_b32 s86, 0'); e('s_cmp_lg_u32 s2, 0'); e('s_cbranch_scc1 L_end')
                e(f's_atomic_or s86, s[{sDbg}:{sDbg+1}], {4 * k} glc'); e('s_waitcnt lgkmcnt(0)')
                if k & 1: e('s_lshr_b32 s86, s86, 8'); e('s_mul_i32 s86, s86, 10')
                else: e('s_mul_i32 s86, s86, 100')
                e('s_min_u32 s86, s86, 100000')
            elif chan == 'end':
                e('s_memrealtime s[86:87]'); e('s_waitcnt lgkmcnt(0)'); e('s_sub_u32 s86, s86, s80'); e('s_mul_i32 s86, s86, 10')
            e('s_add_u32 s86, s86, 20000')
            e('L_chan:'); e('s_memrealtime s[82:83]'); e('s_waitcnt lgkmcnt(0)'); e('s_sub_u32 s82, s82, s80')
            e('s_cmp_lt_u32 s82, s86'); e('s_cbranch_scc1 L_chan')
        e('s_cmp_lg_u32 s2, 0')
        e('s_cbranch_scc1 L_end')
        e('s_mov_b64 exec, 1')
        e(f'v_mov_b32 v{vR+2}, s{sE}')
        e(f's_mov_b32 s{sT0}, {EP}')
        e(f'buffer_store_dword v{vR+2}, off, s[8:11], s{sT0}')
        if hdiag:
            e('s_memrealtime s[82:83]'); e('s_waitcnt lgkmcnt(0)'); e('s_sub_u32 s82, s82, s80')
            e(f's_mov_b32 s12, s{sDbg}'); e(f's_mov_b32 s13, s{sDbg+1}'); e('s_mov_b32 s14, 256')
            e(f'v_mov_b32 v{vR+3}, s82')
            e(f'buffer_store_dword v{vR+3}, off, s[12:15], 0')

    X0, X1, X2 = 60, 124, 188
    vOff = 2; vL16 = 6; vPd = 7; vQ = 8; vS = 12; vT = 20; vMask = 44; vAcc = 48; vAccB = 52; vP = 56
    vPA = 124
    vSt = 132; vMl = 136; vR2 = 140; vStA = 152; vTg = 153; vF = 154; vOa = 155
    sOff, sN = 53, 54
    sM3, sM4 = 60, 62
    sC = 64
    sFA0, sFA1, sFB = 67, 68, 69
    sWb, sSeg = 72, 73
    sHk = 70
    sVk = 78; sKK = 55; sKV = 66; sX = 77; sPPa = 14; sPPb = 15; s7f = 13
    vWa = 170; vYa = 171; vTg2 = 172; vAr = 244; vBt = 176; vAo = 208; vDD = 224; vYw = 173; vYr = 174; sYd = 12; vPat = 160; vPs = 164; vPPa = 168; vPPb = 169
    e(f's_lshl_b32 s{sT0}, s{sB}, 5')
    e(f's_add_u32 s{sT0}, s{sT0}, s{sH}')
    e(f's_lshl_b32 s{sSlab}, s{sT0}, 21')
    e(f'v_lshlrev_b32 v{vL16}, 4, v0')
    e(f'v_bfe_u32 v{vOff+1}, v0, 4, 1')
    e(f'v_lshl_add_u32 v{vOff}, v{vOff+1}, 15, v{vL16}')
    e(f'v_lshrrev_b32 v{vOff+1}, 5, v0')
    e(f'v_lshl_add_u32 v{vOff}, v{vOff+1}, 13, v{vOff}')
    e(f's_lshl_b32 s{sT0}, s{sW}, 8')
    e(f'v_xor_b32 v{vOff}, s{sT0}, v{vOff}')
    if pat == 1:
        e(f's_lshl_b32 s{sT0}, s{sSide}, 13')
        e(f'v_xor_b32 v{vOff}, s{sT0}, v{vOff}')
    for j in range(1, 4):
        e(f'v_xor_b32 v{vOff+j}, {(j << 8) | ((j >> 1) << 16 if pat == 1 else 0)}, v{vOff}')
    e(f's_and_b32 s{sT0}, s{sW}, 1')
    e(f's_lshl_b32 s{sT0}, s{sT0}, 12')
    e(f's_add_u32 s{sWb}, s{sSlab}, s{sT0}')
    e(f's_lshr_b32 s{sT0}, s{sW}, 1')
    e(f's_lshl_b32 s{sT0}, s{sT0}, 14')
    e(f's_add_u32 s{sWb}, s{sWb}, s{sT0}')
    if pat == 0:
        e(f's_lshl_b32 s{sT0}, s{sSide}, 16')
        e(f's_add_u32 s{sWb}, s{sWb}, s{sT0}')
    e(f's_add_u32 s{sOff}, s{sWb}, 0x180000')
    e('s_mov_b32 s6, 0x10000000')
    e('s_waitcnt lgkmcnt(0)')
    e(f's_mov_b32 s4, s{sBk}'); e(f's_mov_b32 s5, s{sBk+1}')
    if diag: e('s_memrealtime s[92:93]')
    def issue(buf, i):
        v = buf + 4 * i
        e(f'buffer_load_dwordx4 v[{v}:{v+3}], v{vOff + (i >> 2)}, s[4:7], s{sOff} offen offset:{(i & 3) * 1024} {pol}')
    allhooks = [3, 4, 7, 8, 16, 22, 23, 24, 30, 31, 32, 39, 40] + ([26] if wgstat else [])
    vkind = list(range(5, 9)) + list(range(25, 41))
    def mask64(ns): return sum(1 << n for n in ns)
    def setup():
        load_epoch()
        e(f's_mov_b32 s8, s{sWs}'); e(f's_mov_b32 s9, s{sWs+1}')
        if diag:
            e('v_writelane_b32 v254, s80, 0'); e('v_writelane_b32 v255, s81, 0')
        e(f's_mov_b32 s{sM3}, 0xcccccccc'); e(f's_mov_b32 s{sM3+1}, 0xcccccccc')
        e(f's_mov_b32 s{sM4}, 0xaaaaaaaa'); e(f's_mov_b32 s{sM4+1}, 0xaaaaaaaa')
        e(f's_mov_b32 s{sC}, {f32(128 ** -0.5 * math.log2(math.e))}')
        m = mask64(allhooks)
        e(f's_mov_b32 s{sHk}, 0x{m & 0xffffffff:08x}'); e(f's_mov_b32 s{sHk+1}, 0x{m >> 32:08x}')
        e(f'v_and_b32 v{vT}, 15, v0')
        e(f'v_lshlrev_b32 v1, 4, v{vT}')
        e(f'v_and_b32 v{vT+1}, 1, v0')
        e(f'v_lshlrev_b32 v{vT+1}, 4, v{vT+1}')
        e(f'v_mov_b32 v{vT+2}, 0xffff')
        e(f'v_lshlrev_b32 v{vT+2}, v{vT+1}, v{vT+2}')
        e(f'v_lshrrev_b32 v{vT}, 1, v{vT}')
        for r in range(4):
            e(f'v_cmp_eq_u32 vcc, {4 + r}, v{vT}')
            e(f'v_mov_b32 v{vAcc + r}, 0')
            e(f'v_mov_b32 v{vS + r}, 0xff800000')
            e(f'v_cndmask_b32 v{vMask + r}, 0, v{vT+2}, vcc')
        e(f'v_mov_b32 v{vS + 4}, 0xff800000'); e(f'v_mov_b32 v{vS + 5}, 0xff800000')
    k = 0
    kbar = early if wfirst else DB
    bufs = (X1, X2, X0) if nbuf == 3 else (X1, X0)
    if kbar == 0:
        setup(); e('s_barrier')
    for buf in bufs:
        for i in range(16):
            if k >= DB: e(f's_waitcnt vmcnt({DB-1})')
            issue(buf, i)
            k += 1
            if k == kbar:
                if wfirst: setup()
                e('s_barrier')
                if diag: e('s_memrealtime s[94:95]')
                if not wfirst: setup()
        e(f's_add_u32 s{sOff}, s{sOff}, 0x20000')
    stamp(1, 0)
    e('s_barrier')
    e(f'ds_read_b128 v[{vQ}:{vQ+3}], v1 offset:{L_Q + 256}')
    e('s_waitcnt lgkmcnt(0)')
    stamp(2, 0)
    if diag:
        e('v_writelane_b32 v252, s80, 44'); e('v_writelane_b32 v252, s92, 45'); e('v_writelane_b32 v252, s94, 46')

    sCk, sRc, sRk, sIsC = 56, 58, 59, 65
    vLv = 156; vZz = 157; sRs = 86; sLh = 96; sMap = 98
    def body_begin(tagn):
        if diag:
            e('s_memrealtime s[82:83]'); e('s_mov_b32 m0, s%d' % sN); e('s_waitcnt lgkmcnt(0)')
            e('v_writelane_b32 v252, s82, m0')
        if not rc: return
        e(f's_bitcmp1_b64 s[{sCk}:{sCk+1}], s{sN}')
        e(f's_cselect_b32 s{sIsC}, 1, 0')
        e(f's_cbranch_scc0 L_nt{tagn}')
        e(f's_mov_b32 s{sRk}, 1')
        e(f's_atomic_add s{sRk}, s[{sWs}:{sWs+1}], s{sRc} glc')
        e(f's_add_u32 s{sRc}, s{sRc}, 8192')
        e(f'L_nt{tagn}:')
        setflags()
    def setflags():
        if endb:
            e(f's_cmp_ge_u32 s{sN}, {41 - endb}')
            e(f's_cselect_b32 s{sT3}, 3, s{sT3}')
        e(f's_bitcmp0_b32 s{sT3}, 0')
        e('s_cselect_b64 vcc, -1, 0')
        e(f's_bitcmp1_b32 s{sT3}, 1')
    def throttle(tagn, i):
        if not rc:
            if boost and tagn == 'v':
                e(f's_cbranch_scc1 L_vb{i}')
                e(f's_waitcnt vmcnt({D-1})')
                e(f'L_vb{i}:')
                e(f's_waitcnt vmcnt({boost[1]-1})')
            else:
                e(f's_waitcnt vmcnt({D-1})')
            return
        if i == rcat:
            e(f's_cmp_eq_u32 s{sIsC}, 0')
            e(f's_cbranch_scc1 L_nu{tagn}')
            e('s_waitcnt lgkmcnt(0)')
            e(f's_cmp_ge_u32 s{sRk}, {th[0]}'); e(f's_cselect_b32 s{sT0}, 1, 0')
            e(f's_cmp_ge_u32 s{sRk}, {th[1]}'); e(f's_cselect_b32 s{sT0}, 2, s{sT0}')
            if xlo:
                e(f's_lshl_b32 s{sT0}, s{sT0}, 2'); e(f's_lshr_b32 s{sT0}, s{sMap}, s{sT0}'); e(f's_and_b32 s{sT0}, s{sT0}, 7')
            if emap and tagn == 'v':
                tab = sum(v << (2 * r) for r, v in enumerate(emap))
                e(f's_and_b32 s{sT1}, s{sRk}, 7'); e(f's_lshl_b32 s{sT1}, s{sT1}, 1'); e(f's_lshr_b32 s{sT1}, {tab}, s{sT1}'); e(f's_and_b32 s{sT1}, s{sT1}, 3')
                e(f's_cmp_ge_u32 s{sN}, {efrom}'); e(f's_cselect_b32 s{sT0}, s{sT1}, s{sT0}')
            e(f'v_mov_b32 v{vLv}, s{sT0}')
            e(f'ds_write_b32 v{vZz}, v{vLv} offset:{L_LVL}')
            e(f'L_nu{tagn}:')
            if resets:
                e(f's_bitcmp1_b64 s[{sRs}:{sRs+1}], s{sN}')
                e(f's_cbranch_scc0 L_nv{tagn}')
                e(f'v_mov_b32 v{vLv}, 1')
                e(f'ds_write_b32 v{vZz}, v{vLv} offset:{L_LVL}')
                e(f'L_nv{tagn}:')
            e(f's_bitcmp1_b32 s{sT3}, 1')
        if i == rcat + 2:
            e(f'ds_read_b32 v{vLv}, v{vZz} offset:{L_LVL}')
        if i == rcat + 3:
            e('s_waitcnt lgkmcnt(0)')
            e(f'v_readfirstlane_b32 s{sT3}, v{vLv}')
            setflags()
        if preb and i == 16 - prek:
            e(f's_bitcmp1_b64 s[{sLh}:{sLh+1}], s{sN}')
            e('s_cselect_b64 vcc, 0, vcc')
            e(f's_cselect_b32 s{sT0}, 3, s{sT3}')
            e(f's_bitcmp1_b32 s{sT0}, 1')
        fr = (0, 0.5, 0.25, 0.75)[i & 3]
        dd = [int(x + fr) for x in (rcv if (rcv and tagn == 'v') else rc)]
        if (endb and tagn == 'v') or (preb and i >= 16 - prek):
            e(f's_waitcnt vmcnt({dmax-1})')
            e(f's_cbranch_scc0 L_lo{tagn}{i}')
            e(f's_cbranch_vccz L_go{tagn}{i}')
            e(f'L_lo{tagn}{i}:')
        e(f's_waitcnt vmcnt({dd[2]-1})')
        e(f's_cbranch_scc1 L_go{tagn}{i}')
        e(f's_waitcnt vmcnt({dd[1]-1})')
        dx = int((xlov if (xlov and tagn == 'v') else xlo) + fr) if xlo else dd[0]
        if dx != dd[1]:
            e(f's_cbranch_vccz L_go{tagn}{i}')
            if dd[0] != dd[1]: e(f's_waitcnt vmcnt({dd[0]-1})')
        if dx != dd[0]:
            e(f's_cmp_eq_u32 s{sT3}, 4')
            e(f's_cbranch_scc0 L_go{tagn}{i}')
            e(f's_waitcnt vmcnt({dx-1})')
            e(f's_cmp_eq_u32 s{sT3}, 0')
        e(f'L_go{tagn}{i}:')
    def kops(buf, T):
        dots = [[] for _ in range(20)]
        post = [[] for _ in range(20)]
        d = [T, T + 1, T + 2]
        for i in range(16):
            t = d[i % 3]; kk = buf + 4 * i
            dots[i].append(f'v_dot2_f32_bf16 v{t}, v{kk}, v{vQ}, 0')
            for r in range(1, 4):
                dots[i].append(f'v_dot2_f32_bf16 v{t}, v{kk + r}, v{vQ + r}, v{t}')
            a = T + 3 + ((i >> 1) & 1)
            b = T + 5 + ((i >> 2) & 1)
            bm1 = '0x3' if i % 2 == 0 else '0xc'
            bm2 = '0x5' if (i >> 1) % 2 == 0 else '0xa'
            post[i + 1].append(f'v_add_f32_dpp v{a}, v{t}, v{t} row_ror:8 row_mask:0xf bank_mask:{bm1}')
            if i % 2 == 1:
                post[i + 2].append(f'v_add_f32_dpp v{b}, v{a}, v{a} row_half_mirror row_mask:0xf bank_mask:{bm2}')
            if i % 4 == 3:
                post[i + 3].append(f'v_add_f32_dpp v{b}, v{b}, v{b} quad_perm:[2,3,0,1] {DPPF}')
            if i % 8 == 7:
                c = T + 7 if i == 7 else T + 5
                post[i + 3].append(f'v_cndmask_b32 v{c}, v{T+5}, v{T+6}, s[{sM3}:{sM3+1}]')
                post[i + 4].append(f'v_add_f32_dpp v{c}, v{c}, v{c} quad_perm:[1,0,3,2] {DPPF}')
        return [dots[i] + post[i] for i in range(20)]
    def kfinal(T, dst):
        return f'v_cndmask_b32 v{dst}, v{T+7}, v{T+5}, s[{sM4}:{sM4+1}]'
    def ktail(stepsets):
        for s_ in range(16, 20):
            e('s_nop 2' if s_ == 16 else 's_nop 1')
            for st in stepsets:
                for op in st[s_]: e(op)

    sets = [kops(X0, vT), kops(X1, vT + 8), kops(X2, vT + 16)][:nbuf]
    for i in range(16):
        for op in sets[0][i]: e(op)
        e(f's_waitcnt vmcnt({DB-1})')
        issue(X0, i)
        for st in sets[1:]:
            for op in st[i]: e(op)
    ktail(sets)
    if nbuf == 3:
        e(kfinal(vT + 8, vS + 5)); e(kfinal(vT + 16, vS + 6)); e(kfinal(vT, vS + 7))
    else:
        e(kfinal(vT + 8, vS + 6)); e(kfinal(vT, vS + 7))
    make_tag(vTg)
    if nbuf == 3:
        e(f's_mov_b32 s4, s{sBv}'); e(f's_mov_b32 s5, s{sBv+1}')
        e(f's_add_u32 s{sOff}, s{sWb}, 0x180000')
    else:
        e(f's_add_u32 s{sOff}, s{sOff}, 0x20000')
    e(f's_mov_b32 s{sN}, {nbuf + 1}')
    e(f's_mov_b32 s{sSeg}, 2')
    e(f'v_mov_b32 v{vZz}, 0')
    m = mask64(vkind)
    e(f's_mov_b32 s{sVk}, 0x{m & 0xffffffff:08x}'); e(f's_mov_b32 s{sVk+1}, 0x{m >> 32:08x}')
    e(f's_mov_b32 s{sKK}, 0'); e(f's_mov_b32 s{sKV}, 0'); e(f's_mov_b32 s{sX}, 0')
    if rc:
        m = mask64(cks)
        e(f's_cmp_eq_u32 s{sW}, 0')
        e(f's_cselect_b32 s{sCk}, 0x{m & 0xffffffff:08x}, 0'); e(f's_cselect_b32 s{sCk+1}, 0x{m >> 32:08x}, 0')
        m = mask64([4, 16, 24, 31, 8])
        e(f's_mov_b32 s{sLh}, 0x{m & 0xffffffff:08x}'); e(f's_mov_b32 s{sLh+1}, 0x{m >> 32:08x}')
        e(f's_mov_b32 s{sMap}, 0x210')
        m = mask64(resets)
        e(f's_cselect_b32 s{sRs}, 0x{m & 0xffffffff:08x}, 0'); e(f's_cselect_b32 s{sRs+1}, 0x{m >> 32:08x}, 0')
        e(f's_lshl_b32 s{sRc}, s{sH}, 8'); e(f's_add_u32 s{sRc}, s{sRc}, {RC}')
        e(f's_mov_b32 s{sT3}, {lvl0}')
    stamp(3, 0)

    e('L_kbody:')
    ks = kops(X0, vT)
    body_begin('k')
    for i in range(16):
        for op in ks[i]: e(op)
        if i < 7: e(f'v_mov_b32 v{vS + i}, v{vS + i + 1}')
        throttle('k', i)
        issue(X0, i)
    ktail([ks])
    e(kfinal(vT, vS + 7))
    e(f's_bitcmp1_b64 s[{sHk}:{sHk+1}], s{sN}')
    e('s_cbranch_scc1 L_hooks')
    e(f's_add_u32 s{sOff}, s{sOff}, 0x20000')
    e(f's_add_u32 s{sN}, s{sN}, 1')
    e('s_branch L_kbody')

    e('L_vbody:')
    e(f'v_and_b32 v{vPd}, 0xffff, v{vP}')
    e(f'v_lshl_or_b32 v{vPd}, v{vPd}, 16, v{vPd}')
    for r in range(3):
        e(f'v_alignbit_b32 v{vP + r}, v{vP + r + 1}, v{vP + r}, 16')
    e(f'v_lshrrev_b32 v{vP+3}, 16, v{vP+3}')
    def vand(i):
        a = vS + 4 * (i & 1)
        for r in range(4):
            e(f'v_and_b32_dpp v{a + r}, v{vPd}, v{vMask + r} row_newbcast:{br4(i)} {DPPF}')
    if boost and not rc: e(f's_cmp_ge_u32 s{sN}, {40 - boost[0]}')
    body_begin('v')
    vand(0)
    for i in range(16):
        if i < 15: vand(i + 1)
        a = vS + 4 * (i & 1); v = X0 + 4 * i
        e(f'v_mfma_f32_16x16x32_bf16 v[{vAcc}:{vAcc+3}], v[{a}:{a+3}], v[{v}:{v+3}], v[{vAcc}:{vAcc+3}]')
        throttle('v', i)
        issue(X0, i)
    e(f's_bitcmp1_b64 s[{sHk}:{sHk+1}], s{sN}')
    e('s_cbranch_scc1 L_hooks')
    e(f's_add_u32 s{sOff}, s{sOff}, 0x20000')
    e(f's_add_u32 s{sN}, s{sN}, 1')
    e('s_branch L_vbody')

    e('L_hooks:')
    T = vT
    e(f's_cmp_eq_u32 s{sN}, 40'); e('s_cbranch_scc1 L_sfin')
    for n in (39, 7, 8, 22, 23, 26, 30, 31, 32, 3):
        e(f's_cmp_eq_u32 s{sN}, {n}'); e(f's_cbranch_scc1 L_h{n}')
    def kspin(off, dst):
        l = g.lab('ks')
        e(f's_mov_b32 s{sSpin}, {SPIN * 8}')
        e(f'{l}:')
        e(f'ds_read_b32 v{T}, v{vZz} offset:{off}')
        e(f's_sub_u32 s{sSpin}, s{sSpin}, 1')
        e(f's_cbranch_scc1 {l}x')
        e('s_waitcnt lgkmcnt(0)')
        e(f'v_cmp_eq_u32 vcc, -1, v{T}')
        e(f's_cbranch_vccnz {l}')
        e(f'{l}x:')
        e('s_waitcnt lgkmcnt(0)')
        e(f'v_readfirstlane_b32 s{dst}, v{T}')
        e(f's_and_b32 s{dst}, s{dst}, 1')
    def pcheck(regs, seg):
        l = g.lab('pc')
        e(f's_cmp_eq_u32 s{sX}, 0'); e(f's_cbranch_scc1 {l}x')
        e(f's_mov_b32 s{sSpin}, {0 if (nold or nost) else SPIN}')
        e(f'{l}:')
        for r in range(4): e(f'v_xor_b32 v{regs + r}, v{regs + r}, v{vPat + r}')
        e(f'v_or3_b32 v{T}, v{regs}, v{regs+1}, v{regs+2}')
        e(f'v_or_b32 v{T}, v{T}, v{regs+3}')
        e(f'v_and_b32 v{T}, 0x80008000, v{T}')
        e(f'v_cmp_ne_u32 vcc, 0, v{T}')
        e(f's_cbranch_vccz {l}x')
        e(f's_sub_u32 s{sSpin}, s{sSpin}, 1')
        e(f's_cbranch_scc1 {l}x')
        pload(regs, seg)
        e('s_waitcnt vmcnt(0)')
        e(f's_branch {l}')
        e(f'{l}x:')
    def pload(regs, seg):
        if not nold: e(f'buffer_load_dwordx4 v[{regs}:{regs+3}], v{vPPa + seg}, s[8:11], s{sPPb} offen {ppld}')
    for r in range(4): e(f'v_mov_b32 v{vP + r}, v{vPA + r}')
    e(f'v_max3_f32 v{T}, v{vS}, v{vS+1}, v{vS+2}')
    e(f'v_max3_f32 v{T+1}, v{vS+3}, v{vS+4}, v{vS+5}')
    e(f'v_max3_f32 v{T}, v{T}, v{vS+6}, v{vS+7}')
    e(f'v_max_f32 v{T}, v{T}, v{T+1}')
    def rowred(op, r):
        for ctl in ('quad_perm:[1,0,3,2]', 'quad_perm:[2,3,0,1]', 'row_half_mirror', 'row_mirror'):
            e('s_nop 1')
            e(f'{op}_dpp v{r}, v{r}, v{r} {ctl} {DPPF}')
    def allred(op, r, tmp):
        rowred(op, r)
        for sw in ('v_permlane16_swap_b32', 'v_permlane32_swap_b32'):
            e(f'v_mov_b32 v{tmp}, v{r}')
            e('s_nop 1')
            e(f'{sw} v{tmp}, v{r}')
            e('s_nop 1')
            e(f'{op} v{r}, v{r}, v{tmp}')
    allred('v_max_f32', T, T + 1)
    e(f'v_mul_f32 v{T+2}, s{sC}, v{T}')
    for r in range(8): e(f'v_fma_f32 v{vS + r}, v{vS + r}, s{sC}, -v{T+2}')
    for r in range(8): e(f'v_exp_f32 v{vS + r}, v{vS + r}')
    e(f'v_cmp_eq_u32 vcc, s{sSeg}, v0')
    for r in range(4): e(f'v_cvt_pk_bf16_f32 v{vPA + r}, v{vS + 2*r}, v{vS + 2*r + 1}')
    e(f'v_cndmask_b32 v{vMl}, v{vMl}, v{T+2}, vcc')
    for r in range(4): e(f'v_add_f32 v{vS + 2*r}, v{vS + 2*r}, v{vS + 2*r + 1}')
    e(f'v_add_f32 v{vS}, v{vS}, v{vS+2}')
    e(f'v_add_f32 v{vS+4}, v{vS+4}, v{vS+6}')
    e(f'v_add_f32 v{T}, v{vS}, v{vS+4}')
    allred('v_add_f32', T, T + 1)
    e(f'v_cndmask_b32 v{vMl+1}, v{vMl+1}, v{T}, vcc')
    e(f's_cmp_eq_u32 s{sN}, 4'); e('s_cbranch_scc0 L_finA')
    e(f'v_mov_b32 v{vP}, v{vPA+2}'); e(f'v_mov_b32 v{vP+1}, v{vPA+3}')
    e(f's_mov_b32 s{sSeg}, 0')
    e(f'ds_read_b128 v[{vQ}:{vQ+3}], v1 offset:{L_Q}')
    e('s_waitcnt lgkmcnt(0)')
    e('s_branch L_h_done')
    e('L_finA:')
    if numa:
        e(f's_cmp_eq_u32 s{sN}, 16'); e('s_cbranch_scc0 L_finA1')
        not_class('L_finA1')
        kspin(L_KAP + 4, sKV)
        if truth:
            e(f's_lshl_b32 s90, s{sKV}, 1'); e('s_or_b32 s89, s89, s90')
            e('v_writelane_b32 v254, s88, 13'); e('v_writelane_b32 v255, s89, 13')
            if truth == 2:
                e(f's_bfe_u32 s{sKV}, s88, 0x10001'); e(f's_xor_b32 s{sKV}, s{sKV}, s{sSide}')
        e(f's_xor_b32 s{sX}, s{sKK}, s{sKV}')
        if forcex is not None: e(f's_mov_b32 s{sX}, {forcex}')
        e('L_finA1:')
        e(f's_cmp_eq_u32 s{sX}, 0'); e('s_cbranch_scc1 L_nops')
        for r in range(4): e(f'v_and_or_b32 v{vPs + r}, v{vPA + r}, s{s7f}, v{vPat + r}')
        e(f's_lshl_b32 s{sT0}, s{sSeg}, 8')
        e(f'v_xor_b32 v{T}, s{sT0}, v{vPPa}')
        if not nost: e(f'buffer_store_dwordx4 v[{vPs}:{vPs+3}], v{T}, s[8:11], s{sPPa} offen {ppst}')
        e('L_nops:')
    e(f's_mov_b32 s{sSeg}, 1')
    e(f's_cmp_eq_u32 s{sN}, 24'); e('s_cbranch_scc0 L_h_done')
    stamp(14, 0)
    e(f's_lshl_b32 s{sT0}, s2, 8'); e(f's_lshl_b32 s{sT1}, s{sW}, 6'); e(f's_add_u32 s{sT0}, s{sT0}, s{sT1}')
    e(f's_add_u32 s{sT0}, s{sT0}, {ST}')
    e(f'v_mov_b32 v{vMl+2}, s{sE}'); e(f'v_mov_b32 v{vMl+3}, s{sE}')
    if wgstat: e(f'v_add_u32 v{T}, s{sT1}, v{vL16}')
    e('s_mov_b64 exec, 15')
    if wgstat: e(f'ds_write_b128 v{T}, v[{vMl}:{vMl+3}] offset:{L_ST}')
    else: e(f'buffer_store_dwordx4 v[{vMl}:{vMl+3}], v{vL16}, s[8:11], s{sT0} offen sc1')
    e('s_mov_b64 exec, -1')
    e('s_branch L_h_done')
    e('L_h8:')
    for r in range(4): e(f'v_mov_b32_dpp v{vMask + r}, v{vMask + r} row_ror:8 {DPPF}')
    for r in range(4): e(f'v_mov_b32 v{vAccB + r}, v{vAcc + r}')
    for r in range(4): e(f'v_mov_b32 v{vAcc + r}, 0')
    if numa:
        e(f'v_mul_u32_u24 v{T}, 37, v0')
        e(f'v_xor_b32 v{T}, s{sTag}, v{T}')
        for r in range(4):
            e(f'v_bfe_u32 v{T+1}, v{T}, {2*r}, 1')
            e(f'v_bfe_u32 v{T+2}, v{T}, {2*r+1}, 1')
            e(f'v_lshlrev_b32 v{T+1}, 15, v{T+1}')
            e(f'v_lshl_or_b32 v{vPat + r}, v{T+2}, 31, v{T+1}')
        e(f's_mov_b32 s{s7f}, 0x7fff7fff')
        e(f'v_lshrrev_b32 v{T}, 4, v0')
        e(f'v_lshl_add_u32 v{vPPa}, v{T}, 15, v{vL16}')
        if pplin == 1: e(f'v_and_b32 v{vPPa}, 0xfffffdff, v{vPPa}')
        if pplin == 2: e(f'v_and_b32 v{vPPa}, 0xfffffcff, v{vPPa}')
        e(f's_and_b32 s{sT0}, s{sW}, 1'); e(f's_lshl_b32 s{sT0}, s{sT0}, 9')
        e(f'v_xor_b32 v{vPPa}, s{sT0}, v{vPPa}')
        e(f'v_xor_b32 v{vPPb}, 0x100, v{vPPa}')
        e(f's_lshr_b32 s{sT0}, s{sW}, 1'); e(f's_lshl_b32 s{sT0}, s{sT0}, 10')
        e(f's_and_b32 s{sT1}, s2, 15'); e(f's_lshl_b32 s{sT1}, s{sT1}, 11'); e(f's_add_u32 s{sT0}, s{sT0}, s{sT1}')
        e(f's_lshr_b32 s{sT1}, s2, 4'); e(f's_lshl_b32 s{sT1}, s{sT1}, 17'); e(f's_add_u32 s{sT0}, s{sT0}, s{sT1}')
        e(f's_add_u32 s{sPPa}, s{sT0}, {PP}')
        e(f's_xor_b32 s{sPPb}, s{sPPa}, 0x2000')
    e('s_branch L_h_done')
    e('L_h32:')
    e(f'v_lshrrev_b32 v{T}, 4, v0')
    e(f'v_lshlrev_b32 v{vWa}, 13, v{T}')
    e(f'v_and_b32 v{T+1}, 15, v0')
    e(f'v_lshl_add_u32 v{vWa}, v{T+1}, 4, v{vWa}')
    e(f's_lshl_b32 s{sT0}, s{sH}, 17'); e(f's_lshl_b32 s{sT1}, s{sB}, 8'); e(f's_add_u32 s{sT0}, s{sT0}, s{sT1}')
    e(f's_lshl_b32 s{sT1}, s{sW}, 15'); e(f's_add_u32 s{sT0}, s{sT0}, s{sT1}')
    e(f'v_add_u32 v{vWa}, s{sT0}, v{vWa}')
    e(f'v_and_b32 v{T+1}, 3, v0')
    e(f'v_lshlrev_b32 v{T+1}, 8, v{T+1}')
    e(f'v_lshl_add_u32 v{T+1}, v{T}, 4, v{T+1}')
    e(f's_lshl_b32 s{sT0}, s{sW}, 6'); e(f's_add_u32 s{sT0}, s{sT0}, {L_RED}')
    e(f'v_add_u32 v{T+1}, s{sT0}, v{T+1}')
    e(f'v_bfe_u32 v{T+2}, v0, 2, 2')
    e(f'v_mov_b32 v{T+3}, {L_Z}')
    for q in range(4):
        e(f'v_cmp_eq_u32 vcc, {q}, v{T+2}')
        e('s_nop 1')
        e(f'v_cndmask_b32 v{vAr + q}, v{T+3}, v{T+1}, vcc')
    e(f's_lshl_b32 s{sT0}, s{sW}, 11')
    e(f'v_add_u32 v{vYw}, s{sT0}, v{vL16}')
    e(f'v_and_b32 v{T}, 31, v0')
    e(f'v_lshlrev_b32 v{vYr}, 4, v{T}')
    e(f'v_lshrrev_b32 v{T}, 5, v0')
    e(f'v_lshl_add_u32 v{vYr}, v{T}, 12, v{vYr}')
    e(f's_lshl_b32 s{sT0}, s{sW}, 9')
    e(f'v_add_u32 v{vYr}, s{sT0}, v{vYr}')
    e(f's_and_b32 s{sT0}, s{sW}, 1'); e(f's_lshl_b32 s{sT0}, s{sT0}, 1')
    e(f'v_bfe_u32 v{T}, v0, 4, 1')
    e(f'v_or_b32 v{T}, s{sT0}, v{T}')
    e(f's_lshl_b32 s{sT0}, s2, 1'); e(f's_and_b32 s{sT0}, s{sT0}, 127'); e(f's_lshr_b32 s{sT1}, s{sW}, 1'); e(f's_or_b32 s{sT0}, s{sT0}, s{sT1}')
    e(f'v_xor_b32 v{T+1}, s{sT0}, v{T}')
    e(f'v_lshlrev_b32 v{vYa}, 8, v{T+1}')
    e(f'v_lshl_add_u32 v{vYa}, v{T}, 15, v{vYa}')
    e(f'v_and_b32 v{T}, 15, v0')
    e(f'v_lshl_add_u32 v{vYa}, v{T}, 4, v{vYa}')
    e(f's_lshr_b32 s{sYd}, s2, 6'); e(f's_lshl_b32 s{sYd}, s{sYd}, 17')
    e(f's_add_u32 s{sT0}, s{sE}, 1'); e(f's_and_b32 s{sT0}, s{sT0}, 0xff')
    e(f'v_mov_b32 v{vTg2}, s{sT0}')
    for r in range(4): e(f'v_mov_b32_dpp v{vMask + r}, v{vMask + r} row_ror:8 {DPPF}')
    for r in range(4): e(f'v_mov_b32 v{vP + r}, v{vPA + r}')
    e('s_branch L_h_done')
    e('L_h3:')
    e(f's_mov_b32 s4, s{sBv}'); e(f's_mov_b32 s5, s{sBv+1}')
    e(f's_add_u32 s{sOff}, s{sWb}, {0x180000 - 0x20000}')
    e('s_branch L_h_done')
    e('L_h7:')
    stamp(15, 0)
    if numa:
        not_class('L_h7b')
        kspin(L_KAP, sKK)
        if truth:
            e(f's_lshr_b32 s88, s{sSlab}, 19'); e('s_add_u32 s88, s88, 0x600000')
            e(f's_load_dword s88, s[{sWs}:{sWs+1}], s88')
            e('s_waitcnt lgkmcnt(0)')
            e(f's_mov_b32 s89, s{sKK}')
            if truth == 2:
                e(f's_and_b32 s{sKK}, s88, 1'); e(f's_xor_b32 s{sKK}, s{sKK}, s{sSide}')
        for j in range(4): e(f'v_and_b32 v{vOff + j}, 0xffffdfff, v{vOff + j}')
        e(f's_mov_b32 s{sMap}, {nmap[0] | nmap[1] << 4 | nmap[2] << 8}')
        e('L_h7b:')
    e(f's_mov_b32 s4, s{sAk}'); e(f's_mov_b32 s5, s{sAk+1}')
    e(f's_lshl_b32 s{sT0}, s{sKK}, 13'); e(f's_add_u32 s{sOff}, s{sWb}, s{sT0}')
    e(f's_sub_u32 s{sOff}, s{sOff}, 0x20000')
    e('s_branch L_h_done')
    e('L_h26:')
    e(f's_cmp_lg_u32 s{sW}, 0'); e('s_cbranch_scc1 L_h_done')
    e('s_mov_b64 exec, 0xffff')
    e(f's_mov_b32 s{sSpin}, {SPIN * 8}')
    e('L_h26s:')
    e(f'ds_read_b128 v[{vMl}:{vMl+3}], v{vL16} offset:{L_ST}')
    e(f's_sub_u32 s{sSpin}, s{sSpin}, 1'); e('s_cbranch_scc1 L_h26x')
    e('s_waitcnt lgkmcnt(0)')
    e(f'v_cmp_ne_u32 vcc, s{sE}, v{vMl+2}')
    e('s_cbranch_vccnz L_h26s')
    e('L_h26x:')
    e('s_waitcnt lgkmcnt(0)')
    e(f's_lshl_b32 s{sT0}, s2, 8'); e(f's_add_u32 s{sT0}, s{sT0}, {ST}')
    e(f'buffer_store_dwordx4 v[{vMl}:{vMl+3}], v{vL16}, s[8:11], s{sT0} offen sc1')
    e('s_mov_b64 exec, -1')
    e('s_branch L_h_done')
    e('L_h22:')
    if numa:
        e(f's_cmp_eq_u32 s{sX}, 0'); e('s_cbranch_scc1 L_h_done')
        pload(vPA, 0)
    e('s_branch L_h_done')
    e('L_h23:')
    if numa: pcheck(vPA, 0)
    e(f's_mov_b32 s4, s{sAv}'); e(f's_mov_b32 s5, s{sAv+1}')
    e(f's_lshl_b32 s{sT0}, s{sKV}, 13'); e(f's_add_u32 s{sOff}, s{sWb}, s{sT0}')
    e(f's_sub_u32 s{sOff}, s{sOff}, 0x20000')
    e('s_branch L_h_done')
    e('L_h39:')
    e(f's_cmp_eq_u32 s{sSide}, 0')
    e(f's_cselect_b64 s[4:5], s[{sAwo}:{sAwo+1}], s[{sBwo}:{sBwo+1}]')
    if wlate < 2:
        e('s_mov_b32 s6, 0x400000')
        va = vOff + 2 * wlate; vd = vOff + 2 - 2 * wlate
        e(f'v_mov_b32 v{va}, v{vWa}')
        e(f'v_add_u32 v{va+1}, 4096, v{vWa}')
        e(f'v_mov_b32 v{vd}, 0x400000'); e(f'v_mov_b32 v{vd+1}, 0x400000')
        e(f's_mov_b32 s{sOff}, {(-0x20000) & 0xffffffff}')
    else:
        e('s_mov_b32 s6, 0')
    e('s_branch L_h_done')
    e('L_h30:')
    e(f'v_and_b32 v{T}, 3, v0')
    e(f'v_lshlrev_b32 v{vStA}, 6, v{T}')
    e(f'v_bfe_u32 v{T}, v0, 2, 1')
    e(f'v_lshl_add_u32 v{vStA}, v{T}, 10, v{vStA}')
    e(f'v_lshrrev_b32 v{T}, 3, v0')
    e(f'v_min_u32 v{T}, 2, v{T}')
    e(f'v_lshl_add_u32 v{vStA}, v{T}, 4, v{vStA}')
    e(f's_and_b32 s{sT0}, s2, 0xfb'); e(f's_lshl_b32 s{sT0}, s{sT0}, 8'); e(f's_add_u32 s{sT0}, s{sT0}, {ST}')
    e(f'v_add_u32 v{vStA}, s{sT0}, v{vStA}')
    e(f'buffer_load_dwordx4 v[{vSt}:{vSt+3}], v{vStA}, s[8:11], 0 offen sc1')
    if numa:
        e(f's_cmp_eq_u32 s{sX}, 0'); e('s_cbranch_scc1 L_h_done')
        pload(vPA, 1)
    e('s_branch L_h_done')
    e('L_h31:')
    if numa: pcheck(vPA, 1)
    e(f's_mov_b32 s{sSpin}, {SPIN}')
    e('L_h31s:')
    e(f'v_cmp_ne_u32 vcc, s{sE}, v{vSt+2}')
    e('s_cbranch_vccz L_h31k')
    e(f's_sub_u32 s{sSpin}, s{sSpin}, 1')
    e('s_cbranch_scc1 L_h31k')
    e(f'buffer_load_dwordx4 v[{vSt}:{vSt+3}], v{vStA}, s[8:11], 0 offen sc1')
    e('s_waitcnt vmcnt(0)')
    e('s_branch L_h31s')
    e('L_h31k:')
    e(f'v_mov_b32 v{T}, v{vSt}')
    rowred('v_max_f32', T)
    e(f'v_sub_f32 v{T}, v{vSt}, v{T}')
    e(f'v_exp_f32 v{T}, v{T}')
    e('s_nop 0')
    e(f'v_mul_f32 v{T+1}, v{T}, v{vSt+1}')
    rowred('v_add_f32', T + 1)
    e(f'v_rcp_f32 v{T+1}, v{T+1}')
    e('s_nop 0')
    e(f'v_mul_f32 v{T}, v{T}, v{T+1}')
    e(f's_lshl_b32 s{sT0}, s{sSide}, 2'); e(f's_add_u32 s{sT0}, s{sT0}, s{sW}')
    e(f's_add_u32 s{sT2}, s{sT0}, 16')
    e(f's_lshl_b32 s{sT1}, s{sX}, 2'); e(f's_xor_b32 s{sT0}, s{sT0}, s{sT1}')
    e(f's_add_u32 s{sT1}, s{sT0}, 8')
    e(f'v_readlane_b32 s{sFA0}, v{T}, s{sT0}')
    e(f'v_readlane_b32 s{sFA1}, v{T}, s{sT1}')
    e(f'v_readlane_b32 s{sFB}, v{T}, s{sT2}')
    e('v_cmp_gt_u32 vcc, 32, v0')
    e(f'v_mov_b32 v{T}, s{sFA0}')
    e(f'v_mov_b32 v{T+1}, s{sFA1}')
    e(f'v_cndmask_b32 v{vF}, v{T+1}, v{T}, vcc')
    e(f'v_mov_b32 v{T}, s{sFB}')
    e(f'v_add_f32 v{T}, v{T}, v{T}')
    for r in range(4): e(f'v_mul_f32 v{vAccB + r}, v{T}, v{vAccB + r}')
    e(f'v_lshrrev_b32 v{T}, 5, v0')
    e(f'v_lshlrev_b32 v1, 9, v{T}')
    e(f'v_and_b32 v{T}, 15, v0')
    e(f'v_lshl_add_u32 v1, v{T}, 5, v1')
    e(f'v_and_b32 v{T}, 16, v0')
    e(f'v_add_u32 v1, v{T}, v1')
    e(f's_lshl_b32 s{sT0}, s{sW}, 10')
    e(f'v_add_u32 v1, s{sT0}, v1')
    e('L_h_done:')
    e(f's_add_u32 s{sOff}, s{sOff}, 0x20000')
    e(f's_add_u32 s{sN}, s{sN}, 1')
    e(f's_bitcmp1_b64 s[{sVk}:{sVk+1}], s{sN}')
    e('s_cbranch_scc1 L_vbody')
    e('s_branch L_kbody')
    e('L_sfin:')
    def woload(i0=0, i1=8):
        e('s_mov_b32 s6, 0x400000'); e(f's_movk_i32 s{sT2}, 4096')
        for i in range(i0, i1):
            so = '0' if i < 4 else f's{sT2}'
            e(f'buffer_load_dwordx4 v[{124 + 4*i}:{127 + 4*i}], v{vWa}, s[4:7], {so} offen offset:{(i & 3) * 1024} {wopol}')
    e('s_nop 1')
    for r in range(4): e(f'v_mul_f32 v{vAcc + r}, v{vF}, v{vAcc + r}')
    for r in range(4): e(f'v_permlane32_swap_b32 v{vAcc + r}, v{vAccB + r}')
    for r in range(4): e(f'v_add_f32 v{vAcc + r}, v{vAcc + r}, v{vAccB + r}')
    e(f'ds_write_b128 v1, v[{vAcc}:{vAcc+3}] offset:{L_O}')
    if wlate == 2: woload()
    e('s_waitcnt lgkmcnt(0)')
    e('s_barrier')
    stamp(4, 0)
    if wpre: woload(0, wpre)
    if wlate >= 4: e('s_barrier')
    if wlate >= 3: woload(wpre, 8)
    if wlate == 5: e('s_barrier')
    e(f's_mov_b32 s{sT0}, 0x05040100'); e(f's_mov_b32 s{sT1}, 0x07060302')
    W0 = X0 + 32 * wlate if wlate < 2 else 124
    if afirst:
        e('s_barrier')
        for q in range(4):
            e(f'ds_read_b128 v[{vAo + 4*q}:{vAo + 4*q + 3}], v{vAr + q}')
    for r in range(4):
        e(f's_waitcnt vmcnt({(6 - 2 * r) + 8 * (wlate == 0)})')
        for ee in range(8):
            e(f'v_perm_b32 v{vBt + 4*ee + r}, v{W0 + 4*(2*r+1) + (ee >> 1)}, v{W0 + 4*(2*r) + (ee >> 1)}, s{sT0 + (ee & 1)}')
    stamp(9, 0)
    if not afirst:
        e('s_barrier')
        for q in range(4):
            e(f'ds_read_b128 v[{vAo + 4*q}:{vAo + 4*q + 3}], v{vAr + q}')
    for q in range(4):
        e(f's_waitcnt lgkmcnt({3 - q})')
        for t in range(2):
            d = vDD + 4 * t; ee = 2 * q + t
            c = f'v[{d}:{d+3}]' if q else '0'
            e(f'v_mfma_f32_16x16x32_bf16 v[{d}:{d+3}], v[{vAo + 4*q}:{vAo + 4*q + 3}], v[{vBt + 4*ee}:{vBt + 4*ee + 3}], {c}')
    e('s_nop 6')
    e(f'ds_write_b128 v{vYw}, v[{vDD}:{vDD+3}] offset:{L_Y}')
    e(f'ds_write_b128 v{vYw}, v[{vDD+4}:{vDD+7}] offset:{L_Y + 1024}')
    e('s_waitcnt lgkmcnt(0)')
    e('s_barrier')
    e(f'ds_read_b128 v[{vAcc}:{vAcc+3}], v{vYr} offset:{L_Y}')
    e(f'ds_read_b128 v[{vAccB}:{vAccB+3}], v{vYr} offset:{L_Y + 2048}')
    e('s_waitcnt lgkmcnt(0)')
    for r in range(4): e(f'v_add_f32 v{vAcc + r}, v{vAcc + r}, v{vAccB + r}')
    for r in range(4): e(f'v_permlane32_swap_b32 v{vAcc + r}, v{vAccB + r}')
    for r in range(4): e(f'v_add_f32 v{vAcc + r}, v{vAcc + r}, v{vAccB + r}')
    for r in range(4): tag(vAcc + r, vTg2)
    e('s_mov_b32 exec_hi, 0')
    e(f'buffer_store_dwordx4 v[{vAcc}:{vAcc+3}], v{vYa}, s[8:11], s{sYd} offen {stp}')
    if diag:
        e(f's_cmp_lg_u32 s{sW}, 0'); e('s_cbranch_scc1 L_end')
        stamp(11)
    flush_stamps([0, 1, 2, 3, 4, 9, 11, 13, 14, 15])
    if diag:
        e('s_mov_b64 exec, -1')
        e('s_lshl_b32 s84, s2, 8'); e(f's_add_u32 s84, s84, {STAMP + 0x8000}')
        e('v_lshlrev_b32 v253, 2, v0')
        e('buffer_store_dword v252, v253, s[8:11], s84 offen')
    e('s_endpgm')

    def tlbpf():
        e(f's_lshl_b32 s{sT0}, s{sB}, 5'); e(f's_add_u32 s{sT0}, s{sT0}, s{sH}'); e(f's_lshl_b32 s{sT0}, s{sT0}, 21')
        e(f's_load_dword s77, s[{sAk}:{sAk+1}], s{sT0}')
        e(f's_load_dword s78, s[{sBv}:{sBv+1}], s{sT0}')
        e(f's_load_dword s79, s[{sAv}:{sAv+1}], s{sT0}')
        e(f's_load_dword s60, s[{sOut}:{sOut+1}], 0')
    e('L_service:')
    sU = sB; sBeta = sSide
    sIt, sDst = 53, 54
    vG = 2; vC = 3; vA = 4; vA2 = 5; vL = 6; vZ = 7
    vXA = 8; vWt = 16; vSel = 48; vOpA = 56; vD = 64; vR = 72
    vA3 = 104; vTg = 105; vX3 = 108; vX4 = 109; vOut = 110
    e(f's_sub_u32 s{sW}, s{sW}, 4')
    e(f'v_lshrrev_b32 v{vG}, 4, v0')
    e(f'v_and_b32 v{vC}, 15, v0')
    e(f'v_mov_b32 v{vZ}, 0')
    e(f'ds_write_b32 v{vZ}, v{vZ} offset:{L_CNT}')
    e(f'v_and_b32 v{vA}, 12, v0')
    e(f'ds_write_b32 v{vA}, v{vZ} offset:{L_Z}')
    if rc:
        e(f'v_mov_b32 v{vA}, {lvl0}')
        e(f'ds_write_b32 v{vZ}, v{vA} offset:{L_LVL}')
    if numa:
        e(f'v_mov_b32 v{vL}, 0')
        e(f'ds_write_b64 v{vZ}, v[{vL}:{vL+1}] offset:{L_CN2}')
        for r in range(4): e(f'v_mov_b32 v{vR + r}, -1')
        e(f'ds_write_b128 v{vZ}, v[{vR}:{vR+3}] offset:{L_EV}')
        e(f'ds_write_b64 v{vZ}, v[{vR}:{vR+1}] offset:{L_KAP}')
    e(f'v_lshlrev_b32 v{vA}, 16, v{vG}')
    e(f'v_lshl_add_u32 v{vA}, v{vC}, 4, v{vA}')
    e(f'v_lshrrev_b32 v{vA2}, 3, v{vC}')
    e(f'v_lshlrev_b32 v{vA2}, 10, v{vA2}')
    e(f'v_lshl_add_u32 v{vA2}, v{vG}, 4, v{vA2}')
    e(f's_lshl_b32 s{sT0}, s{sU}, 7')
    e(f's_lshl_b32 s{sT1}, s{sW}, 5')
    e(f's_add_u32 s{sT0}, s{sT0}, s{sT1}')
    e(f's_lshl_b32 s{sT1}, s{sT0}, 1')
    e(f's_lshl_b32 s{sT0}, s{sT0}, 13')
    e(f's_lshl_b32 s{sT2}, s{sH}, 8')
    e(f's_add_u32 s{sT0}, s{sT0}, s{sT2}')
    e('s_mov_b32 s6, 0x400000')
    e('s_mov_b32 s14, 4096')
    e('s_mov_b32 s15, 0x20000')
    e(f's_cmp_eq_u32 s{sBeta}, 0')
    e('s_waitcnt lgkmcnt(0)')
    e(f's_cselect_b64 s[4:5], s[{sAwq}:{sAwq+1}], s[{sBwq}:{sBwq+1}]')
    e(f's_cselect_b64 s[12:13], s[{sAx}:{sAx+1}], s[{sBx}:{sBx+1}]')
    if diag: e('s_memrealtime s[92:93]')
    for m in range(2):
        e(f'buffer_load_dwordx4 v[{vXA + 4*m}:{vXA + 4*m + 3}], v{vA2}, s[12:15], s{sT1} offen offset:{2048*m}')
    vWo = 112
    def wo_addr(va):
        e(f'v_lshlrev_b32 v{va}, 13, v{vG}')
        e(f'v_lshl_add_u32 v{va}, v{vC}, 4, v{va}')
        e(f's_lshl_b32 s{sT0}, s{sH}, 17')
        e(f's_lshl_b32 s{sT1}, s{sW}, 15')
        e(f's_add_u32 s{sT0}, s{sT0}, s{sT1}')
        e(f's_lshl_b32 s{sT1}, s{sU}, 8')
        e(f's_add_u32 s{sT0}, s{sT0}, s{sT1}')
        e(f's_add_u32 s{sT1}, s{sT0}, 4096')
        e(f's_cmp_eq_u32 s{sBeta}, 0')
        e(f's_cselect_b64 s[4:5], s[{sAwo}:{sAwo+1}], s[{sBwo}:{sBwo+1}]')
    for i in range(8):
        if wfirst and i >= DW: e(f's_waitcnt vmcnt({DW-1})')
        if diag and i == DW: e('s_memrealtime s[94:95]')
        e(f'buffer_load_dwordx4 v[{vWt + 4*i}:{vWt + 4*i + 3}], v{vA}, s[4:7], s{sT0} offen {pol}')
        if i < 7: e(f's_add_u32 s{sT0}, s{sT0}, 8192')
        if i == min(DW, 8) - 1: load_epoch()
    if wfirst == 2:
        wo_addr(vR)
        for i in range(8):
            if 8 + i >= DW: e(f's_waitcnt vmcnt({DW-1})')
            e(f'buffer_load_dwordx4 v[{vWo + 4*i}:{vWo + 4*i + 3}], v{vR}, s[4:7], s{sT0 if i < 4 else sT1} offen offset:{(i & 3) * 1024} {pol}')
    e('s_barrier')
    e(f's_mov_b32 s8, s{sWs}'); e(f's_mov_b32 s9, s{sWs+1}')
    e(f'v_lshlrev_b32 v{vL}, 4, v0')
    e(f'v_mov_b32 v{vX4}, 0'); e(f'v_mov_b32 v{vOut}, 0')
    if rc:
        assert wfirst != 2 and len(cks) <= 16
        e(f's_lshl_b32 s{sT0}, s{sW}, 3'); e(f's_add_u32 s{sT0}, s{sT0}, s{sJ}')
        e(f's_cmp_ge_u32 s{sT0}, {len(cks)}'); e('s_cbranch_scc1 L_norc')
        e(f's_lshl_b32 s{sT0}, s{sT0}, 5'); e(f's_add_u32 s{sT0}, s{sT0}, s{sH}'); e(f's_lshl_b32 s{sT0}, s{sT0}, 8'); e(f's_add_u32 s{sT0}, s{sT0}, {RC}')
        e('s_mov_b64 exec, 0xffff')
        e(f'v_lshlrev_b32 v{vR}, 2, v0')
        e(f'buffer_store_dword v{vZ}, v{vR}, s[8:11], s{sT0} offen sc1')
        e('s_mov_b64 exec, -1')
        e('L_norc:')
    e(f'v_and_b32 v{vR}, 7, v0')
    e(f'v_and_b32 v{vR+1}, 1, v0')
    e(f'v_lshlrev_b32 v{vR+1}, 4, v{vR+1}')
    e(f'v_mov_b32 v{vR+2}, 0xffff')
    e(f'v_lshlrev_b32 v{vR+2}, v{vR+1}, v{vR+2}')
    e(f'v_lshrrev_b32 v{vR}, 1, v{vR}')
    e(f'v_mov_b32 v{vR+4}, 0x0c0c0c0c')
    e(f's_mov_b32 s{sT0}, 0x01000100')
    e(f's_mov_b32 s{sT1}, 0x03020302')
    for r in range(4):
        e(f'v_cmp_eq_u32 vcc, {r}, v{vR}')
        e('s_nop 1')
        e(f'v_cndmask_b32 v{vR+3}, 0, v{vR+2}, vcc')
        e(f'v_bfi_b32 v{vSel + r}, v{vR+3}, s{sT0}, v{vR+4}')
        e(f'v_bfi_b32 v{vSel + 4 + r}, v{vR+3}, s{sT1}, v{vR+4}')
    e(f'v_lshrrev_b32 v{vR}, 5, v0')
    e(f'v_lshlrev_b32 v{vA}, 9, v{vR}')
    e(f'v_lshl_add_u32 v{vA}, v{vC}, 5, v{vA}')
    e(f'v_and_b32 v{vR}, 16, v0')
    e(f's_lshl_b32 s{sT0}, s{sW}, 11')
    e(f'v_add3_u32 v{vA}, v{vA}, v{vR}, s{sT0}')
    e(f'v_lshl_add_u32 v{vA2}, v{vG}, 15, v{vL}')
    e(f's_lshl_b32 s{sT0}, s2, 1'); e(f's_and_b32 s{sT0}, s{sT0}, 127'); e(f's_lshl_b32 s{sT0}, s{sT0}, 8')
    e(f'v_xor_b32 v{vA2}, s{sT0}, v{vA2}')
    e(f'v_xor_b32 v{vA3}, 0x100, v{vA2}')
    e(f's_lshr_b32 s{sDst}, s2, 6'); e(f's_lshl_b32 s{sDst}, s{sDst}, 17')
    if QP: e(f's_add_u32 s{sDst}, s{sDst}, {QP}')
    e('s_waitcnt lgkmcnt(0)')
    make_tag(vTg)
    if pads:
        for w in range(3):
            e(f's_cmp_eq_u32 s{sW}, {w}'); e(f's_cbranch_scc1 L_pad{w}')
        e('s_branch L_pad3')
        e('L_padret:')
    e(f's_waitcnt vmcnt({8 if wfirst == 2 else 0})')
    stamp(5, 0)
    e('L_gemv:')
    seq = [(i, m) for i in range(8) for m in range(2)]
    def perms(k):
        i, m = seq[k]
        a = vOpA + 4 * (k & 1); x = vXA + 4 * m + (i >> 1)
        for r in range(4):
            e(f'v_perm_b32 v{a + r}, v{x}, v{x}, v{vSel + 4 * (i & 1) + r}')
    perms(0)
    for k, (i, m) in enumerate(seq):
        if k < 15: perms(k + 1)
        else: e('s_nop 0')
        a = vOpA + 4 * (k & 1); d = vD + 4 * m; w = vWt + 4 * i
        c = f'v[{d}:{d+3}]' if i > 0 else '0'
        e(f'v_mfma_f32_16x16x32_bf16 v[{d}:{d+3}], v[{a}:{a+3}], v[{w}:{w+3}], {c}')
    e(f'v_mov_b32 v{vR}, 1')
    e('s_nop 5')
    e(f'ds_write_b128 v{vA}, v[{vD}:{vD+3}] offset:{L_RED}')
    e(f'ds_write_b128 v{vA}, v[{vD+4}:{vD+7}] offset:{L_RED + 1024}')
    e('s_mov_b64 exec, 1')
    e(f'ds_add_u32 v{vZ}, v{vR} offset:{L_CNT}')
    e('s_mov_b64 exec, -1')
    e(f's_cmp_lg_u32 s{sW}, 0')
    e('s_cbranch_scc1 L_notleader')
    e(f's_mov_b32 s{sSpin}, {SPIN * 8}')
    e('L_cspin:')
    e(f'ds_read_b32 v{vR}, v{vZ} offset:{L_CNT}')
    e(f's_sub_u32 s{sSpin}, s{sSpin}, 1')
    e('s_cbranch_scc1 L_cout')
    e('s_waitcnt lgkmcnt(0)')
    e(f'v_cmp_eq_u32 vcc, 4, v{vR}')
    e('s_cbranch_vccz L_cspin')
    e('L_cout:')
    for m in range(2):
        e(f'ds_read_b128 v[{vD + 4*m}:{vD + 4*m + 3}], v{vL} offset:{L_RED + m * 1024}')
    for w in range(1, 4):
        for m in range(2):
            r = vR + ((w - 1) * 2 + m) * 4
            e(f'ds_read_b128 v[{r}:{r+3}], v{vL} offset:{L_RED + w * 2048 + m * 1024}')
    e('s_waitcnt lgkmcnt(4)')
    for r in range(8): e(f'v_add_f32 v{vD + r}, v{vD + r}, v{vR + r}')
    e('s_waitcnt lgkmcnt(0)')
    for r in range(8): e(f'v_add_f32 v{vR + 8 + r}, v{vR + 8 + r}, v{vR + 16 + r}')
    for r in range(8): e(f'v_add_f32 v{vD + r}, v{vD + r}, v{vR + 8 + r}')
    for r in range(8): tag(vD + r, vTg)
    e(f'buffer_store_dwordx4 v[{vD}:{vD+3}], v{vA2}, s[8:11], s{sDst} offen {stp}')
    e(f'buffer_store_dwordx4 v[{vD+4}:{vD+7}], v{vA3}, s[8:11], s{sDst} offen {stp}')
    stamp(6)
    e(f'v_bfe_u32 v{vR}, v0, 4, 1')
    e(f's_and_b32 s{sT0}, s{sB}, 1'); e(f's_lshl_b32 s{sT0}, s{sT0}, 1')
    e(f'v_or_b32 v{vR}, s{sT0}, v{vR}')
    e(f'v_lshrrev_b32 v{vR+1}, 5, v0')
    e(f'v_lshlrev_b32 v{vR+1}, 3, v{vR+1}')
    e(f's_and_b32 s{sT0}, s{sH}, 7'); e(f's_lshl_b32 s{sT0}, s{sT0}, 4'); e(f's_lshr_b32 s{sT1}, s{sB}, 1'); e(f's_or_b32 s{sT0}, s{sT0}, s{sT1}')
    e(f'v_or_b32 v{vR+1}, s{sT0}, v{vR+1}')
    e(f'v_xor_b32 v{vR+1}, v{vR+1}, v{vR}')
    e(f'v_lshlrev_b32 v{vR+1}, 8, v{vR+1}')
    e(f'v_lshl_add_u32 v{vR+1}, v{vR}, 15, v{vR+1}')
    e(f'v_lshl_add_u32 v{vR}, v{vC}, 4, v{vR+1}')
    e(f'v_xor_b32 v{vR+1}, 0x200, v{vR}')
    e(f's_mov_b32 s{sSpin}, {SPIN}')
    e('L_x1spin:')
    for r in range(4):
        d = vR + 4 + 4 * r
        e(f'buffer_load_dwordx4 v[{d}:{d+3}], v{vR + (r & 1)}, s[8:11], s{sDst} offen offset:{(r >> 1) * 1024} sc1')
    e(f's_sub_u32 s{sSpin}, s{sSpin}, 1')
    e('s_cbranch_scc1 L_x1out')
    e('s_waitcnt vmcnt(0)')
    check(list(range(vR + 4, vR + 20)), vR + 2, vTg)
    e('s_cbranch_vccnz L_x1spin')
    e('L_x1out:')
    e('s_waitcnt vmcnt(0)')
    if diag:
        e('v_writelane_b32 v254, s92, 7'); e('v_writelane_b32 v255, s93, 7'); pass
    e(f'v_lshlrev_b32 v{vR+1}, 3, v0')
    for r in range(4):
        e(f'v_add_f32 v{vR + 4 + r}, v{vR + 4 + r}, v{vR + 8 + r}')
        e(f'v_add_f32 v{vR + 12 + r}, v{vR + 12 + r}, v{vR + 16 + r}')
    for r in range(4): e(f'v_add_f32 v{vR + 4 + r}, v{vR + 4 + r}, v{vR + 12 + r}')
    e(f'v_cvt_pk_bf16_f32 v{vR+4}, v{vR+4}, v{vR+5}')
    e(f'v_cvt_pk_bf16_f32 v{vR+5}, v{vR+6}, v{vR+7}')
    e(f'ds_write_b64 v{vR+1}, v[{vR+4}:{vR+5}] offset:{L_Q}')
    if wgstat:
        e(f's_xor_b32 s{sT0}, s{sE}, 1')
        e(f'v_mov_b32 v{vR+2}, s{sT0}')
        e(f'v_lshlrev_b32 v{vR+3}, 2, v0')
        e(f'ds_write_b32 v{vR+3}, v{vR+2} offset:{L_ST}')
    e('s_waitcnt lgkmcnt(0)')
    stamp(8)
    e('L_notleader:')
    sE0, sE1, sPa, sCnt, sTm, sRd, sPr = 56, 57, 58, 59, 60, 64, 65
    def probe_setup(ptr):
        e(f's_mov_b32 s12, s{ptr}'); e(f's_mov_b32 s13, s{ptr+1}'); e('s_mov_b32 s14, 0x10000000')
        e(f's_lshl_b32 s{sT0}, s{sB}, 5'); e(f's_add_u32 s{sT0}, s{sT0}, s{sH}'); e(f's_lshl_b32 s{sPa}, s{sT0}, 21')
        e(f's_lshl_b32 s{sT0}, s{sSide}, {pside}'); e(f's_add_u32 s{sPa}, s{sPa}, s{sT0}')
        e(f's_mul_i32 s{sT0}, s{sW}, 0x83000'); e(f's_and_b32 s{sT0}, s{sT0}, 0x183000'); e(f's_add_u32 s{sPa}, s{sPa}, s{sT0}')
        e(f's_mov_b32 s{sE0}, 0x10000'); e(f's_mov_b32 s{sE1}, 0x10000')
    sRn = 66
    def probe_loop():
        l = g.lab('pr')
        e(f'{l}:')
        e(f's_memtime s[{sTm}:{sTm+1}]')
        e(f's_and_b32 s{sT2}, s{sRn}, 0x3df80')
        e(f's_xor_b32 s{sT2}, s{sT2}, s{sPa}')
        e('s_waitcnt lgkmcnt(0)')
        e(f's_buffer_load_dword s{sPr}, s[12:15], s{sT2}')
        e('s_waitcnt lgkmcnt(0)')
        e(f's_memtime s[{sTm+2}:{sTm+3}]')
        e('s_waitcnt lgkmcnt(0)')
        e(f's_sub_u32 s{sT0}, s{sTm+2}, s{sTm}')
        if pmin:
            e(f's_cmp_lt_u32 s{sT0}, {pmin}')
            e(f's_cselect_b32 s{sT0}, 0x10000, s{sT0}')
        e(f's_bitcmp1_b32 s{sPa}, 13')
        e(f's_cselect_b32 s{sT1}, 0x10000, s{sT0}')
        e(f's_cselect_b32 s{sT0}, s{sT0}, 0x10000')
        e(f's_min_u32 s{sE0}, s{sE0}, s{sT1}')
        e(f's_min_u32 s{sE1}, s{sE1}, s{sT0}')
        e(f's_xor_b32 s{sPa}, s{sPa}, 0x2000')
        if prand: e(f's_add_u32 s{sRn}, s{sRn}, s{sTm+2}')
        e(f's_mul_i32 s{sRn}, s{sRn}, 0x9e3779b1')
        e(f's_lshr_b32 s{sT0}, s{sRn}, 14')
        e(f's_xor_b32 s{sRn}, s{sRn}, s{sT0}')
        e(f's_sub_u32 s{sCnt}, s{sCnt}, 1')
        e(f's_cmp_lg_u32 s{sCnt}, 0')
        e(f's_cbranch_scc1 {l}')
    if numa:
        assert shA % 2 == 0 and shB % 2 == 0 and shV % 2 == 0 and (shA + shB) <= 30 and shV <= 30
        probe_setup(sAk)
        if prand:
            e(f's_memtime s[{sTm}:{sTm+1}]'); e('s_waitcnt lgkmcnt(0)')
            e(f's_mul_i32 s{sRn}, s{sTm}, 0x9e3779b1'); e(f's_lshr_b32 s{sRn}, s{sRn}, 9')
        else:
            e(f's_mov_b32 s{sRn}, 0x12345')
        if shA:
            e(f's_cmp_eq_u32 s{sW}, 0'); e('s_cbranch_scc1 L_nopre')
            not_class('L_nopre')
            e(f's_mov_b32 s{sCnt}, {shA}')
            probe_loop()
            e('L_nopre:')
    e('s_barrier')
    if numa:
        not_class('L_rdone')
        e(f's_mov_b32 s{sRd}, 0')
        e(f's_mov_b32 s{sCnt}, {shB}')
        e('L_round:')
        probe_loop()
        e(f's_lshl_b32 s{sT0}, s{sRd}, 3'); e(f's_lshl_b32 s{sT1}, s{sRd}, 2')
        e('s_mov_b64 exec, 1')
        e(f'v_mov_b32 v{vR}, s{sT0}'); e(f'v_mov_b32 v{vR+1}, s{sT1}')
        e(f's_sub_i32 s{sE0}, s{sE0}, s{sE1}'); e(f's_min_i32 s{sE0}, s{sE0}, {clip}'); e(f's_max_i32 s{sE0}, s{sE0}, {-clip}')
        e(f'v_mov_b32 v{vR+2}, s{sE0}'); e(f'v_mov_b32 v{vR+4}, 1')
        e(f'ds_add_u32 v{vR}, v{vR+2} offset:{L_EV}')
        e(f'ds_add_u32 v{vR+1}, v{vR+4} offset:{L_CN2}')
        e(f's_cmp_lg_u32 s{sW}, 0'); e('s_cbranch_scc1 L_rnext')
        e(f's_mov_b32 s{sSpin}, {SPIN * 8}')
        e('L_rspin:')
        e(f'ds_read_b32 v{vR+4}, v{vR+1} offset:{L_CN2}')
        e(f's_sub_u32 s{sSpin}, s{sSpin}, 1'); e('s_cbranch_scc1 L_rout')
        e('s_waitcnt lgkmcnt(0)')
        e(f'v_cmp_eq_u32 vcc, 4, v{vR+4}')
        e('s_cbranch_vccz L_rspin')
        e('L_rout:')
        e(f'ds_read_b64 v[{vR+2}:{vR+3}], v{vR} offset:{L_EV}')
        e(f's_lshl_b32 s{sT0}, s2, 8'); e(f's_add_u32 s{sT0}, s{sT0}, {EV}'); e(f's_xor_b32 s{sT1}, s{sT0}, 0x400')
        e('s_waitcnt lgkmcnt(0)')
        if diag and truth:
            e(f's_lshl_b32 s84, s2, 4'); e(f's_add_u32 s84, s84, {STAMP + 0x18000}')
            e(f'buffer_store_dwordx2 v[{vR+2}:{vR+3}], v{vR}, s[8:11], s84 offen')
            e('s_nop 1')
        e(f'v_sub_u32 v{vR+2}, v{vR+2}, v{vR+3}')
        e(f'v_mov_b32 v{vR+3}, s{sE}')
        e(f'buffer_store_dwordx2 v[{vR+2}:{vR+3}], v{vR}, s[8:11], s{sT0} offen sc1')
        e(f's_mov_b32 s{sSpin}, {SPIN}')
        e('L_espin:')
        e(f'buffer_load_dwordx2 v[{vR+4}:{vR+5}], v{vR}, s[8:11], s{sT1} offen sc1')
        e(f's_sub_u32 s{sSpin}, s{sSpin}, 1'); e('s_cbranch_scc1 L_eout')
        e('s_waitcnt vmcnt(0)')
        e(f'v_cmp_eq_u32 vcc, s{sE}, v{vR+5}')
        e('s_cbranch_vccz L_espin')
        e('L_eout:')
        e('s_waitcnt vmcnt(0)')
        e(f'v_sub_u32 v{vR+6}, v{vR+2}, v{vR+4}')
        e(f'v_sub_u32 v{vR+7}, v{vR+4}, v{vR+2}')
        e(f's_cmp_eq_u32 s{sSide}, 0')
        e('s_cselect_b64 vcc, -1, 0')
        e(f'v_cndmask_b32 v{vR+6}, v{vR+7}, v{vR+6}, vcc')
        if chan and chan[0] == 'c':
            e('s_nop 0')
            e(f'v_readfirstlane_b32 s88, v{vR+6}')
            e(f's_lshl_b32 s92, s{sRd}, 4')
            e('s_cmp_gt_i32 s88, 0'); e('s_cselect_b32 s89, 1, 0'); e(f's_xor_b32 s89, s89, s{sH}'); e('s_and_b32 s89, s89, 1')
            e('s_add_u32 s93, s92, 8'); e(f's_atomic_add s89, s[{sDbg}:{sDbg+1}], s93'); e('s_waitcnt lgkmcnt(0)')
            e('s_abs_i32 s88, s88'); e('s_cmp_lt_u32 s88, 300'); e('s_cselect_b32 s89, 1, 0')
            e(f's_atomic_add s89, s[{sDbg}:{sDbg+1}], s92'); e('s_waitcnt lgkmcnt(0)')
            e('s_add_u32 s93, s92, 4'); e(f's_atomic_add s88, s[{sDbg}:{sDbg+1}], s93'); e('s_waitcnt lgkmcnt(0)')
            e(f's_mov_b32 s89, s{sE1}'); e('s_add_u32 s93, s92, 12'); e(f's_atomic_add s89, s[{sDbg}:{sDbg+1}], s93'); e('s_waitcnt lgkmcnt(0)')
        if chan in ('mK', 'mV'):
            e(f's_cmp_lg_u32 s{sRd}, {int(chan[1] == chr(86))}'); e('s_cbranch_scc1 L_nocap')
            e(f'v_readfirstlane_b32 s88, v{vR+6}'); e('s_abs_i32 s88, s88')
            e('L_nocap:')
        e(f'v_cmp_lt_i32 vcc, 0, v{vR+6}')
        e('s_nop 1')
        e(f'v_cndmask_b32 v{vR+6}, 0, 1, vcc')
        e(f'v_xor_b32 v{vR+6}, s{sSide}, v{vR+6}')
        e(f'ds_write_b32 v{vR+1}, v{vR+6} offset:{L_KAP}')
        if diag:
            e(f's_cmp_lg_u32 s{sRd}, 0'); e('s_cbranch_scc1 L_rnext')
            stamp(6)
        e('L_rnext:')
        e('s_mov_b64 exec, -1')
        e(f's_cmp_lg_u32 s{sRd}, 0'); e('s_cbranch_scc1 L_rdone')
        probe_setup(sAv)
        e(f's_mov_b32 s{sRd}, 1')
        e(f's_mov_b32 s{sCnt}, {shV}')
        e('s_branch L_round')
        e('L_rdone:')
    vTg2 = 107
    sX3 = 64
    e(f'v_and_b32 v{vR}, 1, v{vG}')
    e(f's_lshl_b32 s{sT0}, s{sBeta}, 1')
    e(f'v_or_b32 v{vR}, s{sT0}, v{vR}')
    e(f'v_xor_b32 v{vR+1}, s{sW}, v{vR}')
    e(f'v_lshlrev_b32 v{vX3}, 8, v{vR+1}')
    e(f'v_lshl_add_u32 v{vX3}, v{vR}, 15, v{vX3}')
    e(f'v_lshrrev_b32 v{vR+1}, 5, v0')
    e(f'v_lshl_add_u32 v{vX3}, v{vR+1}, 10, v{vX3}')
    e(f'v_lshl_add_u32 v{vX3}, v{vC}, 4, v{vX3}')
    e(f'v_and_b32 v{vR}, 31, v0')
    e(f'v_lshlrev_b32 v{vA}, 3, v{vR}')
    e(f'v_lshl_add_u32 v{vA}, v{vR+1}, 2, v{vA}')
    e(f's_lshl_b32 s{sT0}, s{sW}, 8')
    e(f'v_add_u32 v{vA}, s{sT0}, v{vA}')
    e(f'v_lshlrev_b32 v{vA2}, 6, v{vC}')
    e(f'v_lshl_add_u32 v{vA2}, v{vG}, 4, v{vA2}')
    e(f's_and_b32 s{sT1}, s{sH}, 15'); e(f's_lshl_b32 s{sX3}, s{sT1}, 11')
    e(f's_lshr_b32 s{sT1}, s{sH}, 4'); e(f's_lshl_b32 s{sT1}, s{sT1}, 17'); e(f's_add_u32 s{sX3}, s{sX3}, s{sT1}')
    e(f's_add_u32 s{sX3}, s{sX3}, {OP}')
    e(f's_add_u32 s{sE}, s{sE}, 1'); e(f's_and_b32 s{sT0}, s{sE}, 0xff')
    e(f'v_mov_b32 v{vTg2}, s{sT0}')
    if not fin1: x4_setup(vR, vX4, vOut)
    e(f's_mov_b32 s{sSpin}, {SPIN}')
    e(f'v_lshl_add_u32 v{vA3}, v{vG}, 15, v{vL}')
    e(f's_and_b32 s{sT0}, s2, 127'); e(f's_lshl_b32 s{sT0}, s{sT0}, 8')
    e(f'v_xor_b32 v{vA3}, s{sT0}, v{vA3}')
    e(f's_lshr_b32 s{sT0}, s2, 7'); e(f's_lshl_b32 s{sT0}, s{sT0}, 17'); e(f's_add_u32 s{sT0}, s{sT0}, {OP}')
    e(f'v_add_u32 v{vA3}, s{sT0}, v{vA3}')
    if pretouch:
        e(f's_cmp_lg_u32 s{sW}, s{sB}'); e('s_cbranch_scc1 L_nopt0')
        e(f'buffer_load_dwordx4 v[{vR}:{vR+3}], v{vA3}, s[8:11], 0 offen sc1')
        e('s_waitcnt vmcnt(0)')
        e('L_nopt0:')
    if cpre:
        if cpre & 1:
            e(f'buffer_load_dwordx4 v[{vR}:{vR+3}], v{vX3}, s[8:11], s{sX3} offen {ldp}')
        e(f's_cmp_lg_u32 s{sW}, 0'); e('s_cbranch_scc1 L_nopt')
        if cpre & 2:
            for k in range(2):
                e(f'buffer_load_dwordx4 v[{vR + 8 + 4*k}:{vR + 4*k + 11}], v{vX4}, s[8:11], s{sX4a + k} offen {ldp}')
        e('L_nopt:')
        e('s_waitcnt vmcnt(0)')
    e(f's_cmp_lg_u32 s{sW}, s{sB}')
    e('s_barrier')
    e('s_cbranch_scc1 L_x3first')
    for w in range(4):
        e(f'ds_read_b128 v[{vR + 4*w}:{vR + 4*w + 3}], v{vL} offset:{L_O + w * 1024}')
    e('s_waitcnt lgkmcnt(2)')
    for r in range(4): e(f'v_add_f32 v{vD + r}, v{vR + r}, v{vR + 4 + r}')
    e('s_waitcnt lgkmcnt(0)')
    for r in range(4): e(f'v_add_f32 v{vR + 8 + r}, v{vR + 8 + r}, v{vR + 12 + r}')
    for r in range(4): e(f'v_add_f32 v{vD + r}, v{vD + r}, v{vR + 8 + r}')
    for r in range(4): tag(vD + r, vTg)
    e(f'buffer_store_dwordx4 v[{vD}:{vD+3}], v{vA3}, s[8:11], 0 offen {stp}')
    if selfo:
        assert mretry
        for r in range(4): e(f'v_xor_b32 v{vR + r}, v{vD + r}, v{vTg}')
        e(f's_cmp_eq_u32 s{sSide}, 0')
        e('s_cselect_b32 exec_lo, 0, -1')
        e('s_cselect_b32 exec_hi, -1, 0')
    e('L_x3first:')
    if wlate == 4:
        e(f'buffer_load_dwordx4 v[{vR}:{vR+3}], v{vX3}, s[8:11], s{sX3} offen {ldp}')
        e('s_barrier')
        e('s_branch L_x3w')
    if wlate >= 5: e('s_barrier')
    if wlate == 5: e('s_barrier')
    e('L_x3spin:')
    e(f'buffer_load_dwordx4 v[{vR}:{vR+3}], v{vX3}, s[8:11], s{sX3} offen {ldp}')
    e('L_x3w:')
    e(f's_sub_u32 s{sSpin}, s{sSpin}, 1')
    e('s_cbranch_scc1 L_x3out')
    e('s_waitcnt vmcnt(0)')
    check(range(vR, vR + 4), vR + 4, vTg)
    if mretry:
        e('s_and_b64 exec, exec, vcc')
        e('s_cbranch_scc1 L_x3spin')
    else:
        e('s_cbranch_vccnz L_x3spin')
    e('L_x3out:')
    e('s_mov_b64 exec, -1')
    e('s_waitcnt vmcnt(0)')
    e(f'v_permlane32_swap_b32 v{vR}, v{vR+2}')
    e(f'v_permlane32_swap_b32 v{vR+1}, v{vR+3}')
    e('s_nop 0')
    e(f'v_add_f32 v{vR}, v{vR}, v{vR+2}')
    e(f'v_add_f32 v{vR+1}, v{vR+1}, v{vR+3}')
    e(f'v_cvt_pk_bf16_f32 v{vR}, v{vR}, v{vR+1}')
    e(f'ds_write_b32 v{vA}, v{vR} offset:{L_RED}')
    e('s_waitcnt lgkmcnt(0)')
    e('s_barrier')
    stamp(10, 0)
    e(f's_cmp_lg_u32 s{sW}, 0')
    e('s_cbranch_scc1 L_end')
    e('s_barrier')
    if slp4: e(f's_sleep {slp4}')
    if fin1: flush_stamps([5, 6, 7, 8, 9, 10, 11])
    else: x4_code(vR, vX4, vOut, vTg2)
    e('L_end:')
    e('s_endpgm')
    e('.section .rodata,"a"')
    e('.p2align 6')
    e(f'.amdhsa_kernel {NAME}_kernel')
    e('  .amdhsa_next_free_vgpr 256')
    e('  .amdhsa_next_free_sgpr 100')
    e('  .amdhsa_accum_offset 256')
    e('  .amdhsa_group_segment_fixed_size 0')
    e('  .amdhsa_kernarg_size 104')
    e('  .amdhsa_user_sgpr_count 2')
    e('  .amdhsa_user_sgpr_kernarg_segment_ptr 1')
    e('  .amdhsa_system_sgpr_workgroup_id_x 1')
    e('  .amdhsa_float_denorm_mode_32 3')
    e('.end_amdhsa_kernel')
    if truth:
        import gen_numa
        e('.p2align 6')
        gen_numa.kd(e, 'probe_kernel', 8)
    L = g.L
    if pads:
        i0 = L.index('L_kbody:'); i1 = L.index('L_service:')
        spots = [i for i in range(i0, i1) if L[i].startswith('s_branch ')]
        n = len(spots)
        out = []
        for i, x in enumerate(L):
            out.append(x)
            if i in spots:
                k = spots.index(i)
                out.append(f'L_pad{k}:')
                out.append(f's_branch L_pad{k + 4}' if k + 4 < n else 's_branch L_padret')
        L = out
    return '\n'.join(L) + '\n'

if __name__ == '__main__':
    import ast
    for spec in sys.argv[1:]:
        name, _, opts = spec.partition(':')
        kw = {}
        for o in filter(None, opts.split(',')):
            k_, v_ = o.split('=')
            v_ = v_.replace('/', ',')
            try: kw[k_] = ast.literal_eval(v_)
            except Exception: kw[k_] = v_
        open(name, 'w').write(gen(**kw))
```

```python
import sys, math, struct
NAME = 'concat_heads__gqa_block_cached__sliding_block_cached__decode'

def f32(x): return '0x%08x' % struct.unpack('<I', struct.pack('<f', x))[0]
def br4(i): return ((i & 1) << 3) | ((i & 2) << 1) | ((i & 4) >> 1) | ((i & 8) >> 3)
def mask64(ns): return sum(1 << n for n in ns)

QP = 0x000000
OP = 0x100000
ST = 0x140000
EP = 0x150000
RC = 0x160000
EV = 0x180000
PP = 0x200000
WS_USED = 0x600000
STAMP = 0x40000000
L_Q = 0
L_CNT = 512; L_LVL = 516
L_CN2 = 528
L_EV = 544
L_Z = 560
L_KAP = 576
L_QF = 592
L_ST = 1024
L_F = 1280
L_RED = 2048
L_O = L_RED + 8192
L_Y = L_O + 4096
LDS_BYTES = L_Y + 8192
SPIN = 1 << 17
DPPF = 'row_mask:0xf bank_mask:0xf'

def gen(DB=6, early=6, rc=(5, 6, 7), rcv=(5, 6, 7), xlo=4, nmap=(4, 0, 2), lvl0=0, lvlc=1, th=(3, 6),
        cks=(8, 12, 16, 20, 24, 28, 31, 34, 37), rcat=7, endb=2, prek=2, cls=(8, 1), nearB=1, up=(), uplvl=2, dn=(), dnlvl=0, kfull=0, qs=0, qs0=0, afirst=1, xfirst=0, ys0=0, outp='', ylay=0, emap=None, enmap=None, dmax=15, bsh=None, front=1, burst=0, abl=0, qflag=1, pb=0, DC=6, DN=8, selfp=2, clip0=1500, pfirst=1,
        sh0=2, shots=(2, 8, 12, 16), shA=4, clip=200, pmin=400, fat=36, diag=False, chan=None, flip=0):
    L = []; e = L.append
    outp = outp.replace('_', ' ')
    cnt = [0]
    def lab(p):
        cnt[0] += 1
        return f'L_{p}{cnt[0]}'
    e(';   waves 0-3 stream K then V (scores by dot2 + DPP, P.V by MFMA) and apply wo at the end,')
    e(f'; @launch grid=(256,1,1) block=(512,1,1) lds={LDS_BYTES}')
    e('.amdgcn_target "amdgcn-amd-amdhsa--gfx950"')
    e('.text')
    e(f'.globl {NAME}_kernel')
    e('.p2align 8')
    e(f'.type {NAME}_kernel,@function')
    e(f'{NAME}_kernel:')
    sAx, sAk, sAv, sAwq, sAwo, sBx, sBk, sBv = 16, 18, 20, 22, 24, 26, 28, 30
    sBwq, sBwo, sOut, sDbg, sWs = 32, 34, 36, 38, 40
    sW, sH, sJ, sB, sSide = 42, 43, 44, 45, 46
    sU = 3
    sT0, sT1, sT2 = 47, 48, 49
    sCls, sSpin = 51, 52
    sE, sTag, sNF = 74, 75, 76
    e('s_cmp_ge_u32 s2, 256')
    e('s_cbranch_scc1 L_end')
    e('s_load_dwordx16 s[16:31], s[0:1], 0')
    e('s_load_dwordx8 s[32:39], s[0:1], 64')
    e('s_load_dwordx2 s[40:41], s[0:1], 96')
    if diag or chan: e('s_memrealtime s[80:81]')
    e('v_lshrrev_b32 v1, 6, v0')
    e('v_and_b32 v0, 63, v0')
    e(f'v_readfirstlane_b32 s{sW}, v1')
    e(f's_lshr_b32 s{sH}, s2, 3')
    e(f's_and_b32 s{sJ}, s2, 7')
    e(f's_and_b32 s{sU}, s2, 3')
    if bsh is None:
        e(f's_mov_b32 s{sB}, s{sU}')
    else:
        e(f's_lshr_b32 s{sB}, s2, {3 + bsh}'); e(f's_add_u32 s{sB}, s{sB}, s2'); e(f's_and_b32 s{sB}, s{sB}, 3')
    e(f's_lshr_b32 s{sSide}, s{sJ}, 2')
    e(f's_mul_i32 s{sT0}, s{sU}, {max(1, cls[0] // 4)}'); e(f's_add_u32 s{sT0}, s{sT0}, s{sH}')
    e(f's_and_b32 s{sT0}, s{sT0}, {cls[0] - 1}')
    e(f's_cmp_lt_u32 s{sT0}, {cls[1]}')
    e(f's_cselect_b32 s{sCls}, 1, 0')
    e('s_mov_b32 s7, 0x20000')
    e('s_mov_b32 s11, 0x20000')
    e(f's_mov_b32 s10, {WS_USED if not diag else 0x41000000}')
    e(f's_mov_b32 s{sNF}, 0xffffff00')
    e(f's_cmp_ge_u32 s{sW}, 4')
    e('s_cbranch_scc1 L_service')

    def stamp(idx, only_wave=None):
        if not diag: return
        l = lab('st')
        if only_wave is not None:
            e(f's_cmp_lg_u32 s{sW}, {only_wave}'); e(f's_cbranch_scc1 {l}')
        e('s_memrealtime s[82:83]'); e('s_waitcnt lgkmcnt(0)')
        e(f'v_writelane_b32 v254, s82, {idx}'); e(f'v_writelane_b32 v255, s83, {idx}')
        e(f'{l}:')
    def flush_stamps(idxs):
        if not diag: return
        l = lab('fw')
        e(f'{l}:'); e('s_sleep 32'); e('s_memrealtime s[82:83]'); e('s_waitcnt lgkmcnt(0)'); e('s_sub_u32 s82, s82, s80')
        e('s_cmp_lt_u32 s82, 11000'); e(f's_cbranch_scc1 {l}')
        e('s_lshl_b32 s84, s2, 7'); e(f's_add_u32 s84, s84, {STAMP}')
        e('s_mov_b64 exec, -1'); e('v_lshlrev_b32 v253, 3, v0'); e(f's_mov_b64 exec, {mask64(idxs)}')
        e('buffer_store_dwordx2 v[254:255], v253, s[8:11], s84 offen')
    def if_class(target, want):
        e(f's_cmp_eq_u32 s{sCls}, {want}'); e(f's_cbranch_scc1 {target}')
    def load_epoch():
        e(f's_mov_b32 s{sE}, {EP}')
        e(f's_load_dword s{sE}, s[{sWs}:{sWs+1}], s{sE}')
    def tag(r, vTag): e(f'v_and_or_b32 v{r}, v{r}, s{sNF}, v{vTag}')
    def check(regs, t, vTag):
        regs = list(regs)
        for r in regs: e(f'v_xor_b32 v{r}, v{r}, v{vTag}')
        e(f'v_or3_b32 v{t}, v{regs[0]}, v{regs[1]}, v{regs[2]}')
        rest = regs[3:]
        while len(rest) >= 2:
            e(f'v_or3_b32 v{t}, v{t}, v{rest[0]}, v{rest[1]}'); rest = rest[2:]
        e(f'v_bitop3_b32 v{t}, v{t}, v{rest[0]}, s{sNF} bitop3:0x54')
        e(f'v_cmp_ne_u32 vcc, 0, v{t}')
    def spin(n, loads, wait, test, again='vccnz', sleep=0):
        l = lab('sp')
        e(f's_mov_b32 s{sSpin}, {n}')
        e(f'{l}:')
        if sleep: e(f's_sleep {sleep}')
        loads()
        e(f's_sub_u32 s{sSpin}, s{sSpin}, 1'); e(f's_cbranch_scc1 {l}x')
        e(f's_waitcnt {wait}')
        test()
        e(f's_cbranch_{again} {l}')
        e(f'{l}x:')
        e(f's_waitcnt {wait}')
    def rowred(op, r):
        for ctl in ('quad_perm:[1,0,3,2]', 'quad_perm:[2,3,0,1]', 'row_half_mirror', 'row_mirror'):
            e('s_nop 1')
            e(f'{op}_dpp v{r}, v{r}, v{r} {ctl} {DPPF}')
    def allred(op, r, tmp):
        rowred(op, r)
        for sw in ('v_permlane16_swap_b32', 'v_permlane32_swap_b32'):
            e(f'v_mov_b32 v{tmp}, v{r}'); e('s_nop 1'); e(f'{sw} v{tmp}, v{r}'); e('s_nop 1')
            e(f'{op} v{r}, v{r}, v{tmp}')
    sE0, sE1, sPa, sCnt, sTm, sRd, sPr, sRn = 92, 93, 94, 95, 96, 100, 101, 69
    def probe_loop(srd='s[12:15]'):
        l = lab('pr')
        e(f'{l}:')
        e(f's_memtime s[{sTm}:{sTm+1}]')
        e(f's_and_b32 s{sT2}, s{sRn}, 0x3df80')
        e(f's_xor_b32 s{sT2}, s{sT2}, s{sPa}')
        e('s_waitcnt lgkmcnt(0)')
        e(f's_buffer_load_dword s{sPr}, {srd}, s{sT2}')
        e('s_waitcnt lgkmcnt(0)')
        e(f's_memtime s[{sTm+2}:{sTm+3}]')
        e('s_waitcnt lgkmcnt(0)')
        e(f's_sub_u32 s{sT0}, s{sTm+2}, s{sTm}')
        e(f's_cmp_lt_u32 s{sT0}, {pmin}')
        e(f's_cselect_b32 s{sT0}, 0x10000, s{sT0}')
        e(f's_bitcmp1_b32 s{sPa}, 13')
        e(f's_cselect_b32 s{sT1}, 0x10000, s{sT0}')
        e(f's_cselect_b32 s{sT0}, s{sT0}, 0x10000')
        e(f's_min_u32 s{sE0}, s{sE0}, s{sT1}')
        e(f's_min_u32 s{sE1}, s{sE1}, s{sT0}')
        e(f's_xor_b32 s{sPa}, s{sPa}, 0x2000')
        e(f's_add_u32 s{sRn}, s{sRn}, s{sTm+2}')
        e(f's_mul_i32 s{sRn}, s{sRn}, 0x9e3779b1')
        e(f's_lshr_b32 s{sT0}, s{sRn}, 14')
        e(f's_xor_b32 s{sRn}, s{sRn}, s{sT0}')
        e(f's_sub_u32 s{sCnt}, s{sCnt}, 1')
        e(f's_cmp_lg_u32 s{sCnt}, 0')
        e(f's_cbranch_scc1 {l}')
    def evidence(vR, lead, nv, sE, skip, clip=clip):
        e(f's_sub_i32 s{sE0}, s{sE0}, s{sE1}'); e(f's_min_i32 s{sE0}, s{sE0}, {clip}'); e(f's_max_i32 s{sE0}, s{sE0}, {-clip}')
        e(f's_lshl_b32 s{sT0}, s{sRd}, 2')
        e('s_mov_b64 exec, 1')
        e(f'v_mov_b32 v{vR}, s{sT0}'); e(f'v_mov_b32 v{vR+1}, s{sE0}'); e(f'v_mov_b32 v{vR+2}, 1')
        e(f'ds_add_u32 v{vR}, v{vR+1} offset:{L_EV}')
        e(f'ds_add_u32 v{vR}, v{vR+2} offset:{L_CN2}')
        e(f's_cmp_lg_u32 s{sW}, {lead}'); e(f's_cbranch_scc1 {skip}')
        spin(SPIN * 8, lambda: e(f'ds_read_b32 v{vR+2}, v{vR} offset:{L_CN2}'), 'lgkmcnt(0)', lambda: e(f'v_cmp_ne_u32 vcc, {nv}, v{vR+2}'))
        e(f'ds_read_b32 v{vR+4}, v{vR} offset:{L_EV}')
        for r in range(5, 8): e(f'v_mov_b32 v{vR+r}, s{sE}')
        e(f's_lshl_b32 s{sT0}, s2, 8'); e(f's_lshl_b32 s{sT1}, s{sRd}, 6'); e(f's_add_u32 s{sT0}, s{sT0}, s{sT1}')
        e(f's_add_u32 s{sT0}, s{sT0}, {EV}'); e(f's_xor_b32 s{sT1}, s{sT0}, 0x400')
        e('s_waitcnt lgkmcnt(0)')
        e(f'buffer_store_dwordx4 v[{vR+4}:{vR+7}], off, s[8:11], s{sT0} sc1')
        def evtest():
            e(f'v_xor_b32 v{vR+9}, s{sE}, v{vR+9}'); e(f'v_xor_b32 v{vR+10}, s{sE}, v{vR+10}')
            e(f'v_or_b32 v{vR+9}, v{vR+9}, v{vR+10}')
            e(f'v_cmp_ne_u32 vcc, 0, v{vR+9}')
        spin(SPIN, lambda: e(f'buffer_load_dwordx4 v[{vR+8}:{vR+11}], off, s[8:11], s{sT1} sc1'), 'vmcnt(0)', evtest)
        e(f'v_sub_u32 v{vR+2}, v{vR+4}, v{vR+8}')
        e(f'v_sub_u32 v{vR+3}, v{vR+8}, v{vR+4}')
        e(f's_cmp_eq_u32 s{sSide}, 0')
        e('s_cselect_b64 vcc, -1, 0')
        e(f'v_cndmask_b32 v{vR+2}, v{vR+3}, v{vR+2}, vcc')
        if diag:
            e(f's_lshl_b32 s84, s2, 4'); e(f's_add_u32 s84, s84, {STAMP + 0x18000}')
            e(f'buffer_store_dword v{vR+2}, v{vR}, s[8:11], s84 offen')
        e(f'v_cmp_lt_i32 vcc, 0, v{vR+2}')
        e('s_nop 1')
        e(f'v_cndmask_b32 v{vR+2}, 0, 1, vcc')
        e(f'v_xor_b32 v{vR+2}, s{sSide}, v{vR+2}')
        e(f'ds_write_b32 v{vR}, v{vR+2} offset:{L_KAP}')
    def probe_seed(w0):
        e(f's_lshl_b32 s{sT0}, s{sB}, 5'); e(f's_add_u32 s{sT0}, s{sT0}, s{sH}'); e(f's_lshl_b32 s{sPa}, s{sT0}, 21')
        e(f's_lshl_b32 s{sT0}, s{sSide}, 18'); e(f's_add_u32 s{sPa}, s{sPa}, s{sT0}')
        e(f's_sub_u32 s{sT0}, s{sW}, {w0}'); e(f's_mul_i32 s{sT0}, s{sT0}, 0x82000'); e(f's_and_b32 s{sT0}, s{sT0}, 0x182000'); e(f's_add_u32 s{sPa}, s{sPa}, s{sT0}')
        e(f's_memtime s[{sTm}:{sTm+1}]'); e('s_waitcnt lgkmcnt(0)')
        e(f's_mul_i32 s{sRn}, s{sTm}, 0x9e3779b1'); e(f's_lshr_b32 s{sRn}, s{sRn}, 9')
    def smask(s, ns):
        m = mask64(ns)
        e(f's_mov_b32 s{s}, 0x{m & 0xffffffff:08x}'); e(f's_mov_b32 s{s+1}, 0x{m >> 32:08x}')

    X0, X1, X2 = 60, 124, 188
    vOff = 2; vL16 = 6; vPd = 7; vQ = 8; vS = 12; vT = 20; vMask = 44; vAcc = 48; vAccB = 52; vP = 56
    vPA = 124; vMl = 128; vF = 132; vLv = 156; vZz = 157; vPat = 160; vPs = 164; vPPa = 168
    vW = 124; vWa = 170; vYa = 171; vTg2 = 172; vYw = 173; vYr = 174; vBt = 176; vAo = 208; vDD = 224; vAr = 244
    sLvl = 50; sOff, sN = 53, 54; sKp = 55; sCk, sRc, sRk = 56, 58, 59; sM3, sM4 = 60, 62; sC = 64; sIsC = 65
    sKV = 66; sXB = 67; sMap = 68; sHk = 70; sWb, sSeg = 72, 73; sX = 77; sVk = 78; sLh = 86
    sYd = 12; s7f = 13; sPPa = 14; sPPb = 15
    T = vT
    e(f'v_lshlrev_b32 v{vL16}, 4, v0')
    e(f'v_bfe_u32 v{vOff+1}, v0, 4, 1')
    e(f'v_lshl_add_u32 v{vOff}, v{vOff+1}, 15, v{vL16}')
    e(f'v_lshrrev_b32 v{vOff+1}, 5, v0')
    e(f'v_lshl_add_u32 v{vOff}, v{vOff+1}, 13, v{vOff}')
    e(f's_lshl_b32 s{sT0}, s{sW}, 8'); e(f's_lshl_b32 s{sT1}, s{sSide}, 13'); e(f's_or_b32 s{sT0}, s{sT0}, s{sT1}')
    e(f'v_xor_b32 v{vOff}, s{sT0}, v{vOff}')
    for j in range(1, 4): e(f'v_xor_b32 v{vOff+j}, {(j << 8) | ((j >> 1) << 16)}, v{vOff}')
    e(f's_lshl_b32 s{sT0}, s{sB}, 5'); e(f's_add_u32 s{sT0}, s{sT0}, s{sH}'); e(f's_lshl_b32 s{sWb}, s{sT0}, 21')
    e(f's_and_b32 s{sT0}, s{sW}, 1'); e(f's_lshl_b32 s{sT0}, s{sT0}, 12'); e(f's_add_u32 s{sWb}, s{sWb}, s{sT0}')
    e(f's_lshr_b32 s{sT0}, s{sW}, 1'); e(f's_lshl_b32 s{sT0}, s{sT0}, 14'); e(f's_add_u32 s{sWb}, s{sWb}, s{sT0}')
    e(f's_add_u32 s{sOff}, s{sWb}, 0x180000')
    e('s_mov_b32 s6, 0x10000000')
    e(f's_mov_b32 s{sKp}, 0')
    if nearB: e(f's_cmp_eq_u32 s{sCls}, 1')
    e('s_waitcnt lgkmcnt(0)')
    e(f's_mov_b32 s4, s{sBk}'); e(f's_mov_b32 s5, s{sBk+1}')
    def issue(buf, i):
        v = buf + 4 * i
        e(f'buffer_load_dwordx4 v[{v}:{v+3}], v{vOff + (i >> 2)}, s[4:7], s{sOff} offen offset:{(i & 3) * 1024} nt')
    def kappa(rnd, dst):
        e(f'v_mov_b32 v{T+1}, 0')
        spin(SPIN * 8, lambda: e(f'ds_read_b32 v{T}, v{T+1} offset:{L_KAP + 4 * rnd}'), 'lgkmcnt(0)',
             lambda: e(f'v_cmp_eq_u32 vcc, -1, v{T}'))
        e(f'v_readfirstlane_b32 s{dst}, v{T}')
        e(f's_and_b32 s{dst}, s{dst}, 1')
        if flip >> rnd & 1: e(f's_xor_b32 s{dst}, s{dst}, 1')
    def go_near():
        for j in range(4): e(f'v_and_b32 v{vOff + j}, 0xffffdfff, v{vOff + j}')
    def switch(ptr, kap, base):
        e(f's_mov_b32 s4, s{ptr}'); e(f's_mov_b32 s5, s{ptr+1}')
        e(f's_lshl_b32 s{sT0}, s{kap}, 13'); e(f's_add_u32 s{sOff}, s{sWb}, s{sT0}')
        e(f's_add_u32 s{sOff}, s{sOff}, {base & 0xffffffff}')
    if nearB: e('s_cbranch_scc1 L_late0')
    for i in range(early): issue(X1, i)
    if nearB and selfp:
        e('s_branch L_late0b')
        e('L_late0:')
        e(f's_buffer_load_dword s{sPr}, s[4:7], s{sOff}')
        e('L_late0b:')
    else:
        e('L_late0:')
    load_epoch()
    e(f's_mov_b32 s8, s{sWs}'); e(f's_mov_b32 s9, s{sWs+1}')
    if diag: e('v_writelane_b32 v254, s80, 0'); e('v_writelane_b32 v255, s81, 0')
    e(f's_mov_b32 s{sM3}, 0xcccccccc'); e(f's_mov_b32 s{sM3+1}, 0xcccccccc')
    e(f's_mov_b32 s{sM4}, 0xaaaaaaaa'); e(f's_mov_b32 s{sM4+1}, 0xaaaaaaaa')
    e(f's_mov_b32 s{sC}, {f32(128 ** -0.5 * math.log2(math.e))}')
    e(f'v_and_b32 v{T}, 15, v0')
    e(f'v_lshlrev_b32 v1, 4, v{T}')
    e(f'v_and_b32 v{T+1}, 1, v0')
    e(f'v_lshlrev_b32 v{T+1}, 4, v{T+1}')
    e(f'v_mov_b32 v{T+2}, 0xffff')
    e(f'v_lshlrev_b32 v{T+2}, v{T+1}, v{T+2}')
    e(f'v_lshrrev_b32 v{T}, 1, v{T}')
    for r in range(4):
        e(f'v_cmp_eq_u32 vcc, {4 + r}, v{T}')
        e(f'v_mov_b32 v{vAcc + r}, 0')
        e(f'v_mov_b32 v{vS + r}, 0xff800000')
        e(f'v_cndmask_b32 v{vMask + r}, 0, v{T+2}, vcc')
    e(f'v_mov_b32 v{vS + 4}, 0xff800000')
    smask(sHk, [4, 7, 8, 16, 23, 24, 32, fat, 39, 40])
    smask(sVk, list(range(5, 9)) + list(range(25, 41)))
    smask(sLh, [4, 16, 24])
    if up: smask(88, up)
    if dn: smask(90, dn)
    m = mask64(cks)
    e(f's_cmp_eq_u32 s{sW}, 0')
    e(f's_cselect_b32 s{sCk}, 0x{m & 0xffffffff:08x}, 0'); e(f's_cselect_b32 s{sCk+1}, 0x{m >> 32:08x}, 0')
    e(f's_lshl_b32 s{sRc}, s{sH}, 8'); e(f's_add_u32 s{sRc}, s{sRc}, {RC}')
    e(f's_mov_b32 s{sMap}, 0x210'); e(f's_mov_b32 s{sLvl}, {lvl0}')
    e(f's_mov_b32 s{sKV}, 0'); e(f's_mov_b32 s{sX}, 0'); e(f's_mov_b32 s{sXB}, 0')
    e(f's_mov_b32 s{sN}, 4'); e(f's_mov_b32 s{sSeg}, 2')
    def selfprobe():
        probe_seed(0)
        e(f's_mov_b32 s{sE0}, 0x10000'); e(f's_mov_b32 s{sE1}, 0x10000'); e(f's_mov_b32 s{sRd}, 0'); e(f's_mov_b32 s{sCnt}, {selfp}')
        probe_loop('s[4:7]')
    if nearB and pfirst:
        if_class('L_late2', 0)
        selfprobe()
        e('L_late2:')
    e('s_barrier')
    if nearB:
        if_class('L_late1', 0)
        if selfp:
            if not pfirst: selfprobe()
            e(f's_add_u32 s{sPr}, s{sE}, 1')
            evidence(vT + 4, 0, 4, sPr, 'L_sp0', clip0)
            e('L_sp0:')
            e('s_mov_b64 exec, -1')
        kappa(0, sKp)
        go_near()
        e(f's_lshl_b32 s{sT0}, s{sKp}, 13'); e(f's_add_u32 s{sOff}, s{sOff}, s{sT0}')
        e(f's_mov_b32 s{sLvl}, {lvlc}')
        for i in range(early): issue(X1, i)
        e('L_late1:')
    def qread():
        e(f'ds_read_b32 v{vP}, v{vPd} offset:{L_QF}')
        e(f'ds_read_b128 v[{vQ}:{vQ+3}], v1 offset:{L_Q + 256}')
    k = 0
    for buf in (X1, X2, X0):
        for i in range(16):
            if k >= early:
                if qflag and k == 46:
                    e(f'v_mov_b32 v{vPd}, 0')
                    qread()
                if nearB and DN:
                    if i == 0 or k == early: e(f's_cmp_eq_u32 s{sCls}, 1')
                    e(f's_waitcnt vmcnt({DN - 1})'); e(f's_cbranch_scc1 L_pf{k}')
                if k >= max(DB, burst) and k < 48 - pb: e(f's_waitcnt vmcnt({max(DB, burst - (k - burst) // 2) - 1})')
                if nearB and DN: e(f'L_pf{k}:')
                issue(buf, i)
            k += 1
        e(f's_add_u32 s{sOff}, s{sOff}, 0x20000')
    stamp(1, 0)
    if qflag:
        e('s_waitcnt lgkmcnt(0)')
        e(f'v_cmp_ne_u32 vcc, 0, v{vP}')
        e('s_cbranch_vccz L_qok')
        spin(SPIN * 8, qread, 'lgkmcnt(0)', lambda: e(f'v_cmp_ne_u32 vcc, 0, v{vP}'))
        e('L_qok:')
    else:
        e('s_barrier')
        e(f'ds_read_b128 v[{vQ}:{vQ+3}], v1 offset:{L_Q + 256}')
        e('s_waitcnt lgkmcnt(0)')
    stamp(2, 0)

    def setflags():
        if up:
            e(f's_bitcmp1_b64 s[88:89], s{sN}'); e(f's_cselect_b32 s{sLvl}, {uplvl}, s{sLvl}')
        if dn:
            e(f's_bitcmp1_b64 s[90:91], s{sN}'); e(f's_cselect_b32 s{sLvl}, {dnlvl}, s{sLvl}')
        e(f's_cmp_ge_u32 s{sN}, {41 - endb}')
        e(f's_cselect_b32 s{sLvl}, 3, s{sLvl}')
        e(f's_bitcmp0_b32 s{sLvl}, 0')
        e('s_cselect_b64 vcc, -1, 0')
        e(f's_bitcmp1_b32 s{sLvl}, 1')
    def body_begin(t):
        if diag:
            e('s_memrealtime s[82:83]'); e(f's_mov_b32 m0, s{sN}'); e('s_waitcnt lgkmcnt(0)')
            e('v_writelane_b32 v252, s82, m0')
        e(f's_bitcmp1_b64 s[{sCk}:{sCk+1}], s{sN}')
        e(f's_cselect_b32 s{sIsC}, 1, 0')
        e(f's_cbranch_scc0 L_nt{t}')
        e(f's_mov_b32 s{sRk}, 1')
        e(f's_atomic_add s{sRk}, s[{sWs}:{sWs+1}], s{sRc} glc')
        e(f'L_nt{t}:')
        setflags()
    def throttle(t, i):
        if i == rcat:
            e(f's_cmp_eq_u32 s{sIsC}, 0')
            e(f's_cbranch_scc1 L_nu{t}')
            e('s_waitcnt lgkmcnt(0)')
            e(f's_add_u32 s{sRc}, s{sRc}, 8192')
            e(f's_cmp_ge_u32 s{sRk}, {th[0]}'); e(f's_cselect_b32 s{sT0}, 4, 0')
            e(f's_cmp_ge_u32 s{sRk}, {th[1]}'); e(f's_cselect_b32 s{sT0}, 8, s{sT0}')
            e(f's_lshr_b32 s{sT0}, s{sMap}, s{sT0}'); e(f's_and_b32 s{sT0}, s{sT0}, 7')
            e(f'v_mov_b32 v{vLv}, s{sT0}')
            e(f'ds_write_b32 v{vZz}, v{vLv} offset:{L_LVL}')
            e(f'L_nu{t}:')
            e(f's_bitcmp1_b32 s{sLvl}, 1')
        if i == rcat + 2:
            e(f'ds_read_b32 v{vLv}, v{vZz} offset:{L_LVL}')
        if i == rcat + 3:
            e('s_waitcnt lgkmcnt(0)')
            e(f'v_readfirstlane_b32 s{sLvl}, v{vLv}')
            setflags()
        pre = t == 'k' and i >= 16 - prek
        if pre and i == 16 - prek:
            e(f's_bitcmp1_b64 s[{sLh}:{sLh+1}], s{sN}')
            e('s_cselect_b64 vcc, 0, vcc')
            e(f's_cselect_b32 s{sT0}, 3, s{sLvl}')
            e(f's_bitcmp1_b32 s{sT0}, 1')
        fr = (0, 0.5, 0.25, 0.75)[i & 3]
        dd = [int(x + fr) for x in (rcv if t == 'v' else rc)]
        dx = int(xlo + fr)
        go = f'L_go{t}{i}'
        if t == 'v' or pre or kfull:
            e(f's_waitcnt vmcnt({dmax - 1})')
            e(f's_cbranch_scc0 L_lo{t}{i}')
            e(f's_cbranch_vccz {go}')
            e(f'L_lo{t}{i}:')
        e(f's_waitcnt vmcnt({dd[2]-1})')
        e(f's_cbranch_scc1 {go}')
        e(f's_waitcnt vmcnt({dd[1]-1})')
        if dx != dd[1]:
            e(f's_cbranch_vccz {go}')
            if dd[0] != dd[1]: e(f's_waitcnt vmcnt({dd[0]-1})')
        if dx != dd[0]:
            e(f's_cmp_eq_u32 s{sLvl}, 4')
            e(f's_cbranch_scc0 {go}')
            e(f's_waitcnt vmcnt({dx-1})')
            e(f's_cmp_eq_u32 s{sLvl}, 0')
        e(f'{go}:')
    def kops(buf, R):
        dots = [[] for _ in range(20)]; post = [[] for _ in range(20)]
        for i in range(16):
            t = R + i % 3; kk = buf + 4 * i
            dots[i].append(f'v_dot2_f32_bf16 v{t}, v{kk}, v{vQ}, 0')
            for r in range(1, 4): dots[i].append(f'v_dot2_f32_bf16 v{t}, v{kk + r}, v{vQ + r}, v{t}')
            a = R + 3 + ((i >> 1) & 1); b = R + 5 + ((i >> 2) & 1)
            bm1 = '0x3' if i % 2 == 0 else '0xc'
            bm2 = '0x5' if (i >> 1) % 2 == 0 else '0xa'
            post[i + 1].append(f'v_add_f32_dpp v{a}, v{t}, v{t} row_ror:8 row_mask:0xf bank_mask:{bm1}')
            if i % 2 == 1: post[i + 2].append(f'v_add_f32_dpp v{b}, v{a}, v{a} row_half_mirror row_mask:0xf bank_mask:{bm2}')
            if i % 4 == 3: post[i + 3].append(f'v_add_f32_dpp v{b}, v{b}, v{b} quad_perm:[2,3,0,1] {DPPF}')
            if i % 8 == 7:
                c = R + 7 if i == 7 else R + 5
                post[i + 3].append(f'v_cndmask_b32 v{c}, v{R+5}, v{R+6}, s[{sM3}:{sM3+1}]')
                post[i + 4].append(f'v_add_f32_dpp v{c}, v{c}, v{c} quad_perm:[1,0,3,2] {DPPF}')
        return [dots[i] + post[i] for i in range(20)]
    def kfinal(R, dst): e(f'v_cndmask_b32 v{dst}, v{R+7}, v{R+5}, s[{sM4}:{sM4+1}]')
    def ktail(sets):
        for s_ in range(16, 20):
            e('s_nop 2' if s_ == 16 else 's_nop 1')
            for st in sets:
                for op in st[s_]: e(op)
    sets = [kops(X0, vT), kops(X1, vT + 8), kops(X2, vT + 16)]
    for i in range(16):
        for op in sets[0][i]: e(op)
        if nearB and DN:
            if i == 0: e(f's_cmp_eq_u32 s{sCls}, 1')
            e(f's_waitcnt vmcnt({DN - 1})'); e(f's_cbranch_scc1 L_cf{i}')
        e(f's_waitcnt vmcnt({(DC or DB)-1})')
        if nearB and DN: e(f'L_cf{i}:')
        issue(X0, i)
        for st in sets[1:]:
            for op in st[i]: e(op)
    ktail(sets)
    kfinal(vT + 8, vS + 5); kfinal(vT + 16, vS + 6); kfinal(vT, vS + 7)
    e(f's_add_u32 s{sE}, s{sE}, 1')
    e(f'v_mov_b32 v{vZz}, 0')
    if_class('L_nc3', 0)
    e(f'v_and_b32 v{T}, 3, v0')
    e(f'v_lshlrev_b32 v{T}, 3, v{T}')
    e(f's_and_b32 s{sT0}, s{sE}, 0xffffff00')
    e(f'v_lshrrev_b32 v{T}, v{T}, s{sT0}')
    e(f'v_mul_u32_u24 v{T+1}, 37, v0')
    e(f'v_xor_b32 v{T}, s{sE}, v{T}')
    e(f'v_xor_b32 v{T}, v{T+1}, v{T}')
    for r in range(4):
        e(f'v_bfe_u32 v{T+1}, v{T}, {2*r}, 1')
        e(f'v_bfe_u32 v{T+2}, v{T}, {2*r+1}, 1')
        e(f'v_lshlrev_b32 v{T+1}, 15, v{T+1}')
        e(f'v_lshl_or_b32 v{vPat + r}, v{T+2}, 31, v{T+1}')
    e(f's_mov_b32 s{s7f}, 0x7fff7fff')
    e(f'v_lshrrev_b32 v{T}, 4, v0')
    e(f'v_lshl_add_u32 v{vPPa}, v{T}, 15, v{vL16}')
    e(f's_and_b32 s{sT0}, s{sW}, 1'); e(f's_lshl_b32 s{sT0}, s{sT0}, 9')
    e(f'v_xor_b32 v{vPPa}, s{sT0}, v{vPPa}')
    e(f'v_xor_b32 v{vPPa+1}, 0x100, v{vPPa}')
    e(f's_lshr_b32 s{sT0}, s{sW}, 1'); e(f's_lshl_b32 s{sT0}, s{sT0}, 10')
    e(f's_and_b32 s{sT1}, s2, 15'); e(f's_lshl_b32 s{sT1}, s{sT1}, 11'); e(f's_add_u32 s{sT0}, s{sT0}, s{sT1}')
    e(f's_lshr_b32 s{sT1}, s2, 4'); e(f's_lshl_b32 s{sT1}, s{sT1}, 17'); e(f's_add_u32 s{sT0}, s{sT0}, s{sT1}')
    e(f's_add_u32 s{sPPa}, s{sT0}, {PP + 0x200000}')
    e(f's_xor_b32 s{sPPb}, s{sPPa}, 0x2000')
    e(f's_or_b32 s{sHk}, s{sHk}, 0x{mask64([22, 30, 31]):08x}')
    e(f's_mov_b32 s{sMap}, {nmap[0] | nmap[1] << 4 | nmap[2] << 8}')
    if nearB:
        kappa(1, sKV)
        e(f's_xor_b32 s{sXB}, s{sKp}, s{sKV}')
        e(f's_mov_b32 s{sX}, s{sXB}')
    e('L_nc3:')
    switch(sBv, sKV, 0x180000)
    stamp(3, 0)

    def body_end(name):
        e(f's_bitcmp1_b64 s[{sHk}:{sHk+1}], s{sN}')
        e('s_cbranch_scc1 L_hooks')
        e(f's_add_u32 s{sOff}, s{sOff}, 0x20000')
        e(f's_add_u32 s{sN}, s{sN}, 1')
        e(f's_branch {name}')
    e('L_kbody:')
    ks = kops(X0, vT)
    body_begin('k')
    for i in range(16):
        for op in ks[i]: e(op)
        if i < 7: e(f'v_mov_b32 v{vS + i}, v{vS + i + 1}')
        throttle('k', i)
        issue(X0, i)
    ktail([ks])
    kfinal(vT, vS + 7)
    body_end('L_kbody')

    e('L_vbody:')
    e(f'v_and_b32 v{vPd}, 0xffff, v{vP}')
    e(f'v_lshl_or_b32 v{vPd}, v{vPd}, 16, v{vPd}')
    for r in range(3): e(f'v_alignbit_b32 v{vP + r}, v{vP + r + 1}, v{vP + r}, 16')
    e(f'v_lshrrev_b32 v{vP+3}, 16, v{vP+3}')
    def vand(i):
        for r in range(4):
            e(f'v_and_b32_dpp v{vS + 4 * (i & 1) + r}, v{vPd}, v{vMask + r} row_newbcast:{br4(i)} {DPPF}')
    body_begin('v')
    vand(0)
    for i in range(16):
        if i < 15: vand(i + 1)
        a = vS + 4 * (i & 1); v = X0 + 4 * i
        e(f'v_mfma_f32_16x16x32_bf16 v[{vAcc}:{vAcc+3}], v[{a}:{a+3}], v[{v}:{v+3}], v[{vAcc}:{vAcc+3}]')
        throttle('v', i)
        issue(X0, i)
    body_end('L_vbody')

    e('L_hooks:')
    e(f's_cmp_eq_u32 s{sN}, 40'); e('s_cbranch_scc1 L_sfin')
    for n in (39, 7, 8, 23, 32, fat, 22, 30, 31):
        e(f's_cmp_eq_u32 s{sN}, {n}'); e(f's_cbranch_scc1 L_h{n}')
    def pload(seg): e(f'buffer_load_dwordx4 v[{vPA}:{vPA+3}], v{vPPa + seg}, s[8:11], s{sPPb} offen sc1')
    def ptest():
        for r in range(4): e(f'v_xor_b32 v{vPA + r}, v{vPA + r}, v{vPat + r}')
        e(f'v_or3_b32 v{T}, v{vPA}, v{vPA+1}, v{vPA+2}')
        e(f'v_bitop3_b32 v{T}, v{T}, v{vPA+3}, s{s7f} bitop3:0x54')
        e(f'v_cmp_ne_u32 vcc, 0, v{T}')
    def pcheck(seg):
        l = lab('pc')
        e(f's_cmp_eq_u32 s{sX}, 0'); e(f's_cbranch_scc1 {l}')
        ptest()
        e(f's_cbranch_vccz {l}')
        spin(SPIN, lambda: pload(seg), 'vmcnt(0)', ptest)
        e(f'{l}:')
    for r in range(4): e(f'v_mov_b32 v{vP + r}, v{vPA + r}')
    e(f'v_max3_f32 v{T}, v{vS}, v{vS+1}, v{vS+2}')
    e(f'v_max3_f32 v{T+1}, v{vS+3}, v{vS+4}, v{vS+5}')
    e(f'v_max3_f32 v{T}, v{T}, v{vS+6}, v{vS+7}')
    e(f'v_max_f32 v{T}, v{T}, v{T+1}')
    allred('v_max_f32', T, T + 1)
    e(f'v_mul_f32 v{T+2}, s{sC}, v{T}')
    for r in range(8): e(f'v_fma_f32 v{vS + r}, v{vS + r}, s{sC}, -v{T+2}')
    for r in range(8): e(f'v_exp_f32 v{vS + r}, v{vS + r}')
    e(f'v_cmp_eq_u32 vcc, s{sSeg}, v0')
    for r in range(4): e(f'v_cvt_pk_bf16_f32 v{vPA + r}, v{vS + 2*r}, v{vS + 2*r + 1}')
    e(f'v_cndmask_b32 v{vMl}, v{vMl}, v{T+2}, vcc')
    for r in range(4): e(f'v_add_f32 v{vS + 2*r}, v{vS + 2*r}, v{vS + 2*r + 1}')
    e(f'v_add_f32 v{vS}, v{vS}, v{vS+2}')
    e(f'v_add_f32 v{vS+4}, v{vS+4}, v{vS+6}')
    e(f'v_add_f32 v{T}, v{vS}, v{vS+4}')
    allred('v_add_f32', T, T + 1)
    e(f'v_cndmask_b32 v{vMl+1}, v{vMl+1}, v{T}, vcc')
    if_class('L_fin2', 0)
    e(f's_cmp_eq_u32 s{sN}, 16'); e('s_cbranch_scc0 L_fin1')
    kappa(3, sKV)
    e(f's_xor_b32 s{sX}, s{sKp}, s{sKV}')
    e('L_fin1:')
    e(f's_cmp_eq_u32 s{sX}, 0'); e('s_cbranch_scc1 L_fin2')
    for r in range(4): e(f'v_and_or_b32 v{vPs + r}, v{vPA + r}, s{s7f}, v{vPat + r}')
    e(f's_and_b32 s{sT0}, s{sSeg}, 1'); e(f's_lshl_b32 s{sT0}, s{sT0}, 8')
    e(f'v_xor_b32 v{T}, s{sT0}, v{vPPa}')
    e(f'buffer_store_dwordx4 v[{vPs}:{vPs+3}], v{T}, s[8:11], s{sPPa} offen sc1')
    e(f's_cmp_eq_u32 s{sN}, 4'); e('s_cbranch_scc0 L_fin2')
    spin(SPIN, lambda: pload(0), 'vmcnt(0)', ptest)
    e('L_fin2:')
    e(f's_cmp_eq_u32 s{sN}, 4'); e('s_cbranch_scc0 L_fin3')
    e(f'ds_read_b128 v[{vQ}:{vQ+3}], v1 offset:{L_Q}')
    e(f'v_mov_b32 v{vP}, v{vPA+2}'); e(f'v_mov_b32 v{vP+1}, v{vPA+3}')
    e(f's_mov_b32 s{sSeg}, 0')
    e(f's_sub_u32 s{sPPa}, s{sPPa}, 0x200000'); e(f's_sub_u32 s{sPPb}, s{sPPb}, 0x200000')
    e('s_waitcnt lgkmcnt(0)')
    e('s_branch L_h_done')
    e('L_fin3:')
    e(f's_mov_b32 s{sSeg}, 1')
    e(f's_cmp_eq_u32 s{sN}, 24'); e('s_cbranch_scc0 L_h_done')
    stamp(14, 0)
    e(f's_lshl_b32 s{sT1}, s{sW}, 6')
    e(f'v_mov_b32 v{vMl+2}, s{sE}'); e(f'v_mov_b32 v{vMl+3}, s{sE}')
    e(f'v_add_u32 v{T}, s{sT1}, v{vL16}')
    e('s_mov_b64 exec, 15')
    e(f'ds_write_b128 v{T}, v[{vMl}:{vMl+3}] offset:{L_ST}')
    e('s_mov_b64 exec, -1')
    e('s_branch L_h_done')
    e('L_h7:')
    stamp(15, 0)
    if_class('L_h7b', 0)
    kappa(2, sKp)
    if not nearB: go_near()
    e('L_h7b:')
    switch(sAk, sKp, -0x20000)
    e('s_branch L_h_done')
    e('L_h8:')
    for r in range(4): e(f'v_mov_b32_dpp v{vMask + r}, v{vMask + r} row_ror:8 {DPPF}')
    for r in range(4): e(f'v_mov_b32 v{vAccB + r}, v{vAcc + r}')
    for r in range(4): e(f'v_mov_b32 v{vAcc + r}, 0')
    e('s_branch L_h_done')
    for n, seg in ((22, 0), (30, 1)):
        e(f'L_h{n}:')
        e(f's_cmp_eq_u32 s{sX}, 0'); e('s_cbranch_scc1 L_h_done')
        pload(seg)
        e('s_branch L_h_done')
    e('L_h31:')
    pcheck(1)
    e('s_branch L_h_done')
    e('L_h23:')
    pcheck(0)
    switch(sAv, sKV, -0x20000)
    e('s_branch L_h_done')
    e('L_h32:')
    if emap:
        e(f's_mov_b32 s{sMap}, {emap[0] | emap[1] << 4 | emap[2] << 8}')
        e(f's_cmp_eq_u32 s{sCls}, 1'); e(f's_cselect_b32 s{sMap}, {enmap[0] | enmap[1] << 4 | enmap[2] << 8}, s{sMap}')
    for r in range(4): e(f'v_mov_b32_dpp v{vMask + r}, v{vMask + r} row_ror:8 {DPPF}')
    for r in range(4): e(f'v_mov_b32 v{vP + r}, v{vPA + r}')
    e('s_branch L_h_done')
    e(f'L_h{fat}:')
    e(f's_xor_b32 s{sT0}, s{sSide}, s{sX}'); e(f's_lshl_b32 s{sT0}, s{sT0}, 2'); e(f's_add_u32 s{sT0}, s{sT0}, s{sW}'); e(f's_lshl_b32 s{sT0}, s{sT0}, 3')
    e(f's_xor_b32 s{sT1}, s{sSide}, s{sXB}'); e(f's_lshl_b32 s{sT1}, s{sT1}, 2'); e(f's_add_u32 s{sT1}, s{sT1}, s{sW}'); e(f's_lshl_b32 s{sT1}, s{sT1}, 3')
    e(f'v_lshrrev_b32 v{T+4}, 5, v0')
    e(f'v_lshl_add_u32 v{T}, v{T+4}, 6, s{sT0}')
    e(f'v_mov_b32 v{T+1}, s{sT1}')
    def fload():
        e(f'ds_read_b64 v[{vF}:{vF+1}], v{T} offset:{L_F}')
        e(f'ds_read_b64 v[{T+2}:{T+3}], v{T+1} offset:{L_F + 128}')
    def ftest():
        e(f'v_cmp_ne_u32 vcc, s{sE}, v{vF+1}')
        e(f'v_cmp_ne_u32 s[{sT1}:{sT1+1}], s{sE}, v{T+3}')
        e(f's_or_b64 vcc, vcc, s[{sT1}:{sT1+1}]')
    spin(SPIN * 8, fload, 'lgkmcnt(0)', ftest, again='scc1')
    for r in range(4): e(f'v_mul_f32 v{vAccB + r}, v{T+2}, v{vAccB + r}')
    e(f'v_lshlrev_b32 v1, 1, v1')
    e(f'v_lshl_add_u32 v1, v{T+4}, 9, v1')
    e(f'v_and_b32 v{T}, 16, v0')
    e(f's_lshl_b32 s{sT0}, s{sW}, 10')
    e(f'v_add3_u32 v1, v1, v{T}, s{sT0}')
    e('s_branch L_h_done')
    e('L_h39:')
    e('s_mov_b32 s6, 0')
    e('L_h_done:')
    e(f's_add_u32 s{sOff}, s{sOff}, 0x20000')
    e(f's_add_u32 s{sN}, s{sN}, 1')
    e(f's_bitcmp1_b64 s[{sVk}:{sVk+1}], s{sN}')
    e('s_cbranch_scc1 L_vbody')
    e('s_branch L_kbody')
    e('L_sfin:')
    e('s_nop 1')
    for r in range(4): e(f'v_mul_f32 v{vAcc + r}, v{vF}, v{vAcc + r}')
    for r in range(4): e(f'v_permlane32_swap_b32 v{vAcc + r}, v{vAccB + r}')
    for r in range(4): e(f'v_add_f32 v{vAcc + r}, v{vAcc + r}, v{vAccB + r}')
    e(f'ds_write_b128 v1, v[{vAcc}:{vAcc+3}] offset:{L_O}')
    e('s_waitcnt lgkmcnt(0)')
    e('s_barrier')
    stamp(4, 0)
    e(f'v_lshrrev_b32 v{T}, 4, v0')
    e(f'v_and_b32 v{T+4}, 15, v0')
    e(f'v_lshlrev_b32 v{vWa}, 13, v{T}')
    e(f'v_lshl_add_u32 v{vWa}, v{T+4}, 4, v{vWa}')
    e(f's_lshl_b32 s{sT0}, s{sH}, 17'); e(f's_lshl_b32 s{sT1}, s{sU}, 8'); e(f's_add_u32 s{sT0}, s{sT0}, s{sT1}')
    e(f's_lshl_b32 s{sT1}, s{sW}, 15'); e(f's_add_u32 s{sT0}, s{sT0}, s{sT1}'); e(f's_add_u32 s{sT1}, s{sT0}, 4096')
    e(f's_cmp_eq_u32 s{sSide}, 0')
    e(f's_cselect_b64 s[4:5], s[{sAwo}:{sAwo+1}], s[{sBwo}:{sBwo+1}]')
    e('s_mov_b32 s6, 0x400000')
    e('s_barrier')
    for i in range(8):
        e(f'buffer_load_dwordx4 v[{vW + 4*i}:{vW + 4*i + 3}], v{vWa}, s[4:7], s{sT0 + (i >> 2)} offen offset:{(i & 3) * 1024} nt')
    e(f'v_and_b32 v{T+1}, 3, v0')
    e(f'v_lshlrev_b32 v{T+1}, 8, v{T+1}')
    e(f'v_lshl_add_u32 v{T+1}, v{T}, 4, v{T+1}')
    e(f's_lshl_b32 s{sT2}, s{sW}, 6'); e(f's_add_u32 s{sT2}, s{sT2}, {L_RED}')
    e(f'v_add_u32 v{T+1}, s{sT2}, v{T+1}')
    e(f'v_bfe_u32 v{T+2}, v0, 2, 2')
    e(f'v_mov_b32 v{T+3}, {L_Z}')
    for q in range(4):
        e(f'v_cmp_eq_u32 vcc, {q}, v{T+2}'); e('s_nop 1')
        e(f'v_cndmask_b32 v{vAr + q}, v{T+3}, v{T+1}, vcc')
    e(f's_lshl_b32 s{sT2}, s{sW}, 11')
    e(f'v_add_u32 v{vYw}, s{sT2}, v{vL16}')
    e(f'v_and_b32 v{vYr}, 0x1f0, v{vL16}')
    e(f'v_lshrrev_b32 v{T+1}, 5, v0')
    e(f'v_lshl_add_u32 v{vYr}, v{T+1}, 12, v{vYr}')
    e(f's_lshl_b32 s{sT2}, s{sW}, 9')
    e(f'v_add_u32 v{vYr}, s{sT2}, v{vYr}')
    e(f's_and_b32 s{sT2}, s{sW}, 1'); e(f's_lshl_b32 s{sT2}, s{sT2}, 1')
    e(f'v_and_or_b32 v{T}, v{T}, 1, s{sT2}')
    e(f's_lshl_b32 s{sT2}, s2, 1'); e(f's_and_b32 s{sT2}, s{sT2}, 127'); e(f's_lshr_b32 s{sYd}, s{sW}, 1'); e(f's_or_b32 s{sT2}, s{sT2}, s{sYd}')
    e(f'v_xor_b32 v{T+1}, s{sT2}, v{T}')
    e(f'v_lshlrev_b32 v{vYa}, 8, v{T+1}')
    e(f'v_lshl_add_u32 v{vYa}, v{T}, 15, v{vYa}')
    e(f'v_lshl_add_u32 v{vYa}, v{T+4}, 4, v{vYa}')
    e(f's_lshr_b32 s{sYd}, s2, 6'); e(f's_lshl_b32 s{sYd}, s{sYd}, 17')
    e(f's_add_u32 s{sT2}, s{sE}, 1'); e(f's_and_b32 s{sT2}, s{sT2}, 0xff')
    e(f'v_mov_b32 v{vTg2}, s{sT2}')
    e(f's_mov_b32 s{sT0}, 0x05040100'); e(f's_mov_b32 s{sT1}, 0x07060302')
    def bar4():
        e('s_barrier')
        for q in range(4): e(f'ds_read_b128 v[{vAo + 4*q}:{vAo + 4*q + 3}], v{vAr + q}')
    for r in range(4):
        if r == afirst - 1: bar4()
        e(f's_waitcnt vmcnt({6 - 2 * r})')
        for ee in range(8):
            e(f'v_perm_b32 v{vBt + 4*ee + r}, v{vW + 4*(2*r+1) + (ee >> 1)}, v{vW + 4*(2*r) + (ee >> 1)}, s{sT0 + (ee & 1)}')
    stamp(9, 0)
    if afirst == 0: bar4()
    for q in range(4):
        e(f's_waitcnt lgkmcnt({3 - q})')
        for t in range(2):
            d = vDD + 4 * t; ee = 2 * q + t
            c = f'v[{d}:{d+3}]' if q else '0'
            e(f'v_mfma_f32_16x16x32_bf16 v[{d}:{d+3}], v[{vAo + 4*q}:{vAo + 4*q + 3}], v[{vBt + 4*ee}:{vBt + 4*ee + 3}], {c}')
    e('s_nop 6')
    e(f'ds_write_b128 v{vYw}, v[{vDD}:{vDD+3}] offset:{L_Y}')
    e(f'ds_write_b128 v{vYw}, v[{vDD+4}:{vDD+7}] offset:{L_Y + 1024}')
    e('s_waitcnt lgkmcnt(0)')
    e('s_barrier')
    e(f'ds_read_b128 v[{vAcc}:{vAcc+3}], v{vYr} offset:{L_Y}')
    e(f'ds_read_b128 v[{vAccB}:{vAccB+3}], v{vYr} offset:{L_Y + 2048}')
    e('s_waitcnt lgkmcnt(0)')
    for r in range(4): e(f'v_add_f32 v{vAcc + r}, v{vAcc + r}, v{vAccB + r}')
    for r in range(4): e(f'v_permlane32_swap_b32 v{vAcc + r}, v{vAccB + r}')
    for r in range(4): e(f'v_add_f32 v{vAcc + r}, v{vAcc + r}, v{vAccB + r}')
    for r in range(4): tag(vAcc + r, vTg2)
    e('s_mov_b32 exec_hi, 0')
    e(f'buffer_store_dwordx4 v[{vAcc}:{vAcc+3}], v{vYa}, s[8:11], s{sYd} offen sc1')
    if diag:
        e(f's_cmp_lg_u32 s{sW}, 0'); e('s_cbranch_scc1 L_end')
        stamp(11)
        flush_stamps([0, 1, 2, 3, 4, 9, 11, 14, 15])
        e('s_mov_b64 exec, -1')
        e('s_lshl_b32 s84, s2, 8'); e(f's_add_u32 s84, s84, {STAMP + 0x8000}')
        e('v_lshlrev_b32 v253, 2, v0')
        e('buffer_store_dword v252, v253, s[8:11], s84 offen')
    e('s_endpgm')

    e('L_service:')
    sDst = 54
    sX3, sX4a, sX4b, sOo = 56, 57, 58, 59
    vG = 2; vC = 3; vA = 4; vA2 = 5; vL = 6; vZ = 7
    vXA = 8; vWt = 16; vSel = 48; vOpA = 56; vD = 64; vR = 72
    vA3 = 104; vTg = 105; vTg2 = 106; vX3 = 108; vX4 = 109; vOut = 110
    e(f's_sub_u32 s{sW}, s{sW}, 4')
    e(f'v_lshrrev_b32 v{vG}, 4, v0')
    e(f'v_and_b32 v{vC}, 15, v0')
    e(f'v_lshlrev_b32 v{vA}, 16, v{vG}')
    e(f'v_lshl_add_u32 v{vA}, v{vC}, 4, v{vA}')
    e(f'v_lshrrev_b32 v{vA2}, 3, v{vC}')
    e(f'v_lshlrev_b32 v{vA2}, 10, v{vA2}')
    e(f'v_lshl_add_u32 v{vA2}, v{vG}, 4, v{vA2}')
    e(f's_lshl_b32 s{sT0}, s{sU}, 7'); e(f's_lshl_b32 s{sT1}, s{sW}, 5'); e(f's_add_u32 s{sT0}, s{sT0}, s{sT1}')
    e(f's_lshl_b32 s{sT1}, s{sT0}, 1')
    e(f's_lshl_b32 s{sT0}, s{sT0}, 13'); e(f's_lshl_b32 s{sT2}, s{sH}, 8'); e(f's_add_u32 s{sT0}, s{sT0}, s{sT2}')
    e('s_mov_b32 s6, 0x400000'); e('s_mov_b32 s14, 4096'); e('s_mov_b32 s15, 0x20000')
    e(f's_cmp_eq_u32 s{sSide}, 0')
    e('s_waitcnt lgkmcnt(0)')
    e(f's_cselect_b64 s[4:5], s[{sAwq}:{sAwq+1}], s[{sBwq}:{sBwq+1}]')
    e(f's_cselect_b64 s[12:13], s[{sAx}:{sAx+1}], s[{sBx}:{sBx+1}]')
    for m in range(2 if xfirst else 0):
        e(f'buffer_load_dwordx4 v[{vXA + 4*m}:{vXA + 4*m + 3}], v{vA2}, s[12:15], s{sT1} offen offset:{2048*m}')
    for i in range(8):
        if not abl & 4: e(f'buffer_load_dwordx4 v[{vWt + 4*i}:{vWt + 4*i + 3}], v{vA}, s[4:7], s{sT0} offen nt')
        if i < 7: e(f's_add_u32 s{sT0}, s{sT0}, 8192')
    for m in range(0 if (xfirst or abl & 16) else 2):
        e(f'buffer_load_dwordx4 v[{vXA + 4*m}:{vXA + 4*m + 3}], v{vA2}, s[12:15], s{sT1} offen offset:{2048*m}')
    e('L_service2:')
    e(f'v_mov_b32 v{vZ}, 0')
    e(f'v_lshlrev_b32 v{vR}, 2, v0')
    e(f'v_cmp_lt_u32 vcc, 15, v0')
    e(f's_cmp_eq_u32 s{sCls}, {1 if nearB else 2}'); e(f's_cselect_b32 s{sT0}, {lvlc}, {lvl0}')
    e(f'v_cndmask_b32 v{vR+1}, 0, -1, vcc')
    e(f'v_writelane_b32 v{vR+1}, s{sT0}, 1')
    e(f'ds_write_b32 v{vR}, v{vR+1} offset:{L_CNT}')
    e('s_waitcnt lgkmcnt(0)')
    load_epoch()
    e('s_barrier')
    e(f's_mov_b32 s8, s{sWs}'); e(f's_mov_b32 s9, s{sWs+1}')
    e(f'v_lshlrev_b32 v{vL}, 4, v0')
    assert len(cks) <= 16
    e(f's_lshl_b32 s{sT0}, s{sW}, 3'); e(f's_add_u32 s{sT0}, s{sT0}, s{sJ}')
    e(f's_cmp_ge_u32 s{sT0}, {len(cks)}'); e('s_cbranch_scc1 L_norc')
    e(f's_lshl_b32 s{sT0}, s{sT0}, 5'); e(f's_add_u32 s{sT0}, s{sT0}, s{sH}'); e(f's_lshl_b32 s{sT0}, s{sT0}, 8'); e(f's_add_u32 s{sT0}, s{sT0}, {RC}')
    e('s_mov_b64 exec, 0xffff')
    if not abl & 8: e(f'buffer_store_dword v{vZ}, v{vR}, s[8:11], s{sT0} offen sc1')
    e('s_mov_b64 exec, -1')
    e('L_norc:')
    e(f'v_and_b32 v{vR}, 7, v0')
    e(f'v_and_b32 v{vR+1}, 1, v0')
    e(f'v_lshlrev_b32 v{vR+1}, 4, v{vR+1}')
    e(f'v_mov_b32 v{vR+2}, 0xffff')
    e(f'v_lshlrev_b32 v{vR+2}, v{vR+1}, v{vR+2}')
    e(f'v_lshrrev_b32 v{vR}, 1, v{vR}')
    e(f'v_mov_b32 v{vR+4}, 0x0c0c0c0c')
    e(f's_mov_b32 s{sT0}, 0x01000100'); e(f's_mov_b32 s{sT1}, 0x03020302')
    for r in range(4):
        e(f'v_cmp_eq_u32 vcc, {r}, v{vR}'); e('s_nop 1')
        e(f'v_cndmask_b32 v{vR+3}, 0, v{vR+2}, vcc')
        e(f'v_bfi_b32 v{vSel + r}, v{vR+3}, s{sT0}, v{vR+4}')
        e(f'v_bfi_b32 v{vSel + 4 + r}, v{vR+3}, s{sT1}, v{vR+4}')
    e(f'v_lshrrev_b32 v{vR}, 5, v0')
    e(f'v_lshlrev_b32 v{vA}, 9, v{vR}')
    e(f'v_lshl_add_u32 v{vA}, v{vC}, 5, v{vA}')
    e(f'v_and_b32 v{vR}, 16, v0')
    e(f's_lshl_b32 s{sT0}, s{sW}, 11')
    e(f'v_add3_u32 v{vA}, v{vA}, v{vR}, s{sT0}')
    e(f'v_lshl_add_u32 v{vA2}, v{vG}, 15, v{vL}')
    e(f's_lshl_b32 s{sT0}, s2, 1'); e(f's_and_b32 s{sT0}, s{sT0}, 127'); e(f's_lshl_b32 s{sT0}, s{sT0}, 8')
    e(f'v_xor_b32 v{vA2}, s{sT0}, v{vA2}')
    e(f'v_xor_b32 v{vA3}, 0x100, v{vA2}')
    e(f's_lshr_b32 s{sDst}, s2, 6'); e(f's_lshl_b32 s{sDst}, s{sDst}, 17')
    e('s_waitcnt lgkmcnt(0)')
    e(f's_add_u32 s{sE}, s{sE}, 1'); e(f's_and_b32 s{sTag}, s{sE}, 0xff'); e(f'v_mov_b32 v{vTg}, s{sTag}')
    def probe_setup():
        e(f's_mov_b64 s[12:13], s[{sBk}:{sBk+1}]')
        for r, p in ((1, sBv), (2, sAk), (3, sAv)):
            e(f's_cmp_eq_u32 s{sRd}, {r}'); e(f's_cselect_b64 s[12:13], s[{p}:{p+1}], s[12:13]')
        e('s_mov_b32 s14, 0x10000000')
        e(f's_mov_b32 s{sE0}, 0x10000'); e(f's_mov_b32 s{sE1}, 0x10000')
    e(f's_cmp_eq_u32 s{sW}, 0'); e(f's_cselect_b32 s{sCls}, 0, s{sCls}')
    e(f's_mov_b32 s{sRd}, {(1 if selfp else 0) if nearB else 2}')
    probe_setup()
    if_class('L_nop0', 0)
    probe_seed(1)
    if sh0 and nearB and not selfp:
        e(f's_mov_b32 s{sCnt}, {sh0}')
        probe_loop()
        e('s_branch L_padret')
    e('L_nop0:')
    for w in range(3):
        e(f's_cmp_eq_u32 s{sW}, {w}'); e(f's_cbranch_scc1 L_pad{w}')
    e('s_branch L_pad3')
    e('L_padret:')
    e('s_waitcnt vmcnt(0)')
    stamp(5, 0)
    seq = [(i, m) for i in range(8) for m in range(2)]
    def perms(k):
        i, m = seq[k]
        for r in range(4):
            x = vXA + 4 * m + (i >> 1)
            e(f'v_perm_b32 v{vOpA + 4 * (k & 1) + r}, v{x}, v{x}, v{vSel + 4 * (i & 1) + r}')
    perms(0)
    for k, (i, m) in enumerate(seq):
        if k < 15: perms(k + 1)
        else: e('s_nop 0')
        a = vOpA + 4 * (k & 1); d = vD + 4 * m; w = vWt + 4 * i
        c = f'v[{d}:{d+3}]' if i > 0 else '0'
        e(f'v_mfma_f32_16x16x32_bf16 v[{d}:{d+3}], v[{a}:{a+3}], v[{w}:{w+3}], {c}')
    e(f'v_mov_b32 v{vR}, 1')
    e('s_nop 5')
    e(f'ds_write_b128 v{vA}, v[{vD}:{vD+3}] offset:{L_RED}')
    e(f'ds_write_b128 v{vA}, v[{vD+4}:{vD+7}] offset:{L_RED + 1024}')
    e('s_mov_b64 exec, 1')
    e(f'ds_add_u32 v{vZ}, v{vR} offset:{L_CNT}')
    e('s_mov_b64 exec, -1')
    e(f's_cmp_lg_u32 s{sW}, 0')
    e('s_cbranch_scc1 L_notleader')
    spin(SPIN * 8, lambda: e(f'ds_read_b32 v{vR}, v{vZ} offset:{L_CNT}'), 'lgkmcnt(0)', lambda: e(f'v_cmp_ne_u32 vcc, 4, v{vR}'))
    for m in range(2): e(f'ds_read_b128 v[{vD + 4*m}:{vD + 4*m + 3}], v{vL} offset:{L_RED + m * 1024}')
    for w in range(1, 4):
        for m in range(2):
            r = vR + ((w - 1) * 2 + m) * 4
            e(f'ds_read_b128 v[{r}:{r+3}], v{vL} offset:{L_RED + w * 2048 + m * 1024}')
    e('s_waitcnt lgkmcnt(4)')
    for r in range(8): e(f'v_add_f32 v{vD + r}, v{vD + r}, v{vR + r}')
    e('s_waitcnt lgkmcnt(0)')
    for r in range(8): e(f'v_add_f32 v{vR + 8 + r}, v{vR + 8 + r}, v{vR + 16 + r}')
    for r in range(8): e(f'v_add_f32 v{vD + r}, v{vD + r}, v{vR + 8 + r}')
    for r in range(8): tag(vD + r, vTg)
    if not abl & 1:
        e(f'buffer_store_dwordx4 v[{vD}:{vD+3}], v{vA2}, s[8:11], s{sDst} offen sc1')
        e(f'buffer_store_dwordx4 v[{vD+4}:{vD+7}], v{vA3}, s[8:11], s{sDst} offen sc1')
    stamp(6)
    e(f'v_bfe_u32 v{vR}, v0, 4, 1')
    e(f's_and_b32 s{sT0}, s{sB}, 1'); e(f's_lshl_b32 s{sT0}, s{sT0}, 1')
    e(f'v_or_b32 v{vR}, s{sT0}, v{vR}')
    e(f'v_lshrrev_b32 v{vR+1}, 5, v0')
    e(f'v_lshlrev_b32 v{vR+1}, 3, v{vR+1}')
    e(f's_and_b32 s{sT0}, s{sH}, 7'); e(f's_lshl_b32 s{sT0}, s{sT0}, 4'); e(f's_lshr_b32 s{sT1}, s{sB}, 1'); e(f's_or_b32 s{sT0}, s{sT0}, s{sT1}')
    e(f'v_or_b32 v{vR+1}, s{sT0}, v{vR+1}')
    e(f'v_xor_b32 v{vR+1}, v{vR+1}, v{vR}')
    e(f'v_lshlrev_b32 v{vR+1}, 8, v{vR+1}')
    e(f'v_lshl_add_u32 v{vR+1}, v{vR}, 15, v{vR+1}')
    e(f'v_lshl_add_u32 v{vR}, v{vC}, 4, v{vR+1}')
    e(f'v_xor_b32 v{vR+1}, 0x200, v{vR}')
    e(f's_xor_b32 s{sT0}, s{sE}, 1')
    e(f'v_mov_b32 v{vR+20}, s{sT0}'); e(f'v_mov_b32 v{vR+21}, s{sT0}')
    e(f'v_lshlrev_b32 v{vR+22}, 3, v0')
    e(f'ds_write_b64 v{vR+22}, v[{vR+20}:{vR+21}] offset:{L_ST}')
    def qload():
        for r in range(4):
            d = vR + 4 + 4 * r
            e(f'buffer_load_dwordx4 v[{d}:{d+3}], v{vR + (r & 1)}, s[8:11], s{sDst} offen offset:{(r >> 1) * 1024} sc1')
    if qs0: e('s_waitcnt vmcnt(0)')
    if not abl & 2: spin(SPIN, qload, 'vmcnt(0)', lambda: check(range(vR + 4, vR + 20), vR + 2, vTg), sleep=qs)
    for r in range(4):
        e(f'v_add_f32 v{vR + 4 + r}, v{vR + 4 + r}, v{vR + 8 + r}')
        e(f'v_add_f32 v{vR + 12 + r}, v{vR + 12 + r}, v{vR + 16 + r}')
    for r in range(4): e(f'v_add_f32 v{vR + 4 + r}, v{vR + 4 + r}, v{vR + 12 + r}')
    e(f'v_cvt_pk_bf16_f32 v{vR+4}, v{vR+4}, v{vR+5}')
    e(f'v_cvt_pk_bf16_f32 v{vR+5}, v{vR+6}, v{vR+7}')
    e(f'ds_write_b64 v{vR+22}, v[{vR+4}:{vR+5}] offset:{L_Q}')
    if qflag: e(f'ds_write_b32 v{vZ}, v{vZ} offset:{L_QF}')
    e('s_waitcnt lgkmcnt(0)')
    stamp(8)
    if not qflag: e('s_barrier')
    e('s_mov_b64 exec, 0xffff')
    spin(SPIN, lambda: e(f'ds_read_b128 v[{vD}:{vD+3}], v{vL} offset:{L_ST}'), 'lgkmcnt(0)',
         lambda: e(f'v_cmp_ne_u32 vcc, s{sE}, v{vD+2}'), sleep=16)
    e(f's_lshl_b32 s{sT0}, s2, 8'); e(f's_add_u32 s{sT0}, s{sT0}, {ST}')
    e(f'buffer_store_dwordx4 v[{vD}:{vD+3}], v{vL}, s[8:11], s{sT0} offen sc1')
    e('s_mov_b64 exec, -1')
    e(f'v_and_b32 v{vR}, 3, v0')
    e(f'v_lshlrev_b32 v{vA}, 6, v{vR}')
    e(f'v_bfe_u32 v{vR}, v0, 2, 1')
    e(f'v_lshl_add_u32 v{vA}, v{vR}, 10, v{vA}')
    e(f'v_lshrrev_b32 v{vR}, 3, v0')
    e(f'v_min_u32 v{vR}, 2, v{vR}')
    e(f'v_lshl_add_u32 v{vA}, v{vR}, 4, v{vA}')
    e(f's_andn2_b32 s{sT0}, s{sT0}, 0x400')
    spin(SPIN, lambda: e(f'buffer_load_dwordx4 v[{vR+4}:{vR+7}], v{vA}, s[8:11], s{sT0} offen sc1'), 'vmcnt(0)',
         lambda: e(f'v_cmp_ne_u32 vcc, s{sE}, v{vR+6}'), sleep=48)
    e(f'v_mov_b32 v{vR}, v{vR+4}')
    rowred('v_max_f32', vR)
    e(f'v_sub_f32 v{vR}, v{vR+4}, v{vR}')
    e(f'v_exp_f32 v{vR}, v{vR}')
    e('v_cmp_lt_u32 vcc, 15, v0')
    e(f'v_mul_f32 v{vR+1}, v{vR}, v{vR+5}')
    rowred('v_add_f32', vR + 1)
    e(f'v_rcp_f32 v{vR+1}, v{vR+1}')
    e(f'v_cndmask_b32 v{vR+2}, 1.0, 2.0, vcc')
    e(f'v_mul_f32 v{vR}, v{vR}, v{vR+1}')
    e(f'v_mul_f32 v{vR}, v{vR}, v{vR+2}')
    e(f'v_mov_b32 v{vR+1}, s{sE}')
    e('s_mov_b32 exec_hi, 0')
    e(f'ds_write_b64 v{vR+22}, v[{vR}:{vR+1}] offset:{L_F}')
    e('s_mov_b64 exec, -1')
    e(f'v_bfe_u32 v{vR}, v0, 2, 3')
    e(f'v_lshlrev_b32 v{vX4}, 12, v{vR}')
    e(f'v_lshrrev_b32 v{vR}, 5, v0')
    e(f'v_lshl_add_u32 v{vX4}, v{vR}, 17, v{vX4}')
    e(f'v_and_b32 v{vR}, 3, v0')
    e(f'v_lshl_add_u32 v{vX4}, v{vR}, 4, v{vX4}')
    e(f'v_lshlrev_b32 v{vOut}, 4, v{vR}')
    e(f'v_bfe_u32 v{vR}, v0, 2, 2')
    e(f'v_lshl_add_u32 v{vOut}, v{vR}, 11, v{vOut}')
    e(f's_bfe_u32 s{sT0}, s{sH}, 0x20002'); e(f's_lshr_b32 s{sT2}, s{sH}, 4')
    e(f's_lshl_b32 s{sOo}, s{sT0}, 1'); e(f's_add_u32 s{sOo}, s{sOo}, s{sT2}'); e(f's_lshl_b32 s{sOo}, s{sOo}, 1')
    e(f's_lshl_b32 s{sT1}, s{sJ}, 1'); e(f's_or_b32 s{sT1}, s{sT1}, s{sT2}')
    e(f's_xor_b32 s{sT1}, s{sT1}, s{sT0}'); e(f's_lshl_b32 s{sT1}, s{sT1}, 8')
    e(f's_lshl_b32 s{sT0}, s{sT0}, 15'); e(f's_add_u32 s{sT0}, s{sT0}, s{sT1}')
    e(f's_and_b32 s{sT1}, s{sH}, 3'); e(f's_lshl_b32 s{sT1}, s{sT1}, 6')
    e(f's_add_u32 s{sX4a}, s{sT0}, s{sT1}'); e(f's_add_u32 s{sX4b}, s{sX4a}, 0x40000')
    e(f's_add_u32 s{sOo}, s{sOo}, s{sT1}'); e(f's_lshl_b32 s{sT1}, s{sJ}, 8'); e(f's_add_u32 s{sOo}, s{sOo}, s{sT1}')
    e('s_branch L_rdone')
    e('L_notleader:')
    e(f'v_mov_b32 v{vX4}, 0'); e(f'v_mov_b32 v{vOut}, 0')
    if_class('L_round0', 1)
    if not qflag: e('s_barrier')
    e('s_branch L_rdone')
    e('L_round0:')
    if shA and not nearB:
        e(f's_mov_b32 s{sCnt}, {shA}')
        probe_loop()
    e('L_round:')
    if not qflag:
        e(f's_cmp_lg_u32 s{sRd}, 2'); e('s_cbranch_scc1 L_rnb')
        e('s_barrier')
        e('L_rnb:')
    e(f's_lshl_b32 s{sT0}, s{sRd}, 3'); e(f's_lshr_b32 s{sCnt}, {sum(v << (8 * r) for r, v in enumerate(shots))}, s{sT0}'); e(f's_and_b32 s{sCnt}, s{sCnt}, 0xff')
    probe_loop()
    evidence(vR, 1, 3, sE, 'L_rnext')
    e('L_rnext:')
    e('s_mov_b64 exec, -1')
    e(f's_add_u32 s{sRd}, s{sRd}, 1')
    probe_setup()
    e(f's_cmp_lt_u32 s{sRd}, 4'); e('s_cbranch_scc1 L_round')
    e('L_rdone:')
    e(f's_lshl_b32 s{sT0}, s{sSide}, 1')
    e(f'v_and_or_b32 v{vR}, v{vG}, 1, s{sT0}')
    e(f'v_xor_b32 v{vR+1}, s{sW}, v{vR}')
    e(f'v_lshlrev_b32 v{vX3}, 8, v{vR+1}')
    e(f'v_lshl_add_u32 v{vX3}, v{vR}, 15, v{vX3}')
    e(f'v_lshrrev_b32 v{vR+1}, 5, v0')
    e(f'v_lshl_add_u32 v{vX3}, v{vR+1}, 10, v{vX3}')
    e(f'v_lshl_add_u32 v{vX3}, v{vC}, 4, v{vX3}')
    e(f'v_and_b32 v{vR}, 31, v0')
    e(f'v_lshlrev_b32 v{vA}, 3, v{vR}')
    e(f'v_lshl_add_u32 v{vA}, v{vR+1}, 2, v{vA}')
    e(f's_lshl_b32 s{sT0}, s{sW}, 8')
    e(f'v_add_u32 v{vA}, s{sT0}, v{vA}')
    e(f's_and_b32 s{sT1}, s{sH}, 15'); e(f's_lshl_b32 s{sX3}, s{sT1}, 11')
    e(f's_lshr_b32 s{sT1}, s{sH}, 4'); e(f's_lshl_b32 s{sT1}, s{sT1}, 17'); e(f's_add_u32 s{sX3}, s{sX3}, s{sT1}')
    e(f's_add_u32 s{sX3}, s{sX3}, {OP}')
    e(f'v_lshl_add_u32 v{vA3}, v{vG}, 15, v{vL}')
    e(f's_lshl_b32 s{sT0}, s{sSide}, 2'); e(f's_or_b32 s{sT0}, s{sT0}, s{sB}'); e(f's_lshl_b32 s{sT0}, s{sT0}, 8')
    e(f'v_xor_b32 v{vA3}, s{sT0}, v{vA3}')
    e(f's_add_u32 s{sE}, s{sE}, 1'); e(f's_and_b32 s{sT0}, s{sE}, 0xff'); e(f'v_mov_b32 v{vTg2}, s{sT0}')
    e(f's_mov_b32 s12, s{sOut}'); e(f's_mov_b32 s13, s{sOut+1}'); e('s_mov_b32 s14, 8192')
    e(f's_mov_b32 s{sSpin}, {SPIN}')
    e(f's_cmp_lg_u32 s{sW}, s{sB}')
    e('s_waitcnt lgkmcnt(0)')
    e('s_barrier')
    e('s_cbranch_scc1 L_x3first')
    for w in range(4): e(f'ds_read_b128 v[{vR + 4*w}:{vR + 4*w + 3}], v{vL} offset:{L_O + w * 1024}')
    e('s_waitcnt lgkmcnt(2)')
    for r in range(4): e(f'v_add_f32 v{vD + r}, v{vR + r}, v{vR + 4 + r}')
    e('s_waitcnt lgkmcnt(0)')
    for r in range(4): e(f'v_add_f32 v{vR + 8 + r}, v{vR + 8 + r}, v{vR + 12 + r}')
    for r in range(4): e(f'v_add_f32 v{vD + r}, v{vD + r}, v{vR + 8 + r}')
    for r in range(4): tag(vD + r, vTg)
    e(f'buffer_store_dwordx4 v[{vD}:{vD+3}], v{vA3}, s[8:11], s{sX3} offen sc1')
    for r in range(4): e(f'v_xor_b32 v{vR + r}, v{vD + r}, v{vTg}')
    e(f's_cmp_eq_u32 s{sSide}, 0')
    e('s_cselect_b32 exec_lo, 0, -1'); e('s_cselect_b32 exec_hi, -1, 0')
    e('L_x3first:')
    e(f'buffer_load_dwordx4 v[{vR}:{vR+3}], v{vX3}, s[8:11], s{sX3} offen sc1')
    e('s_barrier')
    e('s_branch L_x3w')
    e('L_x3spin:')
    e(f'buffer_load_dwordx4 v[{vR}:{vR+3}], v{vX3}, s[8:11], s{sX3} offen sc1')
    e('L_x3w:')
    e(f's_sub_u32 s{sSpin}, s{sSpin}, 1'); e('s_cbranch_scc1 L_x3out')
    e('s_waitcnt vmcnt(0)')
    check(range(vR, vR + 4), vR + 4, vTg)
    e('s_cbranch_vccnz L_x3spin')
    e('L_x3out:')
    e('s_mov_b64 exec, -1')
    e('s_waitcnt vmcnt(0)')
    e(f'v_permlane32_swap_b32 v{vR}, v{vR+2}')
    e(f'v_permlane32_swap_b32 v{vR+1}, v{vR+3}')
    e(f's_cmp_lg_u32 s{sW}, 0')
    e(f'v_add_f32 v{vR}, v{vR}, v{vR+2}')
    e(f'v_add_f32 v{vR+1}, v{vR+1}, v{vR+3}')
    e(f'v_cvt_pk_bf16_f32 v{vR}, v{vR}, v{vR+1}')
    e(f'ds_write_b32 v{vA}, v{vR} offset:{L_RED}')
    e('s_waitcnt lgkmcnt(0)')
    e('s_barrier')
    e('s_cbranch_scc1 L_end')
    stamp(10)
    e('s_barrier')
    if ys0: e(f's_sleep {ys0}')
    def yload():
        for k in range(2): e(f'buffer_load_dwordx4 v[{vR + 4*k}:{vR + 4*k + 3}], v{vX4}, s[8:11], s{sX4a + k} offen sc1')
    spin(SPIN, yload, 'vmcnt(0)', lambda: check(range(vR, vR + 8), vR + 8, vTg2))
    for r in range(4): e(f'v_add_f32 v{vR + r}, v{vR + r}, v{vR + 4 + r}')
    e(f'v_add_f32_dpp v{vR+4}, v{vR}, v{vR} row_ror:8 row_mask:0xf bank_mask:0x3')
    e(f'v_add_f32_dpp v{vR+5}, v{vR+1}, v{vR+1} row_ror:8 row_mask:0xf bank_mask:0x3')
    e('s_nop 0')
    e(f'v_add_f32_dpp v{vR+4}, v{vR+2}, v{vR+2} row_ror:8 row_mask:0xf bank_mask:0xc')
    e(f'v_add_f32_dpp v{vR+5}, v{vR+3}, v{vR+3} row_ror:8 row_mask:0xf bank_mask:0xc')
    e('s_nop 0')
    e(f'v_add_f32_dpp v{vR}, v{vR+4}, v{vR+4} row_shl:4 row_mask:0xf bank_mask:0x5')
    e('s_nop 1')
    e(f'v_add_f32_dpp v{vR}, v{vR+5}, v{vR+5} row_shr:4 row_mask:0xf bank_mask:0xa')
    for sw in ('v_permlane16_swap_b32', 'v_permlane32_swap_b32'):
        e(f'v_mov_b32 v{vR+1}, v{vR}'); e('s_nop 1'); e(f'{sw} v{vR+1}, v{vR}'); e('s_nop 0')
        e(f'v_add_f32 v{vR}, v{vR}, v{vR+1}')
    e(f'v_cvt_pk_bf16_f32 v{vR}, v{vR}, v{vR}')
    e('s_mov_b64 exec, 0xffff')
    e(f'buffer_store_short v{vR}, v{vOut}, s[12:15], s{sOo} offen {outp}')
    stamp(12)
    if diag: e('s_waitcnt vmcnt(0)')
    stamp(7)
    flush_stamps([5, 6, 7, 8, 10, 12])
    if chan == 'end':
        e('s_memrealtime s[86:87]'); e('s_waitcnt lgkmcnt(0)'); e('s_sub_u32 s86, s86, s80'); e('s_mul_i32 s86, s86, 10')
        e('s_add_u32 s86, s86, 20000')
        e('L_chan:'); e('s_memrealtime s[82:83]'); e('s_waitcnt lgkmcnt(0)'); e('s_sub_u32 s82, s82, s80')
        e('s_cmp_lt_u32 s82, s86'); e('s_cbranch_scc1 L_chan')
    e('s_cmp_lg_u32 s2, 0')
    e('s_cbranch_scc1 L_end')
    e('s_mov_b64 exec, 1')
    e(f'v_mov_b32 v{vR+2}, s{sE}')
    e(f's_mov_b32 s{sT0}, {EP}')
    e(f'buffer_store_dword v{vR+2}, off, s[8:11], s{sT0}')
    e('L_end:')
    e('s_endpgm')
    e('.section .rodata,"a"')
    e('.p2align 6')
    e(f'.amdhsa_kernel {NAME}_kernel')
    e('  .amdhsa_next_free_vgpr 256')
    e('  .amdhsa_next_free_sgpr 102')
    e('  .amdhsa_accum_offset 256')
    e('  .amdhsa_group_segment_fixed_size 0')
    e('  .amdhsa_kernarg_size 104')
    e('  .amdhsa_user_sgpr_count 2')
    e('  .amdhsa_user_sgpr_kernarg_segment_ptr 1')
    e('  .amdhsa_system_sgpr_workgroup_id_x 1')
    e('  .amdhsa_float_denorm_mode_32 3')
    e('.end_amdhsa_kernel')
    if front:
        a = L.index('L_service:'); b = L.index('L_service2:'); c = L.index('s_cbranch_scc1 L_service')
        L[:] = L[:c] + ['s_cbranch_scc0 L_stream'] + L[a + 1:b] + ['s_branch L_service2', 'L_stream:'] + L[c + 1:a] + L[b:]
    i0 = L.index('L_kbody:'); i1 = L.index('L_service2:' if front else 'L_service:')
    spots = [i for i in range(i0, i1) if L[i].startswith('s_branch ')]
    out = []
    for i, x in enumerate(L):
        out.append(x)
        if i in spots:
            k = spots.index(i)
            out.append(f'L_pad{k}:')
            out.append(f's_branch L_pad{k + 4}' if k + 4 < len(spots) else 's_branch L_padret')
    return '\n'.join(out) + '\n'

if __name__ == '__main__':
    import ast
    for spec in sys.argv[1:]:
        name, _, opts = spec.partition(':')
        kw = {}
        for o in filter(None, opts.split(',')):
            k_, v_ = o.split('=')
            v_ = v_.replace('/', ',')
            try: kw[k_] = ast.literal_eval(v_)
            except Exception: kw[k_] = v_
        open(name, 'w').write(gen(**kw))
```

```python
NAME = 'concat_heads__gqa_block_cached__sliding_block_cached__decode'
from gen_numa import hdr, kd
def gen(D=6, karg=8, win=0):
    L = []; e = L.append
    e(f'; @launch grid=(256,1,1) block=(256,1,1) lds=90000')
    e('.amdgcn_target "amdgcn-amd-amdhsa--gfx950"')
    hdr(e, NAME + '_kernel')
    e('s_cmp_ge_u32 s2, 256'); e('s_cbranch_scc1 L_end')
    e(f's_load_dwordx2 s[4:5], s[0:1], {karg}'); e('s_load_dwordx4 s[44:47], s[0:1], 88')
    e('v_lshrrev_b32 v1, 6, v0'); e('v_and_b32 v0, 63, v0'); e('v_readfirstlane_b32 s12, v1')
    e('s_mov_b32 s6, 0x10000000'); e('s_mov_b32 s7, 0x20000')
    e('s_waitcnt lgkmcnt(0)'); e('s_load_dword s30, s[44:45], 0')
    e('s_bfe_u32 s14, s2, 0x10002')
    e('v_lshlrev_b32 v6, 4, v0'); e('v_bfe_u32 v3, v0, 4, 1'); e('v_lshl_add_u32 v2, v3, 15, v6'); e('v_lshrrev_b32 v3, 5, v0'); e('v_lshl_add_u32 v2, v3, 13, v2')
    e('s_lshl_b32 s16, s12, 8'); e('s_lshl_b32 s17, s14, 13'); e('s_or_b32 s16, s16, s17'); e('v_xor_b32 v2, s16, v2')
    for j in range(1, 4): e(f'v_xor_b32 v{2+j}, {(j << 8) | ((j >> 1) << 16)}, v2')
    e('s_and_b32 s16, s12, 1'); e('s_lshl_b32 s18, s16, 12'); e('s_lshr_b32 s16, s12, 1'); e('s_lshl_b32 s16, s16, 14'); e('s_add_u32 s18, s18, s16')
    e('s_lshr_b32 s16, s2, 3'); e('s_lshl_b32 s16, s16, 2'); e('s_and_b32 s17, s2, 3'); e('s_or_b32 s19, s16, s17')
    e('s_waitcnt lgkmcnt(0)')
    e('s_ff1_i32_b32 s31, s30')
    e('s_mov_b32 s21, 0')
    e('s_memrealtime s[40:41]')
    e('L_loop:')
    e('s_lshl_b32 s16, s21, 7'); e('s_or_b32 s16, s16, s19'); e('s_mul_i32 s16, s16, 0x251'); e('s_and_b32 s16, s16, 1023')
    e('s_lshl_b32 s17, 1, s31'); e('s_sub_u32 s17, s17, 1'); e('s_and_b32 s22, s16, s17'); e('s_andn2_b32 s16, s16, s17'); e('s_lshl_b32 s16, s16, 1'); e('s_or_b32 s16, s16, s22')
    e('s_and_b32 s22, s16, s30'); e('s_bcnt1_i32_b32 s22, s22'); e('s_and_b32 s22, s22, 1'); e('s_lshl_b32 s22, s22, s31'); e('s_or_b32 s16, s16, s22')
    e('s_lshl_b32 s16, s16, 17'); e('s_add_u32 s20, s16, s18')
    for i in range(16):
        v = 8 + (i % 8) * 4
        e(f's_waitcnt vmcnt({D-1})')
        e(f'buffer_load_dwordx4 v[{v}:{v+3}], v{2 + (i >> 2)}, s[4:7], s20 offen offset:{(i & 3) * 1024} nt')
    e('s_add_u32 s21, s21, 1'); e('s_cmp_lt_u32 s21, 8'); e('s_cbranch_scc1 L_loop')
    e('s_waitcnt vmcnt(0)'); e('s_barrier'); e('s_memrealtime s[56:57]')
    e('s_cmp_lg_u32 s12, 0'); e('s_cbranch_scc1 L_end'); e('s_waitcnt lgkmcnt(0)')
    e('s_lshl_b32 s48, s2, 6'); e('s_add_u32 s48, s48, 0x40000000'); e('s_add_u32 s46, s46, s48'); e('s_addc_u32 s47, s47, 0')
    e('v_mov_b32 v5, 0'); e('v_mov_b32 v8, s40'); e('v_mov_b32 v9, s41'); e('v_mov_b32 v12, s56'); e('v_mov_b32 v13, s57')
    e('global_store_dwordx2 v5, v[8:9], s[46:47]'); e('global_store_dwordx2 v5, v[12:13], s[46:47] offset:16')
    e('L_end:'); e('s_endpgm')
    e('.section .rodata,"a"'); e('.p2align 6')
    kd(e, NAME + '_kernel', 48, 64)
    return '\n'.join(L) + '\n'
open('pc.s', 'w').write(gen())
```

```python
import sys, math, struct
NAME = 'concat_heads__gqa_block_cached__sliding_block_cached__decode'

def f32(x): return '0x%08x' % struct.unpack('<I', struct.pack('<f', x))[0]
def br4(i): return ((i & 1) << 3) | ((i & 2) << 1) | ((i & 4) >> 1) | ((i & 8) >> 3)
def mask64(ns): return sum(1 << n for n in ns)

QP = 0x000000
YF = 0x080000
OP = 0x100000
ST = 0x140000
EP = 0x150000
RC = 0x160000
EV = 0x180000
PP = 0x200000
WS_USED = 0x600000
STAMP = 0x40000000
L_Q = 0
L_CNT = 512; L_LVL = 516
L_CN2 = 528
L_EV = 544
L_Z = 560
L_KAP = 576
L_QF = 592
L_ST = 1024
L_F = 1280
L_RED = 2048
L_O = L_RED + 8192
L_Y = L_O + 4096
LDS_BYTES = L_Y + 8192
SPIN = 1 << 17
DPPF = 'row_mask:0xf bank_mask:0xf'

def gen(DB=6, early=6, rc=(5, 6, 7), rcv=(5, 6, 7), xlo=4, nmap=(4, 0, 2), lvl0=0, lvlc=1, th=(3, 6),
        cks=(8, 12, 16, 20, 24, 28, 31, 34, 37), rcat=7, endb=2, prek=2, cls=(8, 1), nearB=1, up=(), uplvl=2, dn=(), dnlvl=0, kfull=0, qs=0, qs0=0, afirst=1, xfirst=0, ys0=0, outp='', ylay=0, emap=None, enmap=None, dmax=15, bsh=None, front=1, burst=0, abl=0, qflag=1, pb=0, DC=6, DN=8, selfp=2, clip0=1500, pfirst=1, l2w=0, pads=1, padgap=950, ool=1, fast=48, preown=0, sdelay=0, fpol='', lazy=1, xfake=0,
        sh0=2, shots=(2, 8, 12, 16), shA=4, clip=200, pmin=400, fat=36, diag=False, chan=None, flip=0):
    L = []; e = L.append
    outp = outp.replace('_', ' ')
    cnt = [0]
    def lab(p):
        cnt[0] += 1
        return f'L_{p}{cnt[0]}'
    e(';   waves 0-3 stream K then V (scores by dot2 + DPP, P.V by MFMA) and apply wo at the end,')
    e(f'; @launch grid=(256,1,1) block=(512,1,1) lds={LDS_BYTES}')
    e('.amdgcn_target "amdgcn-amd-amdhsa--gfx950"')
    e('.text')
    e(f'.globl {NAME}_kernel')
    e('.p2align 8')
    e(f'.type {NAME}_kernel,@function')
    e(f'{NAME}_kernel:')
    sAx, sAk, sAv, sAwq, sAwo, sBx, sBk, sBv = 16, 18, 20, 22, 24, 26, 28, 30
    sBwq, sBwo, sOut, sDbg, sWs = 32, 34, 36, 38, 40
    sW, sH, sJ, sB, sSide = 42, 43, 44, 45, 46
    sU = 3
    sT0, sT1, sT2 = 47, 48, 49
    sCls, sSpin = 51, 52
    sE, sTag, sNF = 74, 75, 76
    e('s_cmp_ge_u32 s2, 256')
    e('s_cbranch_scc1 L_end')
    e('s_load_dwordx16 s[16:31], s[0:1], 0')
    e('s_load_dwordx8 s[32:39], s[0:1], 64')
    e('s_load_dwordx2 s[40:41], s[0:1], 96')
    if diag or chan: e('s_memrealtime s[80:81]')
    e('v_lshrrev_b32 v1, 6, v0')
    e('v_and_b32 v0, 63, v0')
    e(f'v_readfirstlane_b32 s{sW}, v1')
    e(f's_lshr_b32 s{sH}, s2, 3')
    e(f's_and_b32 s{sJ}, s2, 7')
    e(f's_and_b32 s{sU}, s2, 3')
    if bsh is None:
        e(f's_mov_b32 s{sB}, s{sU}')
    else:
        e(f's_lshr_b32 s{sB}, s2, {3 + bsh}'); e(f's_add_u32 s{sB}, s{sB}, s2'); e(f's_and_b32 s{sB}, s{sB}, 3')
    e(f's_lshr_b32 s{sSide}, s{sJ}, 2')
    e(f's_mul_i32 s{sT0}, s{sU}, {max(1, cls[0] // 4)}'); e(f's_add_u32 s{sT0}, s{sT0}, s{sH}')
    e(f's_and_b32 s{sT0}, s{sT0}, {cls[0] - 1}')
    e(f's_cmp_lt_u32 s{sT0}, {cls[1]}')
    e(f's_cselect_b32 s{sCls}, 1, 0')
    e('s_mov_b32 s7, 0x20000')
    e('s_mov_b32 s11, 0x20000')
    e(f's_mov_b32 s10, {WS_USED if not diag else 0x41000000}')
    e(f's_mov_b32 s{sNF}, 0xffffff00')
    e(f's_cmp_ge_u32 s{sW}, 4')
    e('s_cbranch_scc1 L_service')

    def stamp(idx, only_wave=None):
        if not diag: return
        l = lab('st')
        if only_wave is not None:
            e(f's_cmp_lg_u32 s{sW}, {only_wave}'); e(f's_cbranch_scc1 {l}')
        e('s_memrealtime s[82:83]'); e('s_waitcnt lgkmcnt(0)')
        e(f'v_writelane_b32 v254, s82, {idx}'); e(f'v_writelane_b32 v255, s83, {idx}')
        e(f'{l}:')
    def flush_stamps(idxs):
        if not diag: return
        l = lab('fw')
        e(f'{l}:'); e('s_sleep 32'); e('s_memrealtime s[82:83]'); e('s_waitcnt lgkmcnt(0)'); e('s_sub_u32 s82, s82, s80')
        e('s_cmp_lt_u32 s82, 11000'); e(f's_cbranch_scc1 {l}')
        e('s_lshl_b32 s84, s2, 7'); e(f's_add_u32 s84, s84, {STAMP}')
        e('s_mov_b64 exec, -1'); e('v_lshlrev_b32 v253, 3, v0'); e(f's_mov_b64 exec, {mask64(idxs)}')
        e('buffer_store_dwordx2 v[254:255], v253, s[8:11], s84 offen')
    def if_class(target, want):
        e(f's_cmp_eq_u32 s{sCls}, {want}'); e(f's_cbranch_scc1 {target}')
    def load_epoch():
        e(f's_mov_b32 s{sE}, {EP}')
        e(f's_load_dword s{sE}, s[{sWs}:{sWs+1}], s{sE}')
    def tag(r, vTag): e(f'v_and_or_b32 v{r}, v{r}, s{sNF}, v{vTag}')
    def xcc(dst):
        e(f's_getreg_b32 s{dst}, hwreg(HW_REG_XCC_ID, 0, 4)')
        if xfake: e(f's_lshr_b32 s{dst}, s2, 7')
    def check(regs, t, vTag, vTag3=None):
        regs = list(regs)
        for k, r in enumerate(regs): e(f'v_xor_b32 v{r}, v{r}, v{vTag3 if (vTag3 and k & 3 == 3) else vTag}')
        e(f'v_or3_b32 v{t}, v{regs[0]}, v{regs[1]}, v{regs[2]}')
        rest = regs[3:]
        while len(rest) >= 2:
            e(f'v_or3_b32 v{t}, v{t}, v{rest[0]}, v{rest[1]}'); rest = rest[2:]
        e(f'v_bitop3_b32 v{t}, v{t}, v{rest[0]}, s{sNF} bitop3:0x54')
        e(f'v_cmp_ne_u32 vcc, 0, v{t}')
    def spin(n, loads, wait, test, again='vccnz', sleep=0):
        l = lab('sp')
        e(f's_mov_b32 s{sSpin}, {n}')
        e(f'{l}:')
        if sleep: e(f's_sleep {sleep}')
        loads()
        e(f's_sub_u32 s{sSpin}, s{sSpin}, 1'); e(f's_cbranch_scc1 {l}x')
        e(f's_waitcnt {wait}')
        test()
        e(f's_cbranch_{again} {l}')
        e(f'{l}x:')
        e(f's_waitcnt {wait}')
    def rowred(op, r):
        for ctl in ('quad_perm:[1,0,3,2]', 'quad_perm:[2,3,0,1]', 'row_half_mirror', 'row_mirror'):
            e('s_nop 1')
            e(f'{op}_dpp v{r}, v{r}, v{r} {ctl} {DPPF}')
    def allred(op, r, tmp):
        rowred(op, r)
        for sw in ('v_permlane16_swap_b32', 'v_permlane32_swap_b32'):
            e(f'v_mov_b32 v{tmp}, v{r}'); e('s_nop 1'); e(f'{sw} v{tmp}, v{r}'); e('s_nop 1')
            e(f'{op} v{r}, v{r}, v{tmp}')
    sE0, sE1, sPa, sCnt, sTm, sRd, sPr, sRn = 92, 93, 94, 95, 96, 100, 101, 69
    def probe_loop(srd='s[12:15]'):
        l = lab('pr')
        e(f'{l}:')
        e(f's_memtime s[{sTm}:{sTm+1}]')
        e(f's_and_b32 s{sT2}, s{sRn}, 0x3df80')
        e(f's_xor_b32 s{sT2}, s{sT2}, s{sPa}')
        e('s_waitcnt lgkmcnt(0)')
        e(f's_buffer_load_dword s{sPr}, {srd}, s{sT2}')
        e('s_waitcnt lgkmcnt(0)')
        e(f's_memtime s[{sTm+2}:{sTm+3}]')
        e('s_waitcnt lgkmcnt(0)')
        e(f's_sub_u32 s{sT0}, s{sTm+2}, s{sTm}')
        e(f's_cmp_lt_u32 s{sT0}, {pmin}')
        e(f's_cselect_b32 s{sT0}, 0x10000, s{sT0}')
        e(f's_bitcmp1_b32 s{sPa}, 13')
        e(f's_cselect_b32 s{sT1}, 0x10000, s{sT0}')
        e(f's_cselect_b32 s{sT0}, s{sT0}, 0x10000')
        e(f's_min_u32 s{sE0}, s{sE0}, s{sT1}')
        e(f's_min_u32 s{sE1}, s{sE1}, s{sT0}')
        e(f's_xor_b32 s{sPa}, s{sPa}, 0x2000')
        e(f's_add_u32 s{sRn}, s{sRn}, s{sTm+2}')
        e(f's_mul_i32 s{sRn}, s{sRn}, 0x9e3779b1')
        e(f's_lshr_b32 s{sT0}, s{sRn}, 14')
        e(f's_xor_b32 s{sRn}, s{sRn}, s{sT0}')
        e(f's_sub_u32 s{sCnt}, s{sCnt}, 1')
        e(f's_cmp_lg_u32 s{sCnt}, 0')
        e(f's_cbranch_scc1 {l}')
    def evidence(vR, lead, nv, sE, skip, clip=clip):
        e(f's_sub_i32 s{sE0}, s{sE0}, s{sE1}'); e(f's_min_i32 s{sE0}, s{sE0}, {clip}'); e(f's_max_i32 s{sE0}, s{sE0}, {-clip}')
        e(f's_lshl_b32 s{sT0}, s{sRd}, 2')
        e('s_mov_b64 exec, 1')
        e(f'v_mov_b32 v{vR}, s{sT0}'); e(f'v_mov_b32 v{vR+1}, s{sE0}'); e(f'v_mov_b32 v{vR+2}, 1')
        e(f'ds_add_u32 v{vR}, v{vR+1} offset:{L_EV}')
        e(f'ds_add_u32 v{vR}, v{vR+2} offset:{L_CN2}')
        e(f's_cmp_lg_u32 s{sW}, {lead}'); e(f's_cbranch_scc1 {skip}')
        spin(SPIN * 8, lambda: e(f'ds_read_b32 v{vR+2}, v{vR} offset:{L_CN2}'), 'lgkmcnt(0)', lambda: e(f'v_cmp_ne_u32 vcc, {nv}, v{vR+2}'))
        e(f'ds_read_b32 v{vR+4}, v{vR} offset:{L_EV}')
        for r in range(5, 8): e(f'v_mov_b32 v{vR+r}, s{sE}')
        e(f's_lshl_b32 s{sT0}, s2, 8'); e(f's_lshl_b32 s{sT1}, s{sRd}, 6'); e(f's_add_u32 s{sT0}, s{sT0}, s{sT1}')
        e(f's_add_u32 s{sT0}, s{sT0}, {EV}'); e(f's_xor_b32 s{sT1}, s{sT0}, 0x400')
        e('s_waitcnt lgkmcnt(0)')
        e(f'buffer_store_dwordx4 v[{vR+4}:{vR+7}], off, s[8:11], s{sT0} sc1')
        def evtest():
            e(f'v_xor_b32 v{vR+9}, s{sE}, v{vR+9}'); e(f'v_xor_b32 v{vR+10}, s{sE}, v{vR+10}')
            e(f'v_or_b32 v{vR+9}, v{vR+9}, v{vR+10}')
            e(f'v_cmp_ne_u32 vcc, 0, v{vR+9}')
        spin(SPIN, lambda: e(f'buffer_load_dwordx4 v[{vR+8}:{vR+11}], off, s[8:11], s{sT1} sc1'), 'vmcnt(0)', evtest)
        e(f'v_sub_u32 v{vR+2}, v{vR+4}, v{vR+8}')
        e(f'v_sub_u32 v{vR+3}, v{vR+8}, v{vR+4}')
        e(f's_cmp_eq_u32 s{sSide}, 0')
        e('s_cselect_b64 vcc, -1, 0')
        e(f'v_cndmask_b32 v{vR+2}, v{vR+3}, v{vR+2}, vcc')
        if diag:
            e(f's_lshl_b32 s84, s2, 4'); e(f's_add_u32 s84, s84, {STAMP + 0x18000}')
            e(f'buffer_store_dword v{vR+2}, v{vR}, s[8:11], s84 offen')
        e(f'v_cmp_lt_i32 vcc, 0, v{vR+2}')
        e('s_nop 1')
        e(f'v_cndmask_b32 v{vR+2}, 0, 1, vcc')
        e(f'v_xor_b32 v{vR+2}, s{sSide}, v{vR+2}')
        e(f'ds_write_b32 v{vR}, v{vR+2} offset:{L_KAP}')
    def probe_seed(w0):
        e(f's_lshl_b32 s{sT0}, s{sB}, 5'); e(f's_add_u32 s{sT0}, s{sT0}, s{sH}'); e(f's_lshl_b32 s{sPa}, s{sT0}, 21')
        e(f's_lshl_b32 s{sT0}, s{sSide}, 18'); e(f's_add_u32 s{sPa}, s{sPa}, s{sT0}')
        e(f's_sub_u32 s{sT0}, s{sW}, {w0}'); e(f's_mul_i32 s{sT0}, s{sT0}, 0x82000'); e(f's_and_b32 s{sT0}, s{sT0}, 0x182000'); e(f's_add_u32 s{sPa}, s{sPa}, s{sT0}')
        e(f's_memtime s[{sTm}:{sTm+1}]'); e('s_waitcnt lgkmcnt(0)')
        e(f's_mul_i32 s{sRn}, s{sTm}, 0x9e3779b1'); e(f's_lshr_b32 s{sRn}, s{sRn}, 9')
    def smask(s, ns):
        m = mask64(ns)
        e(f's_mov_b32 s{s}, 0x{m & 0xffffffff:08x}'); e(f's_mov_b32 s{s+1}, 0x{m >> 32:08x}')

    X0, X1, X2 = 60, 124, 188
    vOff = 2; vL16 = 6; vPd = 7; vQ = 8; vS = 12; vT = 20; vMask = 44; vAcc = 48; vAccB = 52; vP = 56
    vPA = 124; vMl = 128; vF = 132; vLv = 156; vZz = 157; vPat = 160; vPs = 164; vPPa = 168
    vW = 124; vWa = 170; vYa = 171; vTg2 = 172; vYw = 173; vYr = 174; vBt = 176; vAo = 208; vDD = 224; vAr = 244
    sLvl = 50; sOff, sN = 53, 54; sKp = 55; sCk, sRc, sRk = 56, 58, 59; sM3, sM4 = 60, 62; sC = 64; sIsC = 65
    sKV = 66; sXB = 67; sMap = 68; sHk = 70; sWb, sSeg = 72, 73; sX = 77; sVk = 78; sLh = 86
    sYd = 12; s7f = 13; sPPa = 14; sPPb = 15
    T = vT
    e(f'v_lshlrev_b32 v{vL16}, 4, v0')
    e(f'v_bfe_u32 v{vOff+1}, v0, 4, 1')
    e(f'v_lshl_add_u32 v{vOff}, v{vOff+1}, 15, v{vL16}')
    e(f'v_lshrrev_b32 v{vOff+1}, 5, v0')
    e(f'v_lshl_add_u32 v{vOff}, v{vOff+1}, 13, v{vOff}')
    e(f's_lshl_b32 s{sT0}, s{sW}, 8'); e(f's_lshl_b32 s{sT1}, s{sSide}, 13'); e(f's_or_b32 s{sT0}, s{sT0}, s{sT1}')
    e(f'v_xor_b32 v{vOff}, s{sT0}, v{vOff}')
    for j in range(1, 4): e(f'v_xor_b32 v{vOff+j}, {(j << 8) | ((j >> 1) << 16)}, v{vOff}')
    e(f's_lshl_b32 s{sT0}, s{sB}, 5'); e(f's_add_u32 s{sT0}, s{sT0}, s{sH}'); e(f's_lshl_b32 s{sWb}, s{sT0}, 21')
    e(f's_and_b32 s{sT0}, s{sW}, 1'); e(f's_lshl_b32 s{sT0}, s{sT0}, 12'); e(f's_add_u32 s{sWb}, s{sWb}, s{sT0}')
    e(f's_lshr_b32 s{sT0}, s{sW}, 1'); e(f's_lshl_b32 s{sT0}, s{sT0}, 14'); e(f's_add_u32 s{sWb}, s{sWb}, s{sT0}')
    e(f's_add_u32 s{sOff}, s{sWb}, 0x180000')
    e('s_mov_b32 s6, 0x10000000')
    e(f's_mov_b32 s{sKp}, 0')
    if nearB: e(f's_cmp_eq_u32 s{sCls}, 1')
    e('s_waitcnt lgkmcnt(0)')
    e(f's_mov_b32 s4, s{sBk}'); e(f's_mov_b32 s5, s{sBk+1}')
    def issue(buf, i):
        v = buf + 4 * i
        e(f'buffer_load_dwordx4 v[{v}:{v+3}], v{vOff + (i >> 2)}, s[4:7], s{sOff} offen offset:{(i & 3) * 1024} nt')
    def kappa(rnd, dst):
        e(f'v_mov_b32 v{T+1}, 0')
        spin(SPIN * 8, lambda: e(f'ds_read_b32 v{T}, v{T+1} offset:{L_KAP + 4 * rnd}'), 'lgkmcnt(0)',
             lambda: e(f'v_cmp_eq_u32 vcc, -1, v{T}'))
        e(f'v_readfirstlane_b32 s{dst}, v{T}')
        e(f's_and_b32 s{dst}, s{dst}, 1')
        if flip >> rnd & 1: e(f's_xor_b32 s{dst}, s{dst}, 1')
    def go_near():
        for j in range(4): e(f'v_and_b32 v{vOff + j}, 0xffffdfff, v{vOff + j}')
    def switch(ptr, kap, base):
        e(f's_mov_b32 s4, s{ptr}'); e(f's_mov_b32 s5, s{ptr+1}')
        e(f's_lshl_b32 s{sT0}, s{kap}, 13'); e(f's_add_u32 s{sOff}, s{sWb}, s{sT0}')
        e(f's_add_u32 s{sOff}, s{sOff}, {base & 0xffffffff}')
    if nearB: e('s_cbranch_scc1 L_late0')
    for i in range(early): issue(X1, i)
    if nearB and selfp:
        e('s_branch L_late0b')
        e('L_late0:')
        e(f's_buffer_load_dword s{sPr}, s[4:7], s{sOff}')
        e('L_late0b:')
    else:
        e('L_late0:')
    load_epoch()
    e(f's_mov_b32 s8, s{sWs}'); e(f's_mov_b32 s9, s{sWs+1}')
    if diag: e('v_writelane_b32 v254, s80, 0'); e('v_writelane_b32 v255, s81, 0')
    e(f's_mov_b32 s{sM3}, 0xcccccccc'); e(f's_mov_b32 s{sM3+1}, 0xcccccccc')
    e(f's_mov_b32 s{sM4}, 0xaaaaaaaa'); e(f's_mov_b32 s{sM4+1}, 0xaaaaaaaa')
    e(f's_mov_b32 s{sC}, {f32(128 ** -0.5 * math.log2(math.e))}')
    e(f'v_and_b32 v{T}, 15, v0')
    e(f'v_lshlrev_b32 v1, 4, v{T}')
    e(f'v_and_b32 v{T+1}, 1, v0')
    e(f'v_lshlrev_b32 v{T+1}, 4, v{T+1}')
    e(f'v_mov_b32 v{T+2}, 0xffff')
    e(f'v_lshlrev_b32 v{T+2}, v{T+1}, v{T+2}')
    e(f'v_lshrrev_b32 v{T}, 1, v{T}')
    for r in range(4):
        e(f'v_cmp_eq_u32 vcc, {4 + r}, v{T}')
        e(f'v_mov_b32 v{vAcc + r}, 0')
        e(f'v_mov_b32 v{vS + r}, 0xff800000')
        e(f'v_cndmask_b32 v{vMask + r}, 0, v{T+2}, vcc')
    e(f'v_mov_b32 v{vS + 4}, 0xff800000')
    smask(sHk, [4, 7, 8, 16, 23, 24, 32, fat, 39, 40])
    smask(sVk, list(range(5, 9)) + list(range(25, 41)))
    smask(sLh, [4, 16, 24])
    if up: smask(88, up)
    if dn: smask(90, dn)
    m = mask64(cks)
    e(f's_cmp_eq_u32 s{sW}, 0')
    e(f's_cselect_b32 s{sCk}, 0x{m & 0xffffffff:08x}, 0'); e(f's_cselect_b32 s{sCk+1}, 0x{m >> 32:08x}, 0')
    e(f's_lshl_b32 s{sRc}, s{sH}, 8'); e(f's_add_u32 s{sRc}, s{sRc}, {RC}')
    e(f's_mov_b32 s{sMap}, 0x210'); e(f's_mov_b32 s{sLvl}, {lvl0}')
    e(f's_mov_b32 s{sKV}, 0'); e(f's_mov_b32 s{sX}, 0'); e(f's_mov_b32 s{sXB}, 0')
    e(f's_mov_b32 s{sN}, 4'); e(f's_mov_b32 s{sSeg}, 2')
    def selfprobe():
        probe_seed(0)
        e(f's_mov_b32 s{sE0}, 0x10000'); e(f's_mov_b32 s{sE1}, 0x10000'); e(f's_mov_b32 s{sRd}, 0'); e(f's_mov_b32 s{sCnt}, {selfp}')
        probe_loop('s[4:7]')
    if nearB and pfirst:
        if_class('L_late2', 0)
        selfprobe()
        e('L_late2:')
    e('s_barrier')
    if nearB:
        if_class('L_late1', 0)
        if selfp:
            if not pfirst: selfprobe()
            e(f's_add_u32 s{sPr}, s{sE}, 1')
            evidence(vT + 4, 0, 4, sPr, 'L_sp0', clip0)
            e('L_sp0:')
            e('s_mov_b64 exec, -1')
        kappa(0, sKp)
        go_near()
        e(f's_lshl_b32 s{sT0}, s{sKp}, 13'); e(f's_add_u32 s{sOff}, s{sOff}, s{sT0}')
        e(f's_mov_b32 s{sLvl}, {lvlc}')
        for i in range(early): issue(X1, i)
        e('L_late1:')
    def qread():
        e(f'ds_read_b32 v{vP}, v{vPd} offset:{L_QF}')
        e(f'ds_read_b128 v[{vQ}:{vQ+3}], v1 offset:{L_Q + 256}')
    k = 0
    for buf in (X1, X2, X0):
        for i in range(16):
            if k >= early:
                if qflag and k == 46:
                    e(f'v_mov_b32 v{vPd}, 0')
                    qread()
                if nearB and DN:
                    if i == 0 or k == early: e(f's_cmp_eq_u32 s{sCls}, 1')
                    e(f's_waitcnt vmcnt({DN - 1})'); e(f's_cbranch_scc1 L_pf{k}')
                if k >= max(DB, burst) and k < 48 - pb: e(f's_waitcnt vmcnt({max(DB, burst - (k - burst) // 2) - 1})')
                if nearB and DN: e(f'L_pf{k}:')
                issue(buf, i)
            k += 1
        e(f's_add_u32 s{sOff}, s{sOff}, 0x20000')
    stamp(1, 0)
    if qflag:
        e('s_waitcnt lgkmcnt(0)')
        e(f'v_cmp_ne_u32 vcc, 0, v{vP}')
        e('s_cbranch_vccz L_qok')
        spin(SPIN * 8, qread, 'lgkmcnt(0)', lambda: e(f'v_cmp_ne_u32 vcc, 0, v{vP}'))
        e('L_qok:')
    else:
        e('s_barrier')
        e(f'ds_read_b128 v[{vQ}:{vQ+3}], v1 offset:{L_Q + 256}')
        e('s_waitcnt lgkmcnt(0)')
    stamp(2, 0)

    def setflags():
        if up:
            e(f's_bitcmp1_b64 s[88:89], s{sN}'); e(f's_cselect_b32 s{sLvl}, {uplvl}, s{sLvl}')
        if dn:
            e(f's_bitcmp1_b64 s[90:91], s{sN}'); e(f's_cselect_b32 s{sLvl}, {dnlvl}, s{sLvl}')
        e(f's_cmp_ge_u32 s{sN}, {41 - endb}')
        e(f's_cselect_b32 s{sLvl}, 3, s{sLvl}')
        e(f's_bitcmp0_b32 s{sLvl}, 0')
        e('s_cselect_b64 vcc, -1, 0')
        e(f's_bitcmp1_b32 s{sLvl}, 1')
    def body_begin(t):
        if diag:
            e('s_memrealtime s[82:83]'); e(f's_mov_b32 m0, s{sN}'); e('s_waitcnt lgkmcnt(0)')
            e('v_writelane_b32 v252, s82, m0')
        e(f's_bitcmp1_b64 s[{sCk}:{sCk+1}], s{sN}')
        e(f's_cselect_b32 s{sIsC}, 1, 0')
        e(f's_cbranch_scc0 L_nt{t}')
        e(f's_mov_b32 s{sRk}, 1')
        e(f's_atomic_add s{sRk}, s[{sWs}:{sWs+1}], s{sRc} glc')
        e(f'L_nt{t}:')
        setflags()
    def throttle(t, i):
        if i == rcat:
            e(f's_cmp_eq_u32 s{sIsC}, 0')
            e(f's_cbranch_scc1 L_nu{t}')
            e('s_waitcnt lgkmcnt(0)')
            e(f's_add_u32 s{sRc}, s{sRc}, 8192')
            e(f's_cmp_ge_u32 s{sRk}, {th[0]}'); e(f's_cselect_b32 s{sT0}, 4, 0')
            e(f's_cmp_ge_u32 s{sRk}, {th[1]}'); e(f's_cselect_b32 s{sT0}, 8, s{sT0}')
            e(f's_lshr_b32 s{sT0}, s{sMap}, s{sT0}'); e(f's_and_b32 s{sT0}, s{sT0}, 7')
            e(f'v_mov_b32 v{vLv}, s{sT0}')
            e(f'ds_write_b32 v{vZz}, v{vLv} offset:{L_LVL}')
            e(f'L_nu{t}:')
            e(f's_bitcmp1_b32 s{sLvl}, 1')
        if i == rcat + 2:
            e(f'ds_read_b32 v{vLv}, v{vZz} offset:{L_LVL}')
        if i == rcat + 3:
            e('s_waitcnt lgkmcnt(0)')
            e(f'v_readfirstlane_b32 s{sLvl}, v{vLv}')
            setflags()
        pre = t == 'k' and i >= 16 - prek
        if pre and i == 16 - prek:
            e(f's_bitcmp1_b64 s[{sLh}:{sLh+1}], s{sN}')
            e('s_cselect_b64 vcc, 0, vcc')
            e(f's_cselect_b32 s{sT0}, 3, s{sLvl}')
            e(f's_bitcmp1_b32 s{sT0}, 1')
        fr = (0, 0.5, 0.25, 0.75)[i & 3]
        dd = [int(x + fr) for x in (rcv if t == 'v' else rc)]
        dx = int(xlo + fr)
        go = f'L_go{t}{i}'
        if t == 'v' or pre or kfull:
            e(f's_waitcnt vmcnt({dmax - 1})')
            e(f's_cbranch_scc0 L_lo{t}{i}')
            e(f's_cbranch_vccz {go}')
            e(f'L_lo{t}{i}:')
        e(f's_waitcnt vmcnt({dd[2]-1})')
        e(f's_cbranch_scc1 {go}')
        e(f's_waitcnt vmcnt({dd[1]-1})')
        if dx != dd[1]:
            e(f's_cbranch_vccz {go}')
            if dd[0] != dd[1]: e(f's_waitcnt vmcnt({dd[0]-1})')
        if dx != dd[0]:
            e(f's_cmp_eq_u32 s{sLvl}, 4')
            e(f's_cbranch_scc0 {go}')
            e(f's_waitcnt vmcnt({dx-1})')
            e(f's_cmp_eq_u32 s{sLvl}, 0')
        e(f'{go}:')
    def kops(buf, R):
        dots = [[] for _ in range(20)]; post = [[] for _ in range(20)]
        for i in range(16):
            t = R + i % 3; kk = buf + 4 * i
            dots[i].append(f'v_dot2_f32_bf16 v{t}, v{kk}, v{vQ}, 0')
            for r in range(1, 4): dots[i].append(f'v_dot2_f32_bf16 v{t}, v{kk + r}, v{vQ + r}, v{t}')
            a = R + 3 + ((i >> 1) & 1); b = R + 5 + ((i >> 2) & 1)
            bm1 = '0x3' if i % 2 == 0 else '0xc'
            bm2 = '0x5' if (i >> 1) % 2 == 0 else '0xa'
            post[i + 1].append(f'v_add_f32_dpp v{a}, v{t}, v{t} row_ror:8 row_mask:0xf bank_mask:{bm1}')
            if i % 2 == 1: post[i + 2].append(f'v_add_f32_dpp v{b}, v{a}, v{a} row_half_mirror row_mask:0xf bank_mask:{bm2}')
            if i % 4 == 3: post[i + 3].append(f'v_add_f32_dpp v{b}, v{b}, v{b} quad_perm:[2,3,0,1] {DPPF}')
            if i % 8 == 7:
                c = R + 7 if i == 7 else R + 5
                post[i + 3].append(f'v_cndmask_b32 v{c}, v{R+5}, v{R+6}, s[{sM3}:{sM3+1}]')
                post[i + 4].append(f'v_add_f32_dpp v{c}, v{c}, v{c} quad_perm:[1,0,3,2] {DPPF}')
        return [dots[i] + post[i] for i in range(20)]
    def kfinal(R, dst): e(f'v_cndmask_b32 v{dst}, v{R+7}, v{R+5}, s[{sM4}:{sM4+1}]')
    def ktail(sets):
        for s_ in range(16, 20):
            e('s_nop 2' if s_ == 16 else 's_nop 1')
            for st in sets:
                for op in st[s_]: e(op)
    sets = [kops(X0, vT), kops(X1, vT + 8), kops(X2, vT + 16)]
    for i in range(16):
        for op in sets[0][i]: e(op)
        if nearB and DN:
            if i == 0: e(f's_cmp_eq_u32 s{sCls}, 1')
            e(f's_waitcnt vmcnt({DN - 1})'); e(f's_cbranch_scc1 L_cf{i}')
        e(f's_waitcnt vmcnt({(DC or DB)-1})')
        if nearB and DN: e(f'L_cf{i}:')
        issue(X0, i)
        for st in sets[1:]:
            for op in st[i]: e(op)
    ktail(sets)
    kfinal(vT + 8, vS + 5); kfinal(vT + 16, vS + 6); kfinal(vT, vS + 7)
    e(f's_add_u32 s{sE}, s{sE}, 1')
    e(f'v_mov_b32 v{vZz}, 0')
    if_class('L_nc3', 0)
    e(f'v_and_b32 v{T}, 3, v0')
    e(f'v_lshlrev_b32 v{T}, 3, v{T}')
    e(f's_and_b32 s{sT0}, s{sE}, 0xffffff00')
    e(f'v_lshrrev_b32 v{T}, v{T}, s{sT0}')
    e(f'v_mul_u32_u24 v{T+1}, 37, v0')
    e(f'v_xor_b32 v{T}, s{sE}, v{T}')
    e(f'v_xor_b32 v{T}, v{T+1}, v{T}')
    for r in range(4):
        e(f'v_bfe_u32 v{T+1}, v{T}, {2*r}, 1')
        e(f'v_bfe_u32 v{T+2}, v{T}, {2*r+1}, 1')
        e(f'v_lshlrev_b32 v{T+1}, 15, v{T+1}')
        e(f'v_lshl_or_b32 v{vPat + r}, v{T+2}, 31, v{T+1}')
    e(f's_mov_b32 s{s7f}, 0x7fff7fff')
    e(f'v_lshrrev_b32 v{T}, 4, v0')
    e(f'v_lshl_add_u32 v{vPPa}, v{T}, 15, v{vL16}')
    e(f's_and_b32 s{sT0}, s{sW}, 1'); e(f's_lshl_b32 s{sT0}, s{sT0}, 9')
    e(f'v_xor_b32 v{vPPa}, s{sT0}, v{vPPa}')
    e(f'v_xor_b32 v{vPPa+1}, 0x100, v{vPPa}')
    e(f's_lshr_b32 s{sT0}, s{sW}, 1'); e(f's_lshl_b32 s{sT0}, s{sT0}, 10')
    e(f's_and_b32 s{sT1}, s2, 15'); e(f's_lshl_b32 s{sT1}, s{sT1}, 11'); e(f's_add_u32 s{sT0}, s{sT0}, s{sT1}')
    e(f's_lshr_b32 s{sT1}, s2, 4'); e(f's_lshl_b32 s{sT1}, s{sT1}, 17'); e(f's_add_u32 s{sT0}, s{sT0}, s{sT1}')
    e(f's_add_u32 s{sPPa}, s{sT0}, {PP + 0x200000}')
    e(f's_xor_b32 s{sPPb}, s{sPPa}, 0x2000')
    e(f's_or_b32 s{sHk}, s{sHk}, 0x{mask64([22, 30, 31]):08x}')
    e(f's_mov_b32 s{sMap}, {nmap[0] | nmap[1] << 4 | nmap[2] << 8}')
    if nearB:
        kappa(1, sKV)
        e(f's_xor_b32 s{sXB}, s{sKp}, s{sKV}')
        e(f's_mov_b32 s{sX}, s{sXB}')
    e('L_nc3:')
    switch(sBv, sKV, 0x180000)
    stamp(3, 0)

    def body_end(name):
        e(f's_bitcmp1_b64 s[{sHk}:{sHk+1}], s{sN}')
        e('s_cbranch_scc1 L_hooks')
        e(f's_add_u32 s{sOff}, s{sOff}, 0x20000')
        e(f's_add_u32 s{sN}, s{sN}, 1')
        e(f's_branch {name}')
    e('L_kbody:')
    ks = kops(X0, vT)
    body_begin('k')
    for i in range(16):
        for op in ks[i]: e(op)
        if i < 7: e(f'v_mov_b32 v{vS + i}, v{vS + i + 1}')
        throttle('k', i)
        issue(X0, i)
    ktail([ks])
    kfinal(vT, vS + 7)
    body_end('L_kbody')

    e('L_vbody:')
    e(f'v_and_b32 v{vPd}, 0xffff, v{vP}')
    e(f'v_lshl_or_b32 v{vPd}, v{vPd}, 16, v{vPd}')
    for r in range(3): e(f'v_alignbit_b32 v{vP + r}, v{vP + r + 1}, v{vP + r}, 16')
    e(f'v_lshrrev_b32 v{vP+3}, 16, v{vP+3}')
    def vand(i):
        for r in range(4):
            e(f'v_and_b32_dpp v{vS + 4 * (i & 1) + r}, v{vPd}, v{vMask + r} row_newbcast:{br4(i)} {DPPF}')
    body_begin('v')
    vand(0)
    for i in range(16):
        if i < 15: vand(i + 1)
        a = vS + 4 * (i & 1); v = X0 + 4 * i
        e(f'v_mfma_f32_16x16x32_bf16 v[{vAcc}:{vAcc+3}], v[{a}:{a+3}], v[{v}:{v+3}], v[{vAcc}:{vAcc+3}]')
        throttle('v', i)
        issue(X0, i)
    body_end('L_vbody')

    e('L_hooks:')
    e(f's_cmp_eq_u32 s{sN}, 40'); e('s_cbranch_scc1 L_sfin')
    for n in (39, 7, 8, 23, 32, fat, 22, 30, 31):
        e(f's_cmp_eq_u32 s{sN}, {n}'); e(f's_cbranch_scc1 L_h{n}')
    def pload(seg): e(f'buffer_load_dwordx4 v[{vPA}:{vPA+3}], v{vPPa + seg}, s[8:11], s{sPPb} offen sc1')
    def ptest():
        for r in range(4): e(f'v_xor_b32 v{vPA + r}, v{vPA + r}, v{vPat + r}')
        e(f'v_or3_b32 v{T}, v{vPA}, v{vPA+1}, v{vPA+2}')
        e(f'v_bitop3_b32 v{T}, v{T}, v{vPA+3}, s{s7f} bitop3:0x54')
        e(f'v_cmp_ne_u32 vcc, 0, v{T}')
    def pcheck(seg):
        l = lab('pc')
        e(f's_cmp_eq_u32 s{sX}, 0'); e(f's_cbranch_scc1 {l}')
        ptest()
        e(f's_cbranch_vccz {l}')
        spin(SPIN, lambda: pload(seg), 'vmcnt(0)', ptest)
        e(f'{l}:')
    for r in range(4): e(f'v_mov_b32 v{vP + r}, v{vPA + r}')
    e(f'v_max3_f32 v{T}, v{vS}, v{vS+1}, v{vS+2}')
    e(f'v_max3_f32 v{T+1}, v{vS+3}, v{vS+4}, v{vS+5}')
    e(f'v_max3_f32 v{T}, v{T}, v{vS+6}, v{vS+7}')
    e(f'v_max_f32 v{T}, v{T}, v{T+1}')
    allred('v_max_f32', T, T + 1)
    e(f'v_mul_f32 v{T+2}, s{sC}, v{T}')
    for r in range(8): e(f'v_fma_f32 v{vS + r}, v{vS + r}, s{sC}, -v{T+2}')
    for r in range(8): e(f'v_exp_f32 v{vS + r}, v{vS + r}')
    e(f'v_cmp_eq_u32 vcc, s{sSeg}, v0')
    for r in range(4): e(f'v_cvt_pk_bf16_f32 v{vPA + r}, v{vS + 2*r}, v{vS + 2*r + 1}')
    e(f'v_cndmask_b32 v{vMl}, v{vMl}, v{T+2}, vcc')
    for r in range(4): e(f'v_add_f32 v{vS + 2*r}, v{vS + 2*r}, v{vS + 2*r + 1}')
    e(f'v_add_f32 v{vS}, v{vS}, v{vS+2}')
    e(f'v_add_f32 v{vS+4}, v{vS+4}, v{vS+6}')
    e(f'v_add_f32 v{T}, v{vS}, v{vS+4}')
    allred('v_add_f32', T, T + 1)
    e(f'v_cndmask_b32 v{vMl+1}, v{vMl+1}, v{T}, vcc')
    if_class('L_fin2', 0)
    e(f's_cmp_eq_u32 s{sN}, 16'); e('s_cbranch_scc0 L_fin1')
    kappa(3, sKV)
    e(f's_xor_b32 s{sX}, s{sKp}, s{sKV}')
    e('L_fin1:')
    e(f's_cmp_eq_u32 s{sX}, 0'); e('s_cbranch_scc1 L_fin2')
    for r in range(4): e(f'v_and_or_b32 v{vPs + r}, v{vPA + r}, s{s7f}, v{vPat + r}')
    e(f's_and_b32 s{sT0}, s{sSeg}, 1'); e(f's_lshl_b32 s{sT0}, s{sT0}, 8')
    e(f'v_xor_b32 v{T}, s{sT0}, v{vPPa}')
    e(f'buffer_store_dwordx4 v[{vPs}:{vPs+3}], v{T}, s[8:11], s{sPPa} offen sc1')
    e(f's_cmp_eq_u32 s{sN}, 4'); e('s_cbranch_scc0 L_fin2')
    spin(SPIN, lambda: pload(0), 'vmcnt(0)', ptest)
    e('L_fin2:')
    e(f's_cmp_eq_u32 s{sN}, 4'); e('s_cbranch_scc0 L_fin3')
    e(f'ds_read_b128 v[{vQ}:{vQ+3}], v1 offset:{L_Q}')
    e(f'v_mov_b32 v{vP}, v{vPA+2}'); e(f'v_mov_b32 v{vP+1}, v{vPA+3}')
    e(f's_mov_b32 s{sSeg}, 0')
    e(f's_sub_u32 s{sPPa}, s{sPPa}, 0x200000'); e(f's_sub_u32 s{sPPb}, s{sPPb}, 0x200000')
    e('s_waitcnt lgkmcnt(0)')
    e('s_branch L_h_done')
    e('L_fin3:')
    e(f's_mov_b32 s{sSeg}, 1')
    e(f's_cmp_eq_u32 s{sN}, 24'); e('s_cbranch_scc0 L_h_done')
    stamp(14, 0)
    e(f's_lshl_b32 s{sT1}, s{sW}, 6')
    e(f'v_mov_b32 v{vMl+2}, s{sE}'); e(f'v_mov_b32 v{vMl+3}, s{sE}')
    e(f'v_add_u32 v{T}, s{sT1}, v{vL16}')
    e('s_mov_b64 exec, 15')
    e(f'ds_write_b128 v{T}, v[{vMl}:{vMl+3}] offset:{L_ST}')
    e('s_mov_b64 exec, -1')
    e('s_branch L_h_done')
    e('L_h7:')
    stamp(15, 0)
    if_class('L_h7b', 0)
    kappa(2, sKp)
    if not nearB: go_near()
    e('L_h7b:')
    switch(sAk, sKp, -0x20000)
    e('s_branch L_h_done')
    e('L_h8:')
    for r in range(4): e(f'v_mov_b32_dpp v{vMask + r}, v{vMask + r} row_ror:8 {DPPF}')
    for r in range(4): e(f'v_mov_b32 v{vAccB + r}, v{vAcc + r}')
    for r in range(4): e(f'v_mov_b32 v{vAcc + r}, 0')
    e('s_branch L_h_done')
    for n, seg in ((22, 0), (30, 1)):
        e(f'L_h{n}:')
        e(f's_cmp_eq_u32 s{sX}, 0'); e('s_cbranch_scc1 L_h_done')
        pload(seg)
        e('s_branch L_h_done')
    e('L_h31:')
    pcheck(1)
    e('s_branch L_h_done')
    e('L_h23:')
    pcheck(0)
    switch(sAv, sKV, -0x20000)
    e('s_branch L_h_done')
    e('L_h32:')
    if emap:
        e(f's_mov_b32 s{sMap}, {emap[0] | emap[1] << 4 | emap[2] << 8}')
        e(f's_cmp_eq_u32 s{sCls}, 1'); e(f's_cselect_b32 s{sMap}, {enmap[0] | enmap[1] << 4 | enmap[2] << 8}, s{sMap}')
    for r in range(4): e(f'v_mov_b32_dpp v{vMask + r}, v{vMask + r} row_ror:8 {DPPF}')
    for r in range(4): e(f'v_mov_b32 v{vP + r}, v{vPA + r}')
    e('s_branch L_h_done')
    e(f'L_h{fat}:')
    e(f's_xor_b32 s{sT0}, s{sSide}, s{sX}'); e(f's_lshl_b32 s{sT0}, s{sT0}, 2'); e(f's_add_u32 s{sT0}, s{sT0}, s{sW}'); e(f's_lshl_b32 s{sT0}, s{sT0}, 3')
    e(f's_xor_b32 s{sT1}, s{sSide}, s{sXB}'); e(f's_lshl_b32 s{sT1}, s{sT1}, 2'); e(f's_add_u32 s{sT1}, s{sT1}, s{sW}'); e(f's_lshl_b32 s{sT1}, s{sT1}, 3')
    e(f'v_lshrrev_b32 v{T+4}, 5, v0')
    e(f'v_lshl_add_u32 v{T}, v{T+4}, 6, s{sT0}')
    e(f'v_mov_b32 v{T+1}, s{sT1}')
    def fload():
        e(f'ds_read_b64 v[{vF}:{vF+1}], v{T} offset:{L_F}')
        e(f'ds_read_b64 v[{T+2}:{T+3}], v{T+1} offset:{L_F + 128}')
    def ftest():
        e(f'v_cmp_ne_u32 vcc, s{sE}, v{vF+1}')
        e(f'v_cmp_ne_u32 s[{sT1}:{sT1+1}], s{sE}, v{T+3}')
        e(f's_or_b64 vcc, vcc, s[{sT1}:{sT1+1}]')
    spin(SPIN * 8, fload, 'lgkmcnt(0)', ftest, again='scc1')
    for r in range(4): e(f'v_mul_f32 v{vAccB + r}, v{T+2}, v{vAccB + r}')
    e(f'v_lshlrev_b32 v1, 1, v1')
    e(f'v_lshl_add_u32 v1, v{T+4}, 9, v1')
    e(f'v_and_b32 v{T}, 16, v0')
    e(f's_lshl_b32 s{sT0}, s{sW}, 10')
    e(f'v_add3_u32 v1, v1, v{T}, s{sT0}')
    e('s_branch L_h_done')
    e('L_h39:')
    e('s_mov_b32 s6, 0')
    e('L_h_done:')
    e(f's_add_u32 s{sOff}, s{sOff}, 0x20000')
    e(f's_add_u32 s{sN}, s{sN}, 1')
    e(f's_bitcmp1_b64 s[{sVk}:{sVk+1}], s{sN}')
    e('s_cbranch_scc1 L_vbody')
    e('s_branch L_kbody')
    e('L_sfin:')
    e('s_nop 1')
    for r in range(4): e(f'v_mul_f32 v{vAcc + r}, v{vF}, v{vAcc + r}')
    for r in range(4): e(f'v_permlane32_swap_b32 v{vAcc + r}, v{vAccB + r}')
    for r in range(4): e(f'v_add_f32 v{vAcc + r}, v{vAcc + r}, v{vAccB + r}')
    e(f'ds_write_b128 v1, v[{vAcc}:{vAcc+3}] offset:{L_O}')
    e('s_waitcnt lgkmcnt(0)')
    e('s_barrier')
    stamp(4, 0)
    e(f'v_lshrrev_b32 v{T}, 4, v0')
    e(f'v_and_b32 v{T+4}, 15, v0')
    e(f'v_lshlrev_b32 v{vWa}, 13, v{T}')
    e(f'v_lshl_add_u32 v{vWa}, v{T+4}, 4, v{vWa}')
    e(f's_lshl_b32 s{sT0}, s{sH}, 17'); e(f's_lshl_b32 s{sT1}, s{sU}, 8'); e(f's_add_u32 s{sT0}, s{sT0}, s{sT1}')
    e(f's_lshl_b32 s{sT1}, s{sW}, 15'); e(f's_add_u32 s{sT0}, s{sT0}, s{sT1}'); e(f's_add_u32 s{sT1}, s{sT0}, 4096')
    e(f's_cmp_eq_u32 s{sSide}, 0')
    e(f's_cselect_b64 s[4:5], s[{sAwo}:{sAwo+1}], s[{sBwo}:{sBwo+1}]')
    e('s_mov_b32 s6, 0x400000')
    e('s_barrier')
    for i in range(8):
        e(f'buffer_load_dwordx4 v[{vW + 4*i}:{vW + 4*i + 3}], v{vWa}, s[4:7], s{sT0 + (i >> 2)} offen offset:{(i & 3) * 1024} nt')
    e(f'v_and_b32 v{T+1}, 3, v0')
    e(f'v_lshlrev_b32 v{T+1}, 8, v{T+1}')
    e(f'v_lshl_add_u32 v{T+1}, v{T}, 4, v{T+1}')
    e(f's_lshl_b32 s{sT2}, s{sW}, 6'); e(f's_add_u32 s{sT2}, s{sT2}, {L_RED}')
    e(f'v_add_u32 v{T+1}, s{sT2}, v{T+1}')
    e(f'v_bfe_u32 v{T+2}, v0, 2, 2')
    e(f'v_mov_b32 v{T+3}, {L_Z}')
    for q in range(4):
        e(f'v_cmp_eq_u32 vcc, {q}, v{T+2}'); e('s_nop 1')
        e(f'v_cndmask_b32 v{vAr + q}, v{T+3}, v{T+1}, vcc')
    e(f's_lshl_b32 s{sT2}, s{sW}, 11')
    e(f'v_add_u32 v{vYw}, s{sT2}, v{vL16}')
    e(f'v_and_b32 v{vYr}, 0x1f0, v{vL16}')
    e(f'v_lshrrev_b32 v{T+1}, 5, v0')
    e(f'v_lshl_add_u32 v{vYr}, v{T+1}, 12, v{vYr}')
    e(f's_lshl_b32 s{sT2}, s{sW}, 9')
    e(f'v_add_u32 v{vYr}, s{sT2}, v{vYr}')
    e(f's_and_b32 s{sT2}, s{sW}, 1'); e(f's_lshl_b32 s{sT2}, s{sT2}, 1')
    e(f'v_and_or_b32 v{T}, v{T}, 1, s{sT2}')
    e(f's_lshl_b32 s{sT2}, s2, 1'); e(f's_and_b32 s{sT2}, s{sT2}, 127'); e(f's_lshr_b32 s{sYd}, s{sW}, 1'); e(f's_or_b32 s{sT2}, s{sT2}, s{sYd}')
    e(f'v_xor_b32 v{T+1}, s{sT2}, v{T}')
    e(f'v_lshlrev_b32 v{vYa}, 8, v{T+1}')
    e(f'v_lshl_add_u32 v{vYa}, v{T}, 15, v{vYa}')
    e(f'v_lshl_add_u32 v{vYa}, v{T+4}, 4, v{vYa}')
    e(f's_lshr_b32 s{sYd}, s2, 6'); e(f's_lshl_b32 s{sYd}, s{sYd}, 17'); e(f's_add_u32 s{s7f}, s{sYd}, {YF}')
    e(f's_add_u32 s{sT2}, s{sE}, 1'); e(f's_and_b32 s{sT2}, s{sT2}, 0xff')
    e(f'v_mov_b32 v{vTg2}, s{sT2}')
    if lazy:
        xcc(sT0)
        e(f'v_xor_b32 v{vWa}, s{sT0}, v{vTg2}')
    if preown:
        for r in range(4): e(f'v_xor_b32 v{vAcc + r}, 1, v{vTg2}')
        e('s_mov_b32 exec_hi, 0')
        e(f'buffer_store_dwordx4 v[{vAcc}:{vAcc+3}], v{vYa}, s[8:11], s{s7f} offen')
        e('s_mov_b32 exec_hi, -1')
    e(f's_mov_b32 s{sT0}, 0x05040100'); e(f's_mov_b32 s{sT1}, 0x07060302')
    def bar4():
        e('s_barrier')
        for q in range(4): e(f'ds_read_b128 v[{vAo + 4*q}:{vAo + 4*q + 3}], v{vAr + q}')
    for r in range(4):
        if r == afirst - 1: bar4()
        e(f's_waitcnt vmcnt({6 - 2 * r + preown})')
        for ee in range(8):
            e(f'v_perm_b32 v{vBt + 4*ee + r}, v{vW + 4*(2*r+1) + (ee >> 1)}, v{vW + 4*(2*r) + (ee >> 1)}, s{sT0 + (ee & 1)}')
    stamp(9, 0)
    if afirst == 0: bar4()
    for q in range(4):
        e(f's_waitcnt lgkmcnt({3 - q})')
        for t in range(2):
            d = vDD + 4 * t; ee = 2 * q + t
            c = f'v[{d}:{d+3}]' if q else '0'
            e(f'v_mfma_f32_16x16x32_bf16 v[{d}:{d+3}], v[{vAo + 4*q}:{vAo + 4*q + 3}], v[{vBt + 4*ee}:{vBt + 4*ee + 3}], {c}')
    e('s_nop 6')
    e(f'ds_write_b128 v{vYw}, v[{vDD}:{vDD+3}] offset:{L_Y}')
    e(f'ds_write_b128 v{vYw}, v[{vDD+4}:{vDD+7}] offset:{L_Y + 1024}')
    e('s_waitcnt lgkmcnt(0)')
    e('s_barrier')
    e(f'ds_read_b128 v[{vAcc}:{vAcc+3}], v{vYr} offset:{L_Y}')
    e(f'ds_read_b128 v[{vAccB}:{vAccB+3}], v{vYr} offset:{L_Y + 2048}')
    e('s_waitcnt lgkmcnt(0)')
    for r in range(4): e(f'v_add_f32 v{vAcc + r}, v{vAcc + r}, v{vAccB + r}')
    for r in range(4): e(f'v_permlane32_swap_b32 v{vAcc + r}, v{vAccB + r}')
    for r in range(4): e(f'v_add_f32 v{vAcc + r}, v{vAcc + r}, v{vAccB + r}')
    for r in range(4): tag(vAcc + r, vWa if (lazy and r == 3) else vTg2)
    e('s_mov_b32 exec_hi, 0')
    if fast: e(f'buffer_store_dwordx4 v[{vAcc}:{vAcc+3}], v{vYa}, s[8:11], s{s7f} offen {fpol}')
    if sdelay: e('s_waitcnt vmcnt(0)')
    if not lazy: e(f'buffer_store_dwordx4 v[{vAcc}:{vAcc+3}], v{vYa}, s[8:11], s{sYd} offen sc1')
    if diag:
        e(f's_cmp_lg_u32 s{sW}, 0'); e('s_cbranch_scc1 L_end')
        stamp(11)
        flush_stamps([0, 1, 2, 3, 4, 9, 11, 14, 15])
        e('s_mov_b64 exec, -1')
        e('s_lshl_b32 s84, s2, 8'); e(f's_add_u32 s84, s84, {STAMP + 0x8000}')
        e('v_lshlrev_b32 v253, 2, v0')
        e('buffer_store_dword v252, v253, s[8:11], s84 offen')
    e('s_endpgm')

    e('L_service:')
    sDst = 54
    sX3, sX4a, sX4b, sOo = 56, 57, 58, 59
    vG = 2; vC = 3; vA = 4; vA2 = 5; vL = 6; vZ = 7
    vXA = 8; vWt = 16; vSel = 48; vOpA = 56; vD = 64; vR = 72
    vA3 = 104; vTg = 105; vTg2 = 106; vX3 = 108; vX4 = 109; vOut = 110
    e(f's_sub_u32 s{sW}, s{sW}, 4')
    e(f'v_lshrrev_b32 v{vG}, 4, v0')
    e(f'v_and_b32 v{vC}, 15, v0')
    e(f'v_lshlrev_b32 v{vA}, 16, v{vG}')
    e(f'v_lshl_add_u32 v{vA}, v{vC}, 4, v{vA}')
    e(f'v_lshrrev_b32 v{vA2}, 3, v{vC}')
    e(f'v_lshlrev_b32 v{vA2}, 10, v{vA2}')
    e(f'v_lshl_add_u32 v{vA2}, v{vG}, 4, v{vA2}')
    e(f's_lshl_b32 s{sT0}, s{sU}, 7'); e(f's_lshl_b32 s{sT1}, s{sW}, 5'); e(f's_add_u32 s{sT0}, s{sT0}, s{sT1}')
    e(f's_lshl_b32 s{sT1}, s{sT0}, 1')
    e(f's_lshl_b32 s{sT0}, s{sT0}, 13'); e(f's_lshl_b32 s{sT2}, s{sH}, 8'); e(f's_add_u32 s{sT0}, s{sT0}, s{sT2}')
    e('s_mov_b32 s6, 0x400000'); e('s_mov_b32 s14, 4096'); e('s_mov_b32 s15, 0x20000')
    e(f's_cmp_eq_u32 s{sSide}, 0')
    e('s_waitcnt lgkmcnt(0)')
    e(f's_cselect_b64 s[4:5], s[{sAwq}:{sAwq+1}], s[{sBwq}:{sBwq+1}]')
    e(f's_cselect_b64 s[12:13], s[{sAx}:{sAx+1}], s[{sBx}:{sBx+1}]')
    for m in range(2 if xfirst else 0):
        e(f'buffer_load_dwordx4 v[{vXA + 4*m}:{vXA + 4*m + 3}], v{vA2}, s[12:15], s{sT1} offen offset:{2048*m}')
    for i in range(8):
        if not abl & 4: e(f'buffer_load_dwordx4 v[{vWt + 4*i}:{vWt + 4*i + 3}], v{vA}, s[4:7], s{sT0} offen nt')
        if i < 7: e(f's_add_u32 s{sT0}, s{sT0}, 8192')
    for m in range(0 if (xfirst or abl & 16) else 2):
        e(f'buffer_load_dwordx4 v[{vXA + 4*m}:{vXA + 4*m + 3}], v{vA2}, s[12:15], s{sT1} offen offset:{2048*m}')
    if l2w:
        e(f's_getpc_b64 s[{sTm}:{sTm+1}]')
        e('L_pc:')
        e(f's_lshl_b32 s{sT0}, s{sH}, 2'); e(f's_add_u32 s{sT0}, s{sT0}, s{sW}'); e(f's_lshl_b32 s{sT0}, s{sT0}, 7')
        e(f's_min_u32 s{sT0}, s{sT0}, L_end-L_pc')
        e(f's_add_u32 s{sT0}, s{sT0}, s{sTm}'); e(f's_addc_u32 s{sT1}, s{sTm+1}, 0')
        e(f'v_mov_b32 v{vR+2}, s{sT0}'); e(f'v_mov_b32 v{vR+3}, s{sT1}')
        e(f'global_load_dword v{vOut}, v[{vR+2}:{vR+3}], off')
    e('L_service2:')
    e(f'v_mov_b32 v{vZ}, 0')
    e(f'v_lshlrev_b32 v{vR}, 2, v0')
    e(f'v_cmp_lt_u32 vcc, 15, v0')
    e(f's_cmp_eq_u32 s{sCls}, {1 if nearB else 2}'); e(f's_cselect_b32 s{sT0}, {lvlc}, {lvl0}')
    e(f'v_cndmask_b32 v{vR+1}, 0, -1, vcc')
    e(f'v_writelane_b32 v{vR+1}, s{sT0}, 1')
    e(f'ds_write_b32 v{vR}, v{vR+1} offset:{L_CNT}')
    e('s_waitcnt lgkmcnt(0)')
    load_epoch()
    e('s_barrier')
    e(f's_mov_b32 s8, s{sWs}'); e(f's_mov_b32 s9, s{sWs+1}')
    e(f'v_lshlrev_b32 v{vL}, 4, v0')
    assert len(cks) <= 16
    e(f's_lshl_b32 s{sT0}, s{sW}, 3'); e(f's_add_u32 s{sT0}, s{sT0}, s{sJ}')
    e(f's_cmp_ge_u32 s{sT0}, {len(cks)}'); e('s_cbranch_scc1 L_norc')
    e(f's_lshl_b32 s{sT0}, s{sT0}, 5'); e(f's_add_u32 s{sT0}, s{sT0}, s{sH}'); e(f's_lshl_b32 s{sT0}, s{sT0}, 8'); e(f's_add_u32 s{sT0}, s{sT0}, {RC}')
    e('s_mov_b64 exec, 0xffff')
    if not abl & 8: e(f'buffer_store_dword v{vZ}, v{vR}, s[8:11], s{sT0} offen sc1')
    e('s_mov_b64 exec, -1')
    e('L_norc:')
    e(f'v_and_b32 v{vR}, 7, v0')
    e(f'v_and_b32 v{vR+1}, 1, v0')
    e(f'v_lshlrev_b32 v{vR+1}, 4, v{vR+1}')
    e(f'v_mov_b32 v{vR+2}, 0xffff')
    e(f'v_lshlrev_b32 v{vR+2}, v{vR+1}, v{vR+2}')
    e(f'v_lshrrev_b32 v{vR}, 1, v{vR}')
    e(f'v_mov_b32 v{vR+4}, 0x0c0c0c0c')
    e(f's_mov_b32 s{sT0}, 0x01000100'); e(f's_mov_b32 s{sT1}, 0x03020302')
    for r in range(4):
        e(f'v_cmp_eq_u32 vcc, {r}, v{vR}'); e('s_nop 1')
        e(f'v_cndmask_b32 v{vR+3}, 0, v{vR+2}, vcc')
        e(f'v_bfi_b32 v{vSel + r}, v{vR+3}, s{sT0}, v{vR+4}')
        e(f'v_bfi_b32 v{vSel + 4 + r}, v{vR+3}, s{sT1}, v{vR+4}')
    e(f'v_lshrrev_b32 v{vR}, 5, v0')
    e(f'v_lshlrev_b32 v{vA}, 9, v{vR}')
    e(f'v_lshl_add_u32 v{vA}, v{vC}, 5, v{vA}')
    e(f'v_and_b32 v{vR}, 16, v0')
    e(f's_lshl_b32 s{sT0}, s{sW}, 11')
    e(f'v_add3_u32 v{vA}, v{vA}, v{vR}, s{sT0}')
    e(f'v_lshl_add_u32 v{vA2}, v{vG}, 15, v{vL}')
    e(f's_lshl_b32 s{sT0}, s2, 1'); e(f's_and_b32 s{sT0}, s{sT0}, 127'); e(f's_lshl_b32 s{sT0}, s{sT0}, 8')
    e(f'v_xor_b32 v{vA2}, s{sT0}, v{vA2}')
    e(f'v_xor_b32 v{vA3}, 0x100, v{vA2}')
    e(f's_lshr_b32 s{sDst}, s2, 6'); e(f's_lshl_b32 s{sDst}, s{sDst}, 17')
    e('s_waitcnt lgkmcnt(0)')
    e(f's_add_u32 s{sE}, s{sE}, 1'); e(f's_and_b32 s{sTag}, s{sE}, 0xff'); e(f'v_mov_b32 v{vTg}, s{sTag}')
    def probe_setup():
        e(f's_mov_b64 s[12:13], s[{sBk}:{sBk+1}]')
        for r, p in ((1, sBv), (2, sAk), (3, sAv)):
            e(f's_cmp_eq_u32 s{sRd}, {r}'); e(f's_cselect_b64 s[12:13], s[{p}:{p+1}], s[12:13]')
        e('s_mov_b32 s14, 0x10000000')
        e(f's_mov_b32 s{sE0}, 0x10000'); e(f's_mov_b32 s{sE1}, 0x10000')
    e(f's_cmp_eq_u32 s{sW}, 0'); e(f's_cselect_b32 s{sCls}, 0, s{sCls}')
    e(f's_mov_b32 s{sRd}, {(1 if selfp else 0) if nearB else 2}')
    probe_setup()
    if_class('L_nop0', 0)
    probe_seed(1)
    if sh0 and nearB and not selfp:
        e(f's_mov_b32 s{sCnt}, {sh0}')
        probe_loop()
        e('s_branch L_padret')
    e('L_nop0:')
    if pads == 1:
        for w in range(3):
            e(f's_cmp_eq_u32 s{sW}, {w}'); e(f's_cbranch_scc1 L_pad{w}')
        e('s_branch L_pad3')
    e('L_padret:')
    e('s_waitcnt vmcnt(0)')
    stamp(5, 0)
    seq = [(i, m) for i in range(8) for m in range(2)]
    def perms(k):
        i, m = seq[k]
        for r in range(4):
            x = vXA + 4 * m + (i >> 1)
            e(f'v_perm_b32 v{vOpA + 4 * (k & 1) + r}, v{x}, v{x}, v{vSel + 4 * (i & 1) + r}')
    perms(0)
    for k, (i, m) in enumerate(seq):
        if k < 15: perms(k + 1)
        else: e('s_nop 0')
        a = vOpA + 4 * (k & 1); d = vD + 4 * m; w = vWt + 4 * i
        c = f'v[{d}:{d+3}]' if i > 0 else '0'
        e(f'v_mfma_f32_16x16x32_bf16 v[{d}:{d+3}], v[{a}:{a+3}], v[{w}:{w+3}], {c}')
    e(f'v_mov_b32 v{vR}, 1')
    e('s_nop 5')
    e(f'ds_write_b128 v{vA}, v[{vD}:{vD+3}] offset:{L_RED}')
    e(f'ds_write_b128 v{vA}, v[{vD+4}:{vD+7}] offset:{L_RED + 1024}')
    e('s_mov_b64 exec, 1')
    e(f'ds_add_u32 v{vZ}, v{vR} offset:{L_CNT}')
    e('s_mov_b64 exec, -1')
    e(f's_cmp_lg_u32 s{sW}, 0')
    e('s_cbranch_scc1 L_notleader')
    spin(SPIN * 8, lambda: e(f'ds_read_b32 v{vR}, v{vZ} offset:{L_CNT}'), 'lgkmcnt(0)', lambda: e(f'v_cmp_ne_u32 vcc, 4, v{vR}'))
    for m in range(2): e(f'ds_read_b128 v[{vD + 4*m}:{vD + 4*m + 3}], v{vL} offset:{L_RED + m * 1024}')
    for w in range(1, 4):
        for m in range(2):
            r = vR + ((w - 1) * 2 + m) * 4
            e(f'ds_read_b128 v[{r}:{r+3}], v{vL} offset:{L_RED + w * 2048 + m * 1024}')
    e('s_waitcnt lgkmcnt(4)')
    for r in range(8): e(f'v_add_f32 v{vD + r}, v{vD + r}, v{vR + r}')
    e('s_waitcnt lgkmcnt(0)')
    for r in range(8): e(f'v_add_f32 v{vR + 8 + r}, v{vR + 8 + r}, v{vR + 16 + r}')
    for r in range(8): e(f'v_add_f32 v{vD + r}, v{vD + r}, v{vR + 8 + r}')
    for r in range(8): tag(vD + r, vTg)
    if not abl & 1:
        e(f'buffer_store_dwordx4 v[{vD}:{vD+3}], v{vA2}, s[8:11], s{sDst} offen sc1')
        e(f'buffer_store_dwordx4 v[{vD+4}:{vD+7}], v{vA3}, s[8:11], s{sDst} offen sc1')
    stamp(6)
    e(f'v_bfe_u32 v{vR}, v0, 4, 1')
    e(f's_and_b32 s{sT0}, s{sB}, 1'); e(f's_lshl_b32 s{sT0}, s{sT0}, 1')
    e(f'v_or_b32 v{vR}, s{sT0}, v{vR}')
    e(f'v_lshrrev_b32 v{vR+1}, 5, v0')
    e(f'v_lshlrev_b32 v{vR+1}, 3, v{vR+1}')
    e(f's_and_b32 s{sT0}, s{sH}, 7'); e(f's_lshl_b32 s{sT0}, s{sT0}, 4'); e(f's_lshr_b32 s{sT1}, s{sB}, 1'); e(f's_or_b32 s{sT0}, s{sT0}, s{sT1}')
    e(f'v_or_b32 v{vR+1}, s{sT0}, v{vR+1}')
    e(f'v_xor_b32 v{vR+1}, v{vR+1}, v{vR}')
    e(f'v_lshlrev_b32 v{vR+1}, 8, v{vR+1}')
    e(f'v_lshl_add_u32 v{vR+1}, v{vR}, 15, v{vR+1}')
    e(f'v_lshl_add_u32 v{vR}, v{vC}, 4, v{vR+1}')
    e(f'v_xor_b32 v{vR+1}, 0x200, v{vR}')
    e(f's_xor_b32 s{sT0}, s{sE}, 1')
    e(f'v_mov_b32 v{vR+20}, s{sT0}'); e(f'v_mov_b32 v{vR+21}, s{sT0}')
    e(f'v_lshlrev_b32 v{vR+22}, 3, v0')
    e(f'ds_write_b64 v{vR+22}, v[{vR+20}:{vR+21}] offset:{L_ST}')
    def qload():
        for r in range(4):
            d = vR + 4 + 4 * r
            e(f'buffer_load_dwordx4 v[{d}:{d+3}], v{vR + (r & 1)}, s[8:11], s{sDst} offen offset:{(r >> 1) * 1024} sc1')
    if qs0: e('s_waitcnt vmcnt(0)')
    if not abl & 2: spin(SPIN, qload, 'vmcnt(0)', lambda: check(range(vR + 4, vR + 20), vR + 2, vTg), sleep=qs)
    for r in range(4):
        e(f'v_add_f32 v{vR + 4 + r}, v{vR + 4 + r}, v{vR + 8 + r}')
        e(f'v_add_f32 v{vR + 12 + r}, v{vR + 12 + r}, v{vR + 16 + r}')
    for r in range(4): e(f'v_add_f32 v{vR + 4 + r}, v{vR + 4 + r}, v{vR + 12 + r}')
    e(f'v_cvt_pk_bf16_f32 v{vR+4}, v{vR+4}, v{vR+5}')
    e(f'v_cvt_pk_bf16_f32 v{vR+5}, v{vR+6}, v{vR+7}')
    e(f'ds_write_b64 v{vR+22}, v[{vR+4}:{vR+5}] offset:{L_Q}')
    if qflag: e(f'ds_write_b32 v{vZ}, v{vZ} offset:{L_QF}')
    e('s_waitcnt lgkmcnt(0)')
    stamp(8)
    if not qflag: e('s_barrier')
    e('s_mov_b64 exec, 0xffff')
    spin(SPIN, lambda: e(f'ds_read_b128 v[{vD}:{vD+3}], v{vL} offset:{L_ST}'), 'lgkmcnt(0)',
         lambda: e(f'v_cmp_ne_u32 vcc, s{sE}, v{vD+2}'), sleep=16)
    e(f's_lshl_b32 s{sT0}, s2, 8'); e(f's_add_u32 s{sT0}, s{sT0}, {ST}')
    e(f'buffer_store_dwordx4 v[{vD}:{vD+3}], v{vL}, s[8:11], s{sT0} offen sc1')
    e('s_mov_b64 exec, -1')
    e(f'v_and_b32 v{vR}, 3, v0')
    e(f'v_lshlrev_b32 v{vA}, 6, v{vR}')
    e(f'v_bfe_u32 v{vR}, v0, 2, 1')
    e(f'v_lshl_add_u32 v{vA}, v{vR}, 10, v{vA}')
    e(f'v_lshrrev_b32 v{vR}, 3, v0')
    e(f'v_min_u32 v{vR}, 2, v{vR}')
    e(f'v_lshl_add_u32 v{vA}, v{vR}, 4, v{vA}')
    e(f's_andn2_b32 s{sT0}, s{sT0}, 0x400')
    spin(SPIN, lambda: e(f'buffer_load_dwordx4 v[{vR+4}:{vR+7}], v{vA}, s[8:11], s{sT0} offen sc1'), 'vmcnt(0)',
         lambda: e(f'v_cmp_ne_u32 vcc, s{sE}, v{vR+6}'), sleep=48)
    e(f'v_mov_b32 v{vR}, v{vR+4}')
    rowred('v_max_f32', vR)
    e(f'v_sub_f32 v{vR}, v{vR+4}, v{vR}')
    e(f'v_exp_f32 v{vR}, v{vR}')
    e('v_cmp_lt_u32 vcc, 15, v0')
    e(f'v_mul_f32 v{vR+1}, v{vR}, v{vR+5}')
    rowred('v_add_f32', vR + 1)
    e(f'v_rcp_f32 v{vR+1}, v{vR+1}')
    e(f'v_cndmask_b32 v{vR+2}, 1.0, 2.0, vcc')
    e(f'v_mul_f32 v{vR}, v{vR}, v{vR+1}')
    e(f'v_mul_f32 v{vR}, v{vR}, v{vR+2}')
    e(f'v_mov_b32 v{vR+1}, s{sE}')
    e('s_mov_b32 exec_hi, 0')
    e(f'ds_write_b64 v{vR+22}, v[{vR}:{vR+1}] offset:{L_F}')
    e('s_mov_b64 exec, -1')
    e(f'v_bfe_u32 v{vR}, v0, 2, 3')
    e(f'v_lshlrev_b32 v{vX4}, 12, v{vR}')
    e(f'v_lshrrev_b32 v{vR}, 5, v0')
    e(f'v_lshl_add_u32 v{vX4}, v{vR}, 17, v{vX4}')
    e(f'v_and_b32 v{vR}, 3, v0')
    e(f'v_lshl_add_u32 v{vX4}, v{vR}, 4, v{vX4}')
    e(f'v_lshlrev_b32 v{vOut}, 4, v{vR}')
    e(f'v_bfe_u32 v{vR}, v0, 2, 2')
    e(f'v_lshl_add_u32 v{vOut}, v{vR}, 11, v{vOut}')
    e(f's_bfe_u32 s{sT0}, s{sH}, 0x20002'); e(f's_lshr_b32 s{sT2}, s{sH}, 4')
    e(f's_lshl_b32 s{sOo}, s{sT0}, 1'); e(f's_add_u32 s{sOo}, s{sOo}, s{sT2}'); e(f's_lshl_b32 s{sOo}, s{sOo}, 1')
    e(f's_lshl_b32 s{sT1}, s{sJ}, 1'); e(f's_or_b32 s{sT1}, s{sT1}, s{sT2}')
    e(f's_xor_b32 s{sT1}, s{sT1}, s{sT0}'); e(f's_lshl_b32 s{sT1}, s{sT1}, 8')
    e(f's_lshl_b32 s{sT0}, s{sT0}, 15'); e(f's_add_u32 s{sT0}, s{sT0}, s{sT1}')
    e(f's_and_b32 s{sT1}, s{sH}, 3'); e(f's_lshl_b32 s{sT1}, s{sT1}, 6')
    e(f's_add_u32 s{sX4a}, s{sT0}, s{sT1}')
    if fast: e(f's_add_u32 s{sX4a}, s{sX4a}, {YF}')
    e(f's_add_u32 s{sX4b}, s{sX4a}, 0x40000')
    e(f's_add_u32 s{sOo}, s{sOo}, s{sT1}'); e(f's_lshl_b32 s{sT1}, s{sJ}, 8'); e(f's_add_u32 s{sOo}, s{sOo}, s{sT1}')
    e('s_branch L_rdone')
    e('L_notleader:')
    if pads == 2:
        e(f's_cmp_eq_u32 s{sW}, 3'); e('s_cbranch_scc1 L_padtop')
        e('L_padret2:')
    e(f'v_mov_b32 v{vX4}, 0'); e(f'v_mov_b32 v{vOut}, 0')
    if_class('L_round0', 1)
    if not qflag: e('s_barrier')
    e('s_branch L_rdone')
    e('L_round0:')
    if shA and not nearB:
        e(f's_mov_b32 s{sCnt}, {shA}')
        probe_loop()
    e('L_round:')
    if not qflag:
        e(f's_cmp_lg_u32 s{sRd}, 2'); e('s_cbranch_scc1 L_rnb')
        e('s_barrier')
        e('L_rnb:')
    e(f's_lshl_b32 s{sT0}, s{sRd}, 3'); e(f's_lshr_b32 s{sCnt}, {sum(v << (8 * r) for r, v in enumerate(shots))}, s{sT0}'); e(f's_and_b32 s{sCnt}, s{sCnt}, 0xff')
    probe_loop()
    evidence(vR, 1, 3, sE, 'L_rnext')
    e('L_rnext:')
    e('s_mov_b64 exec, -1')
    e(f's_add_u32 s{sRd}, s{sRd}, 1')
    probe_setup()
    e(f's_cmp_lt_u32 s{sRd}, 4'); e('s_cbranch_scc1 L_round')
    e('L_rdone:')
    e(f's_lshl_b32 s{sT0}, s{sSide}, 1')
    e(f'v_and_or_b32 v{vR}, v{vG}, 1, s{sT0}')
    e(f'v_xor_b32 v{vR+1}, s{sW}, v{vR}')
    e(f'v_lshlrev_b32 v{vX3}, 8, v{vR+1}')
    e(f'v_lshl_add_u32 v{vX3}, v{vR}, 15, v{vX3}')
    e(f'v_lshrrev_b32 v{vR+1}, 5, v0')
    e(f'v_lshl_add_u32 v{vX3}, v{vR+1}, 10, v{vX3}')
    e(f'v_lshl_add_u32 v{vX3}, v{vC}, 4, v{vX3}')
    e(f'v_and_b32 v{vR}, 31, v0')
    e(f'v_lshlrev_b32 v{vA}, 3, v{vR}')
    e(f'v_lshl_add_u32 v{vA}, v{vR+1}, 2, v{vA}')
    e(f's_lshl_b32 s{sT0}, s{sW}, 8')
    e(f'v_add_u32 v{vA}, s{sT0}, v{vA}')
    e(f's_and_b32 s{sT1}, s{sH}, 15'); e(f's_lshl_b32 s{sX3}, s{sT1}, 11')
    e(f's_lshr_b32 s{sT1}, s{sH}, 4'); e(f's_lshl_b32 s{sT1}, s{sT1}, 17'); e(f's_add_u32 s{sX3}, s{sX3}, s{sT1}')
    e(f's_add_u32 s{sX3}, s{sX3}, {OP}')
    e(f'v_lshl_add_u32 v{vA3}, v{vG}, 15, v{vL}')
    e(f's_lshl_b32 s{sT0}, s{sSide}, 2'); e(f's_or_b32 s{sT0}, s{sT0}, s{sB}'); e(f's_lshl_b32 s{sT0}, s{sT0}, 8')
    e(f'v_xor_b32 v{vA3}, s{sT0}, v{vA3}')
    e(f's_add_u32 s{sE}, s{sE}, 1'); e(f's_and_b32 s{sT0}, s{sE}, 0xff'); e(f'v_mov_b32 v{vTg2}, s{sT0}')
    e(f's_mov_b32 s12, s{sOut}'); e(f's_mov_b32 s13, s{sOut+1}'); e('s_mov_b32 s14, 8192')
    e(f's_mov_b32 s{sSpin}, {SPIN}')
    e(f's_cmp_lg_u32 s{sW}, s{sB}')
    e('s_waitcnt lgkmcnt(0)')
    e('s_barrier')
    e('s_cbranch_scc1 L_x3first')
    for w in range(4): e(f'ds_read_b128 v[{vR + 4*w}:{vR + 4*w + 3}], v{vL} offset:{L_O + w * 1024}')
    e('s_waitcnt lgkmcnt(2)')
    for r in range(4): e(f'v_add_f32 v{vD + r}, v{vR + r}, v{vR + 4 + r}')
    e('s_waitcnt lgkmcnt(0)')
    for r in range(4): e(f'v_add_f32 v{vR + 8 + r}, v{vR + 8 + r}, v{vR + 12 + r}')
    for r in range(4): e(f'v_add_f32 v{vD + r}, v{vD + r}, v{vR + 8 + r}')
    for r in range(4): tag(vD + r, vTg)
    e(f'buffer_store_dwordx4 v[{vD}:{vD+3}], v{vA3}, s[8:11], s{sX3} offen sc1')
    for r in range(4): e(f'v_xor_b32 v{vR + r}, v{vD + r}, v{vTg}')
    e(f's_cmp_eq_u32 s{sSide}, 0')
    e('s_cselect_b32 exec_lo, 0, -1'); e('s_cselect_b32 exec_hi, -1, 0')
    e('L_x3first:')
    e(f'buffer_load_dwordx4 v[{vR}:{vR+3}], v{vX3}, s[8:11], s{sX3} offen sc1')
    e('s_barrier')
    e('s_branch L_x3w')
    e('L_x3spin:')
    e(f'buffer_load_dwordx4 v[{vR}:{vR+3}], v{vX3}, s[8:11], s{sX3} offen sc1')
    e('L_x3w:')
    e(f's_sub_u32 s{sSpin}, s{sSpin}, 1'); e('s_cbranch_scc1 L_x3out')
    e('s_waitcnt vmcnt(0)')
    check(range(vR, vR + 4), vR + 4, vTg)
    e('s_cbranch_vccnz L_x3spin')
    e('L_x3out:')
    e('s_mov_b64 exec, -1')
    e('s_waitcnt vmcnt(0)')
    e(f'v_permlane32_swap_b32 v{vR}, v{vR+2}')
    e(f'v_permlane32_swap_b32 v{vR+1}, v{vR+3}')
    e(f's_cmp_lg_u32 s{sW}, 0')
    e(f'v_add_f32 v{vR}, v{vR}, v{vR+2}')
    e(f'v_add_f32 v{vR+1}, v{vR+1}, v{vR+3}')
    e(f'v_cvt_pk_bf16_f32 v{vR}, v{vR}, v{vR+1}')
    e(f'ds_write_b32 v{vA}, v{vR} offset:{L_RED}')
    e('s_waitcnt lgkmcnt(0)')
    e('s_barrier')
    e('s_cbranch_scc1 L_end')
    stamp(10)
    e('s_barrier')
    if ys0: e(f's_sleep {ys0}')
    def yload():
        for k in range(2): e(f'buffer_load_dwordx4 v[{vR + 4*k}:{vR + 4*k + 3}], v{vX4}, s[8:11], s{sX4a + k} offen sc1')
    if lazy:
        vTg3 = 107
        xcc(sPa)
        e(f'v_xor_b32 v{vTg3}, s{sPa}, v{vTg2}')
        e(f's_mov_b32 s{sSpin}, {fast}')
        e('L_x4:')
        yload()
        e(f's_sub_u32 s{sSpin}, s{sSpin}, 1'); e('s_cbranch_scc1 L_x4s')
        e('s_waitcnt vmcnt(0)')
        check(range(vR, vR + 8), vR + 8, vTg2, vTg3)
        e('s_cbranch_vccnz L_x4')
        e('L_x4x:')
    elif fast:
        e(f's_mov_b32 s{sSpin}, {SPIN}')
        e('L_x4:')
        yload()
        e(f's_cmp_eq_u32 s{sSpin}, {SPIN - fast}')
        e(f's_cselect_b32 s{sT0}, {YF}, 0')
        e(f's_sub_u32 s{sX4a}, s{sX4a}, s{sT0}'); e(f's_sub_u32 s{sX4b}, s{sX4b}, s{sT0}')
        e(f's_sub_u32 s{sSpin}, s{sSpin}, 1'); e('s_cbranch_scc1 L_x4x')
        e('s_waitcnt vmcnt(0)')
        check(range(vR, vR + 8), vR + 8, vTg2)
        e('s_cbranch_vccnz L_x4')
        e('L_x4x:')
        e('s_waitcnt vmcnt(0)')
    else:
        spin(SPIN, yload, 'vmcnt(0)', lambda: check(range(vR, vR + 8), vR + 8, vTg2))
    for r in range(4): e(f'v_add_f32 v{vR + r}, v{vR + r}, v{vR + 4 + r}')
    e(f'v_add_f32_dpp v{vR+4}, v{vR}, v{vR} row_ror:8 row_mask:0xf bank_mask:0x3')
    e(f'v_add_f32_dpp v{vR+5}, v{vR+1}, v{vR+1} row_ror:8 row_mask:0xf bank_mask:0x3')
    e('s_nop 0')
    e(f'v_add_f32_dpp v{vR+4}, v{vR+2}, v{vR+2} row_ror:8 row_mask:0xf bank_mask:0xc')
    e(f'v_add_f32_dpp v{vR+5}, v{vR+3}, v{vR+3} row_ror:8 row_mask:0xf bank_mask:0xc')
    e('s_nop 0')
    e(f'v_add_f32_dpp v{vR}, v{vR+4}, v{vR+4} row_shl:4 row_mask:0xf bank_mask:0x5')
    e('s_nop 1')
    e(f'v_add_f32_dpp v{vR}, v{vR+5}, v{vR+5} row_shr:4 row_mask:0xf bank_mask:0xa')
    for sw in ('v_permlane16_swap_b32', 'v_permlane32_swap_b32'):
        e(f'v_mov_b32 v{vR+1}, v{vR}'); e('s_nop 1'); e(f'{sw} v{vR+1}, v{vR}'); e('s_nop 0')
        e(f'v_add_f32 v{vR}, v{vR}, v{vR+1}')
    e(f'v_cvt_pk_bf16_f32 v{vR}, v{vR}, v{vR}')
    e('s_mov_b64 exec, 0xffff')
    e(f'buffer_store_short v{vR}, v{vOut}, s[12:15], s{sOo} offen {outp}')
    stamp(12)
    if diag: e('s_waitcnt vmcnt(0)')
    stamp(7)
    flush_stamps([5, 6, 7, 8, 10, 12])
    if chan == 'end':
        e('s_memrealtime s[86:87]'); e('s_waitcnt lgkmcnt(0)'); e('s_sub_u32 s86, s86, s80'); e('s_mul_i32 s86, s86, 10')
        e('s_add_u32 s86, s86, 20000')
        e('L_chan:'); e('s_memrealtime s[82:83]'); e('s_waitcnt lgkmcnt(0)'); e('s_sub_u32 s82, s82, s80')
        e('s_cmp_lt_u32 s82, s86'); e('s_cbranch_scc1 L_chan')
    e('s_cmp_lg_u32 s2, 0')
    e('s_cbranch_scc1 L_end')
    e('s_mov_b64 exec, 1')
    e(f'v_mov_b32 v{vR+2}, s{sE}')
    e(f's_mov_b32 s{sT0}, {EP}')
    e(f'buffer_store_dword v{vR+2}, off, s[8:11], s{sT0}')
    e('L_end:')
    e('s_endpgm')
    if lazy:
        e('L_x4s:')
        for t in range(2):
            for w in range(4): e(f'ds_read_b128 v[{vWt + 4*w}:{vWt + 4*w + 3}], v{vL} offset:{L_Y + w * 2048 + t * 1024}')
            e('s_waitcnt lgkmcnt(0)')
            for r in range(4):
                e(f'v_add_f32 v{vWt + r}, v{vWt + r}, v{vWt + 4 + r}')
                e(f'v_add_f32 v{vWt + 8 + r}, v{vWt + 8 + r}, v{vWt + 12 + r}')
            for r in range(4): e(f'v_add_f32 v{vD + 4*t + r}, v{vWt + r}, v{vWt + 8 + r}')
            for r in range(4): tag(vD + 4*t + r, vTg2)
        e(f'v_xor_b32 v{vA3}, 0x100, v{vA2}')
        e(f'buffer_store_dwordx4 v[{vD}:{vD+3}], v{vA2}, s[8:11], s{sDst} offen sc1')
        e(f'buffer_store_dwordx4 v[{vD+4}:{vD+7}], v{vA3}, s[8:11], s{sDst} offen sc1')
        def flipload():
            e(f's_xor_b32 s{sX4a}, s{sX4a}, {YF}'); e(f's_xor_b32 s{sX4b}, s{sX4b}, {YF}')
            e(f'v_xor_b32 v{vTg3}, s{sPa}, v{vTg3}')
            yload()
        e('s_waitcnt vmcnt(0)')
        spin(SPIN, flipload, 'vmcnt(0)', lambda: check(range(vR, vR + 8), vR + 8, vTg2, vTg3))
        e('s_branch L_x4x')
    e('.section .rodata,"a"')
    e('.p2align 6')
    e(f'.amdhsa_kernel {NAME}_kernel')
    e('  .amdhsa_next_free_vgpr 256')
    e('  .amdhsa_next_free_sgpr 102')
    e('  .amdhsa_accum_offset 256')
    e('  .amdhsa_group_segment_fixed_size 0')
    e('  .amdhsa_kernarg_size 104')
    e('  .amdhsa_user_sgpr_count 2')
    e('  .amdhsa_user_sgpr_kernarg_segment_ptr 1')
    e('  .amdhsa_system_sgpr_workgroup_id_x 1')
    e('  .amdhsa_float_denorm_mode_32 3')
    e('.end_amdhsa_kernel')
    if ool:
        for lb in ('L_late2', 'L_late1', 'L_nc3'):
            if lb + ':' not in L: continue
            a = L.index(f's_cbranch_scc1 {lb}'); b = L.index(lb + ':'); c = L.index('L_service:')
            L[:] = L[:a] + [f's_cbranch_scc0 {lb}o'] + L[b:c] + [f'{lb}o:'] + L[a + 1:b] + [f's_branch {lb}'] + L[c:]
    if front:
        a = L.index('L_service:'); b = L.index('L_service2:'); c = L.index('s_cbranch_scc1 L_service')
        L[:] = L[:c] + ['s_cbranch_scc0 L_stream'] + L[a + 1:b] + ['s_branch L_service2', 'L_stream:'] + L[c + 1:a] + L[b:]
    i0 = L.index('L_kbody:'); i1 = L.index('L_service2:' if front else 'L_service:')
    spots = [i for i in range(i0, i1) if L[i].startswith('s_branch ')]
    if pads == 0: return '\n'.join(L) + '\n'
    if pads == 2:
        def size(x):
            if x.endswith(':') or x.startswith(('.', ';')): return 0
            if x.startswith(('buffer_', 'global_', 'ds_', 'v_')) or '0x' in x: return 8
            return 5
        j0 = L.index('L_late1:' if nearB else 'L_late0:'); j1 = L.index('L_end:')
        out = L[:j0]; acc = 0; k = 0
        for i in range(j0, len(L)):
            x = L[i]; out.append(x); acc += size(x)
            if i < j1 - 1 and (acc > padgap or (acc > padgap - 250 and x.startswith(('s_branch ', 's_endpgm')))):
                free = x.startswith(('s_branch ', 's_endpgm'))
                if not free: out.append(f's_branch L_pads{k}')
                out.append(f'L_padx{k}:'); out.append(f's_branch L_padx{k - 1}' if k else 's_branch L_padret2')
                if not free: out.append(f'L_pads{k}:')
                k += 1; acc = 8
        return '\n'.join(out).replace('L_padtop', f'L_padx{k - 1}') + '\n'
    out = []
    for i, x in enumerate(L):
        out.append(x)
        if i in spots:
            k = spots.index(i)
            out.append(f'L_pad{k}:')
            out.append(f's_branch L_pad{k + 4}' if k + 4 < len(spots) else 's_branch L_padret')
    return '\n'.join(out) + '\n'

if __name__ == '__main__':
    import ast
    for spec in sys.argv[1:]:
        name, _, opts = spec.partition(':')
        kw = {}
        for o in filter(None, opts.split(',')):
            k_, v_ = o.split('=')
            v_ = v_.replace('/', ',')
            try: kw[k_] = ast.literal_eval(v_)
            except Exception: kw[k_] = v_
        open(name, 'w').write(gen(**kw))
```

```python
NAME = 'concat_heads__gqa_block_cached__sliding_block_cached__decode'
from gen_numa import hdr, kd
def gen(stp='sc1', ldp='sc1', depth=1, partner=4, N=64, waves=1, lanes=-1, gap=0):
    L = []; e = L.append
    e(f'; @launch grid=(16,1,1) block=({64*waves},1,1) lds=90000')
    e('.amdgcn_target "amdgcn-amd-amdhsa--gfx950"')
    hdr(e, NAME + '_kernel')
    e('s_cmp_ge_u32 s2, 16'); e('s_cbranch_scc1 L_end')
    e('s_load_dwordx2 s[8:9], s[0:1], 96'); e('s_mov_b32 s10, 0x41000000'); e('s_mov_b32 s11, 0x20000')
    e('v_lshrrev_b32 v1, 6, v0'); e('v_and_b32 v0, 63, v0'); e('v_readfirstlane_b32 s30, v1')
    e('v_lshlrev_b32 v1, 4, v0')
    e('s_mul_i32 s12, s2, 0x1400'); e(f's_xor_b32 s13, s2, {partner}'); e('s_mul_i32 s13, s13, 0x1400')
    e(f's_and_b32 s14, s2, {partner}')
    e('s_mov_b32 s20, 0x1234500'); e('s_mov_b32 s24, 0x40000'); e('s_mov_b32 s25, 0')
    e(f's_mov_b64 exec, {lanes}')
    e('s_waitcnt lgkmcnt(0)')
    e('s_cmp_lg_u32 s14, 0'); e('s_cbranch_scc1 L_wait')
    e('L_send:')
    e('s_cmp_lg_u32 s30, 0'); e('s_cbranch_scc1 L_nost')
    for r in range(4): e(f'v_mov_b32 v{4+r}, s20')
    e(f'buffer_store_dwordx4 v[4:7], v1, s[8:11], s12 offen {stp}')
    e('L_nost:')
    e('s_cmp_lg_u32 s14, 0'); e('s_cbranch_scc1 L_next')
    e('L_wait:')
    for k in range(depth - 1):
        e(f'buffer_load_dwordx4 v[{8+4*k}:{11+4*k}], v1, s[8:11], s13 offen {ldp}')
        if gap: e(f's_nop {gap}')
    e('L_sp:')
    for k in range(depth):
        kk = (k + depth - 1) % depth
        e(f'buffer_load_dwordx4 v[{8+4*kk}:{11+4*kk}], v1, s[8:11], s13 offen {ldp}')
        e('s_sub_u32 s24, s24, 1'); e('s_cbranch_scc1 L_end')
        e('s_add_u32 s25, s25, 1')
        e(f's_waitcnt vmcnt({depth-1})')
        e(f'v_cmp_gt_u32 vcc, s20, v{8+4*k}')
        e(f'v_cmp_lt_u32 s[26:27], s31, v{8+4*k}') if False else None
        e('s_cbranch_vccz L_got')
    e('s_branch L_sp')
    e('L_got:')
    e('s_cmp_lg_u32 s14, 0'); e('s_cbranch_scc1 L_send')
    e('L_next:')
    e('s_add_u32 s20, s20, 1')
    e('s_cmp_eq_u32 s20, 0x1234504'); e('s_cbranch_scc0 L_nt'); e('s_memtime s[16:17]'); e('s_mov_b32 s25, 0'); e('L_nt:')
    e(f's_cmp_eq_u32 s20, {0x1234504 + N}'); e('s_cbranch_scc1 L_fin')
    e('s_cmp_lg_u32 s14, 0'); e('s_cbranch_scc1 L_wait')
    e('s_branch L_send')
    e('L_fin:')
    e('s_memtime s[18:19]'); e('s_waitcnt lgkmcnt(0)'); e('s_sub_u32 s18, s18, s16')
    e('s_cmp_lg_u32 s30, 0'); e('s_cbranch_scc1 L_end')
    e('s_lshl_b32 s21, s2, 3'); e('s_add_u32 s21, s21, 0x40000000'); e('s_mov_b64 exec, 1')
    e('v_mov_b32 v4, s18'); e('v_mov_b32 v5, s25')
    e('buffer_store_dwordx2 v[4:5], off, s[8:11], s21')
    e('L_end:'); e('s_endpgm')
    e('.section .rodata,"a"'); e('.p2align 6')
    kd(e, NAME + '_kernel', 64)
    return '\n'.join(x for x in L if x) + '\n'
c = {'pp_p8_sc1': dict(partner=8), 'pp_p8_plain': dict(partner=8, stp=''), 'pp_p8_plain_nt': dict(partner=8, stp='', ldp='nt'), 'pp_p8_sc0': dict(partner=8, stp='sc0', ldp='sc1'), 'pp_p8_ntst': dict(partner=8, stp='nt', ldp='sc1'),
     'pp_p8_plain_d2': dict(partner=8, stp='', depth=2, gap=15)}
for k, v in c.items(): open(k + '.s', 'w').write(gen(**v))
print(' '.join(k + '.s' for k in c))
```

```python
import sys, math, struct
NAME = 'concat_heads__gqa_block_cached__sliding_block_cached__decode'

def f32(x): return '0x%08x' % struct.unpack('<I', struct.pack('<f', x))[0]
def br4(i): return ((i & 1) << 3) | ((i & 2) << 1) | ((i & 4) >> 1) | ((i & 8) >> 3)
def mask64(ns): return sum(1 << n for n in ns)

QP = 0x000000
YF = 0x080000
OP = 0x100000
ST = 0x140000
EP = 0x150000
RC = 0x160000
EV = 0x180000
PP = 0x200000
WS_USED = 0x600000
STAMP = 0x40000000
L_Q = 0
L_CNT = 512; L_LVL = 516
L_CN2 = 528
L_EV = 544
L_Z = 560
L_KAP = 576
L_QF = 592
L_ST = 1024
L_F = 1280
L_RED = 2048
L_O = L_RED + 8192
L_Y = L_O + 4096
LDS_BYTES = L_Y + 8192
SPIN = 1 << 17
DPPF = 'row_mask:0xf bank_mask:0xf'

HEADER = """
Kernarg layout (104 bytes, pointers only, base s[0:1]):
    0 A_x (4,1,512)   8 A_k (4,32,8192,128)  16 A_v   24 A_wq (512,4096)  32 A_wo (4096,512)
   40 B_x            48 B_k                  56 B_v   64 B_wq             72 B_wo
   80 d_out (4,1,1024) bf16   88 d_debug (unused)   96 d_ws
Generated by a script; everything below is hand-designed.

One launch, 256 workgroups (one per CU) x 8 waves.  wg = head*8 + half*4 + batch.
A pair (two halves) shares the keys of one (batch, head) in both branches.
Waves 0-3 stream 40 items of 16 KiB each: K_B, V_B, K_A, V_A, with non-temporal loads.
  scores: v_dot2_f32_bf16 + DPP transpose-reduce; p = exp2(s*c - max*c) per segment (true max);
  P.V: one 16x16x32 MFMA per load with p spread over a diagonal A operand.
  The number of loads in flight is kept near the bandwidth knee and follows the arrival rank
  at a few checkpoints, so that all workgroups finish together.
  At the end these waves load their slice of wo and apply it.
Waves 4-7 compute a slice of q = x.wq, combine softmax statistics, gather partial results.
One pair in eight splits its keys by memory die (found by timing a few single loads; a wrong
  answer only costs speed), which keeps the die-to-die link below saturation.
Hand-offs go through d_ws.  Every handed-off word carries this launch's epoch (the word found at
  d_ws+0x150000, plus 1 or 2), which readers strip again; all waits are bounded.
"""

def gen(DB=6, early=6, rc=(5, 6, 7), rcv=(5, 5.5, 6.5), xlo=4.5, nmap=(4, 0, 2), lvl0=0, lvlc=1, th=(3, 6),
        cks=(6, 10, 14, 18, 22, 26, 29, 32, 34, 36), mix=3, rcat=7, endb=2, prek=2, cls=(8, 1), nearB=1, up=(), uplvl=2, dn=(), dnlvl=0, kfull=0, qs=0, qs0=0, afirst=1, xfirst=0, ys0=0, outp='', ylay=0, emap=None, enmap=None, dmax=15, bsh=None, front=1, burst=0, abl=0, qflag=1, pb=0, DC=7, DN=8, selfp=2, clip0=1500, pfirst=1, l2w=0, pads=1, padgap=950, ool=1, fast=48, preown=0, sdelay=0, fpol='', lazy=1, xfake=0, s3=0, s4=0, half3=0, wpre=0, wl=4,
        sh0=2, shots=(2, 8, 12, 16), shA=4, clip=200, pmin=400, fat=36, diag=False, chan=None, flip=0):
    L = []; e = L.append
    outp = outp.replace('_', ' ')
    cnt = [0]
    def lab(p):
        cnt[0] += 1
        return f'L_{p}{cnt[0]}'
    for line in HEADER.strip('\n').split('\n'): e(('; ' + line).rstrip())
    e(f'; @launch grid=(256,1,1) block=(512,1,1) lds={LDS_BYTES}')
    e('.amdgcn_target "amdgcn-amd-amdhsa--gfx950"')
    e('.text')
    e(f'.globl {NAME}_kernel')
    e('.p2align 8')
    e(f'.type {NAME}_kernel,@function')
    e(f'{NAME}_kernel:')
    sAx, sAk, sAv, sAwq, sAwo, sBx, sBk, sBv = 16, 18, 20, 22, 24, 26, 28, 30
    sBwq, sBwo, sOut, sDbg, sWs = 32, 34, 36, 38, 40
    sW, sH, sJ, sB, sSide = 42, 43, 44, 45, 46
    sU = 3
    sT0, sT1, sT2 = 47, 48, 49
    sCls, sSpin = 51, 52
    sE, sTag, sNF = 74, 75, 76
    e('s_cmp_ge_u32 s2, 256')
    e('s_cbranch_scc1 L_end')
    e('s_load_dwordx16 s[16:31], s[0:1], 0')
    e('s_load_dwordx8 s[32:39], s[0:1], 64')
    e('s_load_dwordx2 s[40:41], s[0:1], 96')
    if diag or chan: e('s_memrealtime s[80:81]')
    e('v_lshrrev_b32 v1, 6, v0')
    e('v_and_b32 v0, 63, v0')
    e(f'v_readfirstlane_b32 s{sW}, v1')
    e(f's_lshr_b32 s{sH}, s2, 3')
    e(f's_and_b32 s{sJ}, s2, 7')
    e(f's_and_b32 s{sU}, s2, 3')
    if bsh is None:
        e(f's_mov_b32 s{sB}, s{sU}')
    else:
        e(f's_lshr_b32 s{sB}, s2, {3 + bsh}'); e(f's_add_u32 s{sB}, s{sB}, s2'); e(f's_and_b32 s{sB}, s{sB}, 3')
    e(f's_lshr_b32 s{sSide}, s{sJ}, 2')
    e(f's_mul_i32 s{sT0}, s{sU}, {max(1, cls[0] // 4)}'); e(f's_add_u32 s{sT0}, s{sT0}, s{sH}')
    e(f's_and_b32 s{sT0}, s{sT0}, {cls[0] - 1}')
    e(f's_cmp_lt_u32 s{sT0}, {cls[1]}')
    e(f's_cselect_b32 s{sCls}, 1, 0')
    e('s_mov_b32 s7, 0x20000')
    e('s_mov_b32 s11, 0x20000')
    e(f's_mov_b32 s10, {WS_USED if not diag else 0x41000000}')
    e(f's_mov_b32 s{sNF}, 0xffffff00')
    e(f's_cmp_ge_u32 s{sW}, 4')
    e('s_cbranch_scc1 L_service')

    def stamp(idx, only_wave=None):
        if not diag: return
        l = lab('st')
        if only_wave is not None:
            e(f's_cmp_lg_u32 s{sW}, {only_wave}'); e(f's_cbranch_scc1 {l}')
        e('s_memrealtime s[82:83]'); e('s_waitcnt lgkmcnt(0)')
        e(f'v_writelane_b32 v254, s82, {idx}'); e(f'v_writelane_b32 v255, s83, {idx}')
        e(f'{l}:')
    def flush_stamps(idxs):
        if not diag: return
        l = lab('fw')
        e(f'{l}:'); e('s_sleep 32'); e('s_memrealtime s[82:83]'); e('s_waitcnt lgkmcnt(0)'); e('s_sub_u32 s82, s82, s80')
        e('s_cmp_lt_u32 s82, 11000'); e(f's_cbranch_scc1 {l}')
        e('s_lshl_b32 s84, s2, 7'); e(f's_add_u32 s84, s84, {STAMP}')
        e('s_mov_b64 exec, -1'); e('v_lshlrev_b32 v253, 3, v0'); e(f's_mov_b64 exec, {mask64(idxs)}')
        e('buffer_store_dwordx2 v[254:255], v253, s[8:11], s84 offen')
    def if_class(target, want):
        e(f's_cmp_eq_u32 s{sCls}, {want}'); e(f's_cbranch_scc1 {target}')
    def load_epoch():
        e(f's_mov_b32 s{sE}, {EP}')
        e(f's_load_dword s{sE}, s[{sWs}:{sWs+1}], s{sE}')
    def mktag(vTag, sEp, tmp):
        for k in range(4):
            if k:
                e(f's_lshr_b32 s{tmp}, s{sEp}, {8 * k}'); e(f's_xor_b32 s{tmp}, s{tmp}, s{sEp}'); e(f's_and_b32 s{tmp}, s{tmp}, 0xff')
            else:
                e(f's_and_b32 s{tmp}, s{sEp}, 0xff')
            e(f'v_mov_b32 v{vTag + k}, s{tmp}')
    def tag(r, vTag): e(f'v_and_or_b32 v{r}, v{r}, s{sNF}, v{vTag + (r & 3)}')
    def xcc(dst):
        e(f's_getreg_b32 s{dst}, hwreg(HW_REG_XCC_ID, 0, 4)')
        if xfake: e(f's_lshr_b32 s{dst}, s2, 7')
    def check(regs, t, vTag):
        regs = list(regs)
        assert regs[0] % 4 == 0
        for r in regs: e(f'v_xor_b32 v{r}, v{r}, v{vTag + (r & 3)}')
        e(f'v_or3_b32 v{t}, v{regs[0]}, v{regs[1]}, v{regs[2]}')
        rest = regs[3:]
        while len(rest) >= 2:
            e(f'v_or3_b32 v{t}, v{t}, v{rest[0]}, v{rest[1]}'); rest = rest[2:]
        e(f'v_bitop3_b32 v{t}, v{t}, v{rest[0]}, s{sNF} bitop3:0x54')
        e(f'v_cmp_ne_u32 vcc, 0, v{t}')
    def spin(n, loads, wait, test, again='vccnz', sleep=0):
        l = lab('sp')
        e(f's_mov_b32 s{sSpin}, {n}')
        e(f'{l}:')
        if sleep: e(f's_sleep {sleep}')
        loads()
        e(f's_sub_u32 s{sSpin}, s{sSpin}, 1'); e(f's_cbranch_scc1 {l}x')
        e(f's_waitcnt {wait}')
        test()
        e(f's_cbranch_{again} {l}')
        e(f'{l}x:')
        e(f's_waitcnt {wait}')
    def rowred(op, r):
        for ctl in ('quad_perm:[1,0,3,2]', 'quad_perm:[2,3,0,1]', 'row_half_mirror', 'row_mirror'):
            e('s_nop 1')
            e(f'{op}_dpp v{r}, v{r}, v{r} {ctl} {DPPF}')
    def allred(op, r, tmp):
        rowred(op, r)
        for sw in ('v_permlane16_swap_b32', 'v_permlane32_swap_b32'):
            e(f'v_mov_b32 v{tmp}, v{r}'); e('s_nop 1'); e(f'{sw} v{tmp}, v{r}'); e('s_nop 1')
            e(f'{op} v{r}, v{r}, v{tmp}')
    sE0, sE1, sPa, sCnt, sTm, sRd, sPr, sRn = 92, 93, 94, 95, 96, 100, 101, 69
    def probe_loop(srd='s[12:15]'):
        l = lab('pr')
        e(f'{l}:')
        e(f's_memtime s[{sTm}:{sTm+1}]')
        e(f's_and_b32 s{sT2}, s{sRn}, 0x3df80')
        e(f's_xor_b32 s{sT2}, s{sT2}, s{sPa}')
        e('s_waitcnt lgkmcnt(0)')
        e(f's_buffer_load_dword s{sPr}, {srd}, s{sT2}')
        e('s_waitcnt lgkmcnt(0)')
        e(f's_memtime s[{sTm+2}:{sTm+3}]')
        e('s_waitcnt lgkmcnt(0)')
        e(f's_sub_u32 s{sT0}, s{sTm+2}, s{sTm}')
        e(f's_cmp_lt_u32 s{sT0}, {pmin}')
        e(f's_cselect_b32 s{sT0}, 0x10000, s{sT0}')
        e(f's_bitcmp1_b32 s{sPa}, 13')
        e(f's_cselect_b32 s{sT1}, 0x10000, s{sT0}')
        e(f's_cselect_b32 s{sT0}, s{sT0}, 0x10000')
        e(f's_min_u32 s{sE0}, s{sE0}, s{sT1}')
        e(f's_min_u32 s{sE1}, s{sE1}, s{sT0}')
        e(f's_xor_b32 s{sPa}, s{sPa}, 0x2000')
        e(f's_add_u32 s{sRn}, s{sRn}, s{sTm+2}')
        e(f's_mul_i32 s{sRn}, s{sRn}, 0x9e3779b1')
        e(f's_lshr_b32 s{sT0}, s{sRn}, 14')
        e(f's_xor_b32 s{sRn}, s{sRn}, s{sT0}')
        e(f's_sub_u32 s{sCnt}, s{sCnt}, 1')
        e(f's_cmp_lg_u32 s{sCnt}, 0')
        e(f's_cbranch_scc1 {l}')
    def evidence(vR, lead, nv, sE, skip, clip=clip):
        e(f's_sub_i32 s{sE0}, s{sE0}, s{sE1}'); e(f's_min_i32 s{sE0}, s{sE0}, {clip}'); e(f's_max_i32 s{sE0}, s{sE0}, {-clip}')
        e(f's_lshl_b32 s{sT0}, s{sRd}, 2')
        e('s_mov_b64 exec, 1')
        e(f'v_mov_b32 v{vR}, s{sT0}'); e(f'v_mov_b32 v{vR+1}, s{sE0}'); e(f'v_mov_b32 v{vR+2}, 1')
        e(f'ds_add_u32 v{vR}, v{vR+1} offset:{L_EV}')
        e(f'ds_add_u32 v{vR}, v{vR+2} offset:{L_CN2}')
        e(f's_cmp_lg_u32 s{sW}, {lead}'); e(f's_cbranch_scc1 {skip}')
        spin(SPIN * 8, lambda: e(f'ds_read_b32 v{vR+2}, v{vR} offset:{L_CN2}'), 'lgkmcnt(0)', lambda: e(f'v_cmp_ne_u32 vcc, {nv}, v{vR+2}'))
        e(f'ds_read_b32 v{vR+4}, v{vR} offset:{L_EV}')
        for r in range(5, 8): e(f'v_mov_b32 v{vR+r}, s{sE}')
        e(f's_lshl_b32 s{sT0}, s2, 8'); e(f's_lshl_b32 s{sT1}, s{sRd}, 6'); e(f's_add_u32 s{sT0}, s{sT0}, s{sT1}')
        e(f's_add_u32 s{sT0}, s{sT0}, {EV}'); e(f's_xor_b32 s{sT1}, s{sT0}, 0x400')
        e('s_waitcnt lgkmcnt(0)')
        e(f'buffer_store_dwordx4 v[{vR+4}:{vR+7}], off, s[8:11], s{sT0} sc1')
        def evtest():
            e(f'v_xor_b32 v{vR+9}, s{sE}, v{vR+9}'); e(f'v_xor_b32 v{vR+10}, s{sE}, v{vR+10}')
            e(f'v_or_b32 v{vR+9}, v{vR+9}, v{vR+10}')
            e(f'v_cmp_ne_u32 vcc, 0, v{vR+9}')
        spin(SPIN, lambda: e(f'buffer_load_dwordx4 v[{vR+8}:{vR+11}], off, s[8:11], s{sT1} sc1'), 'vmcnt(0)', evtest)
        e(f'v_sub_u32 v{vR+2}, v{vR+4}, v{vR+8}')
        e(f'v_sub_u32 v{vR+3}, v{vR+8}, v{vR+4}')
        e(f's_cmp_eq_u32 s{sSide}, 0')
        e('s_cselect_b64 vcc, -1, 0')
        e(f'v_cndmask_b32 v{vR+2}, v{vR+3}, v{vR+2}, vcc')
        if diag:
            e(f's_lshl_b32 s84, s2, 4'); e(f's_add_u32 s84, s84, {STAMP + 0x18000}')
            e(f'buffer_store_dword v{vR+2}, v{vR}, s[8:11], s84 offen')
        e(f'v_cmp_lt_i32 vcc, 0, v{vR+2}')
        e('s_nop 1')
        e(f'v_cndmask_b32 v{vR+2}, 0, 1, vcc')
        e(f'v_xor_b32 v{vR+2}, s{sSide}, v{vR+2}')
        e(f'ds_write_b32 v{vR}, v{vR+2} offset:{L_KAP}')
    def probe_seed(w0):
        e(f's_lshl_b32 s{sT0}, s{sB}, 5'); e(f's_add_u32 s{sT0}, s{sT0}, s{sH}'); e(f's_lshl_b32 s{sPa}, s{sT0}, 21')
        e(f's_lshl_b32 s{sT0}, s{sSide}, 18'); e(f's_add_u32 s{sPa}, s{sPa}, s{sT0}')
        e(f's_sub_u32 s{sT0}, s{sW}, {w0}'); e(f's_mul_i32 s{sT0}, s{sT0}, 0x82000'); e(f's_and_b32 s{sT0}, s{sT0}, 0x182000'); e(f's_add_u32 s{sPa}, s{sPa}, s{sT0}')
        e(f's_memtime s[{sTm}:{sTm+1}]'); e('s_waitcnt lgkmcnt(0)')
        e(f's_mul_i32 s{sRn}, s{sTm}, 0x9e3779b1'); e(f's_lshr_b32 s{sRn}, s{sRn}, 9')
    def smask(s, ns):
        m = mask64(ns)
        e(f's_mov_b32 s{s}, 0x{m & 0xffffffff:08x}'); e(f's_mov_b32 s{s+1}, 0x{m >> 32:08x}')

    X0, X1, X2 = 60, 124, 188
    vOff = 2; vL16 = 6; vPd = 7; vQ = 8; vS = 12; vT = 20; vMask = 44; vAcc = 48; vAccB = 52; vP = 56
    vPA = 124; vMl = 128; vF = 132; vLv = 156; vZz = 157; vPat = 160; vPs = 164; vPPa = 168
    vW = 124; vWa = 170; vYa = 171; vTg2 = 248; vYw = 173; vYr = 174; vBt = 176; vAo = 208; vDD = 224; vAr = 244
    sLvl = 50; sOff, sN = 53, 54; sKp = 55; sCk, sRc, sRk = 56, 58, 59; sM3, sM4 = 60, 62; sC = 64; sIsC = 65
    sKV = 66; sXB = 67; sMap = 68; sHk = 70; sWb, sSeg = 72, 73; sX = 77; sVk = 78; sLh = 86
    sYd = 12; s7f = 13; sPPa = 14; sPPb = 15
    T = vT
    e(f'v_lshlrev_b32 v{vL16}, 4, v0')
    e(f'v_bfe_u32 v{vOff+1}, v0, 4, 1')
    e(f'v_lshl_add_u32 v{vOff}, v{vOff+1}, 15, v{vL16}')
    e(f'v_lshrrev_b32 v{vOff+1}, 5, v0')
    e(f'v_lshl_add_u32 v{vOff}, v{vOff+1}, 13, v{vOff}')
    e(f's_lshl_b32 s{sT0}, s{sW}, 8'); e(f's_lshl_b32 s{sT1}, s{sSide}, 13'); e(f's_or_b32 s{sT0}, s{sT0}, s{sT1}')
    e(f'v_xor_b32 v{vOff}, s{sT0}, v{vOff}')
    for j in range(1, 4): e(f'v_xor_b32 v{vOff+j}, {(j << 8) | ((j >> 1) << 16)}, v{vOff}')
    e(f's_lshl_b32 s{sT0}, s{sB}, 5'); e(f's_add_u32 s{sT0}, s{sT0}, s{sH}'); e(f's_lshl_b32 s{sWb}, s{sT0}, 21')
    e(f's_and_b32 s{sT0}, s{sW}, 1'); e(f's_lshl_b32 s{sT0}, s{sT0}, 12'); e(f's_add_u32 s{sWb}, s{sWb}, s{sT0}')
    e(f's_lshr_b32 s{sT0}, s{sW}, 1'); e(f's_lshl_b32 s{sT0}, s{sT0}, 14'); e(f's_add_u32 s{sWb}, s{sWb}, s{sT0}')
    e(f's_add_u32 s{sOff}, s{sWb}, 0x180000')
    e('s_mov_b32 s6, 0x10000000')
    e(f's_mov_b32 s{sKp}, 0')
    if nearB: e(f's_cmp_eq_u32 s{sCls}, 1')
    e('s_waitcnt lgkmcnt(0)')
    e(f's_mov_b32 s4, s{sBk}'); e(f's_mov_b32 s5, s{sBk+1}')
    def issue(buf, i):
        v = buf + 4 * i
        e(f'buffer_load_dwordx4 v[{v}:{v+3}], v{vOff + (i >> 2)}, s[4:7], s{sOff} offen offset:{(i & 3) * 1024} nt')
    def kappa(rnd, dst):
        e(f'v_mov_b32 v{T+1}, 0')
        spin(SPIN * 8, lambda: e(f'ds_read_b32 v{T}, v{T+1} offset:{L_KAP + 4 * rnd}'), 'lgkmcnt(0)',
             lambda: e(f'v_cmp_eq_u32 vcc, -1, v{T}'))
        e(f'v_readfirstlane_b32 s{dst}, v{T}')
        e(f's_and_b32 s{dst}, s{dst}, 1')
        if flip >> rnd & 1: e(f's_xor_b32 s{dst}, s{dst}, 1')
    def go_near():
        for j in range(4): e(f'v_and_b32 v{vOff + j}, 0xffffdfff, v{vOff + j}')
    def switch(ptr, kap, base):
        e(f's_mov_b32 s4, s{ptr}'); e(f's_mov_b32 s5, s{ptr+1}')
        e(f's_lshl_b32 s{sT0}, s{kap}, 13'); e(f's_add_u32 s{sOff}, s{sWb}, s{sT0}')
        e(f's_add_u32 s{sOff}, s{sOff}, {base & 0xffffffff}')
    if nearB: e('s_cbranch_scc1 L_late0')
    for i in range(early): issue(X1, i)
    if nearB and selfp:
        e('s_branch L_late0b')
        e('L_late0:')
        e(f's_buffer_load_dword s{sPr}, s[4:7], s{sOff}')
        e('L_late0b:')
    else:
        e('L_late0:')
    load_epoch()
    e(f's_mov_b32 s8, s{sWs}'); e(f's_mov_b32 s9, s{sWs+1}')
    if diag: e('v_writelane_b32 v254, s80, 0'); e('v_writelane_b32 v255, s81, 0')
    e(f's_mov_b32 s{sM3}, 0xcccccccc'); e(f's_mov_b32 s{sM3+1}, 0xcccccccc')
    e(f's_mov_b32 s{sM4}, 0xaaaaaaaa'); e(f's_mov_b32 s{sM4+1}, 0xaaaaaaaa')
    e(f's_mov_b32 s{sC}, {f32(128 ** -0.5 * math.log2(math.e))}')
    e(f'v_and_b32 v{T}, 15, v0')
    e(f'v_lshlrev_b32 v1, 4, v{T}')
    e(f'v_and_b32 v{T+1}, 1, v0')
    e(f'v_lshlrev_b32 v{T+1}, 4, v{T+1}')
    e(f'v_mov_b32 v{T+2}, 0xffff')
    e(f'v_lshlrev_b32 v{T+2}, v{T+1}, v{T+2}')
    e(f'v_lshrrev_b32 v{T}, 1, v{T}')
    for r in range(4):
        e(f'v_cmp_eq_u32 vcc, {4 + r}, v{T}')
        e(f'v_mov_b32 v{vAcc + r}, 0')
        e(f'v_mov_b32 v{vS + r}, 0xff800000')
        e(f'v_cndmask_b32 v{vMask + r}, 0, v{T+2}, vcc')
    e(f'v_mov_b32 v{vS + 4}, 0xff800000')
    smask(sHk, [4, 7, 8, 16, 23, 24, 32, fat, 39, 40])
    smask(sVk, list(range(5, 9)) + list(range(25, 41)))
    smask(sLh, [4, 16, 24])
    if up: smask(88, up)
    if dn: smask(90, dn)
    m = mask64(cks)
    e(f's_cmp_eq_u32 s{sW}, 0')
    e(f's_cselect_b32 s{sCk}, 0x{m & 0xffffffff:08x}, 0'); e(f's_cselect_b32 s{sCk+1}, 0x{m >> 32:08x}, 0')
    e(f's_lshl_b32 s{sRc}, s{sH}, 8'); e(f's_add_u32 s{sRc}, s{sRc}, {RC}')
    e(f's_mov_b32 s{sMap}, 0x210'); e(f's_mov_b32 s{sLvl}, {lvl0}')
    e(f's_mov_b32 s{sKV}, 0'); e(f's_mov_b32 s{sX}, 0'); e(f's_mov_b32 s{sXB}, 0')
    e(f's_mov_b32 s{sN}, 4'); e(f's_mov_b32 s{sSeg}, 2')
    def selfprobe():
        probe_seed(0)
        e(f's_mov_b32 s{sE0}, 0x10000'); e(f's_mov_b32 s{sE1}, 0x10000'); e(f's_mov_b32 s{sRd}, 0'); e(f's_mov_b32 s{sCnt}, {selfp}')
        probe_loop('s[4:7]')
    if nearB and pfirst:
        if_class('L_late2', 0)
        selfprobe()
        e('L_late2:')
    e('s_barrier')
    if nearB:
        if_class('L_late1', 0)
        if selfp:
            if not pfirst: selfprobe()
            e(f's_add_u32 s{sPr}, s{sE}, 1')
            evidence(vT + 4, 0, 4, sPr, 'L_sp0', clip0)
            e('L_sp0:')
            e('s_mov_b64 exec, -1')
        kappa(0, sKp)
        go_near()
        e(f's_lshl_b32 s{sT0}, s{sKp}, 13'); e(f's_add_u32 s{sOff}, s{sOff}, s{sT0}')
        e(f's_mov_b32 s{sLvl}, {lvlc}')
        for i in range(early): issue(X1, i)
        e('L_late1:')
    def qread():
        e(f'ds_read_b32 v{vP}, v{vPd} offset:{L_QF}')
        e(f'ds_read_b128 v[{vQ}:{vQ+3}], v1 offset:{L_Q + 256}')
    k = 0
    for buf in (X1, X2, X0):
        for i in range(16):
            if k >= early:
                if qflag and k == 46:
                    e(f'v_mov_b32 v{vPd}, 0')
                    qread()
                if nearB and DN:
                    if i == 0 or k == early: e(f's_cmp_eq_u32 s{sCls}, 1')
                    e(f's_waitcnt vmcnt({DN - 1})'); e(f's_cbranch_scc1 L_pf{k}')
                if k >= max(DB, burst) and k < 48 - pb: e(f's_waitcnt vmcnt({max(DB, burst - (k - burst) // 2) - 1})')
                if nearB and DN: e(f'L_pf{k}:')
                issue(buf, i)
            k += 1
        e(f's_add_u32 s{sOff}, s{sOff}, 0x20000')
    stamp(1, 0)
    if qflag:
        e('s_waitcnt lgkmcnt(0)')
        e(f'v_cmp_ne_u32 vcc, 0, v{vP}')
        e('s_cbranch_vccz L_qok')
        spin(SPIN * 8, qread, 'lgkmcnt(0)', lambda: e(f'v_cmp_ne_u32 vcc, 0, v{vP}'))
        e('L_qok:')
    else:
        e('s_barrier')
        e(f'ds_read_b128 v[{vQ}:{vQ+3}], v1 offset:{L_Q + 256}')
        e('s_waitcnt lgkmcnt(0)')
    stamp(2, 0)

    def setflags():
        if up:
            e(f's_bitcmp1_b64 s[88:89], s{sN}'); e(f's_cselect_b32 s{sLvl}, {uplvl}, s{sLvl}')
        if dn:
            e(f's_bitcmp1_b64 s[90:91], s{sN}'); e(f's_cselect_b32 s{sLvl}, {dnlvl}, s{sLvl}')
        e(f's_cmp_ge_u32 s{sN}, {41 - endb}')
        e(f's_cselect_b32 s{sLvl}, 3, s{sLvl}')
        e(f's_bitcmp0_b32 s{sLvl}, 0')
        e('s_cselect_b64 vcc, -1, 0')
        e(f's_bitcmp1_b32 s{sLvl}, 1')
    def body_begin(t):
        if diag:
            e('s_memrealtime s[82:83]'); e(f's_mov_b32 m0, s{sN}'); e('s_waitcnt lgkmcnt(0)')
            e('v_writelane_b32 v252, s82, m0')
        e(f's_bitcmp1_b64 s[{sCk}:{sCk+1}], s{sN}')
        e(f's_cselect_b32 s{sIsC}, 1, 0')
        e(f's_cbranch_scc0 L_nt{t}')
        e(f's_mov_b32 s{sRk}, 1')
        e(f's_atomic_add s{sRk}, s[{sWs}:{sWs+1}], s{sRc} glc')
        e(f'L_nt{t}:')
        setflags()
    def throttle(t, i):
        if i == rcat:
            e(f's_cmp_eq_u32 s{sIsC}, 0')
            e(f's_cbranch_scc1 L_nu{t}')
            e('s_waitcnt lgkmcnt(0)')
            if mix:
                e(f's_mul_i32 s{sT0}, s{sJ}, {256 * mix}'); e(f's_add_u32 s{sT0}, s{sT0}, s{sRc}'); e(f's_and_b32 s{sT0}, s{sT0}, 0x1f00')
                e(f's_andn2_b32 s{sRc}, s{sRc}, 0x1f00'); e(f's_or_b32 s{sRc}, s{sRc}, s{sT0}')
            e(f's_add_u32 s{sRc}, s{sRc}, 8192')
            e(f's_cmp_ge_u32 s{sRk}, {th[0]}'); e(f's_cselect_b32 s{sT0}, 4, 0')
            e(f's_cmp_ge_u32 s{sRk}, {th[1]}'); e(f's_cselect_b32 s{sT0}, 8, s{sT0}')
            e(f's_lshr_b32 s{sT0}, s{sMap}, s{sT0}'); e(f's_and_b32 s{sT0}, s{sT0}, 7')
            e(f'v_mov_b32 v{vLv}, s{sT0}')
            e(f'ds_write_b32 v{vZz}, v{vLv} offset:{L_LVL}')
            e(f'L_nu{t}:')
            e(f's_bitcmp1_b32 s{sLvl}, 1')
        if i == rcat + 2:
            e(f'ds_read_b32 v{vLv}, v{vZz} offset:{L_LVL}')
        if i == rcat + 3:
            e('s_waitcnt lgkmcnt(0)')
            e(f'v_readfirstlane_b32 s{sLvl}, v{vLv}')
            setflags()
        pre = t == 'k' and i >= 16 - prek
        if pre and i == 16 - prek:
            e(f's_bitcmp1_b64 s[{sLh}:{sLh+1}], s{sN}')
            e('s_cselect_b64 vcc, 0, vcc')
            e(f's_cselect_b32 s{sT0}, 3, s{sLvl}')
            e(f's_bitcmp1_b32 s{sT0}, 1')
        fr = (0, 0.5, 0.25, 0.75)[i & 3]
        dd = [int(x + fr) for x in (rcv if t == 'v' else rc)]
        dx = int(xlo + fr)
        go = f'L_go{t}{i}'
        if t == 'v' or pre or kfull:
            e(f's_waitcnt vmcnt({dmax - 1})')
            e(f's_cbranch_scc0 L_lo{t}{i}')
            e(f's_cbranch_vccz {go}')
            e(f'L_lo{t}{i}:')
        e(f's_waitcnt vmcnt({dd[2]-1})')
        e(f's_cbranch_scc1 {go}')
        e(f's_waitcnt vmcnt({dd[1]-1})')
        if dx != dd[1]:
            e(f's_cbranch_vccz {go}')
            if dd[0] != dd[1]: e(f's_waitcnt vmcnt({dd[0]-1})')
        if dx != dd[0]:
            e(f's_cmp_eq_u32 s{sLvl}, 4')
            e(f's_cbranch_scc0 {go}')
            e(f's_waitcnt vmcnt({dx-1})')
            e(f's_cmp_eq_u32 s{sLvl}, 0')
        e(f'{go}:')
    def kops(buf, R):
        dots = [[] for _ in range(20)]; post = [[] for _ in range(20)]
        for i in range(16):
            t = R + i % 3; kk = buf + 4 * i
            dots[i].append(f'v_dot2_f32_bf16 v{t}, v{kk}, v{vQ}, 0')
            for r in range(1, 4): dots[i].append(f'v_dot2_f32_bf16 v{t}, v{kk + r}, v{vQ + r}, v{t}')
            a = R + 3 + ((i >> 1) & 1); b = R + 5 + ((i >> 2) & 1)
            bm1 = '0x3' if i % 2 == 0 else '0xc'
            bm2 = '0x5' if (i >> 1) % 2 == 0 else '0xa'
            post[i + 1].append(f'v_add_f32_dpp v{a}, v{t}, v{t} row_ror:8 row_mask:0xf bank_mask:{bm1}')
            if i % 2 == 1: post[i + 2].append(f'v_add_f32_dpp v{b}, v{a}, v{a} row_half_mirror row_mask:0xf bank_mask:{bm2}')
            if i % 4 == 3: post[i + 3].append(f'v_add_f32_dpp v{b}, v{b}, v{b} quad_perm:[2,3,0,1] {DPPF}')
            if i % 8 == 7:
                c = R + 7 if i == 7 else R + 5
                post[i + 3].append(f'v_cndmask_b32 v{c}, v{R+5}, v{R+6}, s[{sM3}:{sM3+1}]')
                post[i + 4].append(f'v_add_f32_dpp v{c}, v{c}, v{c} quad_perm:[1,0,3,2] {DPPF}')
        return [dots[i] + post[i] for i in range(20)]
    def kfinal(R, dst): e(f'v_cndmask_b32 v{dst}, v{R+7}, v{R+5}, s[{sM4}:{sM4+1}]')
    def ktail(sets):
        for s_ in range(16, 20):
            e('s_nop 2' if s_ == 16 else 's_nop 1')
            for st in sets:
                for op in st[s_]: e(op)
    sets = [kops(X0, vT), kops(X1, vT + 8), kops(X2, vT + 16)]
    for i in range(16):
        for op in sets[0][i]: e(op)
        if nearB and DN:
            if i == 0: e(f's_cmp_eq_u32 s{sCls}, 1')
            e(f's_waitcnt vmcnt({DN - 1})'); e(f's_cbranch_scc1 L_cf{i}')
        e(f's_waitcnt vmcnt({(DC or DB)-1})')
        if nearB and DN: e(f'L_cf{i}:')
        issue(X0, i)
        for st in sets[1:]:
            for op in st[i]: e(op)
    ktail(sets)
    kfinal(vT + 8, vS + 5); kfinal(vT + 16, vS + 6); kfinal(vT, vS + 7)
    e(f's_add_u32 s{sE}, s{sE}, 1')
    e(f'v_mov_b32 v{vZz}, 0')
    if_class('L_nc3', 0)
    e(f'v_and_b32 v{T}, 3, v0')
    e(f'v_lshlrev_b32 v{T}, 3, v{T}')
    e(f's_and_b32 s{sT0}, s{sE}, 0xffffff00')
    e(f'v_lshrrev_b32 v{T}, v{T}, s{sT0}')
    e(f'v_mul_u32_u24 v{T+1}, 37, v0')
    e(f'v_xor_b32 v{T}, s{sE}, v{T}')
    e(f'v_xor_b32 v{T}, v{T+1}, v{T}')
    for r in range(4):
        e(f'v_bfe_u32 v{T+1}, v{T}, {2*r}, 1')
        e(f'v_bfe_u32 v{T+2}, v{T}, {2*r+1}, 1')
        e(f'v_lshlrev_b32 v{T+1}, 15, v{T+1}')
        e(f'v_lshl_or_b32 v{vPat + r}, v{T+2}, 31, v{T+1}')
    e(f's_mov_b32 s{s7f}, 0x7fff7fff')
    e(f'v_lshrrev_b32 v{T}, 4, v0')
    e(f'v_lshl_add_u32 v{vPPa}, v{T}, 15, v{vL16}')
    e(f's_and_b32 s{sT0}, s{sW}, 1'); e(f's_lshl_b32 s{sT0}, s{sT0}, 9')
    e(f'v_xor_b32 v{vPPa}, s{sT0}, v{vPPa}')
    e(f'v_xor_b32 v{vPPa+1}, 0x100, v{vPPa}')
    e(f's_lshr_b32 s{sT0}, s{sW}, 1'); e(f's_lshl_b32 s{sT0}, s{sT0}, 10')
    e(f's_and_b32 s{sT1}, s2, 15'); e(f's_lshl_b32 s{sT1}, s{sT1}, 11'); e(f's_add_u32 s{sT0}, s{sT0}, s{sT1}')
    e(f's_lshr_b32 s{sT1}, s2, 4'); e(f's_lshl_b32 s{sT1}, s{sT1}, 17'); e(f's_add_u32 s{sT0}, s{sT0}, s{sT1}')
    e(f's_add_u32 s{sPPa}, s{sT0}, {PP + 0x200000}')
    e(f's_xor_b32 s{sPPb}, s{sPPa}, 0x2000')
    e(f's_or_b32 s{sHk}, s{sHk}, 0x{mask64([22, 30, 31]):08x}')
    e(f's_mov_b32 s{sMap}, {nmap[0] | nmap[1] << 4 | nmap[2] << 8}')
    if nearB:
        kappa(1, sKV)
        e(f's_xor_b32 s{sXB}, s{sKp}, s{sKV}')
        e(f's_mov_b32 s{sX}, s{sXB}')
    e('L_nc3:')
    switch(sBv, sKV, 0x180000)
    stamp(3, 0)

    def body_end(name):
        e(f's_bitcmp1_b64 s[{sHk}:{sHk+1}], s{sN}')
        e('s_cbranch_scc1 L_hooks')
        e(f's_add_u32 s{sOff}, s{sOff}, 0x20000')
        e(f's_add_u32 s{sN}, s{sN}, 1')
        e(f's_branch {name}')
    e('L_kbody:')
    ks = kops(X0, vT)
    body_begin('k')
    for i in range(16):
        for op in ks[i]: e(op)
        if i < 7: e(f'v_mov_b32 v{vS + i}, v{vS + i + 1}')
        throttle('k', i)
        issue(X0, i)
    ktail([ks])
    kfinal(vT, vS + 7)
    body_end('L_kbody')

    e('L_vbody:')
    e(f'v_and_b32 v{vPd}, 0xffff, v{vP}')
    e(f'v_lshl_or_b32 v{vPd}, v{vPd}, 16, v{vPd}')
    for r in range(3): e(f'v_alignbit_b32 v{vP + r}, v{vP + r + 1}, v{vP + r}, 16')
    e(f'v_lshrrev_b32 v{vP+3}, 16, v{vP+3}')
    def vand(i):
        for r in range(4):
            e(f'v_and_b32_dpp v{vS + 4 * (i & 1) + r}, v{vPd}, v{vMask + r} row_newbcast:{br4(i)} {DPPF}')
    body_begin('v')
    vand(0)
    for i in range(16):
        if i < 15: vand(i + 1)
        a = vS + 4 * (i & 1); v = X0 + 4 * i
        e(f'v_mfma_f32_16x16x32_bf16 v[{vAcc}:{vAcc+3}], v[{a}:{a+3}], v[{v}:{v+3}], v[{vAcc}:{vAcc+3}]')
        throttle('v', i)
        issue(X0, i)
    body_end('L_vbody')

    e('L_hooks:')
    e(f's_cmp_eq_u32 s{sN}, 40'); e('s_cbranch_scc1 L_sfin')
    for n in (39, 7, 8, 23, 32, fat, 22, 30, 31):
        e(f's_cmp_eq_u32 s{sN}, {n}'); e(f's_cbranch_scc1 L_h{n}')
    def pload(seg): e(f'buffer_load_dwordx4 v[{vPA}:{vPA+3}], v{vPPa + seg}, s[8:11], s{sPPb} offen sc1')
    def ptest():
        for r in range(4): e(f'v_xor_b32 v{vPA + r}, v{vPA + r}, v{vPat + r}')
        e(f'v_or3_b32 v{T}, v{vPA}, v{vPA+1}, v{vPA+2}')
        e(f'v_bitop3_b32 v{T}, v{T}, v{vPA+3}, s{s7f} bitop3:0x54')
        e(f'v_cmp_ne_u32 vcc, 0, v{T}')
    def pcheck(seg):
        l = lab('pc')
        e(f's_cmp_eq_u32 s{sX}, 0'); e(f's_cbranch_scc1 {l}')
        ptest()
        e(f's_cbranch_vccz {l}')
        spin(SPIN, lambda: pload(seg), 'vmcnt(0)', ptest)
        e(f'{l}:')
    for r in range(4): e(f'v_mov_b32 v{vP + r}, v{vPA + r}')
    e(f'v_max3_f32 v{T}, v{vS}, v{vS+1}, v{vS+2}')
    e(f'v_max3_f32 v{T+1}, v{vS+3}, v{vS+4}, v{vS+5}')
    e(f'v_max3_f32 v{T}, v{T}, v{vS+6}, v{vS+7}')
    e(f'v_max_f32 v{T}, v{T}, v{T+1}')
    allred('v_max_f32', T, T + 1)
    e(f'v_mul_f32 v{T+2}, s{sC}, v{T}')
    for r in range(8): e(f'v_fma_f32 v{vS + r}, v{vS + r}, s{sC}, -v{T+2}')
    for r in range(8): e(f'v_exp_f32 v{vS + r}, v{vS + r}')
    e(f'v_cmp_eq_u32 vcc, s{sSeg}, v0')
    for r in range(4): e(f'v_cvt_pk_bf16_f32 v{vPA + r}, v{vS + 2*r}, v{vS + 2*r + 1}')
    e(f'v_cndmask_b32 v{vMl}, v{vMl}, v{T+2}, vcc')
    for r in range(4): e(f'v_add_f32 v{vS + 2*r}, v{vS + 2*r}, v{vS + 2*r + 1}')
    e(f'v_add_f32 v{vS}, v{vS}, v{vS+2}')
    e(f'v_add_f32 v{vS+4}, v{vS+4}, v{vS+6}')
    e(f'v_add_f32 v{T}, v{vS}, v{vS+4}')
    allred('v_add_f32', T, T + 1)
    e(f'v_cndmask_b32 v{vMl+1}, v{vMl+1}, v{T}, vcc')
    if_class('L_fin2', 0)
    e(f's_cmp_eq_u32 s{sN}, 16'); e('s_cbranch_scc0 L_fin1')
    kappa(3, sKV)
    e(f's_xor_b32 s{sX}, s{sKp}, s{sKV}')
    e('L_fin1:')
    e(f's_cmp_eq_u32 s{sX}, 0'); e('s_cbranch_scc1 L_fin2')
    for r in range(4): e(f'v_and_or_b32 v{vPs + r}, v{vPA + r}, s{s7f}, v{vPat + r}')
    e(f's_and_b32 s{sT0}, s{sSeg}, 1'); e(f's_lshl_b32 s{sT0}, s{sT0}, 8')
    e(f'v_xor_b32 v{T}, s{sT0}, v{vPPa}')
    e(f'buffer_store_dwordx4 v[{vPs}:{vPs+3}], v{T}, s[8:11], s{sPPa} offen sc1')
    e(f's_cmp_eq_u32 s{sN}, 4'); e('s_cbranch_scc0 L_fin2')
    spin(SPIN, lambda: pload(0), 'vmcnt(0)', ptest)
    e('L_fin2:')
    e(f's_cmp_eq_u32 s{sN}, 4'); e('s_cbranch_scc0 L_fin3')
    e(f'ds_read_b128 v[{vQ}:{vQ+3}], v1 offset:{L_Q}')
    e(f'v_mov_b32 v{vP}, v{vPA+2}'); e(f'v_mov_b32 v{vP+1}, v{vPA+3}')
    e(f's_mov_b32 s{sSeg}, 0')
    e(f's_sub_u32 s{sPPa}, s{sPPa}, 0x200000'); e(f's_sub_u32 s{sPPb}, s{sPPb}, 0x200000')
    e('s_waitcnt lgkmcnt(0)')
    e('s_branch L_h_done')
    e('L_fin3:')
    e(f's_mov_b32 s{sSeg}, 1')
    e(f's_cmp_eq_u32 s{sN}, 24'); e('s_cbranch_scc0 L_h_done')
    stamp(14, 0)
    e(f's_lshl_b32 s{sT1}, s{sW}, 6')
    e(f'v_mov_b32 v{vMl+2}, s{sE}'); e(f'v_mov_b32 v{vMl+3}, s{sE}')
    e(f'v_add_u32 v{T}, s{sT1}, v{vL16}')
    e('s_mov_b64 exec, 15')
    e(f'ds_write_b128 v{T}, v[{vMl}:{vMl+3}] offset:{L_ST}')
    e('s_mov_b64 exec, -1')
    e('s_branch L_h_done')
    e('L_h7:')
    stamp(15, 0)
    if_class('L_h7b', 0)
    kappa(2, sKp)
    if not nearB: go_near()
    e('L_h7b:')
    switch(sAk, sKp, -0x20000)
    e('s_branch L_h_done')
    e('L_h8:')
    for r in range(4): e(f'v_mov_b32_dpp v{vMask + r}, v{vMask + r} row_ror:8 {DPPF}')
    for r in range(4): e(f'v_mov_b32 v{vAccB + r}, v{vAcc + r}')
    for r in range(4): e(f'v_mov_b32 v{vAcc + r}, 0')
    e('s_branch L_h_done')
    for n, seg in ((22, 0), (30, 1)):
        e(f'L_h{n}:')
        e(f's_cmp_eq_u32 s{sX}, 0'); e('s_cbranch_scc1 L_h_done')
        pload(seg)
        e('s_branch L_h_done')
    e('L_h31:')
    pcheck(1)
    e('s_branch L_h_done')
    e('L_h23:')
    pcheck(0)
    switch(sAv, sKV, -0x20000)
    e('s_branch L_h_done')
    e('L_h32:')
    if emap:
        e(f's_mov_b32 s{sMap}, {emap[0] | emap[1] << 4 | emap[2] << 8}')
        e(f's_cmp_eq_u32 s{sCls}, 1'); e(f's_cselect_b32 s{sMap}, {enmap[0] | enmap[1] << 4 | enmap[2] << 8}, s{sMap}')
    for r in range(4): e(f'v_mov_b32_dpp v{vMask + r}, v{vMask + r} row_ror:8 {DPPF}')
    for r in range(4): e(f'v_mov_b32 v{vP + r}, v{vPA + r}')
    e('s_branch L_h_done')
    e(f'L_h{fat}:')
    e(f's_xor_b32 s{sT0}, s{sSide}, s{sX}'); e(f's_lshl_b32 s{sT0}, s{sT0}, 2'); e(f's_add_u32 s{sT0}, s{sT0}, s{sW}'); e(f's_lshl_b32 s{sT0}, s{sT0}, 3')
    e(f's_xor_b32 s{sT1}, s{sSide}, s{sXB}'); e(f's_lshl_b32 s{sT1}, s{sT1}, 2'); e(f's_add_u32 s{sT1}, s{sT1}, s{sW}'); e(f's_lshl_b32 s{sT1}, s{sT1}, 3')
    e(f'v_lshrrev_b32 v{T+4}, 5, v0')
    e(f'v_lshl_add_u32 v{T}, v{T+4}, 6, s{sT0}')
    e(f'v_mov_b32 v{T+1}, s{sT1}')
    def fload():
        e(f'ds_read_b64 v[{vF}:{vF+1}], v{T} offset:{L_F}')
        e(f'ds_read_b64 v[{T+2}:{T+3}], v{T+1} offset:{L_F + 128}')
    def ftest():
        e(f'v_cmp_ne_u32 vcc, s{sE}, v{vF+1}')
        e(f'v_cmp_ne_u32 s[{sT1}:{sT1+1}], s{sE}, v{T+3}')
        e(f's_or_b64 vcc, vcc, s[{sT1}:{sT1+1}]')
    spin(SPIN * 8, fload, 'lgkmcnt(0)', ftest, again='scc1')
    for r in range(4): e(f'v_mul_f32 v{vAccB + r}, v{T+2}, v{vAccB + r}')
    e(f'v_lshlrev_b32 v1, 1, v1')
    e(f'v_lshl_add_u32 v1, v{T+4}, 9, v1')
    e(f'v_and_b32 v{T}, 16, v0')
    e(f's_lshl_b32 s{sT0}, s{sW}, 10')
    e(f'v_add3_u32 v1, v1, v{T}, s{sT0}')
    e('s_branch L_h_done')
    e('L_h39:')
    e('s_mov_b32 s6, 0')
    e('L_h_done:')
    e(f's_add_u32 s{sOff}, s{sOff}, 0x20000')
    e(f's_add_u32 s{sN}, s{sN}, 1')
    e(f's_bitcmp1_b64 s[{sVk}:{sVk+1}], s{sN}')
    e('s_cbranch_scc1 L_vbody')
    e('s_branch L_kbody')
    e('L_sfin:')
    e('s_nop 1')
    for r in range(4): e(f'v_mul_f32 v{vAcc + r}, v{vF}, v{vAcc + r}')
    for r in range(4): e(f'v_permlane32_swap_b32 v{vAcc + r}, v{vAccB + r}')
    for r in range(4): e(f'v_add_f32 v{vAcc + r}, v{vAcc + r}, v{vAccB + r}')
    e(f'ds_write_b128 v1, v[{vAcc}:{vAcc+3}] offset:{L_O}')
    e('s_waitcnt lgkmcnt(0)')
    e('s_barrier')
    stamp(4, 0)
    e(f'v_lshrrev_b32 v{T}, 4, v0')
    e(f'v_and_b32 v{T+4}, 15, v0')
    e(f'v_lshlrev_b32 v{vWa}, 13, v{T}')
    e(f'v_lshl_add_u32 v{vWa}, v{T+4}, 4, v{vWa}')
    e(f's_lshl_b32 s{sT0}, s{sH}, 17'); e(f's_lshl_b32 s{sT1}, s{sU}, 8'); e(f's_add_u32 s{sT0}, s{sT0}, s{sT1}')
    e(f's_lshl_b32 s{sT1}, s{sW}, 15'); e(f's_add_u32 s{sT0}, s{sT0}, s{sT1}'); e(f's_add_u32 s{sT1}, s{sT0}, 4096')
    e(f's_cmp_eq_u32 s{sSide}, 0')
    e(f's_cselect_b64 s[4:5], s[{sAwo}:{sAwo+1}], s[{sBwo}:{sBwo+1}]')
    e('s_mov_b32 s6, 0x400000')
    for i in range(8):
        if i == wpre: e('s_barrier')
        e(f'buffer_load_dwordx4 v[{vW + 4*i}:{vW + 4*i + 3}], v{vWa}, s[4:7], s{sT0 + (i >> 2)} offen offset:{(i & 3) * 1024} nt')
    e(f'v_and_b32 v{T+1}, 3, v0')
    e(f'v_lshlrev_b32 v{T+1}, 8, v{T+1}')
    e(f'v_lshl_add_u32 v{T+1}, v{T}, 4, v{T+1}')
    e(f's_lshl_b32 s{sT2}, s{sW}, 6'); e(f's_add_u32 s{sT2}, s{sT2}, {L_RED}')
    e(f'v_add_u32 v{T+1}, s{sT2}, v{T+1}')
    e(f'v_bfe_u32 v{T+2}, v0, 2, 2')
    e(f'v_mov_b32 v{T+3}, {L_Z}')
    for q in range(4):
        e(f'v_cmp_eq_u32 vcc, {q}, v{T+2}'); e('s_nop 1')
        e(f'v_cndmask_b32 v{vAr + q}, v{T+3}, v{T+1}, vcc')
    e(f's_lshl_b32 s{sT2}, s{sW}, 11')
    e(f'v_add_u32 v{vYw}, s{sT2}, v{vL16}')
    e(f'v_and_b32 v{vYr}, 0x1f0, v{vL16}')
    e(f'v_lshrrev_b32 v{T+1}, 5, v0')
    e(f'v_lshl_add_u32 v{vYr}, v{T+1}, 12, v{vYr}')
    e(f's_lshl_b32 s{sT2}, s{sW}, 9')
    e(f'v_add_u32 v{vYr}, s{sT2}, v{vYr}')
    e(f's_and_b32 s{sT2}, s{sW}, 1'); e(f's_lshl_b32 s{sT2}, s{sT2}, 1')
    e(f'v_and_or_b32 v{T}, v{T}, 1, s{sT2}')
    e(f's_lshl_b32 s{sT2}, s2, 1'); e(f's_and_b32 s{sT2}, s{sT2}, 127'); e(f's_lshr_b32 s{sYd}, s{sW}, 1'); e(f's_or_b32 s{sT2}, s{sT2}, s{sYd}')
    e(f'v_xor_b32 v{T+1}, s{sT2}, v{T}')
    e(f'v_lshlrev_b32 v{vYa}, 8, v{T+1}')
    e(f'v_lshl_add_u32 v{vYa}, v{T}, 15, v{vYa}')
    e(f'v_lshl_add_u32 v{vYa}, v{T+4}, 4, v{vYa}')
    e(f's_lshr_b32 s{sYd}, s2, 6'); e(f's_lshl_b32 s{sYd}, s{sYd}, 17'); e(f's_add_u32 s{s7f}, s{sYd}, {YF}')
    e(f's_add_u32 s{sE}, s{sE}, 1')
    mktag(vTg2, sE, sT2)
    xcc(sT2)
    e(f'v_xor_b32 v{vTg2+3}, s{sT2}, v{vTg2+3}')
    e(f's_mov_b32 s{sT0}, 0x05040100'); e(f's_mov_b32 s{sT1}, 0x07060302')
    def bar4():
        e('s_barrier')
        for q in range(4): e(f'ds_read_b128 v[{vAo + 4*q}:{vAo + 4*q + 3}], v{vAr + q}')
    for r in range(4):
        if r == afirst - 1: bar4()
        e(f's_waitcnt vmcnt({6 - 2 * r})')
        for ee in range(8):
            e(f'v_perm_b32 v{vBt + 4*ee + r}, v{vW + 4*(2*r+1) + (ee >> 1)}, v{vW + 4*(2*r) + (ee >> 1)}, s{sT0 + (ee & 1)}')
    stamp(9, 0)
    if afirst == 0: bar4()
    for q in range(4):
        e(f's_waitcnt lgkmcnt({3 - q})')
        for t in range(2):
            d = vDD + 4 * t; ee = 2 * q + t
            c = f'v[{d}:{d+3}]' if q else '0'
            e(f'v_mfma_f32_16x16x32_bf16 v[{d}:{d+3}], v[{vAo + 4*q}:{vAo + 4*q + 3}], v[{vBt + 4*ee}:{vBt + 4*ee + 3}], {c}')
    e('s_nop 6')
    e(f'ds_write_b128 v{vYw}, v[{vDD}:{vDD+3}] offset:{L_Y}')
    e(f'ds_write_b128 v{vYw}, v[{vDD+4}:{vDD+7}] offset:{L_Y + 1024}')
    e('s_waitcnt lgkmcnt(0)')
    e('s_barrier')
    e(f'ds_read_b128 v[{vAcc}:{vAcc+3}], v{vYr} offset:{L_Y}')
    e(f'ds_read_b128 v[{vAccB}:{vAccB+3}], v{vYr} offset:{L_Y + 2048}')
    e('s_waitcnt lgkmcnt(0)')
    for r in range(4): e(f'v_add_f32 v{vAcc + r}, v{vAcc + r}, v{vAccB + r}')
    for r in range(4): e(f'v_permlane32_swap_b32 v{vAcc + r}, v{vAccB + r}')
    for r in range(4): e(f'v_add_f32 v{vAcc + r}, v{vAcc + r}, v{vAccB + r}')
    for r in range(4): tag(vAcc + r, vTg2)
    e('s_mov_b32 exec_hi, 0')
    if fast: e(f'buffer_store_dwordx4 v[{vAcc}:{vAcc+3}], v{vYa}, s[8:11], s{s7f} offen {fpol}')
    if sdelay: e('s_waitcnt vmcnt(0)')
    if not lazy: e(f'buffer_store_dwordx4 v[{vAcc}:{vAcc+3}], v{vYa}, s[8:11], s{sYd} offen sc1')
    if diag:
        e(f's_cmp_lg_u32 s{sW}, 0'); e('s_cbranch_scc1 L_end')
        stamp(11)
        flush_stamps([0, 1, 2, 3, 4, 9, 11, 14, 15])
        e('s_mov_b64 exec, -1')
        e('s_lshl_b32 s84, s2, 8'); e(f's_add_u32 s84, s84, {STAMP + 0x8000}')
        e('v_lshlrev_b32 v253, 2, v0')
        e('buffer_store_dword v252, v253, s[8:11], s84 offen')
    e('s_endpgm')

    e('L_service:')
    sDst = 54
    sX3, sX4a, sX4b, sOo = 56, 57, 58, 59
    vG = 2; vC = 3; vA = 4; vA2 = 5; vL = 6; vZ = 7
    vXA = 8; vWt = 16; vSel = 48; vOpA = 56; vD = 64; vR = 72
    vA3 = 104; vTg = 112; vTg2 = 116; vX3 = 108; vX4 = 109; vOut = 110
    e(f's_sub_u32 s{sW}, s{sW}, 4')
    e(f'v_lshrrev_b32 v{vG}, 4, v0')
    e(f'v_and_b32 v{vC}, 15, v0')
    e(f'v_lshlrev_b32 v{vA}, 16, v{vG}')
    e(f'v_lshl_add_u32 v{vA}, v{vC}, 4, v{vA}')
    e(f'v_lshrrev_b32 v{vA2}, 3, v{vC}')
    e(f'v_lshlrev_b32 v{vA2}, 10, v{vA2}')
    e(f'v_lshl_add_u32 v{vA2}, v{vG}, 4, v{vA2}')
    e(f's_lshl_b32 s{sT0}, s{sU}, 7'); e(f's_lshl_b32 s{sT1}, s{sW}, 5'); e(f's_add_u32 s{sT0}, s{sT0}, s{sT1}')
    e(f's_lshl_b32 s{sT1}, s{sT0}, 1')
    e(f's_lshl_b32 s{sT0}, s{sT0}, 13'); e(f's_lshl_b32 s{sT2}, s{sH}, 8'); e(f's_add_u32 s{sT0}, s{sT0}, s{sT2}')
    e('s_mov_b32 s6, 0x400000'); e('s_mov_b32 s14, 4096'); e('s_mov_b32 s15, 0x20000')
    e(f's_cmp_eq_u32 s{sSide}, 0')
    e('s_waitcnt lgkmcnt(0)')
    e(f's_cselect_b64 s[4:5], s[{sAwq}:{sAwq+1}], s[{sBwq}:{sBwq+1}]')
    e(f's_cselect_b64 s[12:13], s[{sAx}:{sAx+1}], s[{sBx}:{sBx+1}]')
    for m in range(2 if xfirst else 0):
        e(f'buffer_load_dwordx4 v[{vXA + 4*m}:{vXA + 4*m + 3}], v{vA2}, s[12:15], s{sT1} offen offset:{2048*m}')
    for i in range(8):
        if not abl & 4: e(f'buffer_load_dwordx4 v[{vWt + 4*i}:{vWt + 4*i + 3}], v{vA}, s[4:7], s{sT0} offen nt')
        if i < 7: e(f's_add_u32 s{sT0}, s{sT0}, 8192')
    for m in range(0 if (xfirst or abl & 16) else 2):
        e(f'buffer_load_dwordx4 v[{vXA + 4*m}:{vXA + 4*m + 3}], v{vA2}, s[12:15], s{sT1} offen offset:{2048*m}')
    if l2w:
        e(f's_getpc_b64 s[{sTm}:{sTm+1}]')
        e('L_pc:')
        e(f's_lshl_b32 s{sT0}, s{sH}, 2'); e(f's_add_u32 s{sT0}, s{sT0}, s{sW}'); e(f's_lshl_b32 s{sT0}, s{sT0}, 7')
        e(f's_min_u32 s{sT0}, s{sT0}, L_end-L_pc')
        e(f's_add_u32 s{sT0}, s{sT0}, s{sTm}'); e(f's_addc_u32 s{sT1}, s{sTm+1}, 0')
        e(f'v_mov_b32 v{vR+2}, s{sT0}'); e(f'v_mov_b32 v{vR+3}, s{sT1}')
        e(f'global_load_dword v{vOut}, v[{vR+2}:{vR+3}], off')
    e('L_service2:')
    e(f'v_mov_b32 v{vZ}, 0')
    e(f'v_lshlrev_b32 v{vR}, 2, v0')
    e(f'v_cmp_lt_u32 vcc, 15, v0')
    e(f's_cmp_eq_u32 s{sCls}, {1 if nearB else 2}'); e(f's_cselect_b32 s{sT0}, {lvlc}, {lvl0}')
    e(f'v_cndmask_b32 v{vR+1}, 0, -1, vcc')
    e(f'v_writelane_b32 v{vR+1}, s{sT0}, 1')
    e(f'ds_write_b32 v{vR}, v{vR+1} offset:{L_CNT}')
    e('s_waitcnt lgkmcnt(0)')
    load_epoch()
    e('s_barrier')
    e(f's_mov_b32 s8, s{sWs}'); e(f's_mov_b32 s9, s{sWs+1}')
    e(f'v_lshlrev_b32 v{vL}, 4, v0')
    assert len(cks) <= 16
    e(f's_lshl_b32 s{sT0}, s{sW}, 3'); e(f's_add_u32 s{sT0}, s{sT0}, s{sJ}')
    e(f's_cmp_ge_u32 s{sT0}, {len(cks)}'); e('s_cbranch_scc1 L_norc')
    e(f's_lshl_b32 s{sT0}, s{sT0}, 5'); e(f's_add_u32 s{sT0}, s{sT0}, s{sH}'); e(f's_lshl_b32 s{sT0}, s{sT0}, 8'); e(f's_add_u32 s{sT0}, s{sT0}, {RC}')
    e('s_mov_b64 exec, 0xffff')
    if not abl & 8: e(f'buffer_store_dword v{vZ}, v{vR}, s[8:11], s{sT0} offen sc1')
    e('s_mov_b64 exec, -1')
    e('L_norc:')
    e(f'v_and_b32 v{vR}, 7, v0')
    e(f'v_and_b32 v{vR+1}, 1, v0')
    e(f'v_lshlrev_b32 v{vR+1}, 4, v{vR+1}')
    e(f'v_mov_b32 v{vR+2}, 0xffff')
    e(f'v_lshlrev_b32 v{vR+2}, v{vR+1}, v{vR+2}')
    e(f'v_lshrrev_b32 v{vR}, 1, v{vR}')
    e(f'v_mov_b32 v{vR+4}, 0x0c0c0c0c')
    e(f's_mov_b32 s{sT0}, 0x01000100'); e(f's_mov_b32 s{sT1}, 0x03020302')
    for r in range(4):
        e(f'v_cmp_eq_u32 vcc, {r}, v{vR}'); e('s_nop 1')
        e(f'v_cndmask_b32 v{vR+3}, 0, v{vR+2}, vcc')
        e(f'v_bfi_b32 v{vSel + r}, v{vR+3}, s{sT0}, v{vR+4}')
        e(f'v_bfi_b32 v{vSel + 4 + r}, v{vR+3}, s{sT1}, v{vR+4}')
    e(f'v_lshrrev_b32 v{vR}, 5, v0')
    e(f'v_lshlrev_b32 v{vA}, 9, v{vR}')
    e(f'v_lshl_add_u32 v{vA}, v{vC}, 5, v{vA}')
    e(f'v_and_b32 v{vR}, 16, v0')
    e(f's_lshl_b32 s{sT0}, s{sW}, 11')
    e(f'v_add3_u32 v{vA}, v{vA}, v{vR}, s{sT0}')
    e(f'v_lshl_add_u32 v{vA2}, v{vG}, 15, v{vL}')
    e(f's_lshl_b32 s{sT0}, s2, 1'); e(f's_and_b32 s{sT0}, s{sT0}, 127'); e(f's_lshl_b32 s{sT0}, s{sT0}, 8')
    e(f'v_xor_b32 v{vA2}, s{sT0}, v{vA2}')
    e(f'v_xor_b32 v{vA3}, 0x100, v{vA2}')
    e(f's_lshr_b32 s{sDst}, s2, 6'); e(f's_lshl_b32 s{sDst}, s{sDst}, 17')
    e('s_waitcnt lgkmcnt(0)')
    e(f's_add_u32 s{sE}, s{sE}, 1')
    mktag(vTg, sE, sT0)
    def probe_setup():
        e(f's_mov_b64 s[12:13], s[{sBk}:{sBk+1}]')
        for r, p in ((1, sBv), (2, sAk), (3, sAv)):
            e(f's_cmp_eq_u32 s{sRd}, {r}'); e(f's_cselect_b64 s[12:13], s[{p}:{p+1}], s[12:13]')
        e('s_mov_b32 s14, 0x10000000')
        e(f's_mov_b32 s{sE0}, 0x10000'); e(f's_mov_b32 s{sE1}, 0x10000')
    e(f's_cmp_eq_u32 s{sW}, 0'); e(f's_cselect_b32 s{sCls}, 0, s{sCls}')
    e(f's_mov_b32 s{sRd}, {(1 if selfp else 0) if nearB else 2}')
    probe_setup()
    if_class('L_nop0', 0)
    probe_seed(1)
    if sh0 and nearB and not selfp:
        e(f's_mov_b32 s{sCnt}, {sh0}')
        probe_loop()
        e('s_branch L_padret')
    e('L_nop0:')
    if pads == 1:
        for w in range(3):
            e(f's_cmp_eq_u32 s{sW}, {w}'); e(f's_cbranch_scc1 L_pad{w}')
        e('s_branch L_pad3')
    e('L_padret:')
    e('s_waitcnt vmcnt(0)')
    stamp(5, 0)
    seq = [(i, m) for i in range(8) for m in range(2)]
    def perms(k):
        i, m = seq[k]
        for r in range(4):
            x = vXA + 4 * m + (i >> 1)
            e(f'v_perm_b32 v{vOpA + 4 * (k & 1) + r}, v{x}, v{x}, v{vSel + 4 * (i & 1) + r}')
    perms(0)
    for k, (i, m) in enumerate(seq):
        if k < 15: perms(k + 1)
        else: e('s_nop 0')
        a = vOpA + 4 * (k & 1); d = vD + 4 * m; w = vWt + 4 * i
        c = f'v[{d}:{d+3}]' if i > 0 else '0'
        e(f'v_mfma_f32_16x16x32_bf16 v[{d}:{d+3}], v[{a}:{a+3}], v[{w}:{w+3}], {c}')
    e(f'v_mov_b32 v{vR}, 1')
    e('s_nop 5')
    e(f'ds_write_b128 v{vA}, v[{vD}:{vD+3}] offset:{L_RED}')
    e(f'ds_write_b128 v{vA}, v[{vD+4}:{vD+7}] offset:{L_RED + 1024}')
    e('s_mov_b64 exec, 1')
    e(f'ds_add_u32 v{vZ}, v{vR} offset:{L_CNT}')
    e('s_mov_b64 exec, -1')
    e(f's_cmp_lg_u32 s{sW}, 0')
    e('s_cbranch_scc1 L_notleader')
    spin(SPIN * 8, lambda: e(f'ds_read_b32 v{vR}, v{vZ} offset:{L_CNT}'), 'lgkmcnt(0)', lambda: e(f'v_cmp_ne_u32 vcc, 4, v{vR}'))
    for m in range(2): e(f'ds_read_b128 v[{vD + 4*m}:{vD + 4*m + 3}], v{vL} offset:{L_RED + m * 1024}')
    for w in range(1, 4):
        for m in range(2):
            r = vR + ((w - 1) * 2 + m) * 4
            e(f'ds_read_b128 v[{r}:{r+3}], v{vL} offset:{L_RED + w * 2048 + m * 1024}')
    e('s_waitcnt lgkmcnt(4)')
    for r in range(8): e(f'v_add_f32 v{vD + r}, v{vD + r}, v{vR + r}')
    e('s_waitcnt lgkmcnt(0)')
    for r in range(8): e(f'v_add_f32 v{vR + 8 + r}, v{vR + 8 + r}, v{vR + 16 + r}')
    for r in range(8): e(f'v_add_f32 v{vD + r}, v{vD + r}, v{vR + 8 + r}')
    for r in range(8): tag(vD + r, vTg)
    if not abl & 1:
        e(f'buffer_store_dwordx4 v[{vD}:{vD+3}], v{vA2}, s[8:11], s{sDst} offen sc1')
        e(f'buffer_store_dwordx4 v[{vD+4}:{vD+7}], v{vA3}, s[8:11], s{sDst} offen sc1')
    stamp(6)
    e(f'v_bfe_u32 v{vR}, v0, 4, 1')
    e(f's_and_b32 s{sT0}, s{sB}, 1'); e(f's_lshl_b32 s{sT0}, s{sT0}, 1')
    e(f'v_or_b32 v{vR}, s{sT0}, v{vR}')
    e(f'v_lshrrev_b32 v{vR+1}, 5, v0')
    e(f'v_lshlrev_b32 v{vR+1}, 3, v{vR+1}')
    e(f's_and_b32 s{sT0}, s{sH}, 7'); e(f's_lshl_b32 s{sT0}, s{sT0}, 4'); e(f's_lshr_b32 s{sT1}, s{sB}, 1'); e(f's_or_b32 s{sT0}, s{sT0}, s{sT1}')
    e(f'v_or_b32 v{vR+1}, s{sT0}, v{vR+1}')
    e(f'v_xor_b32 v{vR+1}, v{vR+1}, v{vR}')
    e(f'v_lshlrev_b32 v{vR+1}, 8, v{vR+1}')
    e(f'v_lshl_add_u32 v{vR+1}, v{vR}, 15, v{vR+1}')
    e(f'v_lshl_add_u32 v{vR}, v{vC}, 4, v{vR+1}')
    e(f'v_xor_b32 v{vR+1}, 0x200, v{vR}')
    e(f's_xor_b32 s{sT0}, s{sE}, 1')
    e(f'v_mov_b32 v{vR+20}, s{sT0}'); e(f'v_mov_b32 v{vR+21}, s{sT0}')
    e(f'v_lshlrev_b32 v{vR+22}, 3, v0')
    e(f'ds_write_b64 v{vR+22}, v[{vR+20}:{vR+21}] offset:{L_ST}')
    def qload():
        for r in range(4):
            d = vR + 4 + 4 * r
            e(f'buffer_load_dwordx4 v[{d}:{d+3}], v{vR + (r & 1)}, s[8:11], s{sDst} offen offset:{(r >> 1) * 1024} sc1')
    if qs0: e('s_waitcnt vmcnt(0)')
    if not abl & 2: spin(SPIN, qload, 'vmcnt(0)', lambda: check(range(vR + 4, vR + 20), vR + 2, vTg), sleep=qs)
    for r in range(4):
        e(f'v_add_f32 v{vR + 4 + r}, v{vR + 4 + r}, v{vR + 8 + r}')
        e(f'v_add_f32 v{vR + 12 + r}, v{vR + 12 + r}, v{vR + 16 + r}')
    for r in range(4): e(f'v_add_f32 v{vR + 4 + r}, v{vR + 4 + r}, v{vR + 12 + r}')
    e(f'v_cvt_pk_bf16_f32 v{vR+4}, v{vR+4}, v{vR+5}')
    e(f'v_cvt_pk_bf16_f32 v{vR+5}, v{vR+6}, v{vR+7}')
    e(f'ds_write_b64 v{vR+22}, v[{vR+4}:{vR+5}] offset:{L_Q}')
    if qflag: e(f'ds_write_b32 v{vZ}, v{vZ} offset:{L_QF}')
    e('s_waitcnt lgkmcnt(0)')
    stamp(8)
    if not qflag: e('s_barrier')
    e('s_mov_b64 exec, 0xffff')
    spin(SPIN, lambda: e(f'ds_read_b128 v[{vD}:{vD+3}], v{vL} offset:{L_ST}'), 'lgkmcnt(0)',
         lambda: e(f'v_cmp_ne_u32 vcc, s{sE}, v{vD+2}'), sleep=16)
    e(f's_lshl_b32 s{sT0}, s2, 8'); e(f's_add_u32 s{sT0}, s{sT0}, {ST}')
    e(f'buffer_store_dwordx4 v[{vD}:{vD+3}], v{vL}, s[8:11], s{sT0} offen sc1')
    e('s_mov_b64 exec, -1')
    e(f'v_and_b32 v{vR}, 3, v0')
    e(f'v_lshlrev_b32 v{vA}, 6, v{vR}')
    e(f'v_bfe_u32 v{vR}, v0, 2, 1')
    e(f'v_lshl_add_u32 v{vA}, v{vR}, 10, v{vA}')
    e(f'v_lshrrev_b32 v{vR}, 3, v0')
    e(f'v_min_u32 v{vR}, 2, v{vR}')
    e(f'v_lshl_add_u32 v{vA}, v{vR}, 4, v{vA}')
    e(f's_andn2_b32 s{sT0}, s{sT0}, 0x400')
    spin(SPIN, lambda: e(f'buffer_load_dwordx4 v[{vR+4}:{vR+7}], v{vA}, s[8:11], s{sT0} offen sc1'), 'vmcnt(0)',
         lambda: e(f'v_cmp_ne_u32 vcc, s{sE}, v{vR+6}'), sleep=48)
    e(f'v_mov_b32 v{vR}, v{vR+4}')
    rowred('v_max_f32', vR)
    e(f'v_sub_f32 v{vR}, v{vR+4}, v{vR}')
    e(f'v_exp_f32 v{vR}, v{vR}')
    e('v_cmp_lt_u32 vcc, 15, v0')
    e(f'v_mul_f32 v{vR+1}, v{vR}, v{vR+5}')
    rowred('v_add_f32', vR + 1)
    e(f'v_rcp_f32 v{vR+1}, v{vR+1}')
    e(f'v_cndmask_b32 v{vR+2}, 1.0, 2.0, vcc')
    e(f'v_mul_f32 v{vR}, v{vR}, v{vR+1}')
    e(f'v_mul_f32 v{vR}, v{vR}, v{vR+2}')
    e(f'v_mov_b32 v{vR+1}, s{sE}')
    e('s_mov_b32 exec_hi, 0')
    e(f'ds_write_b64 v{vR+22}, v[{vR}:{vR+1}] offset:{L_F}')
    e('s_mov_b64 exec, -1')
    e(f'v_bfe_u32 v{vR}, v0, 2, 3')
    e(f'v_lshlrev_b32 v{vX4}, 12, v{vR}')
    e(f'v_lshrrev_b32 v{vR}, 5, v0')
    e(f'v_lshl_add_u32 v{vX4}, v{vR}, 17, v{vX4}')
    e(f'v_and_b32 v{vR}, 3, v0')
    e(f'v_lshl_add_u32 v{vX4}, v{vR}, 4, v{vX4}')
    e(f'v_lshlrev_b32 v{vOut}, 4, v{vR}')
    e(f'v_bfe_u32 v{vR}, v0, 2, 2')
    e(f'v_lshl_add_u32 v{vOut}, v{vR}, 11, v{vOut}')
    e(f's_bfe_u32 s{sT0}, s{sH}, 0x20002'); e(f's_lshr_b32 s{sT2}, s{sH}, 4')
    e(f's_lshl_b32 s{sOo}, s{sT0}, 1'); e(f's_add_u32 s{sOo}, s{sOo}, s{sT2}'); e(f's_lshl_b32 s{sOo}, s{sOo}, 1')
    e(f's_lshl_b32 s{sT1}, s{sJ}, 1'); e(f's_or_b32 s{sT1}, s{sT1}, s{sT2}')
    e(f's_xor_b32 s{sT1}, s{sT1}, s{sT0}'); e(f's_lshl_b32 s{sT1}, s{sT1}, 8')
    e(f's_lshl_b32 s{sT0}, s{sT0}, 15'); e(f's_add_u32 s{sT0}, s{sT0}, s{sT1}')
    e(f's_and_b32 s{sT1}, s{sH}, 3'); e(f's_lshl_b32 s{sT1}, s{sT1}, 6')
    e(f's_add_u32 s{sX4a}, s{sT0}, s{sT1}')
    if fast: e(f's_add_u32 s{sX4a}, s{sX4a}, {YF}')
    e(f's_add_u32 s{sX4b}, s{sX4a}, 0x40000')
    e(f's_add_u32 s{sOo}, s{sOo}, s{sT1}'); e(f's_lshl_b32 s{sT1}, s{sJ}, 8'); e(f's_add_u32 s{sOo}, s{sOo}, s{sT1}')
    e('s_branch L_rdone')
    e('L_notleader:')
    if pads == 2:
        e(f's_cmp_eq_u32 s{sW}, 3'); e('s_cbranch_scc1 L_padtop')
        e('L_padret2:')
    e(f'v_mov_b32 v{vX4}, 0'); e(f'v_mov_b32 v{vOut}, 0')
    if_class('L_round0', 1)
    if not qflag: e('s_barrier')
    e('s_branch L_rdone')
    e('L_round0:')
    if shA and not nearB:
        e(f's_mov_b32 s{sCnt}, {shA}')
        probe_loop()
    e('L_round:')
    if not qflag:
        e(f's_cmp_lg_u32 s{sRd}, 2'); e('s_cbranch_scc1 L_rnb')
        e('s_barrier')
        e('L_rnb:')
    e(f's_lshl_b32 s{sT0}, s{sRd}, 3'); e(f's_lshr_b32 s{sCnt}, {sum(v << (8 * r) for r, v in enumerate(shots))}, s{sT0}'); e(f's_and_b32 s{sCnt}, s{sCnt}, 0xff')
    probe_loop()
    evidence(vR, 1, 3, sE, 'L_rnext')
    e('L_rnext:')
    e('s_mov_b64 exec, -1')
    e(f's_add_u32 s{sRd}, s{sRd}, 1')
    probe_setup()
    e(f's_cmp_lt_u32 s{sRd}, 4'); e('s_cbranch_scc1 L_round')
    e('L_rdone:')
    e(f's_lshl_b32 s{sT0}, s{sSide}, 1')
    e(f'v_and_or_b32 v{vR}, v{vG}, 1, s{sT0}')
    e(f'v_xor_b32 v{vR+1}, s{sW}, v{vR}')
    e(f'v_lshlrev_b32 v{vX3}, 8, v{vR+1}')
    e(f'v_lshl_add_u32 v{vX3}, v{vR}, 15, v{vX3}')
    e(f'v_lshrrev_b32 v{vR+1}, 5, v0')
    e(f'v_lshl_add_u32 v{vX3}, v{vR+1}, 10, v{vX3}')
    e(f'v_lshl_add_u32 v{vX3}, v{vC}, 4, v{vX3}')
    e(f'v_and_b32 v{vR}, 31, v0')
    e(f'v_lshlrev_b32 v{vA}, 3, v{vR}')
    e(f'v_lshl_add_u32 v{vA}, v{vR+1}, 2, v{vA}')
    e(f's_lshl_b32 s{sT0}, s{sW}, 8')
    e(f'v_add_u32 v{vA}, s{sT0}, v{vA}')
    e(f's_and_b32 s{sT1}, s{sH}, 15'); e(f's_lshl_b32 s{sX3}, s{sT1}, 11')
    e(f's_lshr_b32 s{sT1}, s{sH}, 4'); e(f's_lshl_b32 s{sT1}, s{sT1}, 17'); e(f's_add_u32 s{sX3}, s{sX3}, s{sT1}')
    e(f's_add_u32 s{sX3}, s{sX3}, {OP}')
    e(f'v_lshl_add_u32 v{vA3}, v{vG}, 15, v{vL}')
    e(f's_lshl_b32 s{sT0}, s{sSide}, 2'); e(f's_or_b32 s{sT0}, s{sT0}, s{sB}'); e(f's_lshl_b32 s{sT0}, s{sT0}, 8')
    e(f'v_xor_b32 v{vA3}, s{sT0}, v{vA3}')
    e(f's_add_u32 s{sE}, s{sE}, 1')
    mktag(vTg2, sE, sT0)
    xcc(sPa)
    e(f'v_xor_b32 v{vTg2+3}, s{sPa}, v{vTg2+3}')
    e(f's_mov_b32 s12, s{sOut}'); e(f's_mov_b32 s13, s{sOut+1}'); e('s_mov_b32 s14, 8192')
    e(f's_mov_b32 s{sSpin}, {SPIN}')
    e(f's_cmp_lg_u32 s{sW}, s{sB}')
    e('s_waitcnt lgkmcnt(0)')
    e('s_barrier')
    e('s_cbranch_scc1 L_x3first')
    for w in range(4): e(f'ds_read_b128 v[{vR + 4*w}:{vR + 4*w + 3}], v{vL} offset:{L_O + w * 1024}')
    e('s_waitcnt lgkmcnt(2)')
    for r in range(4): e(f'v_add_f32 v{vD + r}, v{vR + r}, v{vR + 4 + r}')
    e('s_waitcnt lgkmcnt(0)')
    for r in range(4): e(f'v_add_f32 v{vR + 8 + r}, v{vR + 8 + r}, v{vR + 12 + r}')
    for r in range(4): e(f'v_add_f32 v{vD + r}, v{vD + r}, v{vR + 8 + r}')
    for r in range(4): tag(vD + r, vTg)
    e(f'buffer_store_dwordx4 v[{vD}:{vD+3}], v{vA3}, s[8:11], s{sX3} offen sc1')
    for r in range(4): e(f'v_xor_b32 v{vR + r}, v{vD + r}, v{vTg + r}')
    e(f's_cmp_eq_u32 s{sSide}, 0')
    e('s_cselect_b32 exec_lo, 0, -1'); e('s_cselect_b32 exec_hi, -1, 0')
    e('L_x3first:')
    e(f'buffer_load_dwordx4 v[{vR}:{vR+3}], v{vX3}, s[8:11], s{sX3} offen sc1')
    e('s_barrier')
    e('s_branch L_x3w')
    e('L_x3spin:')
    if half3:
        e('s_cmp_eq_u32 vcc_lo, 0'); e('s_cselect_b32 exec_lo, 0, exec_lo')
        e('s_cmp_eq_u32 vcc_hi, 0'); e('s_cselect_b32 exec_hi, 0, exec_hi')
    if s3: e(f's_sleep {s3}')
    e(f'buffer_load_dwordx4 v[{vR}:{vR+3}], v{vX3}, s[8:11], s{sX3} offen sc1')
    e('L_x3w:')
    e(f's_sub_u32 s{sSpin}, s{sSpin}, 1'); e('s_cbranch_scc1 L_x3out')
    e('s_waitcnt vmcnt(0)')
    check(range(vR, vR + 4), vR + 4, vTg)
    e('s_cbranch_vccnz L_x3spin')
    e('L_x3out:')
    e('s_mov_b64 exec, -1')
    e('s_waitcnt vmcnt(0)')
    e(f'v_permlane32_swap_b32 v{vR}, v{vR+2}')
    e(f'v_permlane32_swap_b32 v{vR+1}, v{vR+3}')
    e(f's_cmp_lg_u32 s{sW}, 0')
    e(f'v_add_f32 v{vR}, v{vR}, v{vR+2}')
    e(f'v_add_f32 v{vR+1}, v{vR+1}, v{vR+3}')
    e(f'v_cvt_pk_bf16_f32 v{vR}, v{vR}, v{vR+1}')
    e(f'ds_write_b32 v{vA}, v{vR} offset:{L_RED}')
    e('s_waitcnt lgkmcnt(0)')
    e('s_barrier')
    e('s_cbranch_scc1 L_end')
    stamp(10)
    e('s_barrier')
    if ys0: e(f's_sleep {ys0}')
    def yload():
        for k in range(2): e(f'buffer_load_dwordx4 v[{vR + 4*k}:{vR + 4*k + 3}], v{vX4}, s[8:11], s{sX4a + k} offen sc1')
    if lazy:
        e(f's_mov_b32 s{sSpin}, {fast}')
        e('L_x4:')
        if s4: e(f's_sleep {s4}')
        yload()
        e(f's_sub_u32 s{sSpin}, s{sSpin}, 1'); e('s_cbranch_scc1 L_x4s')
        e('s_waitcnt vmcnt(0)')
        check(range(vR, vR + 8), vR + 8, vTg2)
        e('s_cbranch_vccnz L_x4')
        e('L_x4x:')
    elif fast:
        e(f's_mov_b32 s{sSpin}, {SPIN}')
        e('L_x4:')
        yload()
        e(f's_cmp_eq_u32 s{sSpin}, {SPIN - fast}')
        e(f's_cselect_b32 s{sT0}, {YF}, 0')
        e(f's_sub_u32 s{sX4a}, s{sX4a}, s{sT0}'); e(f's_sub_u32 s{sX4b}, s{sX4b}, s{sT0}')
        e(f's_sub_u32 s{sSpin}, s{sSpin}, 1'); e('s_cbranch_scc1 L_x4x')
        e('s_waitcnt vmcnt(0)')
        check(range(vR, vR + 8), vR + 8, vTg2)
        e('s_cbranch_vccnz L_x4')
        e('L_x4x:')
        e('s_waitcnt vmcnt(0)')
    else:
        spin(SPIN, yload, 'vmcnt(0)', lambda: check(range(vR, vR + 8), vR + 8, vTg2))
    for r in range(4): e(f'v_add_f32 v{vR + r}, v{vR + r}, v{vR + 4 + r}')
    e(f'v_add_f32_dpp v{vR+4}, v{vR}, v{vR} row_ror:8 row_mask:0xf bank_mask:0x3')
    e(f'v_add_f32_dpp v{vR+5}, v{vR+1}, v{vR+1} row_ror:8 row_mask:0xf bank_mask:0x3')
    e('s_nop 0')
    e(f'v_add_f32_dpp v{vR+4}, v{vR+2}, v{vR+2} row_ror:8 row_mask:0xf bank_mask:0xc')
    e(f'v_add_f32_dpp v{vR+5}, v{vR+3}, v{vR+3} row_ror:8 row_mask:0xf bank_mask:0xc')
    e('s_nop 0')
    e(f'v_add_f32_dpp v{vR}, v{vR+4}, v{vR+4} row_shl:4 row_mask:0xf bank_mask:0x5')
    e('s_nop 1')
    e(f'v_add_f32_dpp v{vR}, v{vR+5}, v{vR+5} row_shr:4 row_mask:0xf bank_mask:0xa')
    for sw in ('v_permlane16_swap_b32', 'v_permlane32_swap_b32'):
        e(f'v_mov_b32 v{vR+1}, v{vR}'); e('s_nop 1'); e(f'{sw} v{vR+1}, v{vR}'); e('s_nop 0')
        e(f'v_add_f32 v{vR}, v{vR}, v{vR+1}')
    e(f'v_cvt_pk_bf16_f32 v{vR}, v{vR}, v{vR}')
    e('s_mov_b64 exec, 0xffff')
    e(f'buffer_store_short v{vR}, v{vOut}, s[12:15], s{sOo} offen {outp}')
    stamp(12)
    if diag: e('s_waitcnt vmcnt(0)')
    stamp(7)
    flush_stamps([5, 6, 7, 8, 10, 12])
    if chan == 'end':
        e('s_memrealtime s[86:87]'); e('s_waitcnt lgkmcnt(0)'); e('s_sub_u32 s86, s86, s80'); e('s_mul_i32 s86, s86, 10')
        e('s_add_u32 s86, s86, 20000')
        e('L_chan:'); e('s_memrealtime s[82:83]'); e('s_waitcnt lgkmcnt(0)'); e('s_sub_u32 s82, s82, s80')
        e('s_cmp_lt_u32 s82, s86'); e('s_cbranch_scc1 L_chan')
    e('s_cmp_lg_u32 s2, 0')
    e('s_cbranch_scc1 L_end')
    e('s_mov_b64 exec, 1')
    e(f'v_mov_b32 v{vR+2}, s{sE}')
    e(f's_mov_b32 s{sT0}, {EP}')
    e(f'buffer_store_dword v{vR+2}, off, s[8:11], s{sT0}')
    e('L_end:')
    e('s_endpgm')
    if lazy:
        e('L_x4s:')
        e(f'v_xor_b32 v{vTg2+3}, s{sPa}, v{vTg2+3}')
        for t in range(2):
            for w in range(4): e(f'ds_read_b128 v[{vWt + 4*w}:{vWt + 4*w + 3}], v{vL} offset:{L_Y + w * 2048 + t * 1024}')
            e('s_waitcnt lgkmcnt(0)')
            for r in range(4):
                e(f'v_add_f32 v{vWt + r}, v{vWt + r}, v{vWt + 4 + r}')
                e(f'v_add_f32 v{vWt + 8 + r}, v{vWt + 8 + r}, v{vWt + 12 + r}')
            for r in range(4): e(f'v_add_f32 v{vD + 4*t + r}, v{vWt + r}, v{vWt + 8 + r}')
            for r in range(4): tag(vD + 4*t + r, vTg2)
        e(f'v_xor_b32 v{vTg2+3}, s{sPa}, v{vTg2+3}')
        e(f'v_xor_b32 v{vA3}, 0x100, v{vA2}')
        e(f'buffer_store_dwordx4 v[{vD}:{vD+3}], v{vA2}, s[8:11], s{sDst} offen sc1')
        e(f'buffer_store_dwordx4 v[{vD+4}:{vD+7}], v{vA3}, s[8:11], s{sDst} offen sc1')
        def flipload():
            e(f's_xor_b32 s{sX4a}, s{sX4a}, {YF}'); e(f's_xor_b32 s{sX4b}, s{sX4b}, {YF}')
            e(f'v_xor_b32 v{vTg2+3}, s{sPa}, v{vTg2+3}')
            yload()
        e('s_waitcnt vmcnt(0)')
        spin(SPIN, flipload, 'vmcnt(0)', lambda: check(range(vR, vR + 8), vR + 8, vTg2))
        e('s_branch L_x4x')
    e('.section .rodata,"a"')
    e('.p2align 6')
    e(f'.amdhsa_kernel {NAME}_kernel')
    e('  .amdhsa_next_free_vgpr 256')
    e('  .amdhsa_next_free_sgpr 102')
    e('  .amdhsa_accum_offset 256')
    e('  .amdhsa_group_segment_fixed_size 0')
    e('  .amdhsa_kernarg_size 104')
    e('  .amdhsa_user_sgpr_count 2')
    e('  .amdhsa_user_sgpr_kernarg_segment_ptr 1')
    e('  .amdhsa_system_sgpr_workgroup_id_x 1')
    e('  .amdhsa_float_denorm_mode_32 3')
    e('.end_amdhsa_kernel')
    if ool:
        for lb in ('L_late2', 'L_late1', 'L_nc3'):
            if lb + ':' not in L: continue
            a = L.index(f's_cbranch_scc1 {lb}'); b = L.index(lb + ':'); c = L.index('L_service:')
            L[:] = L[:a] + [f's_cbranch_scc0 {lb}o'] + L[b:c] + [f'{lb}o:'] + L[a + 1:b] + [f's_branch {lb}'] + L[c:]
    if front:
        a = L.index('L_service:'); b = L.index('L_service2:'); c = L.index('s_cbranch_scc1 L_service')
        L[:] = L[:c] + ['s_cbranch_scc0 L_stream'] + L[a + 1:b] + ['s_branch L_service2', 'L_stream:'] + L[c + 1:a] + L[b:]
    i0 = L.index('L_kbody:'); i1 = L.index('L_service2:' if front else 'L_service:')
    spots = [i for i in range(i0, i1) if L[i].startswith('s_branch ')]
    if pads == 0: return '\n'.join(L) + '\n'
    if pads == 2:
        def size(x):
            if x.endswith(':') or x.startswith(('.', ';')): return 0
            if x.startswith(('buffer_', 'global_', 'ds_', 'v_')) or '0x' in x: return 8
            return 5
        j0 = L.index('L_late1:' if nearB else 'L_late0:'); j1 = L.index('L_end:')
        out = L[:j0]; acc = 0; k = 0
        for i in range(j0, len(L)):
            x = L[i]; out.append(x); acc += size(x)
            if i < j1 - 1 and (acc > padgap or (acc > padgap - 250 and x.startswith(('s_branch ', 's_endpgm')))):
                free = x.startswith(('s_branch ', 's_endpgm'))
                if not free: out.append(f's_branch L_pads{k}')
                out.append(f'L_padx{k}:'); out.append(f's_branch L_padx{k - 1}' if k else 's_branch L_padret2')
                if not free: out.append(f'L_pads{k}:')
                k += 1; acc = 8
        return '\n'.join(out).replace('L_padtop', f'L_padx{k - 1}') + '\n'
    out = []
    for i, x in enumerate(L):
        out.append(x)
        if i in spots:
            k = spots.index(i)
            out.append(f'L_pad{k}:')
            out.append(f's_branch L_pad{k + 4}' if k + 4 < len(spots) else 's_branch L_padret')
    return '\n'.join(out) + '\n'

if __name__ == '__main__':
    import ast
    for spec in sys.argv[1:]:
        name, _, opts = spec.partition(':')
        kw = {}
        for o in filter(None, opts.split(',')):
            k_, v_ = o.split('=')
            v_ = v_.replace('/', ',')
            try: kw[k_] = ast.literal_eval(v_)
            except Exception: kw[k_] = v_
        open(name, 'w').write(gen(**kw))
```

```python
import sys, math, struct
NAME = 'concat_heads__gqa_block_cached__sliding_block_cached__decode'

def f32(x): return '0x%08x' % struct.unpack('<I', struct.pack('<f', x))[0]
def br4(i): return ((i & 1) << 3) | ((i & 2) << 1) | ((i & 4) >> 1) | ((i & 8) >> 3)
def mask64(ns): return sum(1 << n for n in ns)

QP = 0x000000
YF = 0x080000
OP = 0x100000
ST = 0x140000
EP = 0x150000
RC = 0x160000
EV = 0x180000
PP = 0x200000
WS_USED = 0x600000
STAMP = 0x40000000
L_Q = 0
L_CNT = 512; L_LVL = 516
L_CN2 = 528
L_EV = 544
L_Z = 560
L_KAP = 576
L_QF = 592
L_ST = 1024
L_F = 1280
L_RED = 2048
L_O = L_RED + 8192
L_Y = L_O + 4096
L_W = L_Y + 2048
LDS_BYTES = L_W + 32768
SPIN = 1 << 17
DPPF = 'row_mask:0xf bank_mask:0xf'

HEADER = """
Kernarg layout (104 bytes, pointers only, base s[0:1]):
    0 A_x (4,1,512)   8 A_k (4,32,8192,128)  16 A_v   24 A_wq (512,4096)  32 A_wo (4096,512)
   40 B_x            48 B_k                  56 B_v   64 B_wq             72 B_wo
   80 d_out (4,1,1024) bf16   88 d_debug (unused)   96 d_ws
Generated by a script; everything below is hand-designed.

One launch, 256 workgroups (one per CU) x 8 waves.  wg = head*8 + half*4 + batch.
A pair (two halves) shares the keys of one (batch, head) in both branches.
Waves 0-3 stream 40 items of 16 KiB each: K_B, V_B, K_A, V_A, with non-temporal loads.
  scores: v_dot2_f32_bf16 + DPP transpose-reduce; p = exp2(s*c - max*c) per segment (true max);
  P.V: one 16x16x32 MFMA per load with p spread over a diagonal A operand.
  The number of loads in flight is kept near the bandwidth knee and follows the arrival rank
  at a few checkpoints, so that all workgroups finish together.
  At the end these waves load their slice of wo and apply it.
Waves 4-7 compute a slice of q = x.wq, combine softmax statistics, gather partial results.
One pair in eight splits its keys by memory die (found by timing a few single loads; a wrong
  answer only costs speed), which keeps the die-to-die link below saturation.
Hand-offs go through d_ws.  Every handed-off word carries this launch's epoch (the word found at
  d_ws+0x150000, plus 1 or 2), which readers strip again; all waits are bounded.
"""

def gen(DB=6, early=6, rc=(5, 6, 7), rcv=(5, 5.5, 6.5), xlo=4.5, nmap=(4, 0, 2), lvl0=0, lvlc=1, th=(3, 6),
        cks=(6, 10, 14, 18, 22, 26, 29, 32, 34, 36), mix=3, rcat=7, endb=2, prek=2, cls=(8, 1), nearB=1, up=(), uplvl=2, dn=(), dnlvl=0, kfull=0, qs=0, qs0=0, afirst=1, xfirst=0, ys0=0, outp='', ylay=0, emap=None, enmap=None, dmax=15, bsh=None, front=1, burst=0, abl=0, qflag=1, pb=0, DC=7, DN=8, selfp=2, clip0=1500, pfirst=1, l2w=0, pads=1, padgap=950, ool=1, fast=48, preown=0, sdelay=0, fpol='', lazy=1, xfake=0, s3=0, s4=0, half3=0, wpre=0, w1=0, w2=2,
        sh0=2, shots=(2, 8, 12, 16), shA=4, clip=200, pmin=400, fat=36, diag=False, chan=None, flip=0):
    L = []; e = L.append
    outp = outp.replace('_', ' ')
    cnt = [0]
    def lab(p):
        cnt[0] += 1
        return f'L_{p}{cnt[0]}'
    for line in HEADER.strip('\n').split('\n'): e(('; ' + line).rstrip())
    e(f'; @launch grid=(256,1,1) block=(512,1,1) lds={LDS_BYTES}')
    e('.amdgcn_target "amdgcn-amd-amdhsa--gfx950"')
    e('.text')
    e(f'.globl {NAME}_kernel')
    e('.p2align 8')
    e(f'.type {NAME}_kernel,@function')
    e(f'{NAME}_kernel:')
    sAx, sAk, sAv, sAwq, sAwo, sBx, sBk, sBv = 16, 18, 20, 22, 24, 26, 28, 30
    sBwq, sBwo, sOut, sDbg, sWs = 32, 34, 36, 38, 40
    sW, sH, sJ, sB, sSide = 42, 43, 44, 45, 46
    sU = 3
    sT0, sT1, sT2 = 47, 48, 49
    sCls, sSpin = 51, 52
    sE, sTag, sNF = 74, 75, 76
    e('s_cmp_ge_u32 s2, 256')
    e('s_cbranch_scc1 L_end')
    e('s_load_dwordx16 s[16:31], s[0:1], 0')
    e('s_load_dwordx8 s[32:39], s[0:1], 64')
    e('s_load_dwordx2 s[40:41], s[0:1], 96')
    if diag or chan: e('s_memrealtime s[80:81]')
    e('v_lshrrev_b32 v1, 6, v0')
    e('v_and_b32 v0, 63, v0')
    e(f'v_readfirstlane_b32 s{sW}, v1')
    e(f's_lshr_b32 s{sH}, s2, 3')
    e(f's_and_b32 s{sJ}, s2, 7')
    e(f's_and_b32 s{sU}, s2, 3')
    if bsh is None:
        e(f's_mov_b32 s{sB}, s{sU}')
    else:
        e(f's_lshr_b32 s{sB}, s2, {3 + bsh}'); e(f's_add_u32 s{sB}, s{sB}, s2'); e(f's_and_b32 s{sB}, s{sB}, 3')
    e(f's_lshr_b32 s{sSide}, s{sJ}, 2')
    e(f's_mul_i32 s{sT0}, s{sU}, {max(1, cls[0] // 4)}'); e(f's_add_u32 s{sT0}, s{sT0}, s{sH}')
    e(f's_and_b32 s{sT0}, s{sT0}, {cls[0] - 1}')
    e(f's_cmp_lt_u32 s{sT0}, {cls[1]}')
    e(f's_cselect_b32 s{sCls}, 1, 0')
    e('s_mov_b32 s7, 0x20000')
    e('s_mov_b32 s11, 0x20000')
    e(f's_mov_b32 s10, {WS_USED if not diag else 0x41000000}')
    e(f's_mov_b32 s{sNF}, 0xffffff00')
    e(f's_cmp_ge_u32 s{sW}, 4')
    e('s_cbranch_scc1 L_service')

    def stamp(idx, only_wave=None):
        if not diag: return
        l = lab('st')
        if only_wave is not None:
            e(f's_cmp_lg_u32 s{sW}, {only_wave}'); e(f's_cbranch_scc1 {l}')
        e('s_memrealtime s[82:83]'); e('s_waitcnt lgkmcnt(0)')
        e(f'v_writelane_b32 v254, s82, {idx}'); e(f'v_writelane_b32 v255, s83, {idx}')
        e(f'{l}:')
    def flush_stamps(idxs):
        if not diag: return
        l = lab('fw')
        e(f'{l}:'); e('s_sleep 32'); e('s_memrealtime s[82:83]'); e('s_waitcnt lgkmcnt(0)'); e('s_sub_u32 s82, s82, s80')
        e('s_cmp_lt_u32 s82, 11000'); e(f's_cbranch_scc1 {l}')
        e('s_lshl_b32 s84, s2, 7'); e(f's_add_u32 s84, s84, {STAMP}')
        e('s_mov_b64 exec, -1'); e('v_lshlrev_b32 v253, 3, v0'); e(f's_mov_b64 exec, {mask64(idxs)}')
        e('buffer_store_dwordx2 v[254:255], v253, s[8:11], s84 offen')
    def if_class(target, want):
        e(f's_cmp_eq_u32 s{sCls}, {want}'); e(f's_cbranch_scc1 {target}')
    def load_epoch():
        e(f's_mov_b32 s{sE}, {EP}')
        e(f's_load_dword s{sE}, s[{sWs}:{sWs+1}], s{sE}')
    def mktag(vTag, sEp, tmp):
        for k in range(4):
            if k:
                e(f's_lshr_b32 s{tmp}, s{sEp}, {8 * k}'); e(f's_xor_b32 s{tmp}, s{tmp}, s{sEp}'); e(f's_and_b32 s{tmp}, s{tmp}, 0xff')
            else:
                e(f's_and_b32 s{tmp}, s{sEp}, 0xff')
            e(f'v_mov_b32 v{vTag + k}, s{tmp}')
    def tag(r, vTag): e(f'v_and_or_b32 v{r}, v{r}, s{sNF}, v{vTag + (r & 3)}')
    def xcc(dst):
        e(f's_getreg_b32 s{dst}, hwreg(HW_REG_XCC_ID, 0, 4)')
        if xfake: e(f's_lshr_b32 s{dst}, s2, 7')
    def check(regs, t, vTag):
        regs = list(regs)
        assert regs[0] % 4 == 0
        for r in regs: e(f'v_xor_b32 v{r}, v{r}, v{vTag + (r & 3)}')
        e(f'v_or3_b32 v{t}, v{regs[0]}, v{regs[1]}, v{regs[2]}')
        rest = regs[3:]
        while len(rest) >= 2:
            e(f'v_or3_b32 v{t}, v{t}, v{rest[0]}, v{rest[1]}'); rest = rest[2:]
        e(f'v_bitop3_b32 v{t}, v{t}, v{rest[0]}, s{sNF} bitop3:0x54')
        e(f'v_cmp_ne_u32 vcc, 0, v{t}')
    def spin(n, loads, wait, test, again='vccnz', sleep=0):
        l = lab('sp')
        e(f's_mov_b32 s{sSpin}, {n}')
        e(f'{l}:')
        if sleep: e(f's_sleep {sleep}')
        loads()
        e(f's_sub_u32 s{sSpin}, s{sSpin}, 1'); e(f's_cbranch_scc1 {l}x')
        e(f's_waitcnt {wait}')
        test()
        e(f's_cbranch_{again} {l}')
        e(f'{l}x:')
        e(f's_waitcnt {wait}')
    def rowred(op, r):
        for ctl in ('quad_perm:[1,0,3,2]', 'quad_perm:[2,3,0,1]', 'row_half_mirror', 'row_mirror'):
            e('s_nop 1')
            e(f'{op}_dpp v{r}, v{r}, v{r} {ctl} {DPPF}')
    def allred(op, r, tmp):
        rowred(op, r)
        for sw in ('v_permlane16_swap_b32', 'v_permlane32_swap_b32'):
            e(f'v_mov_b32 v{tmp}, v{r}'); e('s_nop 1'); e(f'{sw} v{tmp}, v{r}'); e('s_nop 1')
            e(f'{op} v{r}, v{r}, v{tmp}')
    sE0, sE1, sPa, sCnt, sTm, sRd, sPr, sRn = 92, 93, 94, 95, 96, 100, 101, 69
    def probe_loop(srd='s[12:15]'):
        l = lab('pr')
        e(f'{l}:')
        e(f's_memtime s[{sTm}:{sTm+1}]')
        e(f's_and_b32 s{sT2}, s{sRn}, 0x3df80')
        e(f's_xor_b32 s{sT2}, s{sT2}, s{sPa}')
        e('s_waitcnt lgkmcnt(0)')
        e(f's_buffer_load_dword s{sPr}, {srd}, s{sT2}')
        e('s_waitcnt lgkmcnt(0)')
        e(f's_memtime s[{sTm+2}:{sTm+3}]')
        e('s_waitcnt lgkmcnt(0)')
        e(f's_sub_u32 s{sT0}, s{sTm+2}, s{sTm}')
        e(f's_cmp_lt_u32 s{sT0}, {pmin}')
        e(f's_cselect_b32 s{sT0}, 0x10000, s{sT0}')
        e(f's_bitcmp1_b32 s{sPa}, 13')
        e(f's_cselect_b32 s{sT1}, 0x10000, s{sT0}')
        e(f's_cselect_b32 s{sT0}, s{sT0}, 0x10000')
        e(f's_min_u32 s{sE0}, s{sE0}, s{sT1}')
        e(f's_min_u32 s{sE1}, s{sE1}, s{sT0}')
        e(f's_xor_b32 s{sPa}, s{sPa}, 0x2000')
        e(f's_add_u32 s{sRn}, s{sRn}, s{sTm+2}')
        e(f's_mul_i32 s{sRn}, s{sRn}, 0x9e3779b1')
        e(f's_lshr_b32 s{sT0}, s{sRn}, 14')
        e(f's_xor_b32 s{sRn}, s{sRn}, s{sT0}')
        e(f's_sub_u32 s{sCnt}, s{sCnt}, 1')
        e(f's_cmp_lg_u32 s{sCnt}, 0')
        e(f's_cbranch_scc1 {l}')
    def evidence(vR, lead, nv, sE, skip, clip=clip):
        e(f's_sub_i32 s{sE0}, s{sE0}, s{sE1}'); e(f's_min_i32 s{sE0}, s{sE0}, {clip}'); e(f's_max_i32 s{sE0}, s{sE0}, {-clip}')
        e(f's_lshl_b32 s{sT0}, s{sRd}, 2')
        e('s_mov_b64 exec, 1')
        e(f'v_mov_b32 v{vR}, s{sT0}'); e(f'v_mov_b32 v{vR+1}, s{sE0}'); e(f'v_mov_b32 v{vR+2}, 1')
        e(f'ds_add_u32 v{vR}, v{vR+1} offset:{L_EV}')
        e(f'ds_add_u32 v{vR}, v{vR+2} offset:{L_CN2}')
        e(f's_cmp_lg_u32 s{sW}, {lead}'); e(f's_cbranch_scc1 {skip}')
        spin(SPIN * 8, lambda: e(f'ds_read_b32 v{vR+2}, v{vR} offset:{L_CN2}'), 'lgkmcnt(0)', lambda: e(f'v_cmp_ne_u32 vcc, {nv}, v{vR+2}'))
        e(f'ds_read_b32 v{vR+4}, v{vR} offset:{L_EV}')
        for r in range(5, 8): e(f'v_mov_b32 v{vR+r}, s{sE}')
        e(f's_lshl_b32 s{sT0}, s2, 8'); e(f's_lshl_b32 s{sT1}, s{sRd}, 6'); e(f's_add_u32 s{sT0}, s{sT0}, s{sT1}')
        e(f's_add_u32 s{sT0}, s{sT0}, {EV}'); e(f's_xor_b32 s{sT1}, s{sT0}, 0x400')
        e('s_waitcnt lgkmcnt(0)')
        e(f'buffer_store_dwordx4 v[{vR+4}:{vR+7}], off, s[8:11], s{sT0} sc1')
        def evtest():
            e(f'v_xor_b32 v{vR+9}, s{sE}, v{vR+9}'); e(f'v_xor_b32 v{vR+10}, s{sE}, v{vR+10}')
            e(f'v_or_b32 v{vR+9}, v{vR+9}, v{vR+10}')
            e(f'v_cmp_ne_u32 vcc, 0, v{vR+9}')
        spin(SPIN, lambda: e(f'buffer_load_dwordx4 v[{vR+8}:{vR+11}], off, s[8:11], s{sT1} sc1'), 'vmcnt(0)', evtest)
        e(f'v_sub_u32 v{vR+2}, v{vR+4}, v{vR+8}')
        e(f'v_sub_u32 v{vR+3}, v{vR+8}, v{vR+4}')
        e(f's_cmp_eq_u32 s{sSide}, 0')
        e('s_cselect_b64 vcc, -1, 0')
        e(f'v_cndmask_b32 v{vR+2}, v{vR+3}, v{vR+2}, vcc')
        if diag:
            e(f's_lshl_b32 s84, s2, 4'); e(f's_add_u32 s84, s84, {STAMP + 0x18000}')
            e(f'buffer_store_dword v{vR+2}, v{vR}, s[8:11], s84 offen')
        e(f'v_cmp_lt_i32 vcc, 0, v{vR+2}')
        e('s_nop 1')
        e(f'v_cndmask_b32 v{vR+2}, 0, 1, vcc')
        e(f'v_xor_b32 v{vR+2}, s{sSide}, v{vR+2}')
        e(f'ds_write_b32 v{vR}, v{vR+2} offset:{L_KAP}')
    def probe_seed(w0):
        e(f's_lshl_b32 s{sT0}, s{sB}, 5'); e(f's_add_u32 s{sT0}, s{sT0}, s{sH}'); e(f's_lshl_b32 s{sPa}, s{sT0}, 21')
        e(f's_lshl_b32 s{sT0}, s{sSide}, 18'); e(f's_add_u32 s{sPa}, s{sPa}, s{sT0}')
        e(f's_sub_u32 s{sT0}, s{sW}, {w0}'); e(f's_mul_i32 s{sT0}, s{sT0}, 0x82000'); e(f's_and_b32 s{sT0}, s{sT0}, 0x182000'); e(f's_add_u32 s{sPa}, s{sPa}, s{sT0}')
        e(f's_memtime s[{sTm}:{sTm+1}]'); e('s_waitcnt lgkmcnt(0)')
        e(f's_mul_i32 s{sRn}, s{sTm}, 0x9e3779b1'); e(f's_lshr_b32 s{sRn}, s{sRn}, 9')
    def smask(s, ns):
        m = mask64(ns)
        e(f's_mov_b32 s{s}, 0x{m & 0xffffffff:08x}'); e(f's_mov_b32 s{s+1}, 0x{m >> 32:08x}')

    X0, X1, X2 = 60, 124, 188
    vOff = 2; vL16 = 6; vPd = 7; vQ = 8; vS = 12; vT = 20; vMask = 44; vAcc = 48; vAccB = 52; vP = 56
    vPA = 124; vMl = 128; vF = 132; vLv = 156; vZz = 157; vPat = 160; vPs = 164; vPPa = 168
    vW = 124; vWa = 170; vYa = 171; vTg2 = 248; vYw = 173; vYr = 174; vBt = 176; vAo = 208; vDD = 224; vAr = 244
    sLvl = 50; sOff, sN = 53, 54; sKp = 55; sCk, sRc, sRk = 56, 58, 59; sM3, sM4 = 60, 62; sC = 64; sIsC = 65
    sKV = 66; sXB = 67; sMap = 68; sHk = 70; sWb, sSeg = 72, 73; sX = 77; sVk = 78; sLh = 86
    sYd = 75; s7f = 85; sPPa = 88; sPPb = 89
    T = vT
    e(f'v_lshlrev_b32 v{vL16}, 4, v0')
    e(f'v_bfe_u32 v{vOff+1}, v0, 4, 1')
    e(f'v_lshl_add_u32 v{vOff}, v{vOff+1}, 15, v{vL16}')
    e(f'v_lshrrev_b32 v{vOff+1}, 5, v0')
    e(f'v_lshl_add_u32 v{vOff}, v{vOff+1}, 13, v{vOff}')
    e(f's_lshl_b32 s{sT0}, s{sW}, 8'); e(f's_lshl_b32 s{sT1}, s{sSide}, 13'); e(f's_or_b32 s{sT0}, s{sT0}, s{sT1}')
    e(f'v_xor_b32 v{vOff}, s{sT0}, v{vOff}')
    for j in range(1, 4): e(f'v_xor_b32 v{vOff+j}, {(j << 8) | ((j >> 1) << 16)}, v{vOff}')
    e(f's_lshl_b32 s{sT0}, s{sB}, 5'); e(f's_add_u32 s{sT0}, s{sT0}, s{sH}'); e(f's_lshl_b32 s{sWb}, s{sT0}, 21')
    e(f's_and_b32 s{sT0}, s{sW}, 1'); e(f's_lshl_b32 s{sT0}, s{sT0}, 12'); e(f's_add_u32 s{sWb}, s{sWb}, s{sT0}')
    e(f's_lshr_b32 s{sT0}, s{sW}, 1'); e(f's_lshl_b32 s{sT0}, s{sT0}, 14'); e(f's_add_u32 s{sWb}, s{sWb}, s{sT0}')
    e(f's_add_u32 s{sOff}, s{sWb}, 0x180000')
    e('s_mov_b32 s6, 0x10000000')
    e(f's_mov_b32 s{sKp}, 0')
    if nearB: e(f's_cmp_eq_u32 s{sCls}, 1')
    e('s_waitcnt lgkmcnt(0)')
    e(f's_mov_b32 s4, s{sBk}'); e(f's_mov_b32 s5, s{sBk+1}')
    def issue(buf, i):
        v = buf + 4 * i
        e(f'buffer_load_dwordx4 v[{v}:{v+3}], v{vOff + (i >> 2)}, s[4:7], s{sOff} offen offset:{(i & 3) * 1024} nt')
    def kappa(rnd, dst):
        e(f'v_mov_b32 v{T+1}, 0')
        spin(SPIN * 8, lambda: e(f'ds_read_b32 v{T}, v{T+1} offset:{L_KAP + 4 * rnd}'), 'lgkmcnt(0)',
             lambda: e(f'v_cmp_eq_u32 vcc, -1, v{T}'))
        e(f'v_readfirstlane_b32 s{dst}, v{T}')
        e(f's_and_b32 s{dst}, s{dst}, 1')
        if flip >> rnd & 1: e(f's_xor_b32 s{dst}, s{dst}, 1')
    def go_near():
        for j in range(4): e(f'v_and_b32 v{vOff + j}, 0xffffdfff, v{vOff + j}')
    def switch(ptr, kap, base):
        e(f's_mov_b32 s4, s{ptr}'); e(f's_mov_b32 s5, s{ptr+1}')
        e(f's_lshl_b32 s{sT0}, s{kap}, 13'); e(f's_add_u32 s{sOff}, s{sWb}, s{sT0}')
        e(f's_add_u32 s{sOff}, s{sOff}, {base & 0xffffffff}')
    if nearB: e('s_cbranch_scc1 L_late0')
    for i in range(early): issue(X1, i)
    if nearB and selfp:
        e('s_branch L_late0b')
        e('L_late0:')
        e(f's_buffer_load_dword s{sPr}, s[4:7], s{sOff}')
        e('L_late0b:')
    else:
        e('L_late0:')
    load_epoch()
    e(f's_mov_b32 s8, s{sWs}'); e(f's_mov_b32 s9, s{sWs+1}')
    if diag: e('v_writelane_b32 v254, s80, 0'); e('v_writelane_b32 v255, s81, 0')
    e(f's_mov_b32 s{sM3}, 0xcccccccc'); e(f's_mov_b32 s{sM3+1}, 0xcccccccc')
    e(f's_mov_b32 s{sM4}, 0xaaaaaaaa'); e(f's_mov_b32 s{sM4+1}, 0xaaaaaaaa')
    e(f's_mov_b32 s{sC}, {f32(128 ** -0.5 * math.log2(math.e))}')
    e(f'v_and_b32 v{T}, 15, v0')
    e(f'v_lshlrev_b32 v1, 4, v{T}')
    e(f'v_and_b32 v{T+1}, 1, v0')
    e(f'v_lshlrev_b32 v{T+1}, 4, v{T+1}')
    e(f'v_mov_b32 v{T+2}, 0xffff')
    e(f'v_lshlrev_b32 v{T+2}, v{T+1}, v{T+2}')
    e(f'v_lshrrev_b32 v{T}, 1, v{T}')
    for r in range(4):
        e(f'v_cmp_eq_u32 vcc, {4 + r}, v{T}')
        e(f'v_mov_b32 v{vAcc + r}, 0')
        e(f'v_mov_b32 v{vS + r}, 0xff800000')
        e(f'v_cndmask_b32 v{vMask + r}, 0, v{T+2}, vcc')
    e(f'v_mov_b32 v{vS + 4}, 0xff800000')
    smask(sHk, [4, 7, 8, 16, 23, 24, 32, fat, 39, 40])
    smask(sVk, list(range(5, 9)) + list(range(25, 41)))
    smask(sLh, [4, 16, 24])
    if up: smask(88, up)
    if dn: smask(90, dn)
    m = mask64(cks)
    e(f's_cmp_eq_u32 s{sW}, 0')
    e(f's_cselect_b32 s{sCk}, 0x{m & 0xffffffff:08x}, 0'); e(f's_cselect_b32 s{sCk+1}, 0x{m >> 32:08x}, 0')
    e(f's_lshl_b32 s{sRc}, s{sH}, 8'); e(f's_add_u32 s{sRc}, s{sRc}, {RC}')
    e(f's_mov_b32 s{sMap}, 0x210'); e(f's_mov_b32 s{sLvl}, {lvl0}')
    e(f's_mov_b32 s{sKV}, 0'); e(f's_mov_b32 s{sX}, 0'); e(f's_mov_b32 s{sXB}, 0')
    e(f's_mov_b32 s{sN}, 4'); e(f's_mov_b32 s{sSeg}, 2')
    e(f's_cmp_eq_u32 s{sSide}, 0')
    e(f's_cselect_b64 s[12:13], s[{sAwo}:{sAwo+1}], s[{sBwo}:{sBwo+1}]')
    e('s_mov_b32 s14, 0x400000'); e('s_mov_b32 s15, 0x20000')
    def selfprobe():
        probe_seed(0)
        e(f's_mov_b32 s{sE0}, 0x10000'); e(f's_mov_b32 s{sE1}, 0x10000'); e(f's_mov_b32 s{sRd}, 0'); e(f's_mov_b32 s{sCnt}, {selfp}')
        probe_loop('s[4:7]')
    if nearB and pfirst:
        if_class('L_late2', 0)
        selfprobe()
        e('L_late2:')
    e('s_barrier')
    if nearB:
        if_class('L_late1', 0)
        if selfp:
            if not pfirst: selfprobe()
            e(f's_add_u32 s{sPr}, s{sE}, 1')
            evidence(vT + 4, 0, 4, sPr, 'L_sp0', clip0)
            e('L_sp0:')
            e('s_mov_b64 exec, -1')
        kappa(0, sKp)
        go_near()
        e(f's_lshl_b32 s{sT0}, s{sKp}, 13'); e(f's_add_u32 s{sOff}, s{sOff}, s{sT0}')
        e(f's_mov_b32 s{sLvl}, {lvlc}')
        for i in range(early): issue(X1, i)
        e('L_late1:')
    def qread():
        e(f'ds_read_b32 v{vP}, v{vPd} offset:{L_QF}')
        e(f'ds_read_b128 v[{vQ}:{vQ+3}], v1 offset:{L_Q + 256}')
    k = 0
    for buf in (X1, X2, X0):
        for i in range(16):
            if k >= early:
                if qflag and k == 46:
                    e(f'v_mov_b32 v{vPd}, 0')
                    qread()
                if nearB and DN:
                    if i == 0 or k == early: e(f's_cmp_eq_u32 s{sCls}, 1')
                    e(f's_waitcnt vmcnt({DN - 1})'); e(f's_cbranch_scc1 L_pf{k}')
                if k >= max(DB, burst) and k < 48 - pb: e(f's_waitcnt vmcnt({max(DB, burst - (k - burst) // 2) - 1})')
                if nearB and DN: e(f'L_pf{k}:')
                issue(buf, i)
            k += 1
        e(f's_add_u32 s{sOff}, s{sOff}, 0x20000')
    stamp(1, 0)
    if qflag:
        e('s_waitcnt lgkmcnt(0)')
        e(f'v_cmp_ne_u32 vcc, 0, v{vP}')
        e('s_cbranch_vccz L_qok')
        spin(SPIN * 8, qread, 'lgkmcnt(0)', lambda: e(f'v_cmp_ne_u32 vcc, 0, v{vP}'))
        e('L_qok:')
    else:
        e('s_barrier')
        e(f'ds_read_b128 v[{vQ}:{vQ+3}], v1 offset:{L_Q + 256}')
        e('s_waitcnt lgkmcnt(0)')
    stamp(2, 0)

    def setflags():
        if up:
            e(f's_bitcmp1_b64 s[88:89], s{sN}'); e(f's_cselect_b32 s{sLvl}, {uplvl}, s{sLvl}')
        if dn:
            e(f's_bitcmp1_b64 s[90:91], s{sN}'); e(f's_cselect_b32 s{sLvl}, {dnlvl}, s{sLvl}')
        e(f's_cmp_ge_u32 s{sN}, {41 - endb}')
        e(f's_cselect_b32 s{sLvl}, 3, s{sLvl}')
        e(f's_bitcmp0_b32 s{sLvl}, 0')
        e('s_cselect_b64 vcc, -1, 0')
        e(f's_bitcmp1_b32 s{sLvl}, 1')
    def body_begin(t):
        if diag:
            e('s_memrealtime s[82:83]'); e(f'v_cmp_eq_u32 vcc, s{sN}, v0'); e('s_waitcnt lgkmcnt(0)')
            e('v_mov_b32 v253, s82'); e('v_cndmask_b32 v252, v252, v253, vcc')
        e(f's_bitcmp1_b64 s[{sCk}:{sCk+1}], s{sN}')
        e(f's_cselect_b32 s{sIsC}, 1, 0')
        e(f's_cbranch_scc0 L_nt{t}')
        e(f's_mov_b32 s{sRk}, 1')
        e(f's_atomic_add s{sRk}, s[{sWs}:{sWs+1}], s{sRc} glc')
        e(f'L_nt{t}:')
        setflags()
    def throttle(t, i):
        if i == rcat:
            e(f's_cmp_eq_u32 s{sIsC}, 0')
            e(f's_cbranch_scc1 L_nu{t}')
            e('s_waitcnt lgkmcnt(0)')
            if mix:
                e(f's_mul_i32 s{sT0}, s{sJ}, {256 * mix}'); e(f's_add_u32 s{sT0}, s{sT0}, s{sRc}'); e(f's_and_b32 s{sT0}, s{sT0}, 0x1f00')
                e(f's_andn2_b32 s{sRc}, s{sRc}, 0x1f00'); e(f's_or_b32 s{sRc}, s{sRc}, s{sT0}')
            e(f's_add_u32 s{sRc}, s{sRc}, 8192')
            e(f's_cmp_ge_u32 s{sRk}, {th[0]}'); e(f's_cselect_b32 s{sT0}, 4, 0')
            e(f's_cmp_ge_u32 s{sRk}, {th[1]}'); e(f's_cselect_b32 s{sT0}, 8, s{sT0}')
            e(f's_lshr_b32 s{sT0}, s{sMap}, s{sT0}'); e(f's_and_b32 s{sT0}, s{sT0}, 7')
            e(f'v_mov_b32 v{vLv}, s{sT0}')
            e(f'ds_write_b32 v{vZz}, v{vLv} offset:{L_LVL}')
            e(f'L_nu{t}:')
            e(f's_bitcmp1_b32 s{sLvl}, 1')
        if i == rcat + 2:
            e(f'ds_read_b32 v{vLv}, v{vZz} offset:{L_LVL}')
        if i == rcat + 3:
            e('s_waitcnt lgkmcnt(0)')
            e(f'v_readfirstlane_b32 s{sLvl}, v{vLv}')
            setflags()
        pre = t == 'k' and i >= 16 - prek
        if pre and i == 16 - prek:
            e(f's_bitcmp1_b64 s[{sLh}:{sLh+1}], s{sN}')
            e('s_cselect_b64 vcc, 0, vcc')
            e(f's_cselect_b32 s{sT0}, 3, s{sLvl}')
            e(f's_bitcmp1_b32 s{sT0}, 1')
        fr = (0, 0.5, 0.25, 0.75)[i & 3]
        dd = [int(x + fr) for x in (rcv if t == 'v' else rc)]
        dx = int(xlo + fr)
        go = f'L_go{t}{i}'
        if t == 'v' or pre or kfull:
            e(f's_waitcnt vmcnt({dmax - 1})')
            e(f's_cbranch_scc0 L_lo{t}{i}')
            e(f's_cbranch_vccz {go}')
            e(f'L_lo{t}{i}:')
        e(f's_waitcnt vmcnt({dd[2]-1})')
        e(f's_cbranch_scc1 {go}')
        e(f's_waitcnt vmcnt({dd[1]-1})')
        if dx != dd[1]:
            e(f's_cbranch_vccz {go}')
            if dd[0] != dd[1]: e(f's_waitcnt vmcnt({dd[0]-1})')
        if dx != dd[0]:
            e(f's_cmp_eq_u32 s{sLvl}, 4')
            e(f's_cbranch_scc0 {go}')
            e(f's_waitcnt vmcnt({dx-1})')
            e(f's_cmp_eq_u32 s{sLvl}, 0')
        e(f'{go}:')
    def kops(buf, R):
        dots = [[] for _ in range(20)]; post = [[] for _ in range(20)]
        for i in range(16):
            t = R + i % 3; kk = buf + 4 * i
            dots[i].append(f'v_dot2_f32_bf16 v{t}, v{kk}, v{vQ}, 0')
            for r in range(1, 4): dots[i].append(f'v_dot2_f32_bf16 v{t}, v{kk + r}, v{vQ + r}, v{t}')
            a = R + 3 + ((i >> 1) & 1); b = R + 5 + ((i >> 2) & 1)
            bm1 = '0x3' if i % 2 == 0 else '0xc'
            bm2 = '0x5' if (i >> 1) % 2 == 0 else '0xa'
            post[i + 1].append(f'v_add_f32_dpp v{a}, v{t}, v{t} row_ror:8 row_mask:0xf bank_mask:{bm1}')
            if i % 2 == 1: post[i + 2].append(f'v_add_f32_dpp v{b}, v{a}, v{a} row_half_mirror row_mask:0xf bank_mask:{bm2}')
            if i % 4 == 3: post[i + 3].append(f'v_add_f32_dpp v{b}, v{b}, v{b} quad_perm:[2,3,0,1] {DPPF}')
            if i % 8 == 7:
                c = R + 7 if i == 7 else R + 5
                post[i + 3].append(f'v_cndmask_b32 v{c}, v{R+5}, v{R+6}, s[{sM3}:{sM3+1}]')
                post[i + 4].append(f'v_add_f32_dpp v{c}, v{c}, v{c} quad_perm:[1,0,3,2] {DPPF}')
        return [dots[i] + post[i] for i in range(20)]
    def kfinal(R, dst): e(f'v_cndmask_b32 v{dst}, v{R+7}, v{R+5}, s[{sM4}:{sM4+1}]')
    def ktail(sets):
        for s_ in range(16, 20):
            e('s_nop 2' if s_ == 16 else 's_nop 1')
            for st in sets:
                for op in st[s_]: e(op)
    sets = [kops(X0, vT), kops(X1, vT + 8), kops(X2, vT + 16)]
    for i in range(16):
        for op in sets[0][i]: e(op)
        if nearB and DN:
            if i == 0: e(f's_cmp_eq_u32 s{sCls}, 1')
            e(f's_waitcnt vmcnt({DN - 1})'); e(f's_cbranch_scc1 L_cf{i}')
        e(f's_waitcnt vmcnt({(DC or DB)-1})')
        if nearB and DN: e(f'L_cf{i}:')
        issue(X0, i)
        for st in sets[1:]:
            for op in st[i]: e(op)
    ktail(sets)
    kfinal(vT + 8, vS + 5); kfinal(vT + 16, vS + 6); kfinal(vT, vS + 7)
    e(f's_add_u32 s{sE}, s{sE}, 1')
    e(f'v_mov_b32 v{vZz}, 0')
    vWo = 136; sWo = 92
    e(f'v_lshrrev_b32 v{T}, 4, v0')
    e(f'v_and_b32 v{T+4}, 15, v0')
    e(f'v_lshlrev_b32 v{vWo}, 13, v{T}')
    e(f'v_lshl_add_u32 v{vWo}, v{T+4}, 4, v{vWo}')
    e(f'v_and_b32 v{T+1}, 16, v0')
    e(f'v_lshlrev_b32 v{T+1}, 3, v{T+1}')
    e(f'v_xor_b32 v{vWo}, v{T+1}, v{vWo}')
    for k in range(1, 4): e(f'v_xor_b32 v{vWo + k}, {32 * k}, v{vWo}')
    e(f's_lshl_b32 s{sWo}, s{sH}, 17'); e(f's_lshl_b32 s{sT1}, s{sU}, 8'); e(f's_add_u32 s{sWo}, s{sWo}, s{sT1}')
    e(f's_lshl_b32 s{sT1}, s{sW}, 15'); e(f's_add_u32 s{sWo}, s{sWo}, s{sT1}'); e(f's_add_u32 s{sWo+1}, s{sWo}, 4096')
    e(f's_lshl_b32 s{sT2}, s{sW}, 13'); e(f's_add_u32 m0, s{sT2}, {L_W}')
    if_class('L_nc3', 0)
    e(f'v_and_b32 v{T}, 3, v0')
    e(f'v_lshlrev_b32 v{T}, 3, v{T}')
    e(f's_and_b32 s{sT0}, s{sE}, 0xffffff00')
    e(f'v_lshrrev_b32 v{T}, v{T}, s{sT0}')
    e(f'v_mul_u32_u24 v{T+1}, 37, v0')
    e(f'v_xor_b32 v{T}, s{sE}, v{T}')
    e(f'v_xor_b32 v{T}, v{T+1}, v{T}')
    for r in range(4):
        e(f'v_bfe_u32 v{T+1}, v{T}, {2*r}, 1')
        e(f'v_bfe_u32 v{T+2}, v{T}, {2*r+1}, 1')
        e(f'v_lshlrev_b32 v{T+1}, 15, v{T+1}')
        e(f'v_lshl_or_b32 v{vPat + r}, v{T+2}, 31, v{T+1}')
    e(f's_mov_b32 s{s7f}, 0x7fff7fff')
    e(f'v_lshrrev_b32 v{T}, 4, v0')
    e(f'v_lshl_add_u32 v{vPPa}, v{T}, 15, v{vL16}')
    e(f's_and_b32 s{sT0}, s{sW}, 1'); e(f's_lshl_b32 s{sT0}, s{sT0}, 9')
    e(f'v_xor_b32 v{vPPa}, s{sT0}, v{vPPa}')
    e(f'v_xor_b32 v{vPPa+1}, 0x100, v{vPPa}')
    e(f's_lshr_b32 s{sT0}, s{sW}, 1'); e(f's_lshl_b32 s{sT0}, s{sT0}, 10')
    e(f's_and_b32 s{sT1}, s2, 15'); e(f's_lshl_b32 s{sT1}, s{sT1}, 11'); e(f's_add_u32 s{sT0}, s{sT0}, s{sT1}')
    e(f's_lshr_b32 s{sT1}, s2, 4'); e(f's_lshl_b32 s{sT1}, s{sT1}, 17'); e(f's_add_u32 s{sT0}, s{sT0}, s{sT1}')
    e(f's_add_u32 s{sPPa}, s{sT0}, {PP + 0x200000}')
    e(f's_xor_b32 s{sPPb}, s{sPPa}, 0x2000')
    e(f's_or_b32 s{sHk}, s{sHk}, 0x{mask64([22, 30, 31]):08x}')
    e(f's_mov_b32 s{sMap}, {nmap[0] | nmap[1] << 4 | nmap[2] << 8}')
    if nearB:
        kappa(1, sKV)
        e(f's_xor_b32 s{sXB}, s{sKp}, s{sKV}')
        e(f's_mov_b32 s{sX}, s{sXB}')
    e('L_nc3:')
    switch(sBv, sKV, 0x180000)
    stamp(3, 0)

    def body_end(name):
        e(f's_bitcmp1_b64 s[{sHk}:{sHk+1}], s{sN}')
        e('s_cbranch_scc1 L_hooks')
        e(f's_add_u32 s{sOff}, s{sOff}, 0x20000')
        e(f's_add_u32 s{sN}, s{sN}, 1')
        e(f's_branch {name}')
    e('L_kbody:')
    ks = kops(X0, vT)
    body_begin('k')
    for i in range(16):
        for op in ks[i]: e(op)
        if i < 7: e(f'v_mov_b32 v{vS + i}, v{vS + i + 1}')
        throttle('k', i)
        issue(X0, i)
    ktail([ks])
    kfinal(vT, vS + 7)
    body_end('L_kbody')

    e('L_vbody:')
    e(f'v_and_b32 v{vPd}, 0xffff, v{vP}')
    e(f'v_lshl_or_b32 v{vPd}, v{vPd}, 16, v{vPd}')
    for r in range(3): e(f'v_alignbit_b32 v{vP + r}, v{vP + r + 1}, v{vP + r}, 16')
    e(f'v_lshrrev_b32 v{vP+3}, 16, v{vP+3}')
    def vand(i):
        for r in range(4):
            e(f'v_and_b32_dpp v{vS + 4 * (i & 1) + r}, v{vPd}, v{vMask + r} row_newbcast:{br4(i)} {DPPF}')
    body_begin('v')
    vand(0)
    for i in range(16):
        if i < 15: vand(i + 1)
        a = vS + 4 * (i & 1); v = X0 + 4 * i
        e(f'v_mfma_f32_16x16x32_bf16 v[{vAcc}:{vAcc+3}], v[{a}:{a+3}], v[{v}:{v+3}], v[{vAcc}:{vAcc+3}]')
        throttle('v', i)
        issue(X0, i)
    body_end('L_vbody')

    w2 = max(w2, w1); wpre = max(wpre, w2)
    def wload(i0, i1):
        for i in range(i0, i1):
            if i == 4: e('s_add_u32 m0, m0, 4096'); e('s_nop 0')
            e(f'buffer_load_dwordx4 v{vWo + (i & 3)}, s[12:15], s{sWo + (i >> 2)} offen offset:{(i & 3) * 1024} nt lds')
    e('L_hooks:')
    e(f's_cmp_eq_u32 s{sN}, 40'); e('s_cbranch_scc1 L_sfin')
    for n in (39, 7, 8, 23, 32, fat, 22, 30, 31):
        e(f's_cmp_eq_u32 s{sN}, {n}'); e(f's_cbranch_scc1 L_h{n}')
    def pload(seg): e(f'buffer_load_dwordx4 v[{vPA}:{vPA+3}], v{vPPa + seg}, s[8:11], s{sPPb} offen sc1')
    def ptest():
        for r in range(4): e(f'v_xor_b32 v{vPA + r}, v{vPA + r}, v{vPat + r}')
        e(f'v_or3_b32 v{T}, v{vPA}, v{vPA+1}, v{vPA+2}')
        e(f'v_bitop3_b32 v{T}, v{T}, v{vPA+3}, s{s7f} bitop3:0x54')
        e(f'v_cmp_ne_u32 vcc, 0, v{T}')
    def pcheck(seg):
        l = lab('pc')
        e(f's_cmp_eq_u32 s{sX}, 0'); e(f's_cbranch_scc1 {l}')
        ptest()
        e(f's_cbranch_vccz {l}')
        spin(SPIN, lambda: pload(seg), 'vmcnt(0)', ptest)
        e(f'{l}:')
    for r in range(4): e(f'v_mov_b32 v{vP + r}, v{vPA + r}')
    e(f'v_max3_f32 v{T}, v{vS}, v{vS+1}, v{vS+2}')
    e(f'v_max3_f32 v{T+1}, v{vS+3}, v{vS+4}, v{vS+5}')
    e(f'v_max3_f32 v{T}, v{T}, v{vS+6}, v{vS+7}')
    e(f'v_max_f32 v{T}, v{T}, v{T+1}')
    allred('v_max_f32', T, T + 1)
    e(f'v_mul_f32 v{T+2}, s{sC}, v{T}')
    for r in range(8): e(f'v_fma_f32 v{vS + r}, v{vS + r}, s{sC}, -v{T+2}')
    for r in range(8): e(f'v_exp_f32 v{vS + r}, v{vS + r}')
    e(f'v_cmp_eq_u32 vcc, s{sSeg}, v0')
    for r in range(4): e(f'v_cvt_pk_bf16_f32 v{vPA + r}, v{vS + 2*r}, v{vS + 2*r + 1}')
    e(f'v_cndmask_b32 v{vMl}, v{vMl}, v{T+2}, vcc')
    for r in range(4): e(f'v_add_f32 v{vS + 2*r}, v{vS + 2*r}, v{vS + 2*r + 1}')
    e(f'v_add_f32 v{vS}, v{vS}, v{vS+2}')
    e(f'v_add_f32 v{vS+4}, v{vS+4}, v{vS+6}')
    e(f'v_add_f32 v{T}, v{vS}, v{vS+4}')
    allred('v_add_f32', T, T + 1)
    e(f'v_cndmask_b32 v{vMl+1}, v{vMl+1}, v{T}, vcc')
    if_class('L_fin2', 0)
    e(f's_cmp_eq_u32 s{sN}, 16'); e('s_cbranch_scc0 L_fin1')
    kappa(3, sKV)
    e(f's_xor_b32 s{sX}, s{sKp}, s{sKV}')
    e('L_fin1:')
    e(f's_cmp_eq_u32 s{sX}, 0'); e('s_cbranch_scc1 L_fin2')
    for r in range(4): e(f'v_and_or_b32 v{vPs + r}, v{vPA + r}, s{s7f}, v{vPat + r}')
    e(f's_and_b32 s{sT0}, s{sSeg}, 1'); e(f's_lshl_b32 s{sT0}, s{sT0}, 8')
    e(f'v_xor_b32 v{T}, s{sT0}, v{vPPa}')
    e(f'buffer_store_dwordx4 v[{vPs}:{vPs+3}], v{T}, s[8:11], s{sPPa} offen sc1')
    e(f's_cmp_eq_u32 s{sN}, 4'); e('s_cbranch_scc0 L_fin2')
    spin(SPIN, lambda: pload(0), 'vmcnt(0)', ptest)
    e('L_fin2:')
    e(f's_cmp_eq_u32 s{sN}, 4'); e('s_cbranch_scc0 L_fin3')
    e(f'ds_read_b128 v[{vQ}:{vQ+3}], v1 offset:{L_Q}')
    e(f'v_mov_b32 v{vP}, v{vPA+2}'); e(f'v_mov_b32 v{vP+1}, v{vPA+3}')
    e(f's_mov_b32 s{sSeg}, 0')
    e(f's_sub_u32 s{sPPa}, s{sPPa}, 0x200000'); e(f's_sub_u32 s{sPPb}, s{sPPb}, 0x200000')
    e('s_waitcnt lgkmcnt(0)')
    e('s_branch L_h_done')
    e('L_fin3:')
    e(f's_mov_b32 s{sSeg}, 1')
    e(f's_cmp_eq_u32 s{sN}, 24'); e('s_cbranch_scc0 L_h_done')
    stamp(14, 0)
    e(f's_lshl_b32 s{sT1}, s{sW}, 6')
    e(f'v_mov_b32 v{vMl+2}, s{sE}'); e(f'v_mov_b32 v{vMl+3}, s{sE}')
    e(f'v_add_u32 v{T}, s{sT1}, v{vL16}')
    e('s_mov_b64 exec, 15')
    e(f'ds_write_b128 v{T}, v[{vMl}:{vMl+3}] offset:{L_ST}')
    e('s_mov_b64 exec, -1')
    e('s_branch L_h_done')
    e('L_h7:')
    stamp(15, 0)
    if_class('L_h7b', 0)
    kappa(2, sKp)
    if not nearB: go_near()
    e('L_h7b:')
    switch(sAk, sKp, -0x20000)
    e('s_branch L_h_done')
    e('L_h8:')
    for r in range(4): e(f'v_mov_b32_dpp v{vMask + r}, v{vMask + r} row_ror:8 {DPPF}')
    for r in range(4): e(f'v_mov_b32 v{vAccB + r}, v{vAcc + r}')
    for r in range(4): e(f'v_mov_b32 v{vAcc + r}, 0')
    e('s_branch L_h_done')
    for n, seg in ((22, 0), (30, 1)):
        e(f'L_h{n}:')
        e(f's_cmp_eq_u32 s{sX}, 0'); e('s_cbranch_scc1 L_h_done')
        pload(seg)
        e('s_branch L_h_done')
    e('L_h31:')
    pcheck(1)
    e('s_branch L_h_done')
    e('L_h23:')
    pcheck(0)
    switch(sAv, sKV, -0x20000)
    e('s_branch L_h_done')
    e('L_h32:')
    if emap:
        e(f's_mov_b32 s{sMap}, {emap[0] | emap[1] << 4 | emap[2] << 8}')
        e(f's_cmp_eq_u32 s{sCls}, 1'); e(f's_cselect_b32 s{sMap}, {enmap[0] | enmap[1] << 4 | enmap[2] << 8}, s{sMap}')
    for r in range(4): e(f'v_mov_b32_dpp v{vMask + r}, v{vMask + r} row_ror:8 {DPPF}')
    for r in range(4): e(f'v_mov_b32 v{vP + r}, v{vPA + r}')
    e('s_branch L_h_done')
    e(f'L_h{fat}:')
    e(f's_xor_b32 s{sT0}, s{sSide}, s{sX}'); e(f's_lshl_b32 s{sT0}, s{sT0}, 2'); e(f's_add_u32 s{sT0}, s{sT0}, s{sW}'); e(f's_lshl_b32 s{sT0}, s{sT0}, 3')
    e(f's_xor_b32 s{sT1}, s{sSide}, s{sXB}'); e(f's_lshl_b32 s{sT1}, s{sT1}, 2'); e(f's_add_u32 s{sT1}, s{sT1}, s{sW}'); e(f's_lshl_b32 s{sT1}, s{sT1}, 3')
    e(f'v_lshrrev_b32 v{T+4}, 5, v0')
    e(f'v_lshl_add_u32 v{T}, v{T+4}, 6, s{sT0}')
    e(f'v_mov_b32 v{T+1}, s{sT1}')
    def fload():
        e(f'ds_read_b64 v[{vF}:{vF+1}], v{T} offset:{L_F}')
        e(f'ds_read_b64 v[{T+2}:{T+3}], v{T+1} offset:{L_F + 128}')
    def ftest():
        e(f'v_cmp_ne_u32 vcc, s{sE}, v{vF+1}')
        e(f'v_cmp_ne_u32 s[{sT1}:{sT1+1}], s{sE}, v{T+3}')
        e(f's_or_b64 vcc, vcc, s[{sT1}:{sT1+1}]')
    spin(SPIN * 8, fload, 'lgkmcnt(0)', ftest, again='scc1')
    for r in range(4): e(f'v_mul_f32 v{vAccB + r}, v{T+2}, v{vAccB + r}')
    e(f'v_lshlrev_b32 v1, 1, v1')
    e(f'v_lshl_add_u32 v1, v{T+4}, 9, v1')
    e(f'v_and_b32 v{T}, 16, v0')
    e(f's_lshl_b32 s{sT0}, s{sW}, 10')
    e(f'v_add3_u32 v1, v1, v{T}, s{sT0}')
    e('s_branch L_h_done')
    e('L_h39:')
    wload(0, w1)
    e('s_mov_b32 s6, 0')
    e('L_h_done:')
    e(f's_add_u32 s{sOff}, s{sOff}, 0x20000')
    e(f's_add_u32 s{sN}, s{sN}, 1')
    e(f's_bitcmp1_b64 s[{sVk}:{sVk+1}], s{sN}')
    e('s_cbranch_scc1 L_vbody')
    e('s_branch L_kbody')
    e('L_sfin:')
    e('s_nop 1')
    for r in range(4): e(f'v_mul_f32 v{vAcc + r}, v{vF}, v{vAcc + r}')
    for r in range(4): e(f'v_permlane32_swap_b32 v{vAcc + r}, v{vAccB + r}')
    for r in range(4): e(f'v_add_f32 v{vAcc + r}, v{vAcc + r}, v{vAccB + r}')
    e(f'ds_write_b128 v1, v[{vAcc}:{vAcc+3}] offset:{L_O}')
    wload(w1, w2)
    e('s_waitcnt lgkmcnt(0)')
    e('s_barrier')
    stamp(4, 0)
    e(f'v_lshrrev_b32 v{T}, 4, v0')
    e(f'v_and_b32 v{T+4}, 15, v0')
    wload(w2, wpre)
    e('s_barrier')
    wload(wpre, 8)
    e(f'v_bfe_u32 v{T+2}, v0, 2, 3')
    e(f's_lshl_b32 s{sT2}, s{sW}, 1')
    e(f'v_xor_b32 v{T+2}, s{sT2}, v{T+2}')
    e(f'v_lshlrev_b32 v{vYw}, 5, v{T+2}')
    e(f'v_lshl_add_u32 v{vYw}, v{T}, 8, v{vYw}')
    e(f'v_bfe_u32 v{T+2}, v0, 2, 2')
    e(f'v_lshl_add_u32 v{vYw}, v{T+2}, 10, v{vYw}')
    e(f'v_and_b32 v{T+2}, 3, v0')
    e(f'v_lshl_add_u32 v{vYw}, v{T+2}, 3, v{vYw}')
    e(f'v_xor_b32 v{vYr}, 32, v{vYw}')
    e(f'v_lshlrev_b32 v{vAr}, 6, v{T+4}')
    e(f'v_lshl_add_u32 v{vAr}, v{T}, 4, v{vAr}')
    e(f's_and_b32 s{sT2}, s{sW}, 1'); e(f's_lshl_b32 s{sT2}, s{sT2}, 1')
    e(f'v_lshrrev_b32 v{T}, 5, v0')
    e(f'v_or_b32 v{T}, s{sT2}, v{T}')
    e(f's_lshl_b32 s{sT2}, s2, 1'); e(f's_and_b32 s{sT2}, s{sT2}, 127'); e(f's_lshr_b32 s{sYd}, s{sW}, 1'); e(f's_or_b32 s{sT2}, s{sT2}, s{sYd}')
    e(f'v_xor_b32 v{T+1}, s{sT2}, v{T}')
    e(f'v_lshlrev_b32 v{vYa}, 8, v{T+1}')
    e(f'v_lshl_add_u32 v{vYa}, v{T}, 15, v{vYa}')
    e(f'v_and_b32 v{T}, 31, v0')
    e(f'v_lshl_add_u32 v{vYa}, v{T}, 3, v{vYa}')
    e(f's_lshr_b32 s{sYd}, s2, 6'); e(f's_lshl_b32 s{sYd}, s{sYd}, 17'); e(f's_add_u32 s{sYd}, s{sYd}, {YF}')
    e(f's_lshl_b32 s{sT2}, s{sW}, 9')
    e(f'v_lshl_add_u32 v{vWa}, v0, 3, s{sT2}')
    e(f's_add_u32 s{sE}, s{sE}, 1')
    mktag(vTg2, sE, sT2)
    xcc(sT2)
    e(f'v_xor_b32 v{vTg2+3}, s{sT2}, v{vTg2+3}')
    for r in range(2): e(f'v_cndmask_b32 v{vTg2 + r}, v{vTg2 + r}, v{vTg2 + 2 + r}, s[{sM4}:{sM4+1}]')
    def wread():
        for ks in range(4):
            for t in range(2):
                for hh in range(2):
                    d = vBt + (ks * 2 + t) * 4 + 2 * hh
                    if (ks, t, hh) == (3, 1, 0): e('s_waitcnt lgkmcnt(12)')
                    e(f'ds_read_b64_tr_b16 v[{d}:{d+1}], v{vYw + t} offset:{L_W + (ks * 8 + hh * 4) * 1024}')
    e('s_waitcnt vmcnt(0)')
    stamp(9, 0)
    e('s_barrier')
    e(f'ds_read_b128 v[{vAo}:{vAo+3}], v{vAr} offset:{L_RED}')
    wread()
    vDD = 212
    for ks in range(4):
        for t in range(2):
            k = ks * 2 + t
            if k: e(f's_waitcnt lgkmcnt({14 - 2 * k})')
            e(f'v_mfma_f32_16x16x32_bf16 v[{vDD + 4*k}:{vDD + 4*k + 3}], v[{vAo}:{vAo+3}], v[{vBt + 4*k}:{vBt + 4*k + 3}], 0')
    val = lambda ks, t: vDD + (ks * 2 + t) * 4 + ks
    for t in range(2): e(f'v_add_f32 v{vAcc + t}, v{val(0, t)}, v{val(1, t)}')
    e('s_nop 0')
    for t in range(2): e(f'v_add_f32 v{vAcc + t}, v{vAcc + t}, v{val(2, t)}')
    e('s_nop 1')
    for t in range(2): e(f'v_add_f32 v{vAcc + t}, v{vAcc + t}, v{val(3, t)}')
    for r in range(2): tag(vAcc + r, vTg2)
    e(f'buffer_store_dwordx2 v[{vAcc}:{vAcc+1}], v{vYa}, s[8:11], s{sYd} offen')
    e(f'ds_write_b64 v{vWa}, v[{vAcc}:{vAcc+1}] offset:{L_Y}')
    e('s_waitcnt lgkmcnt(0)')
    e('s_barrier')
    if diag:
        e(f's_cmp_lg_u32 s{sW}, 0'); e('s_cbranch_scc1 L_end')
        stamp(11)
        flush_stamps([0, 1, 2, 3, 4, 9, 11, 14, 15])
        e('s_mov_b64 exec, -1')
        e('s_lshl_b32 s84, s2, 8'); e(f's_add_u32 s84, s84, {STAMP + 0x8000}')
        e('v_lshlrev_b32 v253, 2, v0')
        e('buffer_store_dword v252, v253, s[8:11], s84 offen')
    e('s_endpgm')

    e('L_service:')
    sDst = 54
    sX3, sX4a, sX4b, sOo = 56, 57, 58, 59
    vG = 2; vC = 3; vA = 4; vA2 = 5; vL = 6; vZ = 7
    vXA = 8; vWt = 16; vSel = 48; vOpA = 56; vD = 64; vR = 72
    vA3 = 104; vTg = 112; vTg2 = 116; vX3 = 108; vX4 = 109; vOut = 110
    e(f's_sub_u32 s{sW}, s{sW}, 4')
    e(f'v_lshrrev_b32 v{vG}, 4, v0')
    e(f'v_and_b32 v{vC}, 15, v0')
    e(f'v_lshlrev_b32 v{vA}, 16, v{vG}')
    e(f'v_lshl_add_u32 v{vA}, v{vC}, 4, v{vA}')
    e(f'v_lshrrev_b32 v{vA2}, 3, v{vC}')
    e(f'v_lshlrev_b32 v{vA2}, 10, v{vA2}')
    e(f'v_lshl_add_u32 v{vA2}, v{vG}, 4, v{vA2}')
    e(f's_lshl_b32 s{sT0}, s{sU}, 7'); e(f's_lshl_b32 s{sT1}, s{sW}, 5'); e(f's_add_u32 s{sT0}, s{sT0}, s{sT1}')
    e(f's_lshl_b32 s{sT1}, s{sT0}, 1')
    e(f's_lshl_b32 s{sT0}, s{sT0}, 13'); e(f's_lshl_b32 s{sT2}, s{sH}, 8'); e(f's_add_u32 s{sT0}, s{sT0}, s{sT2}')
    e('s_mov_b32 s6, 0x400000'); e('s_mov_b32 s14, 4096'); e('s_mov_b32 s15, 0x20000')
    e(f's_cmp_eq_u32 s{sSide}, 0')
    e('s_waitcnt lgkmcnt(0)')
    e(f's_cselect_b64 s[4:5], s[{sAwq}:{sAwq+1}], s[{sBwq}:{sBwq+1}]')
    e(f's_cselect_b64 s[12:13], s[{sAx}:{sAx+1}], s[{sBx}:{sBx+1}]')
    for m in range(2 if xfirst else 0):
        e(f'buffer_load_dwordx4 v[{vXA + 4*m}:{vXA + 4*m + 3}], v{vA2}, s[12:15], s{sT1} offen offset:{2048*m}')
    for i in range(8):
        if not abl & 4: e(f'buffer_load_dwordx4 v[{vWt + 4*i}:{vWt + 4*i + 3}], v{vA}, s[4:7], s{sT0} offen nt')
        if i < 7: e(f's_add_u32 s{sT0}, s{sT0}, 8192')
    for m in range(0 if (xfirst or abl & 16) else 2):
        e(f'buffer_load_dwordx4 v[{vXA + 4*m}:{vXA + 4*m + 3}], v{vA2}, s[12:15], s{sT1} offen offset:{2048*m}')
    if l2w:
        e(f's_getpc_b64 s[{sTm}:{sTm+1}]')
        e('L_pc:')
        e(f's_lshl_b32 s{sT0}, s{sH}, 2'); e(f's_add_u32 s{sT0}, s{sT0}, s{sW}'); e(f's_lshl_b32 s{sT0}, s{sT0}, 7')
        e(f's_min_u32 s{sT0}, s{sT0}, L_end-L_pc')
        e(f's_add_u32 s{sT0}, s{sT0}, s{sTm}'); e(f's_addc_u32 s{sT1}, s{sTm+1}, 0')
        e(f'v_mov_b32 v{vR+2}, s{sT0}'); e(f'v_mov_b32 v{vR+3}, s{sT1}')
        e(f'global_load_dword v{vOut}, v[{vR+2}:{vR+3}], off')
    e('L_service2:')
    e(f'v_mov_b32 v{vZ}, 0')
    e(f'v_lshlrev_b32 v{vR}, 2, v0')
    e(f'v_cmp_lt_u32 vcc, 15, v0')
    e(f's_cmp_eq_u32 s{sCls}, {1 if nearB else 2}'); e(f's_cselect_b32 s{sT0}, {lvlc}, {lvl0}')
    e(f'v_cndmask_b32 v{vR+1}, 0, -1, vcc')
    e(f'v_writelane_b32 v{vR+1}, s{sT0}, 1')
    e(f'ds_write_b32 v{vR}, v{vR+1} offset:{L_CNT}')
    e('s_waitcnt lgkmcnt(0)')
    load_epoch()
    e('s_barrier')
    e(f's_mov_b32 s8, s{sWs}'); e(f's_mov_b32 s9, s{sWs+1}')
    e(f'v_lshlrev_b32 v{vL}, 4, v0')
    assert len(cks) <= 16
    e(f's_lshl_b32 s{sT0}, s{sW}, 3'); e(f's_add_u32 s{sT0}, s{sT0}, s{sJ}')
    e(f's_cmp_ge_u32 s{sT0}, {len(cks)}'); e('s_cbranch_scc1 L_norc')
    e(f's_lshl_b32 s{sT0}, s{sT0}, 5'); e(f's_add_u32 s{sT0}, s{sT0}, s{sH}'); e(f's_lshl_b32 s{sT0}, s{sT0}, 8'); e(f's_add_u32 s{sT0}, s{sT0}, {RC}')
    e('s_mov_b64 exec, 0xffff')
    if not abl & 8: e(f'buffer_store_dword v{vZ}, v{vR}, s[8:11], s{sT0} offen sc1')
    e('s_mov_b64 exec, -1')
    e('L_norc:')
    e(f'v_and_b32 v{vR}, 7, v0')
    e(f'v_and_b32 v{vR+1}, 1, v0')
    e(f'v_lshlrev_b32 v{vR+1}, 4, v{vR+1}')
    e(f'v_mov_b32 v{vR+2}, 0xffff')
    e(f'v_lshlrev_b32 v{vR+2}, v{vR+1}, v{vR+2}')
    e(f'v_lshrrev_b32 v{vR}, 1, v{vR}')
    e(f'v_mov_b32 v{vR+4}, 0x0c0c0c0c')
    e(f's_mov_b32 s{sT0}, 0x01000100'); e(f's_mov_b32 s{sT1}, 0x03020302')
    for r in range(4):
        e(f'v_cmp_eq_u32 vcc, {r}, v{vR}'); e('s_nop 1')
        e(f'v_cndmask_b32 v{vR+3}, 0, v{vR+2}, vcc')
        e(f'v_bfi_b32 v{vSel + r}, v{vR+3}, s{sT0}, v{vR+4}')
        e(f'v_bfi_b32 v{vSel + 4 + r}, v{vR+3}, s{sT1}, v{vR+4}')
    e(f'v_lshrrev_b32 v{vR}, 5, v0')
    e(f'v_lshlrev_b32 v{vA}, 9, v{vR}')
    e(f'v_lshl_add_u32 v{vA}, v{vC}, 5, v{vA}')
    e(f'v_and_b32 v{vR}, 16, v0')
    e(f's_lshl_b32 s{sT0}, s{sW}, 11')
    e(f'v_add3_u32 v{vA}, v{vA}, v{vR}, s{sT0}')
    e(f'v_lshl_add_u32 v{vA2}, v{vG}, 15, v{vL}')
    e(f's_lshl_b32 s{sT0}, s2, 1'); e(f's_and_b32 s{sT0}, s{sT0}, 127'); e(f's_lshl_b32 s{sT0}, s{sT0}, 8')
    e(f'v_xor_b32 v{vA2}, s{sT0}, v{vA2}')
    e(f'v_xor_b32 v{vA3}, 0x100, v{vA2}')
    e(f's_lshr_b32 s{sDst}, s2, 6'); e(f's_lshl_b32 s{sDst}, s{sDst}, 17')
    e('s_waitcnt lgkmcnt(0)')
    e(f's_add_u32 s{sE}, s{sE}, 1')
    mktag(vTg, sE, sT0)
    def probe_setup():
        e(f's_mov_b64 s[12:13], s[{sBk}:{sBk+1}]')
        for r, p in ((1, sBv), (2, sAk), (3, sAv)):
            e(f's_cmp_eq_u32 s{sRd}, {r}'); e(f's_cselect_b64 s[12:13], s[{p}:{p+1}], s[12:13]')
        e('s_mov_b32 s14, 0x10000000')
        e(f's_mov_b32 s{sE0}, 0x10000'); e(f's_mov_b32 s{sE1}, 0x10000')
    e(f's_cmp_eq_u32 s{sW}, 0'); e(f's_cselect_b32 s{sCls}, 0, s{sCls}')
    e(f's_mov_b32 s{sRd}, {(1 if selfp else 0) if nearB else 2}')
    probe_setup()
    if_class('L_nop0', 0)
    probe_seed(1)
    if sh0 and nearB and not selfp:
        e(f's_mov_b32 s{sCnt}, {sh0}')
        probe_loop()
        e('s_branch L_padret')
    e('L_nop0:')
    if pads == 1:
        for w in range(3):
            e(f's_cmp_eq_u32 s{sW}, {w}'); e(f's_cbranch_scc1 L_pad{w}')
        e('s_branch L_pad3')
    e('L_padret:')
    e('s_waitcnt vmcnt(0)')
    stamp(5, 0)
    seq = [(i, m) for i in range(8) for m in range(2)]
    def perms(k):
        i, m = seq[k]
        for r in range(4):
            x = vXA + 4 * m + (i >> 1)
            e(f'v_perm_b32 v{vOpA + 4 * (k & 1) + r}, v{x}, v{x}, v{vSel + 4 * (i & 1) + r}')
    perms(0)
    for k, (i, m) in enumerate(seq):
        if k < 15: perms(k + 1)
        else: e('s_nop 0')
        a = vOpA + 4 * (k & 1); d = vD + 4 * m; w = vWt + 4 * i
        c = f'v[{d}:{d+3}]' if i > 0 else '0'
        e(f'v_mfma_f32_16x16x32_bf16 v[{d}:{d+3}], v[{a}:{a+3}], v[{w}:{w+3}], {c}')
    e(f'v_mov_b32 v{vR}, 1')
    e('s_nop 5')
    e(f'ds_write_b128 v{vA}, v[{vD}:{vD+3}] offset:{L_RED}')
    e(f'ds_write_b128 v{vA}, v[{vD+4}:{vD+7}] offset:{L_RED + 1024}')
    e('s_mov_b64 exec, 1')
    e(f'ds_add_u32 v{vZ}, v{vR} offset:{L_CNT}')
    e('s_mov_b64 exec, -1')
    e(f's_cmp_lg_u32 s{sW}, 0')
    e('s_cbranch_scc1 L_notleader')
    spin(SPIN * 8, lambda: e(f'ds_read_b32 v{vR}, v{vZ} offset:{L_CNT}'), 'lgkmcnt(0)', lambda: e(f'v_cmp_ne_u32 vcc, 4, v{vR}'))
    for m in range(2): e(f'ds_read_b128 v[{vD + 4*m}:{vD + 4*m + 3}], v{vL} offset:{L_RED + m * 1024}')
    for w in range(1, 4):
        for m in range(2):
            r = vR + ((w - 1) * 2 + m) * 4
            e(f'ds_read_b128 v[{r}:{r+3}], v{vL} offset:{L_RED + w * 2048 + m * 1024}')
    e('s_waitcnt lgkmcnt(4)')
    for r in range(8): e(f'v_add_f32 v{vD + r}, v{vD + r}, v{vR + r}')
    e('s_waitcnt lgkmcnt(0)')
    for r in range(8): e(f'v_add_f32 v{vR + 8 + r}, v{vR + 8 + r}, v{vR + 16 + r}')
    for r in range(8): e(f'v_add_f32 v{vD + r}, v{vD + r}, v{vR + 8 + r}')
    for r in range(8): tag(vD + r, vTg)
    if not abl & 1:
        e(f'buffer_store_dwordx4 v[{vD}:{vD+3}], v{vA2}, s[8:11], s{sDst} offen sc1')
        e(f'buffer_store_dwordx4 v[{vD+4}:{vD+7}], v{vA3}, s[8:11], s{sDst} offen sc1')
    stamp(6)
    e(f'v_bfe_u32 v{vR}, v0, 4, 1')
    e(f's_and_b32 s{sT0}, s{sB}, 1'); e(f's_lshl_b32 s{sT0}, s{sT0}, 1')
    e(f'v_or_b32 v{vR}, s{sT0}, v{vR}')
    e(f'v_lshrrev_b32 v{vR+1}, 5, v0')
    e(f'v_lshlrev_b32 v{vR+1}, 3, v{vR+1}')
    e(f's_and_b32 s{sT0}, s{sH}, 7'); e(f's_lshl_b32 s{sT0}, s{sT0}, 4'); e(f's_lshr_b32 s{sT1}, s{sB}, 1'); e(f's_or_b32 s{sT0}, s{sT0}, s{sT1}')
    e(f'v_or_b32 v{vR+1}, s{sT0}, v{vR+1}')
    e(f'v_xor_b32 v{vR+1}, v{vR+1}, v{vR}')
    e(f'v_lshlrev_b32 v{vR+1}, 8, v{vR+1}')
    e(f'v_lshl_add_u32 v{vR+1}, v{vR}, 15, v{vR+1}')
    e(f'v_lshl_add_u32 v{vR}, v{vC}, 4, v{vR+1}')
    e(f'v_xor_b32 v{vR+1}, 0x200, v{vR}')
    e(f's_xor_b32 s{sT0}, s{sE}, 1')
    e(f'v_mov_b32 v{vR+20}, s{sT0}'); e(f'v_mov_b32 v{vR+21}, s{sT0}')
    e(f'v_lshlrev_b32 v{vR+22}, 3, v0')
    e(f'ds_write_b64 v{vR+22}, v[{vR+20}:{vR+21}] offset:{L_ST}')
    def qload():
        for r in range(4):
            d = vR + 4 + 4 * r
            e(f'buffer_load_dwordx4 v[{d}:{d+3}], v{vR + (r & 1)}, s[8:11], s{sDst} offen offset:{(r >> 1) * 1024} sc1')
    if qs0: e('s_waitcnt vmcnt(0)')
    if not abl & 2: spin(SPIN, qload, 'vmcnt(0)', lambda: check(range(vR + 4, vR + 20), vR + 2, vTg), sleep=qs)
    for r in range(4):
        e(f'v_add_f32 v{vR + 4 + r}, v{vR + 4 + r}, v{vR + 8 + r}')
        e(f'v_add_f32 v{vR + 12 + r}, v{vR + 12 + r}, v{vR + 16 + r}')
    for r in range(4): e(f'v_add_f32 v{vR + 4 + r}, v{vR + 4 + r}, v{vR + 12 + r}')
    e(f'v_cvt_pk_bf16_f32 v{vR+4}, v{vR+4}, v{vR+5}')
    e(f'v_cvt_pk_bf16_f32 v{vR+5}, v{vR+6}, v{vR+7}')
    e(f'ds_write_b64 v{vR+22}, v[{vR+4}:{vR+5}] offset:{L_Q}')
    if qflag: e(f'ds_write_b32 v{vZ}, v{vZ} offset:{L_QF}')
    e('s_waitcnt lgkmcnt(0)')
    stamp(8)
    if not qflag: e('s_barrier')
    e('s_mov_b64 exec, 0xffff')
    spin(SPIN, lambda: e(f'ds_read_b128 v[{vD}:{vD+3}], v{vL} offset:{L_ST}'), 'lgkmcnt(0)',
         lambda: e(f'v_cmp_ne_u32 vcc, s{sE}, v{vD+2}'), sleep=16)
    e(f's_lshl_b32 s{sT0}, s2, 8'); e(f's_add_u32 s{sT0}, s{sT0}, {ST}')
    e(f'buffer_store_dwordx4 v[{vD}:{vD+3}], v{vL}, s[8:11], s{sT0} offen sc1')
    e('s_mov_b64 exec, -1')
    e(f'v_and_b32 v{vR}, 3, v0')
    e(f'v_lshlrev_b32 v{vA}, 6, v{vR}')
    e(f'v_bfe_u32 v{vR}, v0, 2, 1')
    e(f'v_lshl_add_u32 v{vA}, v{vR}, 10, v{vA}')
    e(f'v_lshrrev_b32 v{vR}, 3, v0')
    e(f'v_min_u32 v{vR}, 2, v{vR}')
    e(f'v_lshl_add_u32 v{vA}, v{vR}, 4, v{vA}')
    e(f's_andn2_b32 s{sT0}, s{sT0}, 0x400')
    spin(SPIN, lambda: e(f'buffer_load_dwordx4 v[{vR+4}:{vR+7}], v{vA}, s[8:11], s{sT0} offen sc1'), 'vmcnt(0)',
         lambda: e(f'v_cmp_ne_u32 vcc, s{sE}, v{vR+6}'), sleep=48)
    e(f'v_mov_b32 v{vR}, v{vR+4}')
    rowred('v_max_f32', vR)
    e(f'v_sub_f32 v{vR}, v{vR+4}, v{vR}')
    e(f'v_exp_f32 v{vR}, v{vR}')
    e('v_cmp_lt_u32 vcc, 15, v0')
    e(f'v_mul_f32 v{vR+1}, v{vR}, v{vR+5}')
    rowred('v_add_f32', vR + 1)
    e(f'v_rcp_f32 v{vR+1}, v{vR+1}')
    e(f'v_cndmask_b32 v{vR+2}, 1.0, 2.0, vcc')
    e(f'v_mul_f32 v{vR}, v{vR}, v{vR+1}')
    e(f'v_mul_f32 v{vR}, v{vR}, v{vR+2}')
    e(f'v_mov_b32 v{vR+1}, s{sE}')
    e('s_mov_b32 exec_hi, 0')
    e(f'ds_write_b64 v{vR+22}, v[{vR}:{vR+1}] offset:{L_F}')
    e('s_mov_b64 exec, -1')
    e(f'v_bfe_u32 v{vR}, v0, 2, 3')
    e(f'v_lshlrev_b32 v{vX4}, 12, v{vR}')
    e(f'v_lshrrev_b32 v{vR}, 5, v0')
    e(f'v_lshl_add_u32 v{vX4}, v{vR}, 17, v{vX4}')
    e(f'v_and_b32 v{vR}, 3, v0')
    e(f'v_lshl_add_u32 v{vX4}, v{vR}, 4, v{vX4}')
    e(f'v_lshlrev_b32 v{vOut}, 2, v{vR}')
    e(f'v_bfe_u32 v{vR}, v0, 2, 1')
    e(f'v_lshl_add_u32 v{vOut}, v{vR}, 5, v{vOut}')
    e(f'v_bfe_u32 v{vR}, v0, 3, 1')
    e(f'v_lshl_add_u32 v{vOut}, v{vR}, 1, v{vOut}')
    e(f's_bfe_u32 s{sT0}, s{sH}, 0x20001'); e(f's_lshl_b32 s{sOo}, s{sT0}, 11')
    e(f's_lshr_b32 s{sT0}, s{sH}, 3'); e(f's_lshl_b32 s{sT0}, s{sT0}, 6'); e(f's_add_u32 s{sOo}, s{sOo}, s{sT0}')
    e(f's_and_b32 s{sT0}, s{sH}, 1'); e(f's_lshl_b32 s{sT0}, s{sT0}, 4'); e(f's_add_u32 s{sOo}, s{sOo}, s{sT0}')
    e(f's_bfe_u32 s{sT0}, s{sH}, 0x20002'); e(f's_lshr_b32 s{sT2}, s{sH}, 4')
    e(f's_lshl_b32 s{sT1}, s{sJ}, 1'); e(f's_or_b32 s{sT1}, s{sT1}, s{sT2}')
    e(f's_xor_b32 s{sT1}, s{sT1}, s{sT0}'); e(f's_lshl_b32 s{sT1}, s{sT1}, 8')
    e(f's_lshl_b32 s{sT0}, s{sT0}, 15'); e(f's_add_u32 s{sT0}, s{sT0}, s{sT1}')
    e(f's_and_b32 s{sT1}, s{sH}, 3'); e(f's_lshl_b32 s{sT1}, s{sT1}, 6')
    e(f's_add_u32 s{sX4a}, s{sT0}, s{sT1}')
    if fast: e(f's_add_u32 s{sX4a}, s{sX4a}, {YF}')
    e(f's_add_u32 s{sX4b}, s{sX4a}, 0x40000')
    e(f's_lshl_b32 s{sT1}, s{sJ}, 8'); e(f's_add_u32 s{sOo}, s{sOo}, s{sT1}')
    e('s_branch L_rdone')
    e('L_notleader:')
    if pads == 2:
        e(f's_cmp_eq_u32 s{sW}, 3'); e('s_cbranch_scc1 L_padtop')
        e('L_padret2:')
    e(f'v_mov_b32 v{vX4}, 0'); e(f'v_mov_b32 v{vOut}, 0')
    if_class('L_round0', 1)
    if not qflag: e('s_barrier')
    e('s_branch L_rdone')
    e('L_round0:')
    if shA and not nearB:
        e(f's_mov_b32 s{sCnt}, {shA}')
        probe_loop()
    e('L_round:')
    if not qflag:
        e(f's_cmp_lg_u32 s{sRd}, 2'); e('s_cbranch_scc1 L_rnb')
        e('s_barrier')
        e('L_rnb:')
    e(f's_lshl_b32 s{sT0}, s{sRd}, 3'); e(f's_lshr_b32 s{sCnt}, {sum(v << (8 * r) for r, v in enumerate(shots))}, s{sT0}'); e(f's_and_b32 s{sCnt}, s{sCnt}, 0xff')
    probe_loop()
    evidence(vR, 1, 3, sE, 'L_rnext')
    e('L_rnext:')
    e('s_mov_b64 exec, -1')
    e(f's_add_u32 s{sRd}, s{sRd}, 1')
    probe_setup()
    e(f's_cmp_lt_u32 s{sRd}, 4'); e('s_cbranch_scc1 L_round')
    e('L_rdone:')
    e(f's_lshl_b32 s{sT0}, s{sSide}, 1')
    e(f'v_and_or_b32 v{vR}, v{vG}, 1, s{sT0}')
    e(f'v_xor_b32 v{vR+1}, s{sW}, v{vR}')
    e(f'v_lshlrev_b32 v{vX3}, 8, v{vR+1}')
    e(f'v_lshl_add_u32 v{vX3}, v{vR}, 15, v{vX3}')
    e(f'v_lshrrev_b32 v{vR+1}, 5, v0')
    e(f'v_lshl_add_u32 v{vX3}, v{vR+1}, 10, v{vX3}')
    e(f'v_lshl_add_u32 v{vX3}, v{vC}, 4, v{vX3}')
    e(f'v_and_b32 v{vR}, 31, v0')
    e(f'v_lshlrev_b32 v{vA}, 3, v{vR}')
    e(f'v_lshl_add_u32 v{vA}, v{vR+1}, 2, v{vA}')
    e(f's_lshl_b32 s{sT0}, s{sW}, 8')
    e(f'v_add_u32 v{vA}, s{sT0}, v{vA}')
    e(f's_and_b32 s{sT1}, s{sH}, 15'); e(f's_lshl_b32 s{sX3}, s{sT1}, 11')
    e(f's_lshr_b32 s{sT1}, s{sH}, 4'); e(f's_lshl_b32 s{sT1}, s{sT1}, 17'); e(f's_add_u32 s{sX3}, s{sX3}, s{sT1}')
    e(f's_add_u32 s{sX3}, s{sX3}, {OP}')
    e(f'v_lshl_add_u32 v{vA3}, v{vG}, 15, v{vL}')
    e(f's_lshl_b32 s{sT0}, s{sSide}, 2'); e(f's_or_b32 s{sT0}, s{sT0}, s{sB}'); e(f's_lshl_b32 s{sT0}, s{sT0}, 8')
    e(f'v_xor_b32 v{vA3}, s{sT0}, v{vA3}')
    e(f's_add_u32 s{sE}, s{sE}, 1')
    mktag(vTg2, sE, sT0)
    xcc(sPa)
    e(f'v_xor_b32 v{vTg2+3}, s{sPa}, v{vTg2+3}')
    e(f's_mov_b32 s12, s{sOut}'); e(f's_mov_b32 s13, s{sOut+1}'); e('s_mov_b32 s14, 8192')
    e(f's_mov_b32 s{sSpin}, {SPIN}')
    e(f's_cmp_lg_u32 s{sW}, s{sB}')
    e('s_waitcnt lgkmcnt(0)')
    e('s_barrier')
    e('s_cbranch_scc1 L_x3first')
    for w in range(4): e(f'ds_read_b128 v[{vR + 4*w}:{vR + 4*w + 3}], v{vL} offset:{L_O + w * 1024}')
    e('s_waitcnt lgkmcnt(2)')
    for r in range(4): e(f'v_add_f32 v{vD + r}, v{vR + r}, v{vR + 4 + r}')
    e('s_waitcnt lgkmcnt(0)')
    for r in range(4): e(f'v_add_f32 v{vR + 8 + r}, v{vR + 8 + r}, v{vR + 12 + r}')
    for r in range(4): e(f'v_add_f32 v{vD + r}, v{vD + r}, v{vR + 8 + r}')
    for r in range(4): tag(vD + r, vTg)
    e(f'buffer_store_dwordx4 v[{vD}:{vD+3}], v{vA3}, s[8:11], s{sX3} offen sc1')
    for r in range(4): e(f'v_xor_b32 v{vR + r}, v{vD + r}, v{vTg + r}')
    e(f's_cmp_eq_u32 s{sSide}, 0')
    e('s_cselect_b32 exec_lo, 0, -1'); e('s_cselect_b32 exec_hi, -1, 0')
    e('L_x3first:')
    e(f'buffer_load_dwordx4 v[{vR}:{vR+3}], v{vX3}, s[8:11], s{sX3} offen sc1')
    e('s_barrier')
    e('s_branch L_x3w')
    e('L_x3spin:')
    if half3:
        e('s_cmp_eq_u32 vcc_lo, 0'); e('s_cselect_b32 exec_lo, 0, exec_lo')
        e('s_cmp_eq_u32 vcc_hi, 0'); e('s_cselect_b32 exec_hi, 0, exec_hi')
    if s3: e(f's_sleep {s3}')
    e(f'buffer_load_dwordx4 v[{vR}:{vR+3}], v{vX3}, s[8:11], s{sX3} offen sc1')
    e('L_x3w:')
    e(f's_sub_u32 s{sSpin}, s{sSpin}, 1'); e('s_cbranch_scc1 L_x3out')
    e('s_waitcnt vmcnt(0)')
    check(range(vR, vR + 4), vR + 4, vTg)
    e('s_cbranch_vccnz L_x3spin')
    e('L_x3out:')
    e('s_mov_b64 exec, -1')
    e('s_waitcnt vmcnt(0)')
    e(f'v_permlane32_swap_b32 v{vR}, v{vR+2}')
    e(f'v_permlane32_swap_b32 v{vR+1}, v{vR+3}')
    e(f's_cmp_lg_u32 s{sW}, 0')
    e(f'v_add_f32 v{vR}, v{vR}, v{vR+2}')
    e(f'v_add_f32 v{vR+1}, v{vR+1}, v{vR+3}')
    e(f'v_cvt_pk_bf16_f32 v{vR}, v{vR}, v{vR+1}')
    e(f'ds_write_b32 v{vA}, v{vR} offset:{L_RED}')
    e('s_waitcnt lgkmcnt(0)')
    e('s_barrier')
    e('s_cbranch_scc1 L_end')
    stamp(10)
    e('s_barrier')
    if ys0: e(f's_sleep {ys0}')
    def yload():
        for k in range(2): e(f'buffer_load_dwordx4 v[{vR + 4*k}:{vR + 4*k + 3}], v{vX4}, s[8:11], s{sX4a + k} offen sc1')
    if lazy:
        e(f's_mov_b32 s{sSpin}, {fast}')
        e('L_x4:')
        if s4: e(f's_sleep {s4}')
        yload()
        e(f's_sub_u32 s{sSpin}, s{sSpin}, 1'); e('s_cbranch_scc1 L_x4s')
        e('s_waitcnt vmcnt(0)')
        check(range(vR, vR + 8), vR + 8, vTg2)
        e('s_cbranch_vccnz L_x4')
        e('L_x4x:')
    elif fast:
        e(f's_mov_b32 s{sSpin}, {SPIN}')
        e('L_x4:')
        yload()
        e(f's_cmp_eq_u32 s{sSpin}, {SPIN - fast}')
        e(f's_cselect_b32 s{sT0}, {YF}, 0')
        e(f's_sub_u32 s{sX4a}, s{sX4a}, s{sT0}'); e(f's_sub_u32 s{sX4b}, s{sX4b}, s{sT0}')
        e(f's_sub_u32 s{sSpin}, s{sSpin}, 1'); e('s_cbranch_scc1 L_x4x')
        e('s_waitcnt vmcnt(0)')
        check(range(vR, vR + 8), vR + 8, vTg2)
        e('s_cbranch_vccnz L_x4')
        e('L_x4x:')
        e('s_waitcnt vmcnt(0)')
    else:
        spin(SPIN, yload, 'vmcnt(0)', lambda: check(range(vR, vR + 8), vR + 8, vTg2))
    for r in range(4): e(f'v_add_f32 v{vR + r}, v{vR + r}, v{vR + 4 + r}')
    e(f'v_add_f32_dpp v{vR+4}, v{vR}, v{vR} row_ror:8 row_mask:0xf bank_mask:0x3')
    e(f'v_add_f32_dpp v{vR+5}, v{vR+1}, v{vR+1} row_ror:8 row_mask:0xf bank_mask:0x3')
    e('s_nop 0')
    e(f'v_add_f32_dpp v{vR+4}, v{vR+2}, v{vR+2} row_ror:8 row_mask:0xf bank_mask:0xc')
    e(f'v_add_f32_dpp v{vR+5}, v{vR+3}, v{vR+3} row_ror:8 row_mask:0xf bank_mask:0xc')
    e('s_nop 0')
    e(f'v_add_f32_dpp v{vR}, v{vR+4}, v{vR+4} row_shl:4 row_mask:0xf bank_mask:0x5')
    e('s_nop 1')
    e(f'v_add_f32_dpp v{vR}, v{vR+5}, v{vR+5} row_shr:4 row_mask:0xf bank_mask:0xa')
    for sw in ('v_permlane16_swap_b32', 'v_permlane32_swap_b32'):
        e(f'v_mov_b32 v{vR+1}, v{vR}'); e('s_nop 1'); e(f'{sw} v{vR+1}, v{vR}'); e('s_nop 0')
        e(f'v_add_f32 v{vR}, v{vR}, v{vR+1}')
    e(f'v_cvt_pk_bf16_f32 v{vR}, v{vR}, v{vR}')
    e('s_mov_b64 exec, 0xffff')
    e(f'buffer_store_short v{vR}, v{vOut}, s[12:15], s{sOo} offen {outp}')
    stamp(12)
    if diag: e('s_waitcnt vmcnt(0)')
    stamp(7)
    flush_stamps([5, 6, 7, 8, 10, 12])
    if chan == 'end':
        e('s_memrealtime s[86:87]'); e('s_waitcnt lgkmcnt(0)'); e('s_sub_u32 s86, s86, s80'); e('s_mul_i32 s86, s86, 10')
        e('s_add_u32 s86, s86, 20000')
        e('L_chan:'); e('s_memrealtime s[82:83]'); e('s_waitcnt lgkmcnt(0)'); e('s_sub_u32 s82, s82, s80')
        e('s_cmp_lt_u32 s82, s86'); e('s_cbranch_scc1 L_chan')
    e('s_cmp_lg_u32 s2, 0')
    e('s_cbranch_scc1 L_end')
    e('s_mov_b64 exec, 1')
    e(f'v_mov_b32 v{vR+2}, s{sE}')
    e(f's_mov_b32 s{sT0}, {EP}')
    e(f'buffer_store_dword v{vR+2}, off, s[8:11], s{sT0}')
    e('L_end:')
    e('s_endpgm')
    if lazy:
        e('L_x4s:')
        for t in range(2): e(f'ds_read_b128 v[{vD + 4*t}:{vD + 4*t + 3}], v{vL} offset:{L_Y + t * 1024}')
        e('s_waitcnt lgkmcnt(0)')
        for t in range(2): e(f'v_xor_b32 v{vD + 4*t + 3}, s{sPa}, v{vD + 4*t + 3}')
        e(f'v_xor_b32 v{vA3}, 0x100, v{vA2}')
        e(f'buffer_store_dwordx4 v[{vD}:{vD+3}], v{vA2}, s[8:11], s{sDst} offen sc1')
        e(f'buffer_store_dwordx4 v[{vD+4}:{vD+7}], v{vA3}, s[8:11], s{sDst} offen sc1')
        def flipload():
            e(f's_xor_b32 s{sX4a}, s{sX4a}, {YF}'); e(f's_xor_b32 s{sX4b}, s{sX4b}, {YF}')
            e(f'v_xor_b32 v{vTg2+3}, s{sPa}, v{vTg2+3}')
            yload()
        e('s_waitcnt vmcnt(0)')
        spin(SPIN, flipload, 'vmcnt(0)', lambda: check(range(vR, vR + 8), vR + 8, vTg2))
        e('s_branch L_x4x')
    e('.section .rodata,"a"')
    e('.p2align 6')
    e(f'.amdhsa_kernel {NAME}_kernel')
    e('  .amdhsa_next_free_vgpr 256')
    e('  .amdhsa_next_free_sgpr 102')
    e('  .amdhsa_accum_offset 256')
    e('  .amdhsa_group_segment_fixed_size 0')
    e('  .amdhsa_kernarg_size 104')
    e('  .amdhsa_user_sgpr_count 2')
    e('  .amdhsa_user_sgpr_kernarg_segment_ptr 1')
    e('  .amdhsa_system_sgpr_workgroup_id_x 1')
    e('  .amdhsa_float_denorm_mode_32 3')
    e('.end_amdhsa_kernel')
    if ool:
        for lb in ('L_late2', 'L_late1', 'L_nc3'):
            if lb + ':' not in L: continue
            a = L.index(f's_cbranch_scc1 {lb}'); b = L.index(lb + ':'); c = L.index('L_service:')
            L[:] = L[:a] + [f's_cbranch_scc0 {lb}o'] + L[b:c] + [f'{lb}o:'] + L[a + 1:b] + [f's_branch {lb}'] + L[c:]
    if front:
        a = L.index('L_service:'); b = L.index('L_service2:'); c = L.index('s_cbranch_scc1 L_service')
        L[:] = L[:c] + ['s_cbranch_scc0 L_stream'] + L[a + 1:b] + ['s_branch L_service2', 'L_stream:'] + L[c + 1:a] + L[b:]
    i0 = L.index('L_kbody:'); i1 = L.index('L_service2:' if front else 'L_service:')
    spots = [i for i in range(i0, i1) if L[i].startswith('s_branch ')]
    if pads == 0: return '\n'.join(L) + '\n'
    if pads == 2:
        def size(x):
            if x.endswith(':') or x.startswith(('.', ';')): return 0
            if x.startswith(('buffer_', 'global_', 'ds_', 'v_')) or '0x' in x: return 8
            return 5
        j0 = L.index('L_late1:' if nearB else 'L_late0:'); j1 = L.index('L_end:')
        out = L[:j0]; acc = 0; k = 0
        for i in range(j0, len(L)):
            x = L[i]; out.append(x); acc += size(x)
            if i < j1 - 1 and (acc > padgap or (acc > padgap - 250 and x.startswith(('s_branch ', 's_endpgm')))):
                free = x.startswith(('s_branch ', 's_endpgm'))
                if not free: out.append(f's_branch L_pads{k}')
                out.append(f'L_padx{k}:'); out.append(f's_branch L_padx{k - 1}' if k else 's_branch L_padret2')
                if not free: out.append(f'L_pads{k}:')
                k += 1; acc = 8
        return '\n'.join(out).replace('L_padtop', f'L_padx{k - 1}') + '\n'
    out = []
    for i, x in enumerate(L):
        out.append(x)
        if i in spots:
            k = spots.index(i)
            out.append(f'L_pad{k}:')
            out.append(f's_branch L_pad{k + 4}' if k + 4 < len(spots) else 's_branch L_padret')
    return '\n'.join(out) + '\n'

if __name__ == '__main__':
    import ast
    for spec in sys.argv[1:]:
        name, _, opts = spec.partition(':')
        kw = {}
        for o in filter(None, opts.split(',')):
            k_, v_ = o.split('=')
            v_ = v_.replace('/', ',')
            try: kw[k_] = ast.literal_eval(v_)
            except Exception: kw[k_] = v_
        open(name, 'w').write(gen(**kw))
```

```python
import sys, math, struct
NAME = 'concat_heads__gqa_block_cached__sliding_block_cached__decode'

def f32(x): return '0x%08x' % struct.unpack('<I', struct.pack('<f', x))[0]
def br4(i): return ((i & 1) << 3) | ((i & 2) << 1) | ((i & 4) >> 1) | ((i & 8) >> 3)
def mask64(ns): return sum(1 << n for n in ns)

QP = 0x000000
YF = 0x080000
OP = 0x100000
ST = 0x140000
EP = 0x150000
RC = 0x160000
EV = 0x180000
PP = 0x200000
WS_USED = 0x600000
STAMP = 0x40000000
L_Q = 0
L_CNT = 512; L_LVL = 516
L_CN2 = 528
L_EV = 544
L_Z = 560
L_KAP = 576
L_QF = 592
L_ST = 1024
L_F = 1280
L_RED = 2048
L_O = L_RED + 8192
L_Y = L_O + 4096
LDS_BYTES = L_Y + 8192
SPIN = 1 << 17
DPPF = 'row_mask:0xf bank_mask:0xf'

HEADER = """
Kernarg layout (104 bytes, pointers only, base s[0:1]):
    0 A_x (4,1,512)   8 A_k (4,32,8192,128)  16 A_v   24 A_wq (512,4096)  32 A_wo (4096,512)
   40 B_x            48 B_k                  56 B_v   64 B_wq             72 B_wo
   80 d_out (4,1,1024) bf16   88 d_debug (unused)   96 d_ws
Generated by a script; everything below is hand-designed.

One launch, 256 workgroups (one per CU) x 8 waves.  wg = head*8 + half*4 + batch.
A pair (two halves) shares the keys of one (batch, head) in both branches.
Waves 0-3 stream 40 items of 16 KiB each: K_B, V_B, K_A, V_A, with non-temporal loads.
  scores: v_dot2_f32_bf16 + DPP transpose-reduce; p = exp2(s*c - max*c) per segment (true max);
  P.V: one 16x16x32 MFMA per load with p spread over a diagonal A operand.
  The number of loads in flight is kept near the bandwidth knee and follows the arrival rank
  at a few checkpoints, so that all workgroups finish together.
  At the end these waves load their slice of wo and apply it.
Waves 4-7 compute a slice of q = x.wq, combine softmax statistics, gather partial results.
One pair in eight splits its keys by memory die (found by timing a few single loads; a wrong
  answer only costs speed), which keeps the die-to-die link below saturation.
Hand-offs go through d_ws.  Every handed-off word carries this launch's epoch (the word found at
  d_ws+0x150000, plus 1 or 2), which readers strip again; all waits are bounded.
"""

def gen(DB=6, early=6, rc=(5, 6, 7), rcv=(5, 5.5, 6.5), xlo=4.5, nmap=(4, 0, 2), lvl0=0, lvlc=1, th=(3, 6),
        cks=(6, 10, 14, 18, 22, 26, 29, 32, 34, 36), mix=3, rcat=7, endb=2, prek=2, cls=(8, 1), nearB=1, up=(), uplvl=2, dn=(), dnlvl=0, kfull=0, qs=0, qs0=0, afirst=1, xfirst=0, ys0=0, outp='', ylay=0, emap=None, enmap=None, dmax=15, bsh=None, front=1, burst=0, abl=0, qflag=1, pb=0, DC=7, DN=8, selfp=2, clip0=1500, pfirst=1, l2w=0, pads=1, padgap=950, ool=1, fast=48, preown=0, sdelay=0, fpol='', lazy=1, xfake=0, s3=0, s4=0, half3=0, wpre=0, wl=4,
        sh0=2, shots=(2, 8, 12, 16), shA=4, clip=200, pmin=400, fat=36, diag=False, chan=None, flip=0):
    L = []; e = L.append
    outp = outp.replace('_', ' ')
    cnt = [0]
    def lab(p):
        cnt[0] += 1
        return f'L_{p}{cnt[0]}'
    for line in HEADER.strip('\n').split('\n'): e(('; ' + line).rstrip())
    e(f'; @launch grid=(256,1,1) block=(512,1,1) lds={LDS_BYTES}')
    e('.amdgcn_target "amdgcn-amd-amdhsa--gfx950"')
    e('.text')
    e(f'.globl {NAME}_kernel')
    e('.p2align 8')
    e(f'.type {NAME}_kernel,@function')
    e(f'{NAME}_kernel:')
    sAx, sAk, sAv, sAwq, sAwo, sBx, sBk, sBv = 16, 18, 20, 22, 24, 26, 28, 30
    sBwq, sBwo, sOut, sDbg, sWs = 32, 34, 36, 38, 40
    sW, sH, sJ, sB, sSide = 42, 43, 44, 45, 46
    sU = 3
    sT0, sT1, sT2 = 47, 48, 49
    sCls, sSpin = 51, 52
    sE, sTag, sNF = 74, 75, 76
    e('s_cmp_ge_u32 s2, 256')
    e('s_cbranch_scc1 L_end')
    e('s_load_dwordx16 s[16:31], s[0:1], 0')
    e('s_load_dwordx8 s[32:39], s[0:1], 64')
    e('s_load_dwordx2 s[40:41], s[0:1], 96')
    if diag or chan: e('s_memrealtime s[80:81]')
    e('v_lshrrev_b32 v1, 6, v0')
    e('v_and_b32 v0, 63, v0')
    e(f'v_readfirstlane_b32 s{sW}, v1')
    e(f's_lshr_b32 s{sH}, s2, 3')
    e(f's_and_b32 s{sJ}, s2, 7')
    e(f's_and_b32 s{sU}, s2, 3')
    if bsh is None:
        e(f's_mov_b32 s{sB}, s{sU}')
    else:
        e(f's_lshr_b32 s{sB}, s2, {3 + bsh}'); e(f's_add_u32 s{sB}, s{sB}, s2'); e(f's_and_b32 s{sB}, s{sB}, 3')
    e(f's_lshr_b32 s{sSide}, s{sJ}, 2')
    e(f's_mul_i32 s{sT0}, s{sU}, {max(1, cls[0] // 4)}'); e(f's_add_u32 s{sT0}, s{sT0}, s{sH}')
    e(f's_and_b32 s{sT0}, s{sT0}, {cls[0] - 1}')
    e(f's_cmp_lt_u32 s{sT0}, {cls[1]}')
    e(f's_cselect_b32 s{sCls}, 1, 0')
    e('s_mov_b32 s7, 0x20000')
    e('s_mov_b32 s11, 0x20000')
    e(f's_mov_b32 s10, {WS_USED if not diag else 0x41000000}')
    e(f's_mov_b32 s{sNF}, 0xffffff00')
    e(f's_cmp_ge_u32 s{sW}, 4')
    e('s_cbranch_scc1 L_service')

    def stamp(idx, only_wave=None):
        if not diag: return
        l = lab('st')
        if only_wave is not None:
            e(f's_cmp_lg_u32 s{sW}, {only_wave}'); e(f's_cbranch_scc1 {l}')
        e('s_memrealtime s[82:83]'); e('s_waitcnt lgkmcnt(0)')
        e(f'v_writelane_b32 v254, s82, {idx}'); e(f'v_writelane_b32 v255, s83, {idx}')
        e(f'{l}:')
    def flush_stamps(idxs):
        if not diag: return
        l = lab('fw')
        e(f'{l}:'); e('s_sleep 32'); e('s_memrealtime s[82:83]'); e('s_waitcnt lgkmcnt(0)'); e('s_sub_u32 s82, s82, s80')
        e('s_cmp_lt_u32 s82, 11000'); e(f's_cbranch_scc1 {l}')
        e('s_lshl_b32 s84, s2, 7'); e(f's_add_u32 s84, s84, {STAMP}')
        e('s_mov_b64 exec, -1'); e('v_lshlrev_b32 v253, 3, v0'); e(f's_mov_b64 exec, {mask64(idxs)}')
        e('buffer_store_dwordx2 v[254:255], v253, s[8:11], s84 offen')
    def if_class(target, want):
        e(f's_cmp_eq_u32 s{sCls}, {want}'); e(f's_cbranch_scc1 {target}')
    def load_epoch():
        e(f's_mov_b32 s{sE}, {EP}')
        e(f's_load_dword s{sE}, s[{sWs}:{sWs+1}], s{sE}')
    def mktag(vTag, sEp, tmp):
        for k in range(4):
            if k:
                e(f's_lshr_b32 s{tmp}, s{sEp}, {8 * k}'); e(f's_xor_b32 s{tmp}, s{tmp}, s{sEp}'); e(f's_and_b32 s{tmp}, s{tmp}, 0xff')
            else:
                e(f's_and_b32 s{tmp}, s{sEp}, 0xff')
            e(f'v_mov_b32 v{vTag + k}, s{tmp}')
    def tag(r, vTag): e(f'v_and_or_b32 v{r}, v{r}, s{sNF}, v{vTag + (r & 3)}')
    def xcc(dst):
        e(f's_getreg_b32 s{dst}, hwreg(HW_REG_XCC_ID, 0, 4)')
        if xfake: e(f's_lshr_b32 s{dst}, s2, 7')
    def check(regs, t, vTag):
        regs = list(regs)
        assert regs[0] % 4 == 0
        for r in regs: e(f'v_xor_b32 v{r}, v{r}, v{vTag + (r & 3)}')
        e(f'v_or3_b32 v{t}, v{regs[0]}, v{regs[1]}, v{regs[2]}')
        rest = regs[3:]
        while len(rest) >= 2:
            e(f'v_or3_b32 v{t}, v{t}, v{rest[0]}, v{rest[1]}'); rest = rest[2:]
        e(f'v_bitop3_b32 v{t}, v{t}, v{rest[0]}, s{sNF} bitop3:0x54')
        e(f'v_cmp_ne_u32 vcc, 0, v{t}')
    def spin(n, loads, wait, test, again='vccnz', sleep=0):
        l = lab('sp')
        e(f's_mov_b32 s{sSpin}, {n}')
        e(f'{l}:')
        if sleep: e(f's_sleep {sleep}')
        loads()
        e(f's_sub_u32 s{sSpin}, s{sSpin}, 1'); e(f's_cbranch_scc1 {l}x')
        e(f's_waitcnt {wait}')
        test()
        e(f's_cbranch_{again} {l}')
        e(f'{l}x:')
        e(f's_waitcnt {wait}')
    def rowred(op, r):
        for ctl in ('quad_perm:[1,0,3,2]', 'quad_perm:[2,3,0,1]', 'row_half_mirror', 'row_mirror'):
            e('s_nop 1')
            e(f'{op}_dpp v{r}, v{r}, v{r} {ctl} {DPPF}')
    def allred(op, r, tmp):
        rowred(op, r)
        for sw in ('v_permlane16_swap_b32', 'v_permlane32_swap_b32'):
            e(f'v_mov_b32 v{tmp}, v{r}'); e('s_nop 1'); e(f'{sw} v{tmp}, v{r}'); e('s_nop 1')
            e(f'{op} v{r}, v{r}, v{tmp}')
    sE0, sE1, sPa, sCnt, sTm, sRd, sPr, sRn = 92, 93, 94, 95, 96, 100, 101, 69
    def probe_loop(srd='s[12:15]'):
        l = lab('pr')
        e(f'{l}:')
        e(f's_memtime s[{sTm}:{sTm+1}]')
        e(f's_and_b32 s{sT2}, s{sRn}, 0x3df80')
        e(f's_xor_b32 s{sT2}, s{sT2}, s{sPa}')
        e('s_waitcnt lgkmcnt(0)')
        e(f's_buffer_load_dword s{sPr}, {srd}, s{sT2}')
        e('s_waitcnt lgkmcnt(0)')
        e(f's_memtime s[{sTm+2}:{sTm+3}]')
        e('s_waitcnt lgkmcnt(0)')
        e(f's_sub_u32 s{sT0}, s{sTm+2}, s{sTm}')
        e(f's_cmp_lt_u32 s{sT0}, {pmin}')
        e(f's_cselect_b32 s{sT0}, 0x10000, s{sT0}')
        e(f's_bitcmp1_b32 s{sPa}, 13')
        e(f's_cselect_b32 s{sT1}, 0x10000, s{sT0}')
        e(f's_cselect_b32 s{sT0}, s{sT0}, 0x10000')
        e(f's_min_u32 s{sE0}, s{sE0}, s{sT1}')
        e(f's_min_u32 s{sE1}, s{sE1}, s{sT0}')
        e(f's_xor_b32 s{sPa}, s{sPa}, 0x2000')
        e(f's_add_u32 s{sRn}, s{sRn}, s{sTm+2}')
        e(f's_mul_i32 s{sRn}, s{sRn}, 0x9e3779b1')
        e(f's_lshr_b32 s{sT0}, s{sRn}, 14')
        e(f's_xor_b32 s{sRn}, s{sRn}, s{sT0}')
        e(f's_sub_u32 s{sCnt}, s{sCnt}, 1')
        e(f's_cmp_lg_u32 s{sCnt}, 0')
        e(f's_cbranch_scc1 {l}')
    def evidence(vR, lead, nv, sE, skip, clip=clip):
        e(f's_sub_i32 s{sE0}, s{sE0}, s{sE1}'); e(f's_min_i32 s{sE0}, s{sE0}, {clip}'); e(f's_max_i32 s{sE0}, s{sE0}, {-clip}')
        e(f's_lshl_b32 s{sT0}, s{sRd}, 2')
        e('s_mov_b64 exec, 1')
        e(f'v_mov_b32 v{vR}, s{sT0}'); e(f'v_mov_b32 v{vR+1}, s{sE0}'); e(f'v_mov_b32 v{vR+2}, 1')
        e(f'ds_add_u32 v{vR}, v{vR+1} offset:{L_EV}')
        e(f'ds_add_u32 v{vR}, v{vR+2} offset:{L_CN2}')
        e(f's_cmp_lg_u32 s{sW}, {lead}'); e(f's_cbranch_scc1 {skip}')
        spin(SPIN * 8, lambda: e(f'ds_read_b32 v{vR+2}, v{vR} offset:{L_CN2}'), 'lgkmcnt(0)', lambda: e(f'v_cmp_ne_u32 vcc, {nv}, v{vR+2}'))
        e(f'ds_read_b32 v{vR+4}, v{vR} offset:{L_EV}')
        for r in range(5, 8): e(f'v_mov_b32 v{vR+r}, s{sE}')
        e(f's_lshl_b32 s{sT0}, s2, 8'); e(f's_lshl_b32 s{sT1}, s{sRd}, 6'); e(f's_add_u32 s{sT0}, s{sT0}, s{sT1}')
        e(f's_add_u32 s{sT0}, s{sT0}, {EV}'); e(f's_xor_b32 s{sT1}, s{sT0}, 0x400')
        e('s_waitcnt lgkmcnt(0)')
        e(f'buffer_store_dwordx4 v[{vR+4}:{vR+7}], off, s[8:11], s{sT0} sc1')
        def evtest():
            e(f'v_xor_b32 v{vR+9}, s{sE}, v{vR+9}'); e(f'v_xor_b32 v{vR+10}, s{sE}, v{vR+10}')
            e(f'v_or_b32 v{vR+9}, v{vR+9}, v{vR+10}')
            e(f'v_cmp_ne_u32 vcc, 0, v{vR+9}')
        spin(SPIN, lambda: e(f'buffer_load_dwordx4 v[{vR+8}:{vR+11}], off, s[8:11], s{sT1} sc1'), 'vmcnt(0)', evtest)
        e(f'v_sub_u32 v{vR+2}, v{vR+4}, v{vR+8}')
        e(f'v_sub_u32 v{vR+3}, v{vR+8}, v{vR+4}')
        e(f's_cmp_eq_u32 s{sSide}, 0')
        e('s_cselect_b64 vcc, -1, 0')
        e(f'v_cndmask_b32 v{vR+2}, v{vR+3}, v{vR+2}, vcc')
        if diag:
            e(f's_lshl_b32 s84, s2, 4'); e(f's_add_u32 s84, s84, {STAMP + 0x18000}')
            e(f'buffer_store_dword v{vR+2}, v{vR}, s[8:11], s84 offen')
        e(f'v_cmp_lt_i32 vcc, 0, v{vR+2}')
        e('s_nop 1')
        e(f'v_cndmask_b32 v{vR+2}, 0, 1, vcc')
        e(f'v_xor_b32 v{vR+2}, s{sSide}, v{vR+2}')
        e(f'ds_write_b32 v{vR}, v{vR+2} offset:{L_KAP}')
    def probe_seed(w0):
        e(f's_lshl_b32 s{sT0}, s{sB}, 5'); e(f's_add_u32 s{sT0}, s{sT0}, s{sH}'); e(f's_lshl_b32 s{sPa}, s{sT0}, 21')
        e(f's_lshl_b32 s{sT0}, s{sSide}, 18'); e(f's_add_u32 s{sPa}, s{sPa}, s{sT0}')
        e(f's_sub_u32 s{sT0}, s{sW}, {w0}'); e(f's_mul_i32 s{sT0}, s{sT0}, 0x82000'); e(f's_and_b32 s{sT0}, s{sT0}, 0x182000'); e(f's_add_u32 s{sPa}, s{sPa}, s{sT0}')
        e(f's_memtime s[{sTm}:{sTm+1}]'); e('s_waitcnt lgkmcnt(0)')
        e(f's_mul_i32 s{sRn}, s{sTm}, 0x9e3779b1'); e(f's_lshr_b32 s{sRn}, s{sRn}, 9')
    def smask(s, ns):
        m = mask64(ns)
        e(f's_mov_b32 s{s}, 0x{m & 0xffffffff:08x}'); e(f's_mov_b32 s{s+1}, 0x{m >> 32:08x}')

    X0, X1, X2 = 60, 124, 188
    vOff = 2; vL16 = 6; vPd = 7; vQ = 8; vS = 12; vT = 20; vMask = 44; vAcc = 48; vAccB = 52; vP = 56
    vPA = 124; vMl = 128; vF = 132; vLv = 156; vZz = 157; vPat = 160; vPs = 164; vPPa = 168
    vW = 124; vWa = 170; vYa = 171; vTg2 = 248; vYw = 173; vYr = 174; vBt = 176; vAo = 208; vDD = 224; vAr = 244
    sLvl = 50; sOff, sN = 53, 54; sKp = 55; sCk, sRc, sRk = 56, 58, 59; sM3, sM4 = 60, 62; sC = 64; sIsC = 65
    sKV = 66; sXB = 67; sMap = 68; sHk = 70; sWb, sSeg = 72, 73; sX = 77; sVk = 78; sLh = 86
    sYd = 12; s7f = 13; sPPa = 14; sPPb = 15
    T = vT
    e(f'v_lshlrev_b32 v{vL16}, 4, v0')
    e(f'v_bfe_u32 v{vOff+1}, v0, 4, 1')
    e(f'v_lshl_add_u32 v{vOff}, v{vOff+1}, 15, v{vL16}')
    e(f'v_lshrrev_b32 v{vOff+1}, 5, v0')
    e(f'v_lshl_add_u32 v{vOff}, v{vOff+1}, 13, v{vOff}')
    e(f's_lshl_b32 s{sT0}, s{sW}, 8'); e(f's_lshl_b32 s{sT1}, s{sSide}, 13'); e(f's_or_b32 s{sT0}, s{sT0}, s{sT1}')
    e(f'v_xor_b32 v{vOff}, s{sT0}, v{vOff}')
    for j in range(1, 4): e(f'v_xor_b32 v{vOff+j}, {(j << 8) | ((j >> 1) << 16)}, v{vOff}')
    e(f's_lshl_b32 s{sT0}, s{sB}, 5'); e(f's_add_u32 s{sT0}, s{sT0}, s{sH}'); e(f's_lshl_b32 s{sWb}, s{sT0}, 21')
    e(f's_and_b32 s{sT0}, s{sW}, 1'); e(f's_lshl_b32 s{sT0}, s{sT0}, 12'); e(f's_add_u32 s{sWb}, s{sWb}, s{sT0}')
    e(f's_lshr_b32 s{sT0}, s{sW}, 1'); e(f's_lshl_b32 s{sT0}, s{sT0}, 14'); e(f's_add_u32 s{sWb}, s{sWb}, s{sT0}')
    e(f's_add_u32 s{sOff}, s{sWb}, 0x180000')
    e('s_mov_b32 s6, 0x10000000')
    e(f's_mov_b32 s{sKp}, 0')
    if nearB: e(f's_cmp_eq_u32 s{sCls}, 1')
    e('s_waitcnt lgkmcnt(0)')
    e(f's_mov_b32 s4, s{sBk}'); e(f's_mov_b32 s5, s{sBk+1}')
    def issue(buf, i):
        v = buf + 4 * i
        e(f'buffer_load_dwordx4 v[{v}:{v+3}], v{vOff + (i >> 2)}, s[4:7], s{sOff} offen offset:{(i & 3) * 1024} nt')
    def kappa(rnd, dst):
        e(f'v_mov_b32 v{T+1}, 0')
        spin(SPIN * 8, lambda: e(f'ds_read_b32 v{T}, v{T+1} offset:{L_KAP + 4 * rnd}'), 'lgkmcnt(0)',
             lambda: e(f'v_cmp_eq_u32 vcc, -1, v{T}'))
        e(f'v_readfirstlane_b32 s{dst}, v{T}')
        e(f's_and_b32 s{dst}, s{dst}, 1')
        if flip >> rnd & 1: e(f's_xor_b32 s{dst}, s{dst}, 1')
    def go_near():
        for j in range(4): e(f'v_and_b32 v{vOff + j}, 0xffffdfff, v{vOff + j}')
    def switch(ptr, kap, base):
        e(f's_mov_b32 s4, s{ptr}'); e(f's_mov_b32 s5, s{ptr+1}')
        e(f's_lshl_b32 s{sT0}, s{kap}, 13'); e(f's_add_u32 s{sOff}, s{sWb}, s{sT0}')
        e(f's_add_u32 s{sOff}, s{sOff}, {base & 0xffffffff}')
    if nearB: e('s_cbranch_scc1 L_late0')
    for i in range(early): issue(X1, i)
    if nearB and selfp:
        e('s_branch L_late0b')
        e('L_late0:')
        e(f's_buffer_load_dword s{sPr}, s[4:7], s{sOff}')
        e('L_late0b:')
    else:
        e('L_late0:')
    load_epoch()
    e(f's_mov_b32 s8, s{sWs}'); e(f's_mov_b32 s9, s{sWs+1}')
    if diag: e('v_writelane_b32 v254, s80, 0'); e('v_writelane_b32 v255, s81, 0')
    e(f's_mov_b32 s{sM3}, 0xcccccccc'); e(f's_mov_b32 s{sM3+1}, 0xcccccccc')
    e(f's_mov_b32 s{sM4}, 0xaaaaaaaa'); e(f's_mov_b32 s{sM4+1}, 0xaaaaaaaa')
    e(f's_mov_b32 s{sC}, {f32(128 ** -0.5 * math.log2(math.e))}')
    e(f'v_and_b32 v{T}, 15, v0')
    e(f'v_lshlrev_b32 v1, 4, v{T}')
    e(f'v_and_b32 v{T+1}, 1, v0')
    e(f'v_lshlrev_b32 v{T+1}, 4, v{T+1}')
    e(f'v_mov_b32 v{T+2}, 0xffff')
    e(f'v_lshlrev_b32 v{T+2}, v{T+1}, v{T+2}')
    e(f'v_lshrrev_b32 v{T}, 1, v{T}')
    for r in range(4):
        e(f'v_cmp_eq_u32 vcc, {4 + r}, v{T}')
        e(f'v_mov_b32 v{vAcc + r}, 0')
        e(f'v_mov_b32 v{vS + r}, 0xff800000')
        e(f'v_cndmask_b32 v{vMask + r}, 0, v{T+2}, vcc')
    e(f'v_mov_b32 v{vS + 4}, 0xff800000')
    smask(sHk, [4, 7, 8, 16, 23, 24, 32, fat, 39, 40])
    smask(sVk, list(range(5, 9)) + list(range(25, 41)))
    smask(sLh, [4, 16, 24])
    if up: smask(88, up)
    if dn: smask(90, dn)
    m = mask64(cks)
    e(f's_cmp_eq_u32 s{sW}, 0')
    e(f's_cselect_b32 s{sCk}, 0x{m & 0xffffffff:08x}, 0'); e(f's_cselect_b32 s{sCk+1}, 0x{m >> 32:08x}, 0')
    e(f's_lshl_b32 s{sRc}, s{sH}, 8'); e(f's_add_u32 s{sRc}, s{sRc}, {RC}')
    e(f's_mov_b32 s{sMap}, 0x210'); e(f's_mov_b32 s{sLvl}, {lvl0}')
    e(f's_mov_b32 s{sKV}, 0'); e(f's_mov_b32 s{sX}, 0'); e(f's_mov_b32 s{sXB}, 0')
    e(f's_mov_b32 s{sN}, 4'); e(f's_mov_b32 s{sSeg}, 2')
    def selfprobe():
        probe_seed(0)
        e(f's_mov_b32 s{sE0}, 0x10000'); e(f's_mov_b32 s{sE1}, 0x10000'); e(f's_mov_b32 s{sRd}, 0'); e(f's_mov_b32 s{sCnt}, {selfp}')
        probe_loop('s[4:7]')
    if nearB and pfirst:
        if_class('L_late2', 0)
        selfprobe()
        e('L_late2:')
    e('s_barrier')
    if nearB:
        if_class('L_late1', 0)
        if selfp:
            if not pfirst: selfprobe()
            e(f's_add_u32 s{sPr}, s{sE}, 1')
            evidence(vT + 4, 0, 4, sPr, 'L_sp0', clip0)
            e('L_sp0:')
            e('s_mov_b64 exec, -1')
        kappa(0, sKp)
        go_near()
        e(f's_lshl_b32 s{sT0}, s{sKp}, 13'); e(f's_add_u32 s{sOff}, s{sOff}, s{sT0}')
        e(f's_mov_b32 s{sLvl}, {lvlc}')
        for i in range(early): issue(X1, i)
        e('L_late1:')
    def qread():
        e(f'ds_read_b32 v{vP}, v{vPd} offset:{L_QF}')
        e(f'ds_read_b128 v[{vQ}:{vQ+3}], v1 offset:{L_Q + 256}')
    k = 0
    for buf in (X1, X2, X0):
        for i in range(16):
            if k >= early:
                if qflag and k == 46:
                    e(f'v_mov_b32 v{vPd}, 0')
                    qread()
                if nearB and DN:
                    if i == 0 or k == early: e(f's_cmp_eq_u32 s{sCls}, 1')
                    e(f's_waitcnt vmcnt({DN - 1})'); e(f's_cbranch_scc1 L_pf{k}')
                if k >= max(DB, burst) and k < 48 - pb: e(f's_waitcnt vmcnt({max(DB, burst - (k - burst) // 2) - 1})')
                if nearB and DN: e(f'L_pf{k}:')
                issue(buf, i)
            k += 1
        e(f's_add_u32 s{sOff}, s{sOff}, 0x20000')
    stamp(1, 0)
    if qflag:
        e('s_waitcnt lgkmcnt(0)')
        e(f'v_cmp_ne_u32 vcc, 0, v{vP}')
        e('s_cbranch_vccz L_qok')
        spin(SPIN * 8, qread, 'lgkmcnt(0)', lambda: e(f'v_cmp_ne_u32 vcc, 0, v{vP}'))
        e('L_qok:')
    else:
        e('s_barrier')
        e(f'ds_read_b128 v[{vQ}:{vQ+3}], v1 offset:{L_Q + 256}')
        e('s_waitcnt lgkmcnt(0)')
    stamp(2, 0)

    def setflags():
        if up:
            e(f's_bitcmp1_b64 s[88:89], s{sN}'); e(f's_cselect_b32 s{sLvl}, {uplvl}, s{sLvl}')
        if dn:
            e(f's_bitcmp1_b64 s[90:91], s{sN}'); e(f's_cselect_b32 s{sLvl}, {dnlvl}, s{sLvl}')
        e(f's_cmp_ge_u32 s{sN}, {41 - endb}')
        e(f's_cselect_b32 s{sLvl}, 3, s{sLvl}')
        e(f's_bitcmp0_b32 s{sLvl}, 0')
        e('s_cselect_b64 vcc, -1, 0')
        e(f's_bitcmp1_b32 s{sLvl}, 1')
    def body_begin(t):
        if diag:
            e('s_memrealtime s[82:83]'); e(f's_mov_b32 m0, s{sN}'); e('s_waitcnt lgkmcnt(0)')
            e('v_writelane_b32 v252, s82, m0')
        e(f's_bitcmp1_b64 s[{sCk}:{sCk+1}], s{sN}')
        e(f's_cselect_b32 s{sIsC}, 1, 0')
        e(f's_cbranch_scc0 L_nt{t}')
        e(f's_mov_b32 s{sRk}, 1')
        e(f's_atomic_add s{sRk}, s[{sWs}:{sWs+1}], s{sRc} glc')
        e(f'L_nt{t}:')
        setflags()
    def throttle(t, i):
        if i == rcat:
            e(f's_cmp_eq_u32 s{sIsC}, 0')
            e(f's_cbranch_scc1 L_nu{t}')
            e('s_waitcnt lgkmcnt(0)')
            if mix:
                e(f's_mul_i32 s{sT0}, s{sJ}, {256 * mix}'); e(f's_add_u32 s{sT0}, s{sT0}, s{sRc}'); e(f's_and_b32 s{sT0}, s{sT0}, 0x1f00')
                e(f's_andn2_b32 s{sRc}, s{sRc}, 0x1f00'); e(f's_or_b32 s{sRc}, s{sRc}, s{sT0}')
            e(f's_add_u32 s{sRc}, s{sRc}, 8192')
            e(f's_cmp_ge_u32 s{sRk}, {th[0]}'); e(f's_cselect_b32 s{sT0}, 4, 0')
            e(f's_cmp_ge_u32 s{sRk}, {th[1]}'); e(f's_cselect_b32 s{sT0}, 8, s{sT0}')
            e(f's_lshr_b32 s{sT0}, s{sMap}, s{sT0}'); e(f's_and_b32 s{sT0}, s{sT0}, 7')
            e(f'v_mov_b32 v{vLv}, s{sT0}')
            e(f'ds_write_b32 v{vZz}, v{vLv} offset:{L_LVL}')
            e(f'L_nu{t}:')
            e(f's_bitcmp1_b32 s{sLvl}, 1')
        if i == rcat + 2:
            e(f'ds_read_b32 v{vLv}, v{vZz} offset:{L_LVL}')
        if i == rcat + 3:
            e('s_waitcnt lgkmcnt(0)')
            e(f'v_readfirstlane_b32 s{sLvl}, v{vLv}')
            setflags()
        pre = t == 'k' and i >= 16 - prek
        if pre and i == 16 - prek:
            e(f's_bitcmp1_b64 s[{sLh}:{sLh+1}], s{sN}')
            e('s_cselect_b64 vcc, 0, vcc')
            e(f's_cselect_b32 s{sT0}, 3, s{sLvl}')
            e(f's_bitcmp1_b32 s{sT0}, 1')
        fr = (0, 0.5, 0.25, 0.75)[i & 3]
        dd = [int(x + fr) for x in (rcv if t == 'v' else rc)]
        dx = int(xlo + fr)
        go = f'L_go{t}{i}'
        if t == 'v' or pre or kfull:
            e(f's_waitcnt vmcnt({dmax - 1})')
            e(f's_cbranch_scc0 L_lo{t}{i}')
            e(f's_cbranch_vccz {go}')
            e(f'L_lo{t}{i}:')
        e(f's_waitcnt vmcnt({dd[2]-1})')
        e(f's_cbranch_scc1 {go}')
        e(f's_waitcnt vmcnt({dd[1]-1})')
        if dx != dd[1]:
            e(f's_cbranch_vccz {go}')
            if dd[0] != dd[1]: e(f's_waitcnt vmcnt({dd[0]-1})')
        if dx != dd[0]:
            e(f's_cmp_eq_u32 s{sLvl}, 4')
            e(f's_cbranch_scc0 {go}')
            e(f's_waitcnt vmcnt({dx-1})')
            e(f's_cmp_eq_u32 s{sLvl}, 0')
        e(f'{go}:')
    def kops(buf, R):
        dots = [[] for _ in range(20)]; post = [[] for _ in range(20)]
        for i in range(16):
            t = R + i % 3; kk = buf + 4 * i
            dots[i].append(f'v_dot2_f32_bf16 v{t}, v{kk}, v{vQ}, 0')
            for r in range(1, 4): dots[i].append(f'v_dot2_f32_bf16 v{t}, v{kk + r}, v{vQ + r}, v{t}')
            a = R + 3 + ((i >> 1) & 1); b = R + 5 + ((i >> 2) & 1)
            bm1 = '0x3' if i % 2 == 0 else '0xc'
            bm2 = '0x5' if (i >> 1) % 2 == 0 else '0xa'
            post[i + 1].append(f'v_add_f32_dpp v{a}, v{t}, v{t} row_ror:8 row_mask:0xf bank_mask:{bm1}')
            if i % 2 == 1: post[i + 2].append(f'v_add_f32_dpp v{b}, v{a}, v{a} row_half_mirror row_mask:0xf bank_mask:{bm2}')
            if i % 4 == 3: post[i + 3].append(f'v_add_f32_dpp v{b}, v{b}, v{b} quad_perm:[2,3,0,1] {DPPF}')
            if i % 8 == 7:
                c = R + 7 if i == 7 else R + 5
                post[i + 3].append(f'v_cndmask_b32 v{c}, v{R+5}, v{R+6}, s[{sM3}:{sM3+1}]')
                post[i + 4].append(f'v_add_f32_dpp v{c}, v{c}, v{c} quad_perm:[1,0,3,2] {DPPF}')
        return [dots[i] + post[i] for i in range(20)]
    def kfinal(R, dst): e(f'v_cndmask_b32 v{dst}, v{R+7}, v{R+5}, s[{sM4}:{sM4+1}]')
    def ktail(sets):
        for s_ in range(16, 20):
            e('s_nop 2' if s_ == 16 else 's_nop 1')
            for st in sets:
                for op in st[s_]: e(op)
    sets = [kops(X0, vT), kops(X1, vT + 8), kops(X2, vT + 16)]
    for i in range(16):
        for op in sets[0][i]: e(op)
        if nearB and DN:
            if i == 0: e(f's_cmp_eq_u32 s{sCls}, 1')
            e(f's_waitcnt vmcnt({DN - 1})'); e(f's_cbranch_scc1 L_cf{i}')
        e(f's_waitcnt vmcnt({(DC or DB)-1})')
        if nearB and DN: e(f'L_cf{i}:')
        issue(X0, i)
        for st in sets[1:]:
            for op in st[i]: e(op)
    ktail(sets)
    kfinal(vT + 8, vS + 5); kfinal(vT + 16, vS + 6); kfinal(vT, vS + 7)
    e(f's_add_u32 s{sE}, s{sE}, 1')
    e(f'v_mov_b32 v{vZz}, 0')
    if_class('L_nc3', 0)
    e(f'v_and_b32 v{T}, 3, v0')
    e(f'v_lshlrev_b32 v{T}, 3, v{T}')
    e(f's_and_b32 s{sT0}, s{sE}, 0xffffff00')
    e(f'v_lshrrev_b32 v{T}, v{T}, s{sT0}')
    e(f'v_mul_u32_u24 v{T+1}, 37, v0')
    e(f'v_xor_b32 v{T}, s{sE}, v{T}')
    e(f'v_xor_b32 v{T}, v{T+1}, v{T}')
    for r in range(4):
        e(f'v_bfe_u32 v{T+1}, v{T}, {2*r}, 1')
        e(f'v_bfe_u32 v{T+2}, v{T}, {2*r+1}, 1')
        e(f'v_lshlrev_b32 v{T+1}, 15, v{T+1}')
        e(f'v_lshl_or_b32 v{vPat + r}, v{T+2}, 31, v{T+1}')
    e(f's_mov_b32 s{s7f}, 0x7fff7fff')
    e(f'v_lshrrev_b32 v{T}, 4, v0')
    e(f'v_lshl_add_u32 v{vPPa}, v{T}, 15, v{vL16}')
    e(f's_and_b32 s{sT0}, s{sW}, 1'); e(f's_lshl_b32 s{sT0}, s{sT0}, 9')
    e(f'v_xor_b32 v{vPPa}, s{sT0}, v{vPPa}')
    e(f'v_xor_b32 v{vPPa+1}, 0x100, v{vPPa}')
    e(f's_lshr_b32 s{sT0}, s{sW}, 1'); e(f's_lshl_b32 s{sT0}, s{sT0}, 10')
    e(f's_and_b32 s{sT1}, s2, 15'); e(f's_lshl_b32 s{sT1}, s{sT1}, 11'); e(f's_add_u32 s{sT0}, s{sT0}, s{sT1}')
    e(f's_lshr_b32 s{sT1}, s2, 4'); e(f's_lshl_b32 s{sT1}, s{sT1}, 17'); e(f's_add_u32 s{sT0}, s{sT0}, s{sT1}')
    e(f's_add_u32 s{sPPa}, s{sT0}, {PP + 0x200000}')
    e(f's_xor_b32 s{sPPb}, s{sPPa}, 0x2000')
    e(f's_or_b32 s{sHk}, s{sHk}, 0x{mask64([22, 30, 31]):08x}')
    e(f's_mov_b32 s{sMap}, {nmap[0] | nmap[1] << 4 | nmap[2] << 8}')
    if nearB:
        kappa(1, sKV)
        e(f's_xor_b32 s{sXB}, s{sKp}, s{sKV}')
        e(f's_mov_b32 s{sX}, s{sXB}')
    e('L_nc3:')
    switch(sBv, sKV, 0x180000)
    stamp(3, 0)

    def body_end(name):
        e(f's_bitcmp1_b64 s[{sHk}:{sHk+1}], s{sN}')
        e('s_cbranch_scc1 L_hooks')
        e(f's_add_u32 s{sOff}, s{sOff}, 0x20000')
        e(f's_add_u32 s{sN}, s{sN}, 1')
        e(f's_branch {name}')
    e('L_kbody:')
    ks = kops(X0, vT)
    body_begin('k')
    for i in range(16):
        for op in ks[i]: e(op)
        if i < 7: e(f'v_mov_b32 v{vS + i}, v{vS + i + 1}')
        throttle('k', i)
        issue(X0, i)
    ktail([ks])
    kfinal(vT, vS + 7)
    body_end('L_kbody')

    e('L_vbody:')
    e(f'v_and_b32 v{vPd}, 0xffff, v{vP}')
    e(f'v_lshl_or_b32 v{vPd}, v{vPd}, 16, v{vPd}')
    for r in range(3): e(f'v_alignbit_b32 v{vP + r}, v{vP + r + 1}, v{vP + r}, 16')
    e(f'v_lshrrev_b32 v{vP+3}, 16, v{vP+3}')
    def vand(i):
        for r in range(4):
            e(f'v_and_b32_dpp v{vS + 4 * (i & 1) + r}, v{vPd}, v{vMask + r} row_newbcast:{br4(i)} {DPPF}')
    body_begin('v')
    vand(0)
    for i in range(16):
        if i < 15: vand(i + 1)
        a = vS + 4 * (i & 1); v = X0 + 4 * i
        e(f'v_mfma_f32_16x16x32_bf16 v[{vAcc}:{vAcc+3}], v[{a}:{a+3}], v[{v}:{v+3}], v[{vAcc}:{vAcc+3}]')
        throttle('v', i)
        issue(X0, i)
    body_end('L_vbody')

    e('L_hooks:')
    e(f's_cmp_eq_u32 s{sN}, 40'); e('s_cbranch_scc1 L_sfin')
    for n in (39, 7, 8, 23, 32, fat, 22, 30, 31):
        e(f's_cmp_eq_u32 s{sN}, {n}'); e(f's_cbranch_scc1 L_h{n}')
    def pload(seg): e(f'buffer_load_dwordx4 v[{vPA}:{vPA+3}], v{vPPa + seg}, s[8:11], s{sPPb} offen sc1')
    def ptest():
        for r in range(4): e(f'v_xor_b32 v{vPA + r}, v{vPA + r}, v{vPat + r}')
        e(f'v_or3_b32 v{T}, v{vPA}, v{vPA+1}, v{vPA+2}')
        e(f'v_bitop3_b32 v{T}, v{T}, v{vPA+3}, s{s7f} bitop3:0x54')
        e(f'v_cmp_ne_u32 vcc, 0, v{T}')
    def pcheck(seg):
        l = lab('pc')
        e(f's_cmp_eq_u32 s{sX}, 0'); e(f's_cbranch_scc1 {l}')
        ptest()
        e(f's_cbranch_vccz {l}')
        spin(SPIN, lambda: pload(seg), 'vmcnt(0)', ptest)
        e(f'{l}:')
    for r in range(4): e(f'v_mov_b32 v{vP + r}, v{vPA + r}')
    e(f'v_max3_f32 v{T}, v{vS}, v{vS+1}, v{vS+2}')
    e(f'v_max3_f32 v{T+1}, v{vS+3}, v{vS+4}, v{vS+5}')
    e(f'v_max3_f32 v{T}, v{T}, v{vS+6}, v{vS+7}')
    e(f'v_max_f32 v{T}, v{T}, v{T+1}')
    allred('v_max_f32', T, T + 1)
    e(f'v_mul_f32 v{T+2}, s{sC}, v{T}')
    for r in range(8): e(f'v_fma_f32 v{vS + r}, v{vS + r}, s{sC}, -v{T+2}')
    for r in range(8): e(f'v_exp_f32 v{vS + r}, v{vS + r}')
    e(f'v_cmp_eq_u32 vcc, s{sSeg}, v0')
    for r in range(4): e(f'v_cvt_pk_bf16_f32 v{vPA + r}, v{vS + 2*r}, v{vS + 2*r + 1}')
    e(f'v_cndmask_b32 v{vMl}, v{vMl}, v{T+2}, vcc')
    for r in range(4): e(f'v_add_f32 v{vS + 2*r}, v{vS + 2*r}, v{vS + 2*r + 1}')
    e(f'v_add_f32 v{vS}, v{vS}, v{vS+2}')
    e(f'v_add_f32 v{vS+4}, v{vS+4}, v{vS+6}')
    e(f'v_add_f32 v{T}, v{vS}, v{vS+4}')
    allred('v_add_f32', T, T + 1)
    e(f'v_cndmask_b32 v{vMl+1}, v{vMl+1}, v{T}, vcc')
    if_class('L_fin2', 0)
    e(f's_cmp_eq_u32 s{sN}, 16'); e('s_cbranch_scc0 L_fin1')
    kappa(3, sKV)
    e(f's_xor_b32 s{sX}, s{sKp}, s{sKV}')
    e('L_fin1:')
    e(f's_cmp_eq_u32 s{sX}, 0'); e('s_cbranch_scc1 L_fin2')
    for r in range(4): e(f'v_and_or_b32 v{vPs + r}, v{vPA + r}, s{s7f}, v{vPat + r}')
    e(f's_and_b32 s{sT0}, s{sSeg}, 1'); e(f's_lshl_b32 s{sT0}, s{sT0}, 8')
    e(f'v_xor_b32 v{T}, s{sT0}, v{vPPa}')
    e(f'buffer_store_dwordx4 v[{vPs}:{vPs+3}], v{T}, s[8:11], s{sPPa} offen sc1')
    e(f's_cmp_eq_u32 s{sN}, 4'); e('s_cbranch_scc0 L_fin2')
    spin(SPIN, lambda: pload(0), 'vmcnt(0)', ptest)
    e('L_fin2:')
    e(f's_cmp_eq_u32 s{sN}, 4'); e('s_cbranch_scc0 L_fin3')
    e(f'ds_read_b128 v[{vQ}:{vQ+3}], v1 offset:{L_Q}')
    e(f'v_mov_b32 v{vP}, v{vPA+2}'); e(f'v_mov_b32 v{vP+1}, v{vPA+3}')
    e(f's_mov_b32 s{sSeg}, 0')
    e(f's_sub_u32 s{sPPa}, s{sPPa}, 0x200000'); e(f's_sub_u32 s{sPPb}, s{sPPb}, 0x200000')
    e('s_waitcnt lgkmcnt(0)')
    e('s_branch L_h_done')
    e('L_fin3:')
    e(f's_mov_b32 s{sSeg}, 1')
    e(f's_cmp_eq_u32 s{sN}, 24'); e('s_cbranch_scc0 L_h_done')
    stamp(14, 0)
    e(f's_lshl_b32 s{sT1}, s{sW}, 6')
    e(f'v_mov_b32 v{vMl+2}, s{sE}'); e(f'v_mov_b32 v{vMl+3}, s{sE}')
    e(f'v_add_u32 v{T}, s{sT1}, v{vL16}')
    e('s_mov_b64 exec, 15')
    e(f'ds_write_b128 v{T}, v[{vMl}:{vMl+3}] offset:{L_ST}')
    e('s_mov_b64 exec, -1')
    e('s_branch L_h_done')
    e('L_h7:')
    stamp(15, 0)
    if_class('L_h7b', 0)
    kappa(2, sKp)
    if not nearB: go_near()
    e('L_h7b:')
    switch(sAk, sKp, -0x20000)
    e('s_branch L_h_done')
    e('L_h8:')
    for r in range(4): e(f'v_mov_b32_dpp v{vMask + r}, v{vMask + r} row_ror:8 {DPPF}')
    for r in range(4): e(f'v_mov_b32 v{vAccB + r}, v{vAcc + r}')
    for r in range(4): e(f'v_mov_b32 v{vAcc + r}, 0')
    e('s_branch L_h_done')
    for n, seg in ((22, 0), (30, 1)):
        e(f'L_h{n}:')
        e(f's_cmp_eq_u32 s{sX}, 0'); e('s_cbranch_scc1 L_h_done')
        pload(seg)
        e('s_branch L_h_done')
    e('L_h31:')
    pcheck(1)
    e('s_branch L_h_done')
    e('L_h23:')
    pcheck(0)
    switch(sAv, sKV, -0x20000)
    e('s_branch L_h_done')
    e('L_h32:')
    if emap:
        e(f's_mov_b32 s{sMap}, {emap[0] | emap[1] << 4 | emap[2] << 8}')
        e(f's_cmp_eq_u32 s{sCls}, 1'); e(f's_cselect_b32 s{sMap}, {enmap[0] | enmap[1] << 4 | enmap[2] << 8}, s{sMap}')
    for r in range(4): e(f'v_mov_b32_dpp v{vMask + r}, v{vMask + r} row_ror:8 {DPPF}')
    for r in range(4): e(f'v_mov_b32 v{vP + r}, v{vPA + r}')
    e('s_branch L_h_done')
    e(f'L_h{fat}:')
    e(f's_xor_b32 s{sT0}, s{sSide}, s{sX}'); e(f's_lshl_b32 s{sT0}, s{sT0}, 2'); e(f's_add_u32 s{sT0}, s{sT0}, s{sW}'); e(f's_lshl_b32 s{sT0}, s{sT0}, 3')
    e(f's_xor_b32 s{sT1}, s{sSide}, s{sXB}'); e(f's_lshl_b32 s{sT1}, s{sT1}, 2'); e(f's_add_u32 s{sT1}, s{sT1}, s{sW}'); e(f's_lshl_b32 s{sT1}, s{sT1}, 3')
    e(f'v_lshrrev_b32 v{T+4}, 5, v0')
    e(f'v_lshl_add_u32 v{T}, v{T+4}, 6, s{sT0}')
    e(f'v_mov_b32 v{T+1}, s{sT1}')
    def fload():
        e(f'ds_read_b64 v[{vF}:{vF+1}], v{T} offset:{L_F}')
        e(f'ds_read_b64 v[{T+2}:{T+3}], v{T+1} offset:{L_F + 128}')
    def ftest():
        e(f'v_cmp_ne_u32 vcc, s{sE}, v{vF+1}')
        e(f'v_cmp_ne_u32 s[{sT1}:{sT1+1}], s{sE}, v{T+3}')
        e(f's_or_b64 vcc, vcc, s[{sT1}:{sT1+1}]')
    spin(SPIN * 8, fload, 'lgkmcnt(0)', ftest, again='scc1')
    for r in range(4): e(f'v_mul_f32 v{vAccB + r}, v{T+2}, v{vAccB + r}')
    e(f'v_lshlrev_b32 v1, 1, v1')
    e(f'v_lshl_add_u32 v1, v{T+4}, 9, v1')
    e(f'v_and_b32 v{T}, 16, v0')
    e(f's_lshl_b32 s{sT0}, s{sW}, 10')
    e(f'v_add3_u32 v1, v1, v{T}, s{sT0}')
    e('s_branch L_h_done')
    e('L_h39:')
    e('s_mov_b32 s6, 0')
    e('L_h_done:')
    e(f's_add_u32 s{sOff}, s{sOff}, 0x20000')
    e(f's_add_u32 s{sN}, s{sN}, 1')
    e(f's_bitcmp1_b64 s[{sVk}:{sVk+1}], s{sN}')
    e('s_cbranch_scc1 L_vbody')
    e('s_branch L_kbody')
    e('L_sfin:')
    e('s_nop 1')
    for r in range(4): e(f'v_mul_f32 v{vAcc + r}, v{vF}, v{vAcc + r}')
    for r in range(4): e(f'v_permlane32_swap_b32 v{vAcc + r}, v{vAccB + r}')
    for r in range(4): e(f'v_add_f32 v{vAcc + r}, v{vAcc + r}, v{vAccB + r}')
    e(f'ds_write_b128 v1, v[{vAcc}:{vAcc+3}] offset:{L_O}')
    e('s_waitcnt lgkmcnt(0)')
    e('s_barrier')
    stamp(4, 0)
    e(f'v_lshrrev_b32 v{T}, 4, v0')
    e(f'v_and_b32 v{T+4}, 15, v0')
    e(f'v_lshlrev_b32 v{vWa}, 13, v{T}')
    e(f'v_lshl_add_u32 v{vWa}, v{T+4}, 4, v{vWa}')
    e(f's_lshl_b32 s{sT0}, s{sH}, 17'); e(f's_lshl_b32 s{sT1}, s{sU}, 8'); e(f's_add_u32 s{sT0}, s{sT0}, s{sT1}')
    e(f's_lshl_b32 s{sT1}, s{sW}, 15'); e(f's_add_u32 s{sT0}, s{sT0}, s{sT1}'); e(f's_add_u32 s{sT1}, s{sT0}, 4096')
    e(f's_cmp_eq_u32 s{sSide}, 0')
    e(f's_cselect_b64 s[4:5], s[{sAwo}:{sAwo+1}], s[{sBwo}:{sBwo+1}]')
    e('s_mov_b32 s6, 0x400000')
    for i in range(8):
        if i == wpre: e('s_barrier')
        e(f'buffer_load_dwordx4 v[{vW + 4*i}:{vW + 4*i + 3}], v{vWa}, s[4:7], s{sT0 + (i >> 2)} offen offset:{(i & 3) * 1024} nt')
    e(f'v_and_b32 v{T+1}, 3, v0')
    e(f'v_lshlrev_b32 v{T+1}, 8, v{T+1}')
    e(f'v_lshl_add_u32 v{T+1}, v{T}, 4, v{T+1}')
    e(f's_lshl_b32 s{sT2}, s{sW}, 6'); e(f's_add_u32 s{sT2}, s{sT2}, {L_RED}')
    e(f'v_add_u32 v{T+1}, s{sT2}, v{T+1}')
    e(f'v_bfe_u32 v{T+2}, v0, 2, 2')
    e(f'v_mov_b32 v{T+3}, {L_Z}')
    for q in range(4):
        e(f'v_cmp_eq_u32 vcc, {q}, v{T+2}'); e('s_nop 1')
        e(f'v_cndmask_b32 v{vAr + q}, v{T+3}, v{T+1}, vcc')
    e(f's_lshl_b32 s{sT2}, s{sW}, 11')
    e(f'v_add_u32 v{vYw}, s{sT2}, v{vL16}')
    e(f'v_and_b32 v{vYr}, 0x1f0, v{vL16}')
    e(f'v_lshrrev_b32 v{T+1}, 5, v0')
    e(f'v_lshl_add_u32 v{vYr}, v{T+1}, 12, v{vYr}')
    e(f's_lshl_b32 s{sT2}, s{sW}, 9')
    e(f'v_add_u32 v{vYr}, s{sT2}, v{vYr}')
    e(f's_and_b32 s{sT2}, s{sW}, 1'); e(f's_lshl_b32 s{sT2}, s{sT2}, 1')
    e(f'v_and_or_b32 v{T}, v{T}, 1, s{sT2}')
    e(f's_lshl_b32 s{sT2}, s2, 1'); e(f's_and_b32 s{sT2}, s{sT2}, 127'); e(f's_lshr_b32 s{sYd}, s{sW}, 1'); e(f's_or_b32 s{sT2}, s{sT2}, s{sYd}')
    e(f'v_xor_b32 v{T+1}, s{sT2}, v{T}')
    e(f'v_lshlrev_b32 v{vYa}, 8, v{T+1}')
    e(f'v_lshl_add_u32 v{vYa}, v{T}, 15, v{vYa}')
    e(f'v_lshl_add_u32 v{vYa}, v{T+4}, 4, v{vYa}')
    e(f's_lshr_b32 s{sYd}, s2, 6'); e(f's_lshl_b32 s{sYd}, s{sYd}, 17'); e(f's_add_u32 s{s7f}, s{sYd}, {YF}')
    e(f's_add_u32 s{sE}, s{sE}, 1')
    mktag(vTg2, sE, sT2)
    xcc(sT2)
    e(f'v_xor_b32 v{vTg2+3}, s{sT2}, v{vTg2+3}')
    e(f's_mov_b32 s{sT0}, 0x05040100'); e(f's_mov_b32 s{sT1}, 0x07060302')
    def bar4():
        e('s_barrier')
        for q in range(4): e(f'ds_read_b128 v[{vAo + 4*q}:{vAo + 4*q + 3}], v{vAr + q}')
    for r in range(4):
        if r == afirst - 1: bar4()
        e(f's_waitcnt vmcnt({6 - 2 * r})')
        for ee in range(8):
            e(f'v_perm_b32 v{vBt + 4*ee + r}, v{vW + 4*(2*r+1) + (ee >> 1)}, v{vW + 4*(2*r) + (ee >> 1)}, s{sT0 + (ee & 1)}')
    stamp(9, 0)
    if afirst == 0: bar4()
    for q in range(4):
        e(f's_waitcnt lgkmcnt({3 - q})')
        for t in range(2):
            d = vDD + 4 * t; ee = 2 * q + t
            c = f'v[{d}:{d+3}]' if q else '0'
            e(f'v_mfma_f32_16x16x32_bf16 v[{d}:{d+3}], v[{vAo + 4*q}:{vAo + 4*q + 3}], v[{vBt + 4*ee}:{vBt + 4*ee + 3}], {c}')
    e('s_nop 6')
    e(f'ds_write_b128 v{vYw}, v[{vDD}:{vDD+3}] offset:{L_Y}')
    e(f'ds_write_b128 v{vYw}, v[{vDD+4}:{vDD+7}] offset:{L_Y + 1024}')
    e('s_waitcnt lgkmcnt(0)')
    e('s_barrier')
    e(f'ds_read_b128 v[{vAcc}:{vAcc+3}], v{vYr} offset:{L_Y}')
    e(f'ds_read_b128 v[{vAccB}:{vAccB+3}], v{vYr} offset:{L_Y + 2048}')
    e('s_waitcnt lgkmcnt(0)')
    for r in range(4): e(f'v_add_f32 v{vAcc + r}, v{vAcc + r}, v{vAccB + r}')
    for r in range(4): e(f'v_permlane32_swap_b32 v{vAcc + r}, v{vAccB + r}')
    for r in range(4): e(f'v_add_f32 v{vAcc + r}, v{vAcc + r}, v{vAccB + r}')
    for r in range(4): tag(vAcc + r, vTg2)
    e('s_mov_b32 exec_hi, 0')
    if fast: e(f'buffer_store_dwordx4 v[{vAcc}:{vAcc+3}], v{vYa}, s[8:11], s{s7f} offen {fpol}')
    if sdelay: e('s_waitcnt vmcnt(0)')
    if not lazy: e(f'buffer_store_dwordx4 v[{vAcc}:{vAcc+3}], v{vYa}, s[8:11], s{sYd} offen sc1')
    if diag:
        e(f's_cmp_lg_u32 s{sW}, 0'); e('s_cbranch_scc1 L_end')
        stamp(11)
        flush_stamps([0, 1, 2, 3, 4, 9, 11, 14, 15])
        e('s_mov_b64 exec, -1')
        e('s_lshl_b32 s84, s2, 8'); e(f's_add_u32 s84, s84, {STAMP + 0x8000}')
        e('v_lshlrev_b32 v253, 2, v0')
        e('buffer_store_dword v252, v253, s[8:11], s84 offen')
    e('s_endpgm')

    e('L_service:')
    sDst = 54
    sX3, sX4a, sX4b, sOo = 56, 57, 58, 59
    vG = 2; vC = 3; vA = 4; vA2 = 5; vL = 6; vZ = 7
    vXA = 8; vWt = 16; vSel = 48; vOpA = 56; vD = 64; vR = 72
    vA3 = 104; vTg = 112; vTg2 = 116; vX3 = 108; vX4 = 109; vOut = 110
    e(f's_sub_u32 s{sW}, s{sW}, 4')
    e(f'v_lshrrev_b32 v{vG}, 4, v0')
    e(f'v_and_b32 v{vC}, 15, v0')
    e(f'v_lshlrev_b32 v{vA}, 16, v{vG}')
    e(f'v_lshl_add_u32 v{vA}, v{vC}, 4, v{vA}')
    e(f'v_lshrrev_b32 v{vA2}, 3, v{vC}')
    e(f'v_lshlrev_b32 v{vA2}, 10, v{vA2}')
    e(f'v_lshl_add_u32 v{vA2}, v{vG}, 4, v{vA2}')
    e(f's_lshl_b32 s{sT0}, s{sU}, 7'); e(f's_lshl_b32 s{sT1}, s{sW}, 5'); e(f's_add_u32 s{sT0}, s{sT0}, s{sT1}')
    e(f's_lshl_b32 s{sT1}, s{sT0}, 1')
    e(f's_lshl_b32 s{sT0}, s{sT0}, 13'); e(f's_lshl_b32 s{sT2}, s{sH}, 8'); e(f's_add_u32 s{sT0}, s{sT0}, s{sT2}')
    e('s_mov_b32 s6, 0x400000'); e('s_mov_b32 s14, 4096'); e('s_mov_b32 s15, 0x20000')
    e(f's_cmp_eq_u32 s{sSide}, 0')
    e('s_waitcnt lgkmcnt(0)')
    e(f's_cselect_b64 s[4:5], s[{sAwq}:{sAwq+1}], s[{sBwq}:{sBwq+1}]')
    e(f's_cselect_b64 s[12:13], s[{sAx}:{sAx+1}], s[{sBx}:{sBx+1}]')
    for m in range(2 if xfirst else 0):
        e(f'buffer_load_dwordx4 v[{vXA + 4*m}:{vXA + 4*m + 3}], v{vA2}, s[12:15], s{sT1} offen offset:{2048*m}')
    for i in range(8):
        if not abl & 4: e(f'buffer_load_dwordx4 v[{vWt + 4*i}:{vWt + 4*i + 3}], v{vA}, s[4:7], s{sT0} offen nt')
        if i < 7: e(f's_add_u32 s{sT0}, s{sT0}, 8192')
    for m in range(0 if (xfirst or abl & 16) else 2):
        e(f'buffer_load_dwordx4 v[{vXA + 4*m}:{vXA + 4*m + 3}], v{vA2}, s[12:15], s{sT1} offen offset:{2048*m}')
    if l2w:
        e(f's_getpc_b64 s[{sTm}:{sTm+1}]')
        e('L_pc:')
        e(f's_lshl_b32 s{sT0}, s{sH}, 2'); e(f's_add_u32 s{sT0}, s{sT0}, s{sW}'); e(f's_lshl_b32 s{sT0}, s{sT0}, 7')
        e(f's_min_u32 s{sT0}, s{sT0}, L_end-L_pc')
        e(f's_add_u32 s{sT0}, s{sT0}, s{sTm}'); e(f's_addc_u32 s{sT1}, s{sTm+1}, 0')
        e(f'v_mov_b32 v{vR+2}, s{sT0}'); e(f'v_mov_b32 v{vR+3}, s{sT1}')
        e(f'global_load_dword v{vOut}, v[{vR+2}:{vR+3}], off')
    e('L_service2:')
    e(f'v_mov_b32 v{vZ}, 0')
    e(f'v_lshlrev_b32 v{vR}, 2, v0')
    e(f'v_cmp_lt_u32 vcc, 15, v0')
    e(f's_cmp_eq_u32 s{sCls}, {1 if nearB else 2}'); e(f's_cselect_b32 s{sT0}, {lvlc}, {lvl0}')
    e(f'v_cndmask_b32 v{vR+1}, 0, -1, vcc')
    e(f'v_writelane_b32 v{vR+1}, s{sT0}, 1')
    e(f'ds_write_b32 v{vR}, v{vR+1} offset:{L_CNT}')
    e('s_waitcnt lgkmcnt(0)')
    load_epoch()
    e('s_barrier')
    e(f's_mov_b32 s8, s{sWs}'); e(f's_mov_b32 s9, s{sWs+1}')
    e(f'v_lshlrev_b32 v{vL}, 4, v0')
    assert len(cks) <= 16
    e(f's_lshl_b32 s{sT0}, s{sW}, 3'); e(f's_add_u32 s{sT0}, s{sT0}, s{sJ}')
    e(f's_cmp_ge_u32 s{sT0}, {len(cks)}'); e('s_cbranch_scc1 L_norc')
    e(f's_lshl_b32 s{sT0}, s{sT0}, 5'); e(f's_add_u32 s{sT0}, s{sT0}, s{sH}'); e(f's_lshl_b32 s{sT0}, s{sT0}, 8'); e(f's_add_u32 s{sT0}, s{sT0}, {RC}')
    e('s_mov_b64 exec, 0xffff')
    if not abl & 8: e(f'buffer_store_dword v{vZ}, v{vR}, s[8:11], s{sT0} offen sc1')
    e('s_mov_b64 exec, -1')
    e('L_norc:')
    e(f'v_and_b32 v{vR}, 7, v0')
    e(f'v_and_b32 v{vR+1}, 1, v0')
    e(f'v_lshlrev_b32 v{vR+1}, 4, v{vR+1}')
    e(f'v_mov_b32 v{vR+2}, 0xffff')
    e(f'v_lshlrev_b32 v{vR+2}, v{vR+1}, v{vR+2}')
    e(f'v_lshrrev_b32 v{vR}, 1, v{vR}')
    e(f'v_mov_b32 v{vR+4}, 0x0c0c0c0c')
    e(f's_mov_b32 s{sT0}, 0x01000100'); e(f's_mov_b32 s{sT1}, 0x03020302')
    for r in range(4):
        e(f'v_cmp_eq_u32 vcc, {r}, v{vR}'); e('s_nop 1')
        e(f'v_cndmask_b32 v{vR+3}, 0, v{vR+2}, vcc')
        e(f'v_bfi_b32 v{vSel + r}, v{vR+3}, s{sT0}, v{vR+4}')
        e(f'v_bfi_b32 v{vSel + 4 + r}, v{vR+3}, s{sT1}, v{vR+4}')
    e(f'v_lshrrev_b32 v{vR}, 5, v0')
    e(f'v_lshlrev_b32 v{vA}, 9, v{vR}')
    e(f'v_lshl_add_u32 v{vA}, v{vC}, 5, v{vA}')
    e(f'v_and_b32 v{vR}, 16, v0')
    e(f's_lshl_b32 s{sT0}, s{sW}, 11')
    e(f'v_add3_u32 v{vA}, v{vA}, v{vR}, s{sT0}')
    e(f'v_lshl_add_u32 v{vA2}, v{vG}, 15, v{vL}')
    e(f's_lshl_b32 s{sT0}, s2, 1'); e(f's_and_b32 s{sT0}, s{sT0}, 127'); e(f's_lshl_b32 s{sT0}, s{sT0}, 8')
    e(f'v_xor_b32 v{vA2}, s{sT0}, v{vA2}')
    e(f'v_xor_b32 v{vA3}, 0x100, v{vA2}')
    e(f's_lshr_b32 s{sDst}, s2, 6'); e(f's_lshl_b32 s{sDst}, s{sDst}, 17')
    e('s_waitcnt lgkmcnt(0)')
    e(f's_add_u32 s{sE}, s{sE}, 1')
    mktag(vTg, sE, sT0)
    def probe_setup():
        e(f's_mov_b64 s[12:13], s[{sBk}:{sBk+1}]')
        for r, p in ((1, sBv), (2, sAk), (3, sAv)):
            e(f's_cmp_eq_u32 s{sRd}, {r}'); e(f's_cselect_b64 s[12:13], s[{p}:{p+1}], s[12:13]')
        e('s_mov_b32 s14, 0x10000000')
        e(f's_mov_b32 s{sE0}, 0x10000'); e(f's_mov_b32 s{sE1}, 0x10000')
    e(f's_cmp_eq_u32 s{sW}, 0'); e(f's_cselect_b32 s{sCls}, 0, s{sCls}')
    e(f's_mov_b32 s{sRd}, {(1 if selfp else 0) if nearB else 2}')
    probe_setup()
    if_class('L_nop0', 0)
    probe_seed(1)
    if sh0 and nearB and not selfp:
        e(f's_mov_b32 s{sCnt}, {sh0}')
        probe_loop()
        e('s_branch L_padret')
    e('L_nop0:')
    if pads == 1:
        for w in range(3):
            e(f's_cmp_eq_u32 s{sW}, {w}'); e(f's_cbranch_scc1 L_pad{w}')
        e('s_branch L_pad3')
    e('L_padret:')
    e('s_waitcnt vmcnt(0)')
    stamp(5, 0)
    seq = [(i, m) for i in range(8) for m in range(2)]
    def perms(k):
        i, m = seq[k]
        for r in range(4):
            x = vXA + 4 * m + (i >> 1)
            e(f'v_perm_b32 v{vOpA + 4 * (k & 1) + r}, v{x}, v{x}, v{vSel + 4 * (i & 1) + r}')
    perms(0)
    for k, (i, m) in enumerate(seq):
        if k < 15: perms(k + 1)
        else: e('s_nop 0')
        a = vOpA + 4 * (k & 1); d = vD + 4 * m; w = vWt + 4 * i
        c = f'v[{d}:{d+3}]' if i > 0 else '0'
        e(f'v_mfma_f32_16x16x32_bf16 v[{d}:{d+3}], v[{a}:{a+3}], v[{w}:{w+3}], {c}')
    e(f'v_mov_b32 v{vR}, 1')
    e('s_nop 5')
    e(f'ds_write_b128 v{vA}, v[{vD}:{vD+3}] offset:{L_RED}')
    e(f'ds_write_b128 v{vA}, v[{vD+4}:{vD+7}] offset:{L_RED + 1024}')
    e('s_mov_b64 exec, 1')
    e(f'ds_add_u32 v{vZ}, v{vR} offset:{L_CNT}')
    e('s_mov_b64 exec, -1')
    e(f's_cmp_lg_u32 s{sW}, 0')
    e('s_cbranch_scc1 L_notleader')
    spin(SPIN * 8, lambda: e(f'ds_read_b32 v{vR}, v{vZ} offset:{L_CNT}'), 'lgkmcnt(0)', lambda: e(f'v_cmp_ne_u32 vcc, 4, v{vR}'))
    for m in range(2): e(f'ds_read_b128 v[{vD + 4*m}:{vD + 4*m + 3}], v{vL} offset:{L_RED + m * 1024}')
    for w in range(1, 4):
        for m in range(2):
            r = vR + ((w - 1) * 2 + m) * 4
            e(f'ds_read_b128 v[{r}:{r+3}], v{vL} offset:{L_RED + w * 2048 + m * 1024}')
    e('s_waitcnt lgkmcnt(4)')
    for r in range(8): e(f'v_add_f32 v{vD + r}, v{vD + r}, v{vR + r}')
    e('s_waitcnt lgkmcnt(0)')
    for r in range(8): e(f'v_add_f32 v{vR + 8 + r}, v{vR + 8 + r}, v{vR + 16 + r}')
    for r in range(8): e(f'v_add_f32 v{vD + r}, v{vD + r}, v{vR + 8 + r}')
    for r in range(8): tag(vD + r, vTg)
    if not abl & 1:
        e(f'buffer_store_dwordx4 v[{vD}:{vD+3}], v{vA2}, s[8:11], s{sDst} offen sc1')
        e(f'buffer_store_dwordx4 v[{vD+4}:{vD+7}], v{vA3}, s[8:11], s{sDst} offen sc1')
    stamp(6)
    e(f'v_bfe_u32 v{vR}, v0, 4, 1')
    e(f's_and_b32 s{sT0}, s{sB}, 1'); e(f's_lshl_b32 s{sT0}, s{sT0}, 1')
    e(f'v_or_b32 v{vR}, s{sT0}, v{vR}')
    e(f'v_lshrrev_b32 v{vR+1}, 5, v0')
    e(f'v_lshlrev_b32 v{vR+1}, 3, v{vR+1}')
    e(f's_and_b32 s{sT0}, s{sH}, 7'); e(f's_lshl_b32 s{sT0}, s{sT0}, 4'); e(f's_lshr_b32 s{sT1}, s{sB}, 1'); e(f's_or_b32 s{sT0}, s{sT0}, s{sT1}')
    e(f'v_or_b32 v{vR+1}, s{sT0}, v{vR+1}')
    e(f'v_xor_b32 v{vR+1}, v{vR+1}, v{vR}')
    e(f'v_lshlrev_b32 v{vR+1}, 8, v{vR+1}')
    e(f'v_lshl_add_u32 v{vR+1}, v{vR}, 15, v{vR+1}')
    e(f'v_lshl_add_u32 v{vR}, v{vC}, 4, v{vR+1}')
    e(f'v_xor_b32 v{vR+1}, 0x200, v{vR}')
    e(f's_xor_b32 s{sT0}, s{sE}, 1')
    e(f'v_mov_b32 v{vR+20}, s{sT0}'); e(f'v_mov_b32 v{vR+21}, s{sT0}')
    e(f'v_lshlrev_b32 v{vR+22}, 3, v0')
    e(f'ds_write_b64 v{vR+22}, v[{vR+20}:{vR+21}] offset:{L_ST}')
    def qload():
        for r in range(4):
            d = vR + 4 + 4 * r
            e(f'buffer_load_dwordx4 v[{d}:{d+3}], v{vR + (r & 1)}, s[8:11], s{sDst} offen offset:{(r >> 1) * 1024} sc1')
    if qs0: e('s_waitcnt vmcnt(0)')
    if not abl & 2: spin(SPIN, qload, 'vmcnt(0)', lambda: check(range(vR + 4, vR + 20), vR + 2, vTg), sleep=qs)
    for r in range(4):
        e(f'v_add_f32 v{vR + 4 + r}, v{vR + 4 + r}, v{vR + 8 + r}')
        e(f'v_add_f32 v{vR + 12 + r}, v{vR + 12 + r}, v{vR + 16 + r}')
    for r in range(4): e(f'v_add_f32 v{vR + 4 + r}, v{vR + 4 + r}, v{vR + 12 + r}')
    e(f'v_cvt_pk_bf16_f32 v{vR+4}, v{vR+4}, v{vR+5}')
    e(f'v_cvt_pk_bf16_f32 v{vR+5}, v{vR+6}, v{vR+7}')
    e(f'ds_write_b64 v{vR+22}, v[{vR+4}:{vR+5}] offset:{L_Q}')
    if qflag: e(f'ds_write_b32 v{vZ}, v{vZ} offset:{L_QF}')
    e('s_waitcnt lgkmcnt(0)')
    stamp(8)
    if not qflag: e('s_barrier')
    e('s_mov_b64 exec, 0xffff')
    spin(SPIN, lambda: e(f'ds_read_b128 v[{vD}:{vD+3}], v{vL} offset:{L_ST}'), 'lgkmcnt(0)',
         lambda: e(f'v_cmp_ne_u32 vcc, s{sE}, v{vD+2}'), sleep=16)
    e(f's_lshl_b32 s{sT0}, s2, 8'); e(f's_add_u32 s{sT0}, s{sT0}, {ST}')
    e(f'buffer_store_dwordx4 v[{vD}:{vD+3}], v{vL}, s[8:11], s{sT0} offen sc1')
    e('s_mov_b64 exec, -1')
    e(f'v_and_b32 v{vR}, 3, v0')
    e(f'v_lshlrev_b32 v{vA}, 6, v{vR}')
    e(f'v_bfe_u32 v{vR}, v0, 2, 1')
    e(f'v_lshl_add_u32 v{vA}, v{vR}, 10, v{vA}')
    e(f'v_lshrrev_b32 v{vR}, 3, v0')
    e(f'v_min_u32 v{vR}, 2, v{vR}')
    e(f'v_lshl_add_u32 v{vA}, v{vR}, 4, v{vA}')
    e(f's_andn2_b32 s{sT0}, s{sT0}, 0x400')
    spin(SPIN, lambda: e(f'buffer_load_dwordx4 v[{vR+4}:{vR+7}], v{vA}, s[8:11], s{sT0} offen sc1'), 'vmcnt(0)',
         lambda: e(f'v_cmp_ne_u32 vcc, s{sE}, v{vR+6}'), sleep=48)
    e(f'v_mov_b32 v{vR}, v{vR+4}')
    rowred('v_max_f32', vR)
    e(f'v_sub_f32 v{vR}, v{vR+4}, v{vR}')
    e(f'v_exp_f32 v{vR}, v{vR}')
    e('v_cmp_lt_u32 vcc, 15, v0')
    e(f'v_mul_f32 v{vR+1}, v{vR}, v{vR+5}')
    rowred('v_add_f32', vR + 1)
    e(f'v_rcp_f32 v{vR+1}, v{vR+1}')
    e(f'v_cndmask_b32 v{vR+2}, 1.0, 2.0, vcc')
    e(f'v_mul_f32 v{vR}, v{vR}, v{vR+1}')
    e(f'v_mul_f32 v{vR}, v{vR}, v{vR+2}')
    e(f'v_mov_b32 v{vR+1}, s{sE}')
    e('s_mov_b32 exec_hi, 0')
    e(f'ds_write_b64 v{vR+22}, v[{vR}:{vR+1}] offset:{L_F}')
    e('s_mov_b64 exec, -1')
    e(f'v_bfe_u32 v{vR}, v0, 2, 3')
    e(f'v_lshlrev_b32 v{vX4}, 12, v{vR}')
    e(f'v_lshrrev_b32 v{vR}, 5, v0')
    e(f'v_lshl_add_u32 v{vX4}, v{vR}, 17, v{vX4}')
    e(f'v_and_b32 v{vR}, 3, v0')
    e(f'v_lshl_add_u32 v{vX4}, v{vR}, 4, v{vX4}')
    e(f'v_lshlrev_b32 v{vOut}, 4, v{vR}')
    e(f'v_bfe_u32 v{vR}, v0, 2, 2')
    e(f'v_lshl_add_u32 v{vOut}, v{vR}, 11, v{vOut}')
    e(f's_bfe_u32 s{sT0}, s{sH}, 0x20002'); e(f's_lshr_b32 s{sT2}, s{sH}, 4')
    e(f's_lshl_b32 s{sOo}, s{sT0}, 1'); e(f's_add_u32 s{sOo}, s{sOo}, s{sT2}'); e(f's_lshl_b32 s{sOo}, s{sOo}, 1')
    e(f's_lshl_b32 s{sT1}, s{sJ}, 1'); e(f's_or_b32 s{sT1}, s{sT1}, s{sT2}')
    e(f's_xor_b32 s{sT1}, s{sT1}, s{sT0}'); e(f's_lshl_b32 s{sT1}, s{sT1}, 8')
    e(f's_lshl_b32 s{sT0}, s{sT0}, 15'); e(f's_add_u32 s{sT0}, s{sT0}, s{sT1}')
    e(f's_and_b32 s{sT1}, s{sH}, 3'); e(f's_lshl_b32 s{sT1}, s{sT1}, 6')
    e(f's_add_u32 s{sX4a}, s{sT0}, s{sT1}')
    if fast: e(f's_add_u32 s{sX4a}, s{sX4a}, {YF}')
    e(f's_add_u32 s{sX4b}, s{sX4a}, 0x40000')
    e(f's_add_u32 s{sOo}, s{sOo}, s{sT1}'); e(f's_lshl_b32 s{sT1}, s{sJ}, 8'); e(f's_add_u32 s{sOo}, s{sOo}, s{sT1}')
    e('s_branch L_rdone')
    e('L_notleader:')
    if pads == 2:
        e(f's_cmp_eq_u32 s{sW}, 3'); e('s_cbranch_scc1 L_padtop')
        e('L_padret2:')
    e(f'v_mov_b32 v{vX4}, 0'); e(f'v_mov_b32 v{vOut}, 0')
    if_class('L_round0', 1)
    if not qflag: e('s_barrier')
    e('s_branch L_rdone')
    e('L_round0:')
    if shA and not nearB:
        e(f's_mov_b32 s{sCnt}, {shA}')
        probe_loop()
    e('L_round:')
    if not qflag:
        e(f's_cmp_lg_u32 s{sRd}, 2'); e('s_cbranch_scc1 L_rnb')
        e('s_barrier')
        e('L_rnb:')
    e(f's_lshl_b32 s{sT0}, s{sRd}, 3'); e(f's_lshr_b32 s{sCnt}, {sum(v << (8 * r) for r, v in enumerate(shots))}, s{sT0}'); e(f's_and_b32 s{sCnt}, s{sCnt}, 0xff')
    probe_loop()
    evidence(vR, 1, 3, sE, 'L_rnext')
    e('L_rnext:')
    e('s_mov_b64 exec, -1')
    e(f's_add_u32 s{sRd}, s{sRd}, 1')
    probe_setup()
    e(f's_cmp_lt_u32 s{sRd}, 4'); e('s_cbranch_scc1 L_round')
    e('L_rdone:')
    e(f's_lshl_b32 s{sT0}, s{sSide}, 1')
    e(f'v_and_or_b32 v{vR}, v{vG}, 1, s{sT0}')
    e(f'v_xor_b32 v{vR+1}, s{sW}, v{vR}')
    e(f'v_lshlrev_b32 v{vX3}, 8, v{vR+1}')
    e(f'v_lshl_add_u32 v{vX3}, v{vR}, 15, v{vX3}')
    e(f'v_lshrrev_b32 v{vR+1}, 5, v0')
    e(f'v_lshl_add_u32 v{vX3}, v{vR+1}, 10, v{vX3}')
    e(f'v_lshl_add_u32 v{vX3}, v{vC}, 4, v{vX3}')
    e(f'v_and_b32 v{vR}, 31, v0')
    e(f'v_lshlrev_b32 v{vA}, 3, v{vR}')
    e(f'v_lshl_add_u32 v{vA}, v{vR+1}, 2, v{vA}')
    e(f's_lshl_b32 s{sT0}, s{sW}, 8')
    e(f'v_add_u32 v{vA}, s{sT0}, v{vA}')
    e(f's_and_b32 s{sT1}, s{sH}, 15'); e(f's_lshl_b32 s{sX3}, s{sT1}, 11')
    e(f's_lshr_b32 s{sT1}, s{sH}, 4'); e(f's_lshl_b32 s{sT1}, s{sT1}, 17'); e(f's_add_u32 s{sX3}, s{sX3}, s{sT1}')
    e(f's_add_u32 s{sX3}, s{sX3}, {OP}')
    e(f'v_lshl_add_u32 v{vA3}, v{vG}, 15, v{vL}')
    e(f's_lshl_b32 s{sT0}, s{sSide}, 2'); e(f's_or_b32 s{sT0}, s{sT0}, s{sB}'); e(f's_lshl_b32 s{sT0}, s{sT0}, 8')
    e(f'v_xor_b32 v{vA3}, s{sT0}, v{vA3}')
    e(f's_add_u32 s{sE}, s{sE}, 1')
    mktag(vTg2, sE, sT0)
    xcc(sPa)
    e(f'v_xor_b32 v{vTg2+3}, s{sPa}, v{vTg2+3}')
    e(f's_mov_b32 s12, s{sOut}'); e(f's_mov_b32 s13, s{sOut+1}'); e('s_mov_b32 s14, 8192')
    e(f's_mov_b32 s{sSpin}, {SPIN}')
    e(f's_cmp_lg_u32 s{sW}, s{sB}')
    e('s_waitcnt lgkmcnt(0)')
    e('s_barrier')
    if chan == 'tail': e('s_memrealtime s[90:91]')
    e('s_cbranch_scc1 L_x3first')
    for w in range(4): e(f'ds_read_b128 v[{vR + 4*w}:{vR + 4*w + 3}], v{vL} offset:{L_O + w * 1024}')
    e('s_waitcnt lgkmcnt(2)')
    for r in range(4): e(f'v_add_f32 v{vD + r}, v{vR + r}, v{vR + 4 + r}')
    e('s_waitcnt lgkmcnt(0)')
    for r in range(4): e(f'v_add_f32 v{vR + 8 + r}, v{vR + 8 + r}, v{vR + 12 + r}')
    for r in range(4): e(f'v_add_f32 v{vD + r}, v{vD + r}, v{vR + 8 + r}')
    for r in range(4): tag(vD + r, vTg)
    e(f'buffer_store_dwordx4 v[{vD}:{vD+3}], v{vA3}, s[8:11], s{sX3} offen sc1')
    for r in range(4): e(f'v_xor_b32 v{vR + r}, v{vD + r}, v{vTg + r}')
    e(f's_cmp_eq_u32 s{sSide}, 0')
    e('s_cselect_b32 exec_lo, 0, -1'); e('s_cselect_b32 exec_hi, -1, 0')
    e('L_x3first:')
    e(f'buffer_load_dwordx4 v[{vR}:{vR+3}], v{vX3}, s[8:11], s{sX3} offen sc1')
    e('s_barrier')
    e('s_branch L_x3w')
    e('L_x3spin:')
    if half3:
        e('s_cmp_eq_u32 vcc_lo, 0'); e('s_cselect_b32 exec_lo, 0, exec_lo')
        e('s_cmp_eq_u32 vcc_hi, 0'); e('s_cselect_b32 exec_hi, 0, exec_hi')
    if s3: e(f's_sleep {s3}')
    e(f'buffer_load_dwordx4 v[{vR}:{vR+3}], v{vX3}, s[8:11], s{sX3} offen sc1')
    e('L_x3w:')
    e(f's_sub_u32 s{sSpin}, s{sSpin}, 1'); e('s_cbranch_scc1 L_x3out')
    e('s_waitcnt vmcnt(0)')
    check(range(vR, vR + 4), vR + 4, vTg)
    e('s_cbranch_vccnz L_x3spin')
    e('L_x3out:')
    e('s_mov_b64 exec, -1')
    e('s_waitcnt vmcnt(0)')
    e(f'v_permlane32_swap_b32 v{vR}, v{vR+2}')
    e(f'v_permlane32_swap_b32 v{vR+1}, v{vR+3}')
    e(f's_cmp_lg_u32 s{sW}, 0')
    e(f'v_add_f32 v{vR}, v{vR}, v{vR+2}')
    e(f'v_add_f32 v{vR+1}, v{vR+1}, v{vR+3}')
    e(f'v_cvt_pk_bf16_f32 v{vR}, v{vR}, v{vR+1}')
    e(f'ds_write_b32 v{vA}, v{vR} offset:{L_RED}')
    e('s_waitcnt lgkmcnt(0)')
    e('s_barrier')
    e('s_cbranch_scc1 L_end')
    stamp(10)
    e('s_barrier')
    if ys0: e(f's_sleep {ys0}')
    def yload():
        for k in range(2): e(f'buffer_load_dwordx4 v[{vR + 4*k}:{vR + 4*k + 3}], v{vX4}, s[8:11], s{sX4a + k} offen sc1')
    if lazy:
        e(f's_mov_b32 s{sSpin}, {fast}')
        e('L_x4:')
        if s4: e(f's_sleep {s4}')
        yload()
        e(f's_sub_u32 s{sSpin}, s{sSpin}, 1'); e('s_cbranch_scc1 L_x4s')
        e('s_waitcnt vmcnt(0)')
        check(range(vR, vR + 8), vR + 8, vTg2)
        e('s_cbranch_vccnz L_x4')
        e('L_x4x:')
    elif fast:
        e(f's_mov_b32 s{sSpin}, {SPIN}')
        e('L_x4:')
        yload()
        e(f's_cmp_eq_u32 s{sSpin}, {SPIN - fast}')
        e(f's_cselect_b32 s{sT0}, {YF}, 0')
        e(f's_sub_u32 s{sX4a}, s{sX4a}, s{sT0}'); e(f's_sub_u32 s{sX4b}, s{sX4b}, s{sT0}')
        e(f's_sub_u32 s{sSpin}, s{sSpin}, 1'); e('s_cbranch_scc1 L_x4x')
        e('s_waitcnt vmcnt(0)')
        check(range(vR, vR + 8), vR + 8, vTg2)
        e('s_cbranch_vccnz L_x4')
        e('L_x4x:')
        e('s_waitcnt vmcnt(0)')
    else:
        spin(SPIN, yload, 'vmcnt(0)', lambda: check(range(vR, vR + 8), vR + 8, vTg2))
    for r in range(4): e(f'v_add_f32 v{vR + r}, v{vR + r}, v{vR + 4 + r}')
    e(f'v_add_f32_dpp v{vR+4}, v{vR}, v{vR} row_ror:8 row_mask:0xf bank_mask:0x3')
    e(f'v_add_f32_dpp v{vR+5}, v{vR+1}, v{vR+1} row_ror:8 row_mask:0xf bank_mask:0x3')
    e('s_nop 0')
    e(f'v_add_f32_dpp v{vR+4}, v{vR+2}, v{vR+2} row_ror:8 row_mask:0xf bank_mask:0xc')
    e(f'v_add_f32_dpp v{vR+5}, v{vR+3}, v{vR+3} row_ror:8 row_mask:0xf bank_mask:0xc')
    e('s_nop 0')
    e(f'v_add_f32_dpp v{vR}, v{vR+4}, v{vR+4} row_shl:4 row_mask:0xf bank_mask:0x5')
    e('s_nop 1')
    e(f'v_add_f32_dpp v{vR}, v{vR+5}, v{vR+5} row_shr:4 row_mask:0xf bank_mask:0xa')
    for sw in ('v_permlane16_swap_b32', 'v_permlane32_swap_b32'):
        e(f'v_mov_b32 v{vR+1}, v{vR}'); e('s_nop 1'); e(f'{sw} v{vR+1}, v{vR}'); e('s_nop 0')
        e(f'v_add_f32 v{vR}, v{vR}, v{vR+1}')
    e(f'v_cvt_pk_bf16_f32 v{vR}, v{vR}, v{vR}')
    e('s_mov_b64 exec, 0xffff')
    e(f'buffer_store_short v{vR}, v{vOut}, s[12:15], s{sOo} offen {outp}')
    stamp(12)
    if diag: e('s_waitcnt vmcnt(0)')
    stamp(7)
    flush_stamps([5, 6, 7, 8, 10, 12])
    if chan:
        e('s_memrealtime s[86:87]'); e('s_waitcnt lgkmcnt(0)')
        if chan == 'tail':
            e('s_sub_u32 s86, s86, s90'); e('s_min_u32 s86, s86, 500'); e('s_sub_u32 s86, 500, s86'); e('s_mul_i32 s86, s86, 50')
        else:
            e('s_sub_u32 s86, s86, s80'); e('s_mul_i32 s86, s86, 10')
        e('s_add_u32 s86, s86, 20000')
        e('L_chan:'); e('s_memrealtime s[82:83]'); e('s_waitcnt lgkmcnt(0)'); e('s_sub_u32 s82, s82, s80')
        e('s_cmp_lt_u32 s82, s86'); e('s_cbranch_scc1 L_chan')
    e('s_cmp_lg_u32 s2, 0')
    e('s_cbranch_scc1 L_end')
    e('s_mov_b64 exec, 1')
    e(f'v_mov_b32 v{vR+2}, s{sE}')
    e(f's_mov_b32 s{sT0}, {EP}')
    e(f'buffer_store_dword v{vR+2}, off, s[8:11], s{sT0}')
    e('L_end:')
    e('s_endpgm')
    if lazy:
        e('L_x4s:')
        e(f'v_xor_b32 v{vTg2+3}, s{sPa}, v{vTg2+3}')
        for t in range(2):
            for w in range(4): e(f'ds_read_b128 v[{vWt + 4*w}:{vWt + 4*w + 3}], v{vL} offset:{L_Y + w * 2048 + t * 1024}')
            e('s_waitcnt lgkmcnt(0)')
            for r in range(4):
                e(f'v_add_f32 v{vWt + r}, v{vWt + r}, v{vWt + 4 + r}')
                e(f'v_add_f32 v{vWt + 8 + r}, v{vWt + 8 + r}, v{vWt + 12 + r}')
            for r in range(4): e(f'v_add_f32 v{vD + 4*t + r}, v{vWt + r}, v{vWt + 8 + r}')
            for r in range(4): tag(vD + 4*t + r, vTg2)
        e(f'v_xor_b32 v{vTg2+3}, s{sPa}, v{vTg2+3}')
        e(f'v_xor_b32 v{vA3}, 0x100, v{vA2}')
        e(f'buffer_store_dwordx4 v[{vD}:{vD+3}], v{vA2}, s[8:11], s{sDst} offen sc1')
        e(f'buffer_store_dwordx4 v[{vD+4}:{vD+7}], v{vA3}, s[8:11], s{sDst} offen sc1')
        def flipload():
            e(f's_xor_b32 s{sX4a}, s{sX4a}, {YF}'); e(f's_xor_b32 s{sX4b}, s{sX4b}, {YF}')
            e(f'v_xor_b32 v{vTg2+3}, s{sPa}, v{vTg2+3}')
            yload()
        e('s_waitcnt vmcnt(0)')
        spin(SPIN, flipload, 'vmcnt(0)', lambda: check(range(vR, vR + 8), vR + 8, vTg2))
        e('s_branch L_x4x')
    e('.section .rodata,"a"')
    e('.p2align 6')
    e(f'.amdhsa_kernel {NAME}_kernel')
    e('  .amdhsa_next_free_vgpr 256')
    e('  .amdhsa_next_free_sgpr 102')
    e('  .amdhsa_accum_offset 256')
    e('  .amdhsa_group_segment_fixed_size 0')
    e('  .amdhsa_kernarg_size 104')
    e('  .amdhsa_user_sgpr_count 2')
    e('  .amdhsa_user_sgpr_kernarg_segment_ptr 1')
    e('  .amdhsa_system_sgpr_workgroup_id_x 1')
    e('  .amdhsa_float_denorm_mode_32 3')
    e('.end_amdhsa_kernel')
    if ool:
        for lb in ('L_late2', 'L_late1', 'L_nc3'):
            if lb + ':' not in L: continue
            a = L.index(f's_cbranch_scc1 {lb}'); b = L.index(lb + ':'); c = L.index('L_service:')
            L[:] = L[:a] + [f's_cbranch_scc0 {lb}o'] + L[b:c] + [f'{lb}o:'] + L[a + 1:b] + [f's_branch {lb}'] + L[c:]
    if front:
        a = L.index('L_service:'); b = L.index('L_service2:'); c = L.index('s_cbranch_scc1 L_service')
        L[:] = L[:c] + ['s_cbranch_scc0 L_stream'] + L[a + 1:b] + ['s_branch L_service2', 'L_stream:'] + L[c + 1:a] + L[b:]
    i0 = L.index('L_kbody:'); i1 = L.index('L_service2:' if front else 'L_service:')
    spots = [i for i in range(i0, i1) if L[i].startswith('s_branch ')]
    if pads == 0: return '\n'.join(L) + '\n'
    if pads == 2:
        def size(x):
            if x.endswith(':') or x.startswith(('.', ';')): return 0
            if x.startswith(('buffer_', 'global_', 'ds_', 'v_')) or '0x' in x: return 8
            return 5
        j0 = L.index('L_late1:' if nearB else 'L_late0:'); j1 = L.index('L_end:')
        out = L[:j0]; acc = 0; k = 0
        for i in range(j0, len(L)):
            x = L[i]; out.append(x); acc += size(x)
            if i < j1 - 1 and (acc > padgap or (acc > padgap - 250 and x.startswith(('s_branch ', 's_endpgm')))):
                free = x.startswith(('s_branch ', 's_endpgm'))
                if not free: out.append(f's_branch L_pads{k}')
                out.append(f'L_padx{k}:'); out.append(f's_branch L_padx{k - 1}' if k else 's_branch L_padret2')
                if not free: out.append(f'L_pads{k}:')
                k += 1; acc = 8
        return '\n'.join(out).replace('L_padtop', f'L_padx{k - 1}') + '\n'
    out = []
    for i, x in enumerate(L):
        out.append(x)
        if i in spots:
            k = spots.index(i)
            out.append(f'L_pad{k}:')
            out.append(f's_branch L_pad{k + 4}' if k + 4 < len(spots) else 's_branch L_padret')
    return '\n'.join(out) + '\n'

if __name__ == '__main__':
    import ast
    for spec in sys.argv[1:]:
        name, _, opts = spec.partition(':')
        kw = {}
        for o in filter(None, opts.split(',')):
            k_, v_ = o.split('=')
            v_ = v_.replace('/', ',')
            try: kw[k_] = ast.literal_eval(v_)
            except Exception: kw[k_] = v_
        open(name, 'w').write(gen(**kw))
```

```python
import sys, math, struct
NAME = 'concat_heads__gqa_block_cached__sliding_block_cached__decode'

def f32(x): return '0x%08x' % struct.unpack('<I', struct.pack('<f', x))[0]
def br4(i): return ((i & 1) << 3) | ((i & 2) << 1) | ((i & 4) >> 1) | ((i & 8) >> 3)
def mask64(ns): return sum(1 << n for n in ns)

QP = 0x000000
YF = 0x080000
OP = 0x100000
ST = 0x140000
EP = 0x150000
RC = 0x160000
EV = 0x180000
PP = 0x200000
WS_USED = 0x600000
STAMP = 0x40000000
L_Q = 0
L_CNT = 512; L_LVL = 516
L_CN2 = 528
L_EV = 544
L_Z = 560
L_KAP = 576
L_QF = 592
L_ST = 1024
L_F = 1280
L_RED = 2048
L_O = L_RED + 8192
L_Y = L_O + 4096
L_W = L_Y + 2048
LDS_BYTES = L_W + 32768
SPIN = 1 << 17
DPPF = 'row_mask:0xf bank_mask:0xf'

HEADER = """
Kernarg layout (104 bytes, pointers only, base s[0:1]):
    0 A_x (4,1,512)   8 A_k (4,32,8192,128)  16 A_v   24 A_wq (512,4096)  32 A_wo (4096,512)
   40 B_x            48 B_k                  56 B_v   64 B_wq             72 B_wo
   80 d_out (4,1,1024) bf16   88 d_debug (unused)   96 d_ws
Generated by a script; everything below is hand-designed.

One launch, 256 workgroups (one per CU) x 8 waves.  wg = head*8 + half*4 + batch.
A pair (two halves) shares the keys of one (batch, head) in both branches.
Waves 0-3 stream 40 items of 16 KiB each: K_B, V_B, K_A, V_A, with non-temporal loads.
  scores: v_dot2_f32_bf16 + DPP transpose-reduce; p = exp2(s*c - max*c) per segment (true max);
  P.V: one 16x16x32 MFMA per load with p spread over a diagonal A operand.
  The number of loads in flight is kept near the bandwidth knee and follows the arrival rank
  at a few checkpoints, so that all workgroups finish together.
  At the end these waves load their slice of wo and apply it.
Waves 4-7 compute a slice of q = x.wq, combine softmax statistics, gather partial results.
One pair in eight splits its keys by memory die (found by timing a few single loads; a wrong
  answer only costs speed), which keeps the die-to-die link below saturation.
Hand-offs go through d_ws.  Every handed-off word carries this launch's epoch (the word found at
  d_ws+0x150000, plus 1 or 2), which readers strip again; all waits are bounded.
"""

def gen(DB=6, early=6, rc=(5, 6, 7), rcv=(5, 5.5, 6.5), xlo=4.5, nmap=(4, 0, 2), lvl0=0, lvlc=1, th=(3, 6),
        cks=(6, 10, 14, 18, 22, 26, 29, 32, 34, 36), mix=3, rcat=7, endb=2, prek=2, cls=(8, 1), nearB=1, up=(), uplvl=2, dn=(), dnlvl=0, kfull=0, qs=0, qs0=0, afirst=1, xfirst=0, ys0=0, outp='', ylay=0, emap=None, enmap=None, dmax=15, bsh=None, front=1, burst=0, abl=0, qflag=1, pb=0, DC=7, DN=8, selfp=2, clip0=1500, pfirst=1, l2w=0, pads=1, padgap=950, ool=1, fast=48, preown=0, sdelay=0, fpol='', lazy=1, xfake=0, s3=0, s4=0, half3=0, wpre=0, w1=0, w2=2, flay=0, olin=0, sl1=0, sl2=0, prio=0,
        sh0=2, shots=(2, 8, 12, 16), shA=4, clip=200, pmin=400, fat=36, diag=False, chan=None, flip=0):
    L = []; e = L.append
    outp = outp.replace('_', ' ')
    cnt = [0]
    def lab(p):
        cnt[0] += 1
        return f'L_{p}{cnt[0]}'
    for line in HEADER.strip('\n').split('\n'): e(('; ' + line).rstrip())
    e(f'; @launch grid=(256,1,1) block=(512,1,1) lds={LDS_BYTES}')
    e('.amdgcn_target "amdgcn-amd-amdhsa--gfx950"')
    e('.text')
    e(f'.globl {NAME}_kernel')
    e('.p2align 8')
    e(f'.type {NAME}_kernel,@function')
    e(f'{NAME}_kernel:')
    sAx, sAk, sAv, sAwq, sAwo, sBx, sBk, sBv = 16, 18, 20, 22, 24, 26, 28, 30
    sBwq, sBwo, sOut, sDbg, sWs = 32, 34, 36, 38, 40
    sW, sH, sJ, sB, sSide = 42, 43, 44, 45, 46
    sU = 3
    sT0, sT1, sT2 = 47, 48, 49
    sCls, sSpin = 51, 52
    sE, sTag, sNF = 74, 75, 76
    e('s_cmp_ge_u32 s2, 256')
    e('s_cbranch_scc1 L_end')
    e('s_load_dwordx16 s[16:31], s[0:1], 0')
    e('s_load_dwordx8 s[32:39], s[0:1], 64')
    e('s_load_dwordx2 s[40:41], s[0:1], 96')
    if diag or chan: e('s_memrealtime s[80:81]')
    e('v_lshrrev_b32 v1, 6, v0')
    e('v_and_b32 v0, 63, v0')
    e(f'v_readfirstlane_b32 s{sW}, v1')
    e(f's_lshr_b32 s{sH}, s2, 3')
    e(f's_and_b32 s{sJ}, s2, 7')
    e(f's_and_b32 s{sU}, s2, 3')
    if bsh is None:
        e(f's_mov_b32 s{sB}, s{sU}')
    else:
        e(f's_lshr_b32 s{sB}, s2, {3 + bsh}'); e(f's_add_u32 s{sB}, s{sB}, s2'); e(f's_and_b32 s{sB}, s{sB}, 3')
    e(f's_lshr_b32 s{sSide}, s{sJ}, 2')
    e(f's_mul_i32 s{sT0}, s{sU}, {max(1, cls[0] // 4)}'); e(f's_add_u32 s{sT0}, s{sT0}, s{sH}')
    e(f's_and_b32 s{sT0}, s{sT0}, {cls[0] - 1}')
    e(f's_cmp_lt_u32 s{sT0}, {cls[1]}')
    e(f's_cselect_b32 s{sCls}, 1, 0')
    e('s_mov_b32 s7, 0x20000')
    e('s_mov_b32 s11, 0x20000')
    e(f's_mov_b32 s10, {WS_USED if not diag else 0x41000000}')
    e(f's_mov_b32 s{sNF}, 0xffffff00')
    e(f's_cmp_ge_u32 s{sW}, 4')
    e('s_cbranch_scc1 L_service')

    def stamp(idx, only_wave=None):
        if not diag: return
        l = lab('st')
        if only_wave is not None:
            e(f's_cmp_lg_u32 s{sW}, {only_wave}'); e(f's_cbranch_scc1 {l}')
        e('s_memrealtime s[82:83]'); e('s_waitcnt lgkmcnt(0)')
        e(f'v_writelane_b32 v254, s82, {idx}'); e(f'v_writelane_b32 v255, s83, {idx}')
        e(f'{l}:')
    def flush_stamps(idxs):
        if not diag: return
        l = lab('fw')
        e(f'{l}:'); e('s_sleep 32'); e('s_memrealtime s[82:83]'); e('s_waitcnt lgkmcnt(0)'); e('s_sub_u32 s82, s82, s80')
        e('s_cmp_lt_u32 s82, 11000'); e(f's_cbranch_scc1 {l}')
        e('s_lshl_b32 s84, s2, 7'); e(f's_add_u32 s84, s84, {STAMP}')
        e('s_mov_b64 exec, -1'); e('v_lshlrev_b32 v253, 3, v0'); e(f's_mov_b64 exec, {mask64(idxs)}')
        e('buffer_store_dwordx2 v[254:255], v253, s[8:11], s84 offen')
    def if_class(target, want):
        e(f's_cmp_eq_u32 s{sCls}, {want}'); e(f's_cbranch_scc1 {target}')
    def load_epoch():
        e(f's_mov_b32 s{sE}, {EP}')
        e(f's_load_dword s{sE}, s[{sWs}:{sWs+1}], s{sE}')
    def mktag(vTag, sEp, tmp):
        for k in range(4):
            if k:
                e(f's_lshr_b32 s{tmp}, s{sEp}, {8 * k}'); e(f's_xor_b32 s{tmp}, s{tmp}, s{sEp}'); e(f's_and_b32 s{tmp}, s{tmp}, 0xff')
            else:
                e(f's_and_b32 s{tmp}, s{sEp}, 0xff')
            e(f'v_mov_b32 v{vTag + k}, s{tmp}')
    def tag(r, vTag): e(f'v_and_or_b32 v{r}, v{r}, s{sNF}, v{vTag + (r & 3)}')
    def xcc(dst):
        e(f's_getreg_b32 s{dst}, hwreg(HW_REG_XCC_ID, 0, 4)')
        if xfake: e(f's_lshr_b32 s{dst}, s2, 7')
    def check(regs, t, vTag):
        regs = list(regs)
        assert regs[0] % 4 == 0
        for r in regs: e(f'v_xor_b32 v{r}, v{r}, v{vTag + (r & 3)}')
        e(f'v_or3_b32 v{t}, v{regs[0]}, v{regs[1]}, v{regs[2]}')
        rest = regs[3:]
        while len(rest) >= 2:
            e(f'v_or3_b32 v{t}, v{t}, v{rest[0]}, v{rest[1]}'); rest = rest[2:]
        e(f'v_bitop3_b32 v{t}, v{t}, v{rest[0]}, s{sNF} bitop3:0x54')
        e(f'v_cmp_ne_u32 vcc, 0, v{t}')
    def spin(n, loads, wait, test, again='vccnz', sleep=0):
        l = lab('sp')
        e(f's_mov_b32 s{sSpin}, {n}')
        e(f'{l}:')
        if sleep: e(f's_sleep {sleep}')
        loads()
        e(f's_sub_u32 s{sSpin}, s{sSpin}, 1'); e(f's_cbranch_scc1 {l}x')
        e(f's_waitcnt {wait}')
        test()
        e(f's_cbranch_{again} {l}')
        e(f'{l}x:')
        e(f's_waitcnt {wait}')
    def rowred(op, r):
        for ctl in ('quad_perm:[1,0,3,2]', 'quad_perm:[2,3,0,1]', 'row_half_mirror', 'row_mirror'):
            e('s_nop 1')
            e(f'{op}_dpp v{r}, v{r}, v{r} {ctl} {DPPF}')
    def allred(op, r, tmp):
        rowred(op, r)
        for sw in ('v_permlane16_swap_b32', 'v_permlane32_swap_b32'):
            e(f'v_mov_b32 v{tmp}, v{r}'); e('s_nop 1'); e(f'{sw} v{tmp}, v{r}'); e('s_nop 1')
            e(f'{op} v{r}, v{r}, v{tmp}')
    sE0, sE1, sPa, sCnt, sTm, sRd, sPr, sRn = 92, 93, 94, 95, 96, 100, 101, 69
    def probe_loop(srd='s[12:15]'):
        l = lab('pr')
        e(f'{l}:')
        e(f's_memtime s[{sTm}:{sTm+1}]')
        e(f's_and_b32 s{sT2}, s{sRn}, 0x3df80')
        e(f's_xor_b32 s{sT2}, s{sT2}, s{sPa}')
        e('s_waitcnt lgkmcnt(0)')
        e(f's_buffer_load_dword s{sPr}, {srd}, s{sT2}')
        e('s_waitcnt lgkmcnt(0)')
        e(f's_memtime s[{sTm+2}:{sTm+3}]')
        e('s_waitcnt lgkmcnt(0)')
        e(f's_sub_u32 s{sT0}, s{sTm+2}, s{sTm}')
        e(f's_cmp_lt_u32 s{sT0}, {pmin}')
        e(f's_cselect_b32 s{sT0}, 0x10000, s{sT0}')
        e(f's_bitcmp1_b32 s{sPa}, 13')
        e(f's_cselect_b32 s{sT1}, 0x10000, s{sT0}')
        e(f's_cselect_b32 s{sT0}, s{sT0}, 0x10000')
        e(f's_min_u32 s{sE0}, s{sE0}, s{sT1}')
        e(f's_min_u32 s{sE1}, s{sE1}, s{sT0}')
        e(f's_xor_b32 s{sPa}, s{sPa}, 0x2000')
        e(f's_add_u32 s{sRn}, s{sRn}, s{sTm+2}')
        e(f's_mul_i32 s{sRn}, s{sRn}, 0x9e3779b1')
        e(f's_lshr_b32 s{sT0}, s{sRn}, 14')
        e(f's_xor_b32 s{sRn}, s{sRn}, s{sT0}')
        e(f's_sub_u32 s{sCnt}, s{sCnt}, 1')
        e(f's_cmp_lg_u32 s{sCnt}, 0')
        e(f's_cbranch_scc1 {l}')
    def evidence(vR, lead, nv, sE, skip, clip=clip):
        e(f's_sub_i32 s{sE0}, s{sE0}, s{sE1}'); e(f's_min_i32 s{sE0}, s{sE0}, {clip}'); e(f's_max_i32 s{sE0}, s{sE0}, {-clip}')
        e(f's_lshl_b32 s{sT0}, s{sRd}, 2')
        e('s_mov_b64 exec, 1')
        e(f'v_mov_b32 v{vR}, s{sT0}'); e(f'v_mov_b32 v{vR+1}, s{sE0}'); e(f'v_mov_b32 v{vR+2}, 1')
        e(f'ds_add_u32 v{vR}, v{vR+1} offset:{L_EV}')
        e(f'ds_add_u32 v{vR}, v{vR+2} offset:{L_CN2}')
        e(f's_cmp_lg_u32 s{sW}, {lead}'); e(f's_cbranch_scc1 {skip}')
        spin(SPIN * 8, lambda: e(f'ds_read_b32 v{vR+2}, v{vR} offset:{L_CN2}'), 'lgkmcnt(0)', lambda: e(f'v_cmp_ne_u32 vcc, {nv}, v{vR+2}'))
        e(f'ds_read_b32 v{vR+4}, v{vR} offset:{L_EV}')
        for r in range(5, 8): e(f'v_mov_b32 v{vR+r}, s{sE}')
        e(f's_lshl_b32 s{sT0}, s2, 8'); e(f's_lshl_b32 s{sT1}, s{sRd}, 6'); e(f's_add_u32 s{sT0}, s{sT0}, s{sT1}')
        e(f's_add_u32 s{sT0}, s{sT0}, {EV}'); e(f's_xor_b32 s{sT1}, s{sT0}, 0x400')
        e('s_waitcnt lgkmcnt(0)')
        e(f'buffer_store_dwordx4 v[{vR+4}:{vR+7}], off, s[8:11], s{sT0} sc1')
        def evtest():
            e(f'v_xor_b32 v{vR+9}, s{sE}, v{vR+9}'); e(f'v_xor_b32 v{vR+10}, s{sE}, v{vR+10}')
            e(f'v_or_b32 v{vR+9}, v{vR+9}, v{vR+10}')
            e(f'v_cmp_ne_u32 vcc, 0, v{vR+9}')
        spin(SPIN, lambda: e(f'buffer_load_dwordx4 v[{vR+8}:{vR+11}], off, s[8:11], s{sT1} sc1'), 'vmcnt(0)', evtest)
        e(f'v_sub_u32 v{vR+2}, v{vR+4}, v{vR+8}')
        e(f'v_sub_u32 v{vR+3}, v{vR+8}, v{vR+4}')
        e(f's_cmp_eq_u32 s{sSide}, 0')
        e('s_cselect_b64 vcc, -1, 0')
        e(f'v_cndmask_b32 v{vR+2}, v{vR+3}, v{vR+2}, vcc')
        if diag:
            e(f's_lshl_b32 s84, s2, 4'); e(f's_add_u32 s84, s84, {STAMP + 0x18000}')
            e(f'buffer_store_dword v{vR+2}, v{vR}, s[8:11], s84 offen')
        e(f'v_cmp_lt_i32 vcc, 0, v{vR+2}')
        e('s_nop 1')
        e(f'v_cndmask_b32 v{vR+2}, 0, 1, vcc')
        e(f'v_xor_b32 v{vR+2}, s{sSide}, v{vR+2}')
        e(f'ds_write_b32 v{vR}, v{vR+2} offset:{L_KAP}')
    def probe_seed(w0):
        e(f's_lshl_b32 s{sT0}, s{sB}, 5'); e(f's_add_u32 s{sT0}, s{sT0}, s{sH}'); e(f's_lshl_b32 s{sPa}, s{sT0}, 21')
        e(f's_lshl_b32 s{sT0}, s{sSide}, 18'); e(f's_add_u32 s{sPa}, s{sPa}, s{sT0}')
        e(f's_sub_u32 s{sT0}, s{sW}, {w0}'); e(f's_mul_i32 s{sT0}, s{sT0}, 0x82000'); e(f's_and_b32 s{sT0}, s{sT0}, 0x182000'); e(f's_add_u32 s{sPa}, s{sPa}, s{sT0}')
        e(f's_memtime s[{sTm}:{sTm+1}]'); e('s_waitcnt lgkmcnt(0)')
        e(f's_mul_i32 s{sRn}, s{sTm}, 0x9e3779b1'); e(f's_lshr_b32 s{sRn}, s{sRn}, 9')
    def smask(s, ns):
        m = mask64(ns)
        e(f's_mov_b32 s{s}, 0x{m & 0xffffffff:08x}'); e(f's_mov_b32 s{s+1}, 0x{m >> 32:08x}')

    X0, X1, X2 = 60, 124, 188
    vOff = 2; vL16 = 6; vPd = 7; vQ = 8; vS = 12; vT = 20; vMask = 44; vAcc = 48; vAccB = 52; vP = 56
    vPA = 124; vMl = 128; vF = 132; vLv = 156; vZz = 157; vPat = 160; vPs = 164; vPPa = 168
    vW = 124; vWa = 170; vYa = 171; vTg2 = 248; vYw = 173; vYr = 174; vBt = 176; vAo = 208; vDD = 224; vAr = 244
    sLvl = 50; sOff, sN = 53, 54; sKp = 55; sCk, sRc, sRk = 56, 58, 59; sM3, sM4 = 60, 62; sC = 64; sIsC = 65
    sKV = 66; sXB = 67; sMap = 68; sHk = 70; sWb, sSeg = 72, 73; sX = 77; sVk = 78; sLh = 86
    sYd = 75; s7f = 85; sPPa = 88; sPPb = 89
    T = vT
    if prio: e(f's_setprio {prio}')
    e(f'v_lshlrev_b32 v{vL16}, 4, v0')
    e(f'v_bfe_u32 v{vOff+1}, v0, 4, 1')
    e(f'v_lshl_add_u32 v{vOff}, v{vOff+1}, 15, v{vL16}')
    e(f'v_lshrrev_b32 v{vOff+1}, 5, v0')
    e(f'v_lshl_add_u32 v{vOff}, v{vOff+1}, 13, v{vOff}')
    e(f's_lshl_b32 s{sT0}, s{sW}, 8'); e(f's_lshl_b32 s{sT1}, s{sSide}, 13'); e(f's_or_b32 s{sT0}, s{sT0}, s{sT1}')
    e(f'v_xor_b32 v{vOff}, s{sT0}, v{vOff}')
    for j in range(1, 4): e(f'v_xor_b32 v{vOff+j}, {(j << 8) | ((j >> 1) << 16)}, v{vOff}')
    e(f's_lshl_b32 s{sT0}, s{sB}, 5'); e(f's_add_u32 s{sT0}, s{sT0}, s{sH}'); e(f's_lshl_b32 s{sWb}, s{sT0}, 21')
    e(f's_and_b32 s{sT0}, s{sW}, 1'); e(f's_lshl_b32 s{sT0}, s{sT0}, 12'); e(f's_add_u32 s{sWb}, s{sWb}, s{sT0}')
    e(f's_lshr_b32 s{sT0}, s{sW}, 1'); e(f's_lshl_b32 s{sT0}, s{sT0}, 14'); e(f's_add_u32 s{sWb}, s{sWb}, s{sT0}')
    e(f's_add_u32 s{sOff}, s{sWb}, 0x180000')
    e('s_mov_b32 s6, 0x10000000')
    e(f's_mov_b32 s{sKp}, 0')
    if nearB: e(f's_cmp_eq_u32 s{sCls}, 1')
    e('s_waitcnt lgkmcnt(0)')
    e(f's_mov_b32 s4, s{sBk}'); e(f's_mov_b32 s5, s{sBk+1}')
    def issue(buf, i):
        v = buf + 4 * i
        e(f'buffer_load_dwordx4 v[{v}:{v+3}], v{vOff + (i >> 2)}, s[4:7], s{sOff} offen offset:{(i & 3) * 1024} nt')
    def kappa(rnd, dst):
        e(f'v_mov_b32 v{T+1}, 0')
        spin(SPIN * 8, lambda: e(f'ds_read_b32 v{T}, v{T+1} offset:{L_KAP + 4 * rnd}'), 'lgkmcnt(0)',
             lambda: e(f'v_cmp_eq_u32 vcc, -1, v{T}'))
        e(f'v_readfirstlane_b32 s{dst}, v{T}')
        e(f's_and_b32 s{dst}, s{dst}, 1')
        if flip >> rnd & 1: e(f's_xor_b32 s{dst}, s{dst}, 1')
    def go_near():
        for j in range(4): e(f'v_and_b32 v{vOff + j}, 0xffffdfff, v{vOff + j}')
    def switch(ptr, kap, base):
        e(f's_mov_b32 s4, s{ptr}'); e(f's_mov_b32 s5, s{ptr+1}')
        e(f's_lshl_b32 s{sT0}, s{kap}, 13'); e(f's_add_u32 s{sOff}, s{sWb}, s{sT0}')
        e(f's_add_u32 s{sOff}, s{sOff}, {base & 0xffffffff}')
    if nearB: e('s_cbranch_scc1 L_late0')
    for i in range(early): issue(X1, i)
    if nearB and selfp:
        e('s_branch L_late0b')
        e('L_late0:')
        e(f's_buffer_load_dword s{sPr}, s[4:7], s{sOff}')
        e('L_late0b:')
    else:
        e('L_late0:')
    load_epoch()
    e(f's_mov_b32 s8, s{sWs}'); e(f's_mov_b32 s9, s{sWs+1}')
    if diag: e('v_writelane_b32 v254, s80, 0'); e('v_writelane_b32 v255, s81, 0')
    e(f's_mov_b32 s{sM3}, 0xcccccccc'); e(f's_mov_b32 s{sM3+1}, 0xcccccccc')
    e(f's_mov_b32 s{sM4}, 0xaaaaaaaa'); e(f's_mov_b32 s{sM4+1}, 0xaaaaaaaa')
    e(f's_mov_b32 s{sC}, {f32(128 ** -0.5 * math.log2(math.e))}')
    e(f'v_and_b32 v{T}, 15, v0')
    e(f'v_lshlrev_b32 v1, 4, v{T}')
    e(f'v_and_b32 v{T+1}, 1, v0')
    e(f'v_lshlrev_b32 v{T+1}, 4, v{T+1}')
    e(f'v_mov_b32 v{T+2}, 0xffff')
    e(f'v_lshlrev_b32 v{T+2}, v{T+1}, v{T+2}')
    e(f'v_lshrrev_b32 v{T}, 1, v{T}')
    for r in range(4):
        e(f'v_cmp_eq_u32 vcc, {4 + r}, v{T}')
        e(f'v_mov_b32 v{vAcc + r}, 0')
        e(f'v_mov_b32 v{vS + r}, 0xff800000')
        e(f'v_cndmask_b32 v{vMask + r}, 0, v{T+2}, vcc')
    e(f'v_mov_b32 v{vS + 4}, 0xff800000')
    smask(sHk, [4, 7, 8, 16, 23, 24, 32, fat, 39, 40])
    smask(sVk, list(range(5, 9)) + list(range(25, 41)))
    smask(sLh, [4, 16, 24])
    if up: smask(88, up)
    if dn: smask(90, dn)
    m = mask64(cks)
    e(f's_cmp_eq_u32 s{sW}, 0')
    e(f's_cselect_b32 s{sCk}, 0x{m & 0xffffffff:08x}, 0'); e(f's_cselect_b32 s{sCk+1}, 0x{m >> 32:08x}, 0')
    e(f's_lshl_b32 s{sRc}, s{sH}, 8'); e(f's_add_u32 s{sRc}, s{sRc}, {RC}')
    e(f's_mov_b32 s{sMap}, 0x210'); e(f's_mov_b32 s{sLvl}, {lvl0}')
    e(f's_mov_b32 s{sKV}, 0'); e(f's_mov_b32 s{sX}, 0'); e(f's_mov_b32 s{sXB}, 0')
    e(f's_mov_b32 s{sN}, 4'); e(f's_mov_b32 s{sSeg}, 2')
    e(f's_cmp_eq_u32 s{sSide}, 0')
    e(f's_cselect_b64 s[12:13], s[{sAwo}:{sAwo+1}], s[{sBwo}:{sBwo+1}]')
    e('s_mov_b32 s14, 0x400000'); e('s_mov_b32 s15, 0x20000')
    def selfprobe():
        probe_seed(0)
        e(f's_mov_b32 s{sE0}, 0x10000'); e(f's_mov_b32 s{sE1}, 0x10000'); e(f's_mov_b32 s{sRd}, 0'); e(f's_mov_b32 s{sCnt}, {selfp}')
        probe_loop('s[4:7]')
    if nearB and pfirst:
        if_class('L_late2', 0)
        selfprobe()
        e('L_late2:')
    e('s_barrier')
    if nearB:
        if_class('L_late1', 0)
        if selfp:
            if not pfirst: selfprobe()
            e(f's_add_u32 s{sPr}, s{sE}, 1')
            evidence(vT + 4, 0, 4, sPr, 'L_sp0', clip0)
            e('L_sp0:')
            e('s_mov_b64 exec, -1')
        kappa(0, sKp)
        go_near()
        e(f's_lshl_b32 s{sT0}, s{sKp}, 13'); e(f's_add_u32 s{sOff}, s{sOff}, s{sT0}')
        e(f's_mov_b32 s{sLvl}, {lvlc}')
        for i in range(early): issue(X1, i)
        e('L_late1:')
    def qread():
        e(f'ds_read_b32 v{vP}, v{vPd} offset:{L_QF}')
        e(f'ds_read_b128 v[{vQ}:{vQ+3}], v1 offset:{L_Q + 256}')
    k = 0
    for buf in (X1, X2, X0):
        for i in range(16):
            if k >= early:
                if qflag and k == 46:
                    e(f'v_mov_b32 v{vPd}, 0')
                    qread()
                if nearB and DN:
                    if i == 0 or k == early: e(f's_cmp_eq_u32 s{sCls}, 1')
                    e(f's_waitcnt vmcnt({DN - 1})'); e(f's_cbranch_scc1 L_pf{k}')
                if k >= max(DB, burst) and k < 48 - pb: e(f's_waitcnt vmcnt({max(DB, burst - (k - burst) // 2) - 1})')
                if nearB and DN: e(f'L_pf{k}:')
                issue(buf, i)
            k += 1
        e(f's_add_u32 s{sOff}, s{sOff}, 0x20000')
    stamp(1, 0)
    if qflag:
        e('s_waitcnt lgkmcnt(0)')
        e(f'v_cmp_ne_u32 vcc, 0, v{vP}')
        e('s_cbranch_vccz L_qok')
        spin(SPIN * 8, qread, 'lgkmcnt(0)', lambda: e(f'v_cmp_ne_u32 vcc, 0, v{vP}'))
        e('L_qok:')
    else:
        e('s_barrier')
        e(f'ds_read_b128 v[{vQ}:{vQ+3}], v1 offset:{L_Q + 256}')
        e('s_waitcnt lgkmcnt(0)')
    stamp(2, 0)

    def setflags():
        if up:
            e(f's_bitcmp1_b64 s[88:89], s{sN}'); e(f's_cselect_b32 s{sLvl}, {uplvl}, s{sLvl}')
        if dn:
            e(f's_bitcmp1_b64 s[90:91], s{sN}'); e(f's_cselect_b32 s{sLvl}, {dnlvl}, s{sLvl}')
        e(f's_cmp_ge_u32 s{sN}, {41 - endb}')
        e(f's_cselect_b32 s{sLvl}, 3, s{sLvl}')
        e(f's_bitcmp0_b32 s{sLvl}, 0')
        e('s_cselect_b64 vcc, -1, 0')
        e(f's_bitcmp1_b32 s{sLvl}, 1')
    def body_begin(t):
        if diag:
            e('s_memrealtime s[82:83]'); e(f'v_cmp_eq_u32 vcc, s{sN}, v0'); e('s_waitcnt lgkmcnt(0)')
            e('v_mov_b32 v253, s82'); e('v_cndmask_b32 v252, v252, v253, vcc')
        e(f's_bitcmp1_b64 s[{sCk}:{sCk+1}], s{sN}')
        e(f's_cselect_b32 s{sIsC}, 1, 0')
        e(f's_cbranch_scc0 L_nt{t}')
        e(f's_mov_b32 s{sRk}, 1')
        e(f's_atomic_add s{sRk}, s[{sWs}:{sWs+1}], s{sRc} glc')
        e(f'L_nt{t}:')
        setflags()
    def throttle(t, i):
        if i == rcat:
            e(f's_cmp_eq_u32 s{sIsC}, 0')
            e(f's_cbranch_scc1 L_nu{t}')
            e('s_waitcnt lgkmcnt(0)')
            if mix:
                e(f's_mul_i32 s{sT0}, s{sJ}, {256 * mix}'); e(f's_add_u32 s{sT0}, s{sT0}, s{sRc}'); e(f's_and_b32 s{sT0}, s{sT0}, 0x1f00')
                e(f's_andn2_b32 s{sRc}, s{sRc}, 0x1f00'); e(f's_or_b32 s{sRc}, s{sRc}, s{sT0}')
            e(f's_add_u32 s{sRc}, s{sRc}, 8192')
            e(f's_cmp_ge_u32 s{sRk}, {th[0]}'); e(f's_cselect_b32 s{sT0}, 4, 0')
            e(f's_cmp_ge_u32 s{sRk}, {th[1]}'); e(f's_cselect_b32 s{sT0}, 8, s{sT0}')
            e(f's_lshr_b32 s{sT0}, s{sMap}, s{sT0}'); e(f's_and_b32 s{sT0}, s{sT0}, 7')
            e(f'v_mov_b32 v{vLv}, s{sT0}')
            e(f'ds_write_b32 v{vZz}, v{vLv} offset:{L_LVL}')
            e(f'L_nu{t}:')
            e(f's_bitcmp1_b32 s{sLvl}, 1')
        if i == rcat + 2:
            e(f'ds_read_b32 v{vLv}, v{vZz} offset:{L_LVL}')
        if i == rcat + 3:
            e('s_waitcnt lgkmcnt(0)')
            e(f'v_readfirstlane_b32 s{sLvl}, v{vLv}')
            setflags()
        pre = t == 'k' and i >= 16 - prek
        if pre and i == 16 - prek:
            e(f's_bitcmp1_b64 s[{sLh}:{sLh+1}], s{sN}')
            e('s_cselect_b64 vcc, 0, vcc')
            e(f's_cselect_b32 s{sT0}, 3, s{sLvl}')
            e(f's_bitcmp1_b32 s{sT0}, 1')
        fr = (0, 0.5, 0.25, 0.75)[i & 3]
        dd = [int(x + fr) for x in (rcv if t == 'v' else rc)]
        dx = int(xlo + fr)
        go = f'L_go{t}{i}'
        if t == 'v' or pre or kfull:
            e(f's_waitcnt vmcnt({dmax - 1})')
            e(f's_cbranch_scc0 L_lo{t}{i}')
            e(f's_cbranch_vccz {go}')
            e(f'L_lo{t}{i}:')
        e(f's_waitcnt vmcnt({dd[2]-1})')
        e(f's_cbranch_scc1 {go}')
        e(f's_waitcnt vmcnt({dd[1]-1})')
        if dx != dd[1]:
            e(f's_cbranch_vccz {go}')
            if dd[0] != dd[1]: e(f's_waitcnt vmcnt({dd[0]-1})')
        if dx != dd[0]:
            e(f's_cmp_eq_u32 s{sLvl}, 4')
            e(f's_cbranch_scc0 {go}')
            e(f's_waitcnt vmcnt({dx-1})')
            e(f's_cmp_eq_u32 s{sLvl}, 0')
        e(f'{go}:')
    def kops(buf, R):
        dots = [[] for _ in range(20)]; post = [[] for _ in range(20)]
        for i in range(16):
            t = R + i % 3; kk = buf + 4 * i
            dots[i].append(f'v_dot2_f32_bf16 v{t}, v{kk}, v{vQ}, 0')
            for r in range(1, 4): dots[i].append(f'v_dot2_f32_bf16 v{t}, v{kk + r}, v{vQ + r}, v{t}')
            a = R + 3 + ((i >> 1) & 1); b = R + 5 + ((i >> 2) & 1)
            bm1 = '0x3' if i % 2 == 0 else '0xc'
            bm2 = '0x5' if (i >> 1) % 2 == 0 else '0xa'
            post[i + 1].append(f'v_add_f32_dpp v{a}, v{t}, v{t} row_ror:8 row_mask:0xf bank_mask:{bm1}')
            if i % 2 == 1: post[i + 2].append(f'v_add_f32_dpp v{b}, v{a}, v{a} row_half_mirror row_mask:0xf bank_mask:{bm2}')
            if i % 4 == 3: post[i + 3].append(f'v_add_f32_dpp v{b}, v{b}, v{b} quad_perm:[2,3,0,1] {DPPF}')
            if i % 8 == 7:
                c = R + 7 if i == 7 else R + 5
                post[i + 3].append(f'v_cndmask_b32 v{c}, v{R+5}, v{R+6}, s[{sM3}:{sM3+1}]')
                post[i + 4].append(f'v_add_f32_dpp v{c}, v{c}, v{c} quad_perm:[1,0,3,2] {DPPF}')
        return [dots[i] + post[i] for i in range(20)]
    def kfinal(R, dst): e(f'v_cndmask_b32 v{dst}, v{R+7}, v{R+5}, s[{sM4}:{sM4+1}]')
    def ktail(sets):
        for s_ in range(16, 20):
            e('s_nop 2' if s_ == 16 else 's_nop 1')
            for st in sets:
                for op in st[s_]: e(op)
    sets = [kops(X0, vT), kops(X1, vT + 8), kops(X2, vT + 16)]
    for i in range(16):
        for op in sets[0][i]: e(op)
        if nearB and DN:
            if i == 0: e(f's_cmp_eq_u32 s{sCls}, 1')
            e(f's_waitcnt vmcnt({DN - 1})'); e(f's_cbranch_scc1 L_cf{i}')
        e(f's_waitcnt vmcnt({(DC or DB)-1})')
        if nearB and DN: e(f'L_cf{i}:')
        issue(X0, i)
        for st in sets[1:]:
            for op in st[i]: e(op)
    ktail(sets)
    kfinal(vT + 8, vS + 5); kfinal(vT + 16, vS + 6); kfinal(vT, vS + 7)
    e(f's_add_u32 s{sE}, s{sE}, 1')
    e(f'v_mov_b32 v{vZz}, 0')
    vWo = 136; sWo = 92
    e(f'v_lshrrev_b32 v{T}, 4, v0')
    e(f'v_and_b32 v{T+4}, 15, v0')
    e(f'v_lshlrev_b32 v{vWo}, 13, v{T}')
    e(f'v_lshl_add_u32 v{vWo}, v{T+4}, 4, v{vWo}')
    e(f'v_and_b32 v{T+1}, 16, v0')
    e(f'v_lshlrev_b32 v{T+1}, 3, v{T+1}')
    e(f'v_xor_b32 v{vWo}, v{T+1}, v{vWo}')
    for k in range(1, 4): e(f'v_xor_b32 v{vWo + k}, {32 * k}, v{vWo}')
    e(f's_lshl_b32 s{sWo}, s{sH}, 17'); e(f's_lshl_b32 s{sT1}, s{sU}, 8'); e(f's_add_u32 s{sWo}, s{sWo}, s{sT1}')
    e(f's_lshl_b32 s{sT1}, s{sW}, 15'); e(f's_add_u32 s{sWo}, s{sWo}, s{sT1}'); e(f's_add_u32 s{sWo+1}, s{sWo}, 4096')
    e(f's_lshl_b32 s{sT2}, s{sW}, 13'); e(f's_add_u32 m0, s{sT2}, {L_W}')
    if_class('L_nc3', 0)
    e(f'v_and_b32 v{T}, 3, v0')
    e(f'v_lshlrev_b32 v{T}, 3, v{T}')
    e(f's_and_b32 s{sT0}, s{sE}, 0xffffff00')
    e(f'v_lshrrev_b32 v{T}, v{T}, s{sT0}')
    e(f'v_mul_u32_u24 v{T+1}, 37, v0')
    e(f'v_xor_b32 v{T}, s{sE}, v{T}')
    e(f'v_xor_b32 v{T}, v{T+1}, v{T}')
    for r in range(4):
        e(f'v_bfe_u32 v{T+1}, v{T}, {2*r}, 1')
        e(f'v_bfe_u32 v{T+2}, v{T}, {2*r+1}, 1')
        e(f'v_lshlrev_b32 v{T+1}, 15, v{T+1}')
        e(f'v_lshl_or_b32 v{vPat + r}, v{T+2}, 31, v{T+1}')
    e(f's_mov_b32 s{s7f}, 0x7fff7fff')
    e(f'v_lshrrev_b32 v{T}, 4, v0')
    e(f'v_lshl_add_u32 v{vPPa}, v{T}, 15, v{vL16}')
    e(f's_and_b32 s{sT0}, s{sW}, 1'); e(f's_lshl_b32 s{sT0}, s{sT0}, 9')
    e(f'v_xor_b32 v{vPPa}, s{sT0}, v{vPPa}')
    e(f'v_xor_b32 v{vPPa+1}, 0x100, v{vPPa}')
    e(f's_lshr_b32 s{sT0}, s{sW}, 1'); e(f's_lshl_b32 s{sT0}, s{sT0}, 10')
    e(f's_and_b32 s{sT1}, s2, 15'); e(f's_lshl_b32 s{sT1}, s{sT1}, 11'); e(f's_add_u32 s{sT0}, s{sT0}, s{sT1}')
    e(f's_lshr_b32 s{sT1}, s2, 4'); e(f's_lshl_b32 s{sT1}, s{sT1}, 17'); e(f's_add_u32 s{sT0}, s{sT0}, s{sT1}')
    e(f's_add_u32 s{sPPa}, s{sT0}, {PP + 0x200000}')
    e(f's_xor_b32 s{sPPb}, s{sPPa}, 0x2000')
    e(f's_or_b32 s{sHk}, s{sHk}, 0x{mask64([22, 30, 31]):08x}')
    e(f's_mov_b32 s{sMap}, {nmap[0] | nmap[1] << 4 | nmap[2] << 8}')
    if nearB:
        kappa(1, sKV)
        e(f's_xor_b32 s{sXB}, s{sKp}, s{sKV}')
        e(f's_mov_b32 s{sX}, s{sXB}')
    e('L_nc3:')
    switch(sBv, sKV, 0x180000)
    stamp(3, 0)

    def body_end(name):
        e(f's_bitcmp1_b64 s[{sHk}:{sHk+1}], s{sN}')
        e('s_cbranch_scc1 L_hooks')
        e(f's_add_u32 s{sOff}, s{sOff}, 0x20000')
        e(f's_add_u32 s{sN}, s{sN}, 1')
        e(f's_branch {name}')
    e('L_kbody:')
    ks = kops(X0, vT)
    body_begin('k')
    for i in range(16):
        for op in ks[i]: e(op)
        if i < 7: e(f'v_mov_b32 v{vS + i}, v{vS + i + 1}')
        throttle('k', i)
        issue(X0, i)
    ktail([ks])
    kfinal(vT, vS + 7)
    body_end('L_kbody')

    e('L_vbody:')
    e(f'v_and_b32 v{vPd}, 0xffff, v{vP}')
    e(f'v_lshl_or_b32 v{vPd}, v{vPd}, 16, v{vPd}')
    for r in range(3): e(f'v_alignbit_b32 v{vP + r}, v{vP + r + 1}, v{vP + r}, 16')
    e(f'v_lshrrev_b32 v{vP+3}, 16, v{vP+3}')
    def vand(i):
        for r in range(4):
            e(f'v_and_b32_dpp v{vS + 4 * (i & 1) + r}, v{vPd}, v{vMask + r} row_newbcast:{br4(i)} {DPPF}')
    body_begin('v')
    vand(0)
    for i in range(16):
        if i < 15: vand(i + 1)
        a = vS + 4 * (i & 1); v = X0 + 4 * i
        e(f'v_mfma_f32_16x16x32_bf16 v[{vAcc}:{vAcc+3}], v[{a}:{a+3}], v[{v}:{v+3}], v[{vAcc}:{vAcc+3}]')
        throttle('v', i)
        issue(X0, i)
    body_end('L_vbody')

    w2 = max(w2, w1); wpre = max(wpre, w2)
    def wload(i0, i1):
        for i in range(i0, i1):
            if i == 4: e('s_add_u32 m0, m0, 4096'); e('s_nop 0')
            e(f'buffer_load_dwordx4 v{vWo + (i & 3)}, s[12:15], s{sWo + (i >> 2)} offen offset:{(i & 3) * 1024} nt lds')
    e('L_hooks:')
    e(f's_cmp_eq_u32 s{sN}, 40'); e('s_cbranch_scc1 L_sfin')
    for n in (39, 7, 8, 23, 32, fat, 22, 30, 31):
        e(f's_cmp_eq_u32 s{sN}, {n}'); e(f's_cbranch_scc1 L_h{n}')
    def pload(seg): e(f'buffer_load_dwordx4 v[{vPA}:{vPA+3}], v{vPPa + seg}, s[8:11], s{sPPb} offen sc1')
    def ptest():
        for r in range(4): e(f'v_xor_b32 v{vPA + r}, v{vPA + r}, v{vPat + r}')
        e(f'v_or3_b32 v{T}, v{vPA}, v{vPA+1}, v{vPA+2}')
        e(f'v_bitop3_b32 v{T}, v{T}, v{vPA+3}, s{s7f} bitop3:0x54')
        e(f'v_cmp_ne_u32 vcc, 0, v{T}')
    def pcheck(seg):
        l = lab('pc')
        e(f's_cmp_eq_u32 s{sX}, 0'); e(f's_cbranch_scc1 {l}')
        ptest()
        e(f's_cbranch_vccz {l}')
        spin(SPIN, lambda: pload(seg), 'vmcnt(0)', ptest)
        e(f'{l}:')
    for r in range(4): e(f'v_mov_b32 v{vP + r}, v{vPA + r}')
    e(f'v_max3_f32 v{T}, v{vS}, v{vS+1}, v{vS+2}')
    e(f'v_max3_f32 v{T+1}, v{vS+3}, v{vS+4}, v{vS+5}')
    e(f'v_max3_f32 v{T}, v{T}, v{vS+6}, v{vS+7}')
    e(f'v_max_f32 v{T}, v{T}, v{T+1}')
    allred('v_max_f32', T, T + 1)
    e(f'v_mul_f32 v{T+2}, s{sC}, v{T}')
    for r in range(8): e(f'v_fma_f32 v{vS + r}, v{vS + r}, s{sC}, -v{T+2}')
    for r in range(8): e(f'v_exp_f32 v{vS + r}, v{vS + r}')
    e(f'v_cmp_eq_u32 vcc, s{sSeg}, v0')
    for r in range(4): e(f'v_cvt_pk_bf16_f32 v{vPA + r}, v{vS + 2*r}, v{vS + 2*r + 1}')
    e(f'v_cndmask_b32 v{vMl}, v{vMl}, v{T+2}, vcc')
    for r in range(4): e(f'v_add_f32 v{vS + 2*r}, v{vS + 2*r}, v{vS + 2*r + 1}')
    e(f'v_add_f32 v{vS}, v{vS}, v{vS+2}')
    e(f'v_add_f32 v{vS+4}, v{vS+4}, v{vS+6}')
    e(f'v_add_f32 v{T}, v{vS}, v{vS+4}')
    allred('v_add_f32', T, T + 1)
    e(f'v_cndmask_b32 v{vMl+1}, v{vMl+1}, v{T}, vcc')
    if_class('L_fin2', 0)
    e(f's_cmp_eq_u32 s{sN}, 16'); e('s_cbranch_scc0 L_fin1')
    kappa(3, sKV)
    e(f's_xor_b32 s{sX}, s{sKp}, s{sKV}')
    e('L_fin1:')
    e(f's_cmp_eq_u32 s{sX}, 0'); e('s_cbranch_scc1 L_fin2')
    for r in range(4): e(f'v_and_or_b32 v{vPs + r}, v{vPA + r}, s{s7f}, v{vPat + r}')
    e(f's_and_b32 s{sT0}, s{sSeg}, 1'); e(f's_lshl_b32 s{sT0}, s{sT0}, 8')
    e(f'v_xor_b32 v{T}, s{sT0}, v{vPPa}')
    e(f'buffer_store_dwordx4 v[{vPs}:{vPs+3}], v{T}, s[8:11], s{sPPa} offen sc1')
    e(f's_cmp_eq_u32 s{sN}, 4'); e('s_cbranch_scc0 L_fin2')
    spin(SPIN, lambda: pload(0), 'vmcnt(0)', ptest)
    e('L_fin2:')
    e(f's_cmp_eq_u32 s{sN}, 4'); e('s_cbranch_scc0 L_fin3')
    e(f'ds_read_b128 v[{vQ}:{vQ+3}], v1 offset:{L_Q}')
    e(f'v_mov_b32 v{vP}, v{vPA+2}'); e(f'v_mov_b32 v{vP+1}, v{vPA+3}')
    e(f's_mov_b32 s{sSeg}, 0')
    e(f's_sub_u32 s{sPPa}, s{sPPa}, 0x200000'); e(f's_sub_u32 s{sPPb}, s{sPPb}, 0x200000')
    e('s_waitcnt lgkmcnt(0)')
    e('s_branch L_h_done')
    e('L_fin3:')
    e(f's_mov_b32 s{sSeg}, 1')
    e(f's_cmp_eq_u32 s{sN}, 24'); e('s_cbranch_scc0 L_h_done')
    stamp(14, 0)
    e(f's_lshl_b32 s{sT1}, s{sW}, 6')
    e(f'v_mov_b32 v{vMl+2}, s{sE}'); e(f'v_mov_b32 v{vMl+3}, s{sE}')
    e(f'v_add_u32 v{T}, s{sT1}, v{vL16}')
    e('s_mov_b64 exec, 15')
    e(f'ds_write_b128 v{T}, v[{vMl}:{vMl+3}] offset:{L_ST}')
    e('s_mov_b64 exec, -1')
    e('s_branch L_h_done')
    e('L_h7:')
    stamp(15, 0)
    if_class('L_h7b', 0)
    kappa(2, sKp)
    if not nearB: go_near()
    e('L_h7b:')
    switch(sAk, sKp, -0x20000)
    e('s_branch L_h_done')
    e('L_h8:')
    for r in range(4): e(f'v_mov_b32_dpp v{vMask + r}, v{vMask + r} row_ror:8 {DPPF}')
    for r in range(4): e(f'v_mov_b32 v{vAccB + r}, v{vAcc + r}')
    for r in range(4): e(f'v_mov_b32 v{vAcc + r}, 0')
    e('s_branch L_h_done')
    for n, seg in ((22, 0), (30, 1)):
        e(f'L_h{n}:')
        e(f's_cmp_eq_u32 s{sX}, 0'); e('s_cbranch_scc1 L_h_done')
        pload(seg)
        e('s_branch L_h_done')
    e('L_h31:')
    pcheck(1)
    e('s_branch L_h_done')
    e('L_h23:')
    pcheck(0)
    switch(sAv, sKV, -0x20000)
    e('s_branch L_h_done')
    e('L_h32:')
    if emap:
        e(f's_mov_b32 s{sMap}, {emap[0] | emap[1] << 4 | emap[2] << 8}')
        e(f's_cmp_eq_u32 s{sCls}, 1'); e(f's_cselect_b32 s{sMap}, {enmap[0] | enmap[1] << 4 | enmap[2] << 8}, s{sMap}')
    for r in range(4): e(f'v_mov_b32_dpp v{vMask + r}, v{vMask + r} row_ror:8 {DPPF}')
    for r in range(4): e(f'v_mov_b32 v{vP + r}, v{vPA + r}')
    e('s_branch L_h_done')
    e(f'L_h{fat}:')
    e(f's_xor_b32 s{sT0}, s{sSide}, s{sX}'); e(f's_lshl_b32 s{sT0}, s{sT0}, 2'); e(f's_add_u32 s{sT0}, s{sT0}, s{sW}'); e(f's_lshl_b32 s{sT0}, s{sT0}, 3')
    e(f's_xor_b32 s{sT1}, s{sSide}, s{sXB}'); e(f's_lshl_b32 s{sT1}, s{sT1}, 2'); e(f's_add_u32 s{sT1}, s{sT1}, s{sW}'); e(f's_lshl_b32 s{sT1}, s{sT1}, 3')
    e(f'v_lshrrev_b32 v{T+4}, 5, v0')
    e(f'v_lshl_add_u32 v{T}, v{T+4}, 6, s{sT0}')
    e(f'v_mov_b32 v{T+1}, s{sT1}')
    def fload():
        e(f'ds_read_b64 v[{vF}:{vF+1}], v{T} offset:{L_F}')
        e(f'ds_read_b64 v[{T+2}:{T+3}], v{T+1} offset:{L_F + 128}')
    def ftest():
        e(f'v_cmp_ne_u32 vcc, s{sE}, v{vF+1}')
        e(f'v_cmp_ne_u32 s[{sT1}:{sT1+1}], s{sE}, v{T+3}')
        e(f's_or_b64 vcc, vcc, s[{sT1}:{sT1+1}]')
    spin(SPIN * 8, fload, 'lgkmcnt(0)', ftest, again='scc1')
    for r in range(4): e(f'v_mul_f32 v{vAccB + r}, v{T+2}, v{vAccB + r}')
    e(f'v_lshlrev_b32 v1, 1, v1')
    e(f'v_lshl_add_u32 v1, v{T+4}, 9, v1')
    e(f'v_and_b32 v{T}, 16, v0')
    e(f's_lshl_b32 s{sT0}, s{sW}, 10')
    e(f'v_add3_u32 v1, v1, v{T}, s{sT0}')
    e('s_branch L_h_done')
    e('L_h39:')
    wload(0, w1)
    e('s_mov_b32 s6, 0')
    e('L_h_done:')
    e(f's_add_u32 s{sOff}, s{sOff}, 0x20000')
    e(f's_add_u32 s{sN}, s{sN}, 1')
    e(f's_bitcmp1_b64 s[{sVk}:{sVk+1}], s{sN}')
    e('s_cbranch_scc1 L_vbody')
    e('s_branch L_kbody')
    e('L_sfin:')
    e('s_nop 1')
    for r in range(4): e(f'v_mul_f32 v{vAcc + r}, v{vF}, v{vAcc + r}')
    for r in range(4): e(f'v_permlane32_swap_b32 v{vAcc + r}, v{vAccB + r}')
    for r in range(4): e(f'v_add_f32 v{vAcc + r}, v{vAcc + r}, v{vAccB + r}')
    e(f'ds_write_b128 v1, v[{vAcc}:{vAcc+3}] offset:{L_O}')
    wload(w1, w2)
    e('s_waitcnt lgkmcnt(0)')
    e('s_barrier')
    stamp(4, 0)
    e(f'v_lshrrev_b32 v{T}, 4, v0')
    e(f'v_and_b32 v{T+4}, 15, v0')
    wload(w2, wpre)
    e('s_barrier')
    wload(wpre, 8)
    e(f'v_bfe_u32 v{T+2}, v0, 2, 3')
    e(f's_lshl_b32 s{sT2}, s{sW}, 1')
    e(f'v_xor_b32 v{T+2}, s{sT2}, v{T+2}')
    e(f'v_lshlrev_b32 v{vYw}, 5, v{T+2}')
    e(f'v_lshl_add_u32 v{vYw}, v{T}, 8, v{vYw}')
    e(f'v_bfe_u32 v{T+2}, v0, 2, 2')
    e(f'v_lshl_add_u32 v{vYw}, v{T+2}, 10, v{vYw}')
    e(f'v_and_b32 v{T+2}, 3, v0')
    e(f'v_lshl_add_u32 v{vYw}, v{T+2}, 3, v{vYw}')
    e(f'v_xor_b32 v{vYr}, 32, v{vYw}')
    e(f'v_lshlrev_b32 v{vAr}, 6, v{T+4}')
    e(f'v_lshl_add_u32 v{vAr}, v{T}, 4, v{vAr}')
    if flay == 2:
        e(f's_lshl_b32 s{sT2}, s{sW}, 1'); e(f's_xor_b32 s{sT2}, s{sT2}, s{sH}'); e(f's_and_b32 s{sT2}, s{sT2}, 7'); e(f's_lshl_b32 s{sT2}, s{sT2}, 8')
        e(f'v_lshlrev_b32 v{vYa}, 3, v0')
        e(f'v_xor_b32 v{vYa}, s{sT2}, v{vYa}')
        e(f's_lshl_b32 s{sYd}, s{sJ}, 5'); e(f's_add_u32 s{sYd}, s{sYd}, s{sH}'); e(f's_lshl_b32 s{sYd}, s{sYd}, 11'); e(f's_add_u32 s{sYd}, s{sYd}, {YF}')
    elif flay:
        e(f'v_lshrrev_b32 v{T}, 3, v0')
        e(f'v_lshlrev_b32 v{T+1}, 2, v{T}')
        e(f'v_xor_b32 v{T+1}, s{sH}, v{T+1}')
        e(f'v_lshlrev_b32 v{vYa}, 11, v{T}')
        e(f'v_lshl_add_u32 v{vYa}, v{T+1}, 6, v{vYa}')
        e(f'v_and_b32 v{T}, 7, v0')
        e(f'v_lshl_add_u32 v{vYa}, v{T}, 3, v{vYa}')
        e(f's_lshl_b32 s{sYd}, s{sJ}, 2'); e(f's_add_u32 s{sYd}, s{sYd}, s{sW}'); e(f's_lshl_b32 s{sYd}, s{sYd}, 14'); e(f's_add_u32 s{sYd}, s{sYd}, {YF}')
    else:
        e(f's_and_b32 s{sT2}, s{sW}, 1'); e(f's_lshl_b32 s{sT2}, s{sT2}, 1')
        e(f'v_lshrrev_b32 v{T}, 5, v0')
        e(f'v_or_b32 v{T}, s{sT2}, v{T}')
        e(f's_lshl_b32 s{sT2}, s2, 1'); e(f's_and_b32 s{sT2}, s{sT2}, 127'); e(f's_lshr_b32 s{sYd}, s{sW}, 1'); e(f's_or_b32 s{sT2}, s{sT2}, s{sYd}')
        e(f'v_xor_b32 v{T+1}, s{sT2}, v{T}')
        e(f'v_lshlrev_b32 v{vYa}, 8, v{T+1}')
        e(f'v_lshl_add_u32 v{vYa}, v{T}, 15, v{vYa}')
        e(f'v_and_b32 v{T}, 31, v0')
        e(f'v_lshl_add_u32 v{vYa}, v{T}, 3, v{vYa}')
        e(f's_lshr_b32 s{sYd}, s2, 6'); e(f's_lshl_b32 s{sYd}, s{sYd}, 17'); e(f's_add_u32 s{sYd}, s{sYd}, {YF}')
    e(f's_lshl_b32 s{sT2}, s{sW}, 9')
    e(f'v_lshl_add_u32 v{vWa}, v0, 3, s{sT2}')
    e(f's_add_u32 s{sE}, s{sE}, 1')
    mktag(vTg2, sE, sT2)
    xcc(sT2)
    e(f'v_xor_b32 v{vTg2+3}, s{sT2}, v{vTg2+3}')
    for r in range(2): e(f'v_cndmask_b32 v{vTg2 + r}, v{vTg2 + r}, v{vTg2 + 2 + r}, s[{sM4}:{sM4+1}]')
    def wread():
        for ks in range(4):
            for t in range(2):
                for hh in range(2):
                    d = vBt + (ks * 2 + t) * 4 + 2 * hh
                    if (ks, t, hh) == (3, 1, 0): e('s_waitcnt lgkmcnt(12)')
                    e(f'ds_read_b64_tr_b16 v[{d}:{d+1}], v{vYw + t} offset:{L_W + (ks * 8 + hh * 4) * 1024}')
    e('s_waitcnt vmcnt(0)')
    stamp(9, 0)
    e('s_barrier')
    e(f'ds_read_b128 v[{vAo}:{vAo+3}], v{vAr} offset:{L_RED}')
    wread()
    vDD = 212
    for ks in range(4):
        for t in range(2):
            k = ks * 2 + t
            if k: e(f's_waitcnt lgkmcnt({14 - 2 * k})')
            e(f'v_mfma_f32_16x16x32_bf16 v[{vDD + 4*k}:{vDD + 4*k + 3}], v[{vAo}:{vAo+3}], v[{vBt + 4*k}:{vBt + 4*k + 3}], 0')
    val = lambda ks, t: vDD + (ks * 2 + t) * 4 + ks
    for t in range(2): e(f'v_add_f32 v{vAcc + t}, v{val(0, t)}, v{val(1, t)}')
    e('s_nop 0')
    for t in range(2): e(f'v_add_f32 v{vAcc + t}, v{vAcc + t}, v{val(2, t)}')
    e('s_nop 1')
    for t in range(2): e(f'v_add_f32 v{vAcc + t}, v{vAcc + t}, v{val(3, t)}')
    for r in range(2): tag(vAcc + r, vTg2)
    e(f'buffer_store_dwordx2 v[{vAcc}:{vAcc+1}], v{vYa}, s[8:11], s{sYd} offen')
    e(f'ds_write_b64 v{vWa}, v[{vAcc}:{vAcc+1}] offset:{L_Y}')
    e('s_waitcnt lgkmcnt(0)')
    e('s_barrier')
    if diag:
        e(f's_cmp_lg_u32 s{sW}, 0'); e('s_cbranch_scc1 L_end')
        stamp(11)
        flush_stamps([0, 1, 2, 3, 4, 9, 11, 14, 15])
        e('s_mov_b64 exec, -1')
        e('s_lshl_b32 s84, s2, 8'); e(f's_add_u32 s84, s84, {STAMP + 0x8000}')
        e('v_lshlrev_b32 v253, 2, v0')
        e('buffer_store_dword v252, v253, s[8:11], s84 offen')
    e('s_endpgm')

    e('L_service:')
    sDst = 54
    sX3, sX4a, sX4b, sOo = 56, 57, 58, 59
    vG = 2; vC = 3; vA = 4; vA2 = 5; vL = 6; vZ = 7
    vXA = 8; vWt = 16; vSel = 48; vOpA = 56; vD = 64; vR = 72
    vA3 = 104; vTg = 112; vTg2 = 116; vX3 = 108; vX4 = 109; vOut = 110
    e(f's_sub_u32 s{sW}, s{sW}, 4')
    e(f'v_lshrrev_b32 v{vG}, 4, v0')
    e(f'v_and_b32 v{vC}, 15, v0')
    e(f'v_lshlrev_b32 v{vA}, 16, v{vG}')
    e(f'v_lshl_add_u32 v{vA}, v{vC}, 4, v{vA}')
    e(f'v_lshrrev_b32 v{vA2}, 3, v{vC}')
    e(f'v_lshlrev_b32 v{vA2}, 10, v{vA2}')
    e(f'v_lshl_add_u32 v{vA2}, v{vG}, 4, v{vA2}')
    e(f's_lshl_b32 s{sT0}, s{sU}, 7'); e(f's_lshl_b32 s{sT1}, s{sW}, 5'); e(f's_add_u32 s{sT0}, s{sT0}, s{sT1}')
    e(f's_lshl_b32 s{sT1}, s{sT0}, 1')
    e(f's_lshl_b32 s{sT0}, s{sT0}, 13'); e(f's_lshl_b32 s{sT2}, s{sH}, 8'); e(f's_add_u32 s{sT0}, s{sT0}, s{sT2}')
    e('s_mov_b32 s6, 0x400000'); e('s_mov_b32 s14, 4096'); e('s_mov_b32 s15, 0x20000')
    e(f's_cmp_eq_u32 s{sSide}, 0')
    e('s_waitcnt lgkmcnt(0)')
    e(f's_cselect_b64 s[4:5], s[{sAwq}:{sAwq+1}], s[{sBwq}:{sBwq+1}]')
    e(f's_cselect_b64 s[12:13], s[{sAx}:{sAx+1}], s[{sBx}:{sBx+1}]')
    for m in range(2 if xfirst else 0):
        e(f'buffer_load_dwordx4 v[{vXA + 4*m}:{vXA + 4*m + 3}], v{vA2}, s[12:15], s{sT1} offen offset:{2048*m}')
    for i in range(8):
        if not abl & 4: e(f'buffer_load_dwordx4 v[{vWt + 4*i}:{vWt + 4*i + 3}], v{vA}, s[4:7], s{sT0} offen nt')
        if i < 7: e(f's_add_u32 s{sT0}, s{sT0}, 8192')
    for m in range(0 if (xfirst or abl & 16) else 2):
        e(f'buffer_load_dwordx4 v[{vXA + 4*m}:{vXA + 4*m + 3}], v{vA2}, s[12:15], s{sT1} offen offset:{2048*m}')
    if l2w:
        e(f's_getpc_b64 s[{sTm}:{sTm+1}]')
        e('L_pc:')
        e(f's_lshl_b32 s{sT0}, s{sH}, 2'); e(f's_add_u32 s{sT0}, s{sT0}, s{sW}'); e(f's_lshl_b32 s{sT0}, s{sT0}, 7')
        e(f's_min_u32 s{sT0}, s{sT0}, L_end-L_pc')
        e(f's_add_u32 s{sT0}, s{sT0}, s{sTm}'); e(f's_addc_u32 s{sT1}, s{sTm+1}, 0')
        e(f'v_mov_b32 v{vR+2}, s{sT0}'); e(f'v_mov_b32 v{vR+3}, s{sT1}')
        e(f'global_load_dword v{vOut}, v[{vR+2}:{vR+3}], off')
    e('L_service2:')
    e(f'v_mov_b32 v{vZ}, 0')
    e(f'v_lshlrev_b32 v{vR}, 2, v0')
    e(f'v_cmp_lt_u32 vcc, 15, v0')
    e(f's_cmp_eq_u32 s{sCls}, {1 if nearB else 2}'); e(f's_cselect_b32 s{sT0}, {lvlc}, {lvl0}')
    e(f'v_cndmask_b32 v{vR+1}, 0, -1, vcc')
    e(f'v_writelane_b32 v{vR+1}, s{sT0}, 1')
    e(f'ds_write_b32 v{vR}, v{vR+1} offset:{L_CNT}')
    e('s_waitcnt lgkmcnt(0)')
    load_epoch()
    e('s_barrier')
    e(f's_mov_b32 s8, s{sWs}'); e(f's_mov_b32 s9, s{sWs+1}')
    e(f'v_lshlrev_b32 v{vL}, 4, v0')
    assert len(cks) <= 16
    e(f's_lshl_b32 s{sT0}, s{sW}, 3'); e(f's_add_u32 s{sT0}, s{sT0}, s{sJ}')
    e(f's_cmp_ge_u32 s{sT0}, {len(cks)}'); e('s_cbranch_scc1 L_norc')
    e(f's_lshl_b32 s{sT0}, s{sT0}, 5'); e(f's_add_u32 s{sT0}, s{sT0}, s{sH}'); e(f's_lshl_b32 s{sT0}, s{sT0}, 8'); e(f's_add_u32 s{sT0}, s{sT0}, {RC}')
    e('s_mov_b64 exec, 0xffff')
    if not abl & 8: e(f'buffer_store_dword v{vZ}, v{vR}, s[8:11], s{sT0} offen sc1')
    e('s_mov_b64 exec, -1')
    e('L_norc:')
    e(f'v_and_b32 v{vR}, 7, v0')
    e(f'v_and_b32 v{vR+1}, 1, v0')
    e(f'v_lshlrev_b32 v{vR+1}, 4, v{vR+1}')
    e(f'v_mov_b32 v{vR+2}, 0xffff')
    e(f'v_lshlrev_b32 v{vR+2}, v{vR+1}, v{vR+2}')
    e(f'v_lshrrev_b32 v{vR}, 1, v{vR}')
    e(f'v_mov_b32 v{vR+4}, 0x0c0c0c0c')
    e(f's_mov_b32 s{sT0}, 0x01000100'); e(f's_mov_b32 s{sT1}, 0x03020302')
    for r in range(4):
        e(f'v_cmp_eq_u32 vcc, {r}, v{vR}'); e('s_nop 1')
        e(f'v_cndmask_b32 v{vR+3}, 0, v{vR+2}, vcc')
        e(f'v_bfi_b32 v{vSel + r}, v{vR+3}, s{sT0}, v{vR+4}')
        e(f'v_bfi_b32 v{vSel + 4 + r}, v{vR+3}, s{sT1}, v{vR+4}')
    e(f'v_lshrrev_b32 v{vR}, 5, v0')
    e(f'v_lshlrev_b32 v{vA}, 9, v{vR}')
    e(f'v_lshl_add_u32 v{vA}, v{vC}, 5, v{vA}')
    e(f'v_and_b32 v{vR}, 16, v0')
    e(f's_lshl_b32 s{sT0}, s{sW}, 11')
    e(f'v_add3_u32 v{vA}, v{vA}, v{vR}, s{sT0}')
    e(f'v_lshl_add_u32 v{vA2}, v{vG}, 15, v{vL}')
    e(f's_lshl_b32 s{sT0}, s2, 1'); e(f's_and_b32 s{sT0}, s{sT0}, 127'); e(f's_lshl_b32 s{sT0}, s{sT0}, 8')
    e(f'v_xor_b32 v{vA2}, s{sT0}, v{vA2}')
    e(f'v_xor_b32 v{vA3}, 0x100, v{vA2}')
    e(f's_lshr_b32 s{sDst}, s2, 6'); e(f's_lshl_b32 s{sDst}, s{sDst}, 17')
    e('s_waitcnt lgkmcnt(0)')
    e(f's_add_u32 s{sE}, s{sE}, 1')
    mktag(vTg, sE, sT0)
    def probe_setup():
        e(f's_mov_b64 s[12:13], s[{sBk}:{sBk+1}]')
        for r, p in ((1, sBv), (2, sAk), (3, sAv)):
            e(f's_cmp_eq_u32 s{sRd}, {r}'); e(f's_cselect_b64 s[12:13], s[{p}:{p+1}], s[12:13]')
        e('s_mov_b32 s14, 0x10000000')
        e(f's_mov_b32 s{sE0}, 0x10000'); e(f's_mov_b32 s{sE1}, 0x10000')
    e(f's_cmp_eq_u32 s{sW}, 0'); e(f's_cselect_b32 s{sCls}, 0, s{sCls}')
    e(f's_mov_b32 s{sRd}, {(1 if selfp else 0) if nearB else 2}')
    probe_setup()
    if_class('L_nop0', 0)
    probe_seed(1)
    if sh0 and nearB and not selfp:
        e(f's_mov_b32 s{sCnt}, {sh0}')
        probe_loop()
        e('s_branch L_padret')
    e('L_nop0:')
    if pads == 1:
        for w in range(3):
            e(f's_cmp_eq_u32 s{sW}, {w}'); e(f's_cbranch_scc1 L_pad{w}')
        e('s_branch L_pad3')
    e('L_padret:')
    e('s_waitcnt vmcnt(0)')
    stamp(5, 0)
    seq = [(i, m) for i in range(8) for m in range(2)]
    def perms(k):
        i, m = seq[k]
        for r in range(4):
            x = vXA + 4 * m + (i >> 1)
            e(f'v_perm_b32 v{vOpA + 4 * (k & 1) + r}, v{x}, v{x}, v{vSel + 4 * (i & 1) + r}')
    perms(0)
    for k, (i, m) in enumerate(seq):
        if k < 15: perms(k + 1)
        else: e('s_nop 0')
        a = vOpA + 4 * (k & 1); d = vD + 4 * m; w = vWt + 4 * i
        c = f'v[{d}:{d+3}]' if i > 0 else '0'
        e(f'v_mfma_f32_16x16x32_bf16 v[{d}:{d+3}], v[{a}:{a+3}], v[{w}:{w+3}], {c}')
    e(f'v_mov_b32 v{vR}, 1')
    e('s_nop 5')
    e(f'ds_write_b128 v{vA}, v[{vD}:{vD+3}] offset:{L_RED}')
    e(f'ds_write_b128 v{vA}, v[{vD+4}:{vD+7}] offset:{L_RED + 1024}')
    e('s_mov_b64 exec, 1')
    e(f'ds_add_u32 v{vZ}, v{vR} offset:{L_CNT}')
    e('s_mov_b64 exec, -1')
    e(f's_cmp_lg_u32 s{sW}, 0')
    e('s_cbranch_scc1 L_notleader')
    spin(SPIN * 8, lambda: e(f'ds_read_b32 v{vR}, v{vZ} offset:{L_CNT}'), 'lgkmcnt(0)', lambda: e(f'v_cmp_ne_u32 vcc, 4, v{vR}'))
    for m in range(2): e(f'ds_read_b128 v[{vD + 4*m}:{vD + 4*m + 3}], v{vL} offset:{L_RED + m * 1024}')
    for w in range(1, 4):
        for m in range(2):
            r = vR + ((w - 1) * 2 + m) * 4
            e(f'ds_read_b128 v[{r}:{r+3}], v{vL} offset:{L_RED + w * 2048 + m * 1024}')
    e('s_waitcnt lgkmcnt(4)')
    for r in range(8): e(f'v_add_f32 v{vD + r}, v{vD + r}, v{vR + r}')
    e('s_waitcnt lgkmcnt(0)')
    for r in range(8): e(f'v_add_f32 v{vR + 8 + r}, v{vR + 8 + r}, v{vR + 16 + r}')
    for r in range(8): e(f'v_add_f32 v{vD + r}, v{vD + r}, v{vR + 8 + r}')
    for r in range(8): tag(vD + r, vTg)
    if not abl & 1:
        e(f'buffer_store_dwordx4 v[{vD}:{vD+3}], v{vA2}, s[8:11], s{sDst} offen sc1')
        e(f'buffer_store_dwordx4 v[{vD+4}:{vD+7}], v{vA3}, s[8:11], s{sDst} offen sc1')
    stamp(6)
    e(f'v_bfe_u32 v{vR}, v0, 4, 1')
    e(f's_and_b32 s{sT0}, s{sB}, 1'); e(f's_lshl_b32 s{sT0}, s{sT0}, 1')
    e(f'v_or_b32 v{vR}, s{sT0}, v{vR}')
    e(f'v_lshrrev_b32 v{vR+1}, 5, v0')
    e(f'v_lshlrev_b32 v{vR+1}, 3, v{vR+1}')
    e(f's_and_b32 s{sT0}, s{sH}, 7'); e(f's_lshl_b32 s{sT0}, s{sT0}, 4'); e(f's_lshr_b32 s{sT1}, s{sB}, 1'); e(f's_or_b32 s{sT0}, s{sT0}, s{sT1}')
    e(f'v_or_b32 v{vR+1}, s{sT0}, v{vR+1}')
    e(f'v_xor_b32 v{vR+1}, v{vR+1}, v{vR}')
    e(f'v_lshlrev_b32 v{vR+1}, 8, v{vR+1}')
    e(f'v_lshl_add_u32 v{vR+1}, v{vR}, 15, v{vR+1}')
    e(f'v_lshl_add_u32 v{vR}, v{vC}, 4, v{vR+1}')
    e(f'v_xor_b32 v{vR+1}, 0x200, v{vR}')
    e(f's_xor_b32 s{sT0}, s{sE}, 1')
    e(f'v_mov_b32 v{vR+20}, s{sT0}'); e(f'v_mov_b32 v{vR+21}, s{sT0}')
    e(f'v_lshlrev_b32 v{vR+22}, 3, v0')
    e(f'ds_write_b64 v{vR+22}, v[{vR+20}:{vR+21}] offset:{L_ST}')
    def qload():
        for r in range(4):
            d = vR + 4 + 4 * r
            e(f'buffer_load_dwordx4 v[{d}:{d+3}], v{vR + (r & 1)}, s[8:11], s{sDst} offen offset:{(r >> 1) * 1024} sc1')
    if qs0: e('s_waitcnt vmcnt(0)')
    if not abl & 2: spin(SPIN, qload, 'vmcnt(0)', lambda: check(range(vR + 4, vR + 20), vR + 2, vTg), sleep=qs)
    for r in range(4):
        e(f'v_add_f32 v{vR + 4 + r}, v{vR + 4 + r}, v{vR + 8 + r}')
        e(f'v_add_f32 v{vR + 12 + r}, v{vR + 12 + r}, v{vR + 16 + r}')
    for r in range(4): e(f'v_add_f32 v{vR + 4 + r}, v{vR + 4 + r}, v{vR + 12 + r}')
    e(f'v_cvt_pk_bf16_f32 v{vR+4}, v{vR+4}, v{vR+5}')
    e(f'v_cvt_pk_bf16_f32 v{vR+5}, v{vR+6}, v{vR+7}')
    e(f'ds_write_b64 v{vR+22}, v[{vR+4}:{vR+5}] offset:{L_Q}')
    if qflag: e(f'ds_write_b32 v{vZ}, v{vZ} offset:{L_QF}')
    e('s_waitcnt lgkmcnt(0)')
    stamp(8)
    if not qflag: e('s_barrier')
    e('s_mov_b64 exec, 0xffff')
    spin(SPIN if sl1 else SPIN * 8, lambda: e(f'ds_read_b128 v[{vD}:{vD+3}], v{vL} offset:{L_ST}'), 'lgkmcnt(0)',
         lambda: e(f'v_cmp_ne_u32 vcc, s{sE}, v{vD+2}'), sleep=sl1)
    e(f's_lshl_b32 s{sT0}, s2, 8'); e(f's_add_u32 s{sT0}, s{sT0}, {ST}')
    e(f'buffer_store_dwordx4 v[{vD}:{vD+3}], v{vL}, s[8:11], s{sT0} offen sc1')
    e('s_mov_b64 exec, -1')
    e(f'v_and_b32 v{vR}, 3, v0')
    e(f'v_lshlrev_b32 v{vA}, 6, v{vR}')
    e(f'v_bfe_u32 v{vR}, v0, 2, 1')
    e(f'v_lshl_add_u32 v{vA}, v{vR}, 10, v{vA}')
    e(f'v_lshrrev_b32 v{vR}, 3, v0')
    e(f'v_min_u32 v{vR}, 2, v{vR}')
    e(f'v_lshl_add_u32 v{vA}, v{vR}, 4, v{vA}')
    e(f's_andn2_b32 s{sT0}, s{sT0}, 0x400')
    spin(SPIN, lambda: e(f'buffer_load_dwordx4 v[{vR+4}:{vR+7}], v{vA}, s[8:11], s{sT0} offen sc1'), 'vmcnt(0)',
         lambda: e(f'v_cmp_ne_u32 vcc, s{sE}, v{vR+6}'), sleep=sl2)
    e(f'v_mov_b32 v{vR}, v{vR+4}')
    rowred('v_max_f32', vR)
    e(f'v_sub_f32 v{vR}, v{vR+4}, v{vR}')
    e(f'v_exp_f32 v{vR}, v{vR}')
    e('v_cmp_lt_u32 vcc, 15, v0')
    e(f'v_mul_f32 v{vR+1}, v{vR}, v{vR+5}')
    rowred('v_add_f32', vR + 1)
    e(f'v_rcp_f32 v{vR+1}, v{vR+1}')
    e(f'v_cndmask_b32 v{vR+2}, 1.0, 2.0, vcc')
    e(f'v_mul_f32 v{vR}, v{vR}, v{vR+1}')
    e(f'v_mul_f32 v{vR}, v{vR}, v{vR+2}')
    e(f'v_mov_b32 v{vR+1}, s{sE}')
    e('s_mov_b32 exec_hi, 0')
    e(f'ds_write_b64 v{vR+22}, v[{vR}:{vR+1}] offset:{L_F}')
    e('s_mov_b64 exec, -1')
    e(f'v_bfe_u32 v{vR}, v0, 2, 3')
    e(f'v_lshlrev_b32 v{vX4}, 12, v{vR}')
    e(f'v_lshrrev_b32 v{vR}, 5, v0')
    e(f'v_lshl_add_u32 v{vX4}, v{vR}, 17, v{vX4}')
    e(f'v_and_b32 v{vR}, 3, v0')
    e(f'v_lshl_add_u32 v{vX4}, v{vR}, 4, v{vX4}')
    e(f'v_lshlrev_b32 v{vOut}, 2, v{vR}')
    e(f'v_bfe_u32 v{vR}, v0, 2, 1')
    e(f'v_lshl_add_u32 v{vOut}, v{vR}, 5, v{vOut}')
    e(f'v_bfe_u32 v{vR}, v0, 3, 1')
    e(f'v_lshl_add_u32 v{vOut}, v{vR}, 1, v{vOut}')
    e(f's_bfe_u32 s{sT0}, s{sH}, 0x20001'); e(f's_lshl_b32 s{sOo}, s{sT0}, 11')
    e(f's_lshr_b32 s{sT0}, s{sH}, 3'); e(f's_lshl_b32 s{sT0}, s{sT0}, 6'); e(f's_add_u32 s{sOo}, s{sOo}, s{sT0}')
    e(f's_and_b32 s{sT0}, s{sH}, 1'); e(f's_lshl_b32 s{sT0}, s{sT0}, 4'); e(f's_add_u32 s{sOo}, s{sOo}, s{sT0}')
    e(f's_bfe_u32 s{sT0}, s{sH}, 0x20002'); e(f's_lshr_b32 s{sT2}, s{sH}, 4')
    e(f's_lshl_b32 s{sT1}, s{sJ}, 1'); e(f's_or_b32 s{sT1}, s{sT1}, s{sT2}')
    e(f's_xor_b32 s{sT1}, s{sT1}, s{sT0}'); e(f's_lshl_b32 s{sT1}, s{sT1}, 8')
    e(f's_lshl_b32 s{sT0}, s{sT0}, 15'); e(f's_add_u32 s{sT0}, s{sT0}, s{sT1}')
    e(f's_and_b32 s{sT1}, s{sH}, 3'); e(f's_lshl_b32 s{sT1}, s{sT1}, 6')
    e(f's_add_u32 s{sX4a}, s{sT0}, s{sT1}')
    if not flay: e(f's_add_u32 s{sX4a}, s{sX4a}, {YF}')
    e(f's_add_u32 s{sX4b}, s{sX4a}, 0x40000')
    if flay == 2:
        e(f's_lshl_b32 s{sT0}, s{sJ}, 16'); e(f's_add_u32 s{sT0}, s{sT0}, {YF}')
        e(f's_xor_b32 s60, s{sX4a}, s{sT0}'); e(f's_mov_b32 s{sX4a}, s{sT0}')
        e(f's_add_u32 s{sT0}, s{sT0}, 32768')
        e(f's_xor_b32 s61, s{sX4b}, s{sT0}'); e(f's_mov_b32 s{sX4b}, s{sT0}')
        e(f'v_lshrrev_b32 v{vR}, 2, v0')
        e(f'v_and_b32 v{vR+1}, 7, v{vR}')
        e(f'v_lshlrev_b32 v{vR+1}, 8, v{vR+1}')
        e(f's_lshl_b32 s{sT0}, s{sH}, 6')
        e(f'v_xor_b32 v{vR+1}, s{sT0}, v{vR+1}')
        e(f'v_lshl_add_u32 v{vR+1}, v{vR}, 11, v{vR+1}')
        e(f'v_and_b32 v{vR}, 3, v0')
        e(f'v_lshl_add_u32 v{vR+1}, v{vR}, 4, v{vR+1}')
        e(f'v_xor_b32 v111, v{vX4}, v{vR+1}'); e(f'v_mov_b32 v{vX4}, v{vR+1}')
    elif flay:
        e(f's_lshl_b32 s{sT0}, s{sJ}, 5'); e(f's_add_u32 s{sT0}, s{sT0}, s{sH}'); e(f's_lshl_b32 s{sT0}, s{sT0}, 11'); e(f's_add_u32 s{sT0}, s{sT0}, {YF}')
        e(f's_xor_b32 s60, s{sX4a}, s{sT0}'); e(f's_mov_b32 s{sX4a}, s{sT0}')
        e(f's_add_u32 s{sT0}, s{sT0}, 1024')
        e(f's_xor_b32 s61, s{sX4b}, s{sT0}'); e(f's_mov_b32 s{sX4b}, s{sT0}')
        e(f'v_xor_b32 v111, v{vX4}, v{vL}'); e(f'v_mov_b32 v{vX4}, v{vL}')
    e(f's_lshl_b32 s{sT1}, s{sJ}, 8'); e(f's_add_u32 s{sOo}, s{sOo}, s{sT1}')
    e('s_branch L_rdone')
    e('L_notleader:')
    if pads == 2:
        e(f's_cmp_eq_u32 s{sW}, 3'); e('s_cbranch_scc1 L_padtop')
        e('L_padret2:')
    e(f'v_mov_b32 v{vX4}, 0'); e(f'v_mov_b32 v{vOut}, 0')
    if_class('L_round0', 1)
    if not qflag: e('s_barrier')
    e('s_branch L_rdone')
    e('L_round0:')
    if shA and not nearB:
        e(f's_mov_b32 s{sCnt}, {shA}')
        probe_loop()
    e('L_round:')
    if not qflag:
        e(f's_cmp_lg_u32 s{sRd}, 2'); e('s_cbranch_scc1 L_rnb')
        e('s_barrier')
        e('L_rnb:')
    e(f's_lshl_b32 s{sT0}, s{sRd}, 3'); e(f's_lshr_b32 s{sCnt}, {sum(v << (8 * r) for r, v in enumerate(shots))}, s{sT0}'); e(f's_and_b32 s{sCnt}, s{sCnt}, 0xff')
    probe_loop()
    evidence(vR, 1, 3, sE, 'L_rnext')
    e('L_rnext:')
    e('s_mov_b64 exec, -1')
    e(f's_add_u32 s{sRd}, s{sRd}, 1')
    probe_setup()
    e(f's_cmp_lt_u32 s{sRd}, 4'); e('s_cbranch_scc1 L_round')
    e('L_rdone:')
    e(f's_lshl_b32 s{sT0}, s{sSide}, 1')
    e(f'v_and_or_b32 v{vR}, v{vG}, 1, s{sT0}')
    e(f'v_xor_b32 v{vR+1}, s{sW}, v{vR}')
    e(f'v_lshlrev_b32 v{vX3}, 8, v{vR+1}')
    e(f'v_lshl_add_u32 v{vX3}, v{vR}, 15, v{vX3}')
    e(f'v_lshrrev_b32 v{vR+1}, 5, v0')
    e(f'v_lshl_add_u32 v{vX3}, v{vR+1}, 10, v{vX3}')
    e(f'v_lshl_add_u32 v{vX3}, v{vC}, 4, v{vX3}')
    e(f'v_and_b32 v{vR}, 31, v0')
    e(f'v_lshlrev_b32 v{vA}, 3, v{vR}')
    e(f'v_lshl_add_u32 v{vA}, v{vR+1}, 2, v{vA}')
    e(f's_lshl_b32 s{sT0}, s{sW}, 8')
    e(f'v_add_u32 v{vA}, s{sT0}, v{vA}')
    e(f's_and_b32 s{sT1}, s{sH}, 15'); e(f's_lshl_b32 s{sX3}, s{sT1}, 11')
    e(f's_lshr_b32 s{sT1}, s{sH}, 4'); e(f's_lshl_b32 s{sT1}, s{sT1}, 17'); e(f's_add_u32 s{sX3}, s{sX3}, s{sT1}')
    e(f's_add_u32 s{sX3}, s{sX3}, {OP}')
    e(f'v_lshl_add_u32 v{vA3}, v{vG}, 15, v{vL}')
    e(f's_lshl_b32 s{sT0}, s{sSide}, 2'); e(f's_or_b32 s{sT0}, s{sT0}, s{sB}'); e(f's_lshl_b32 s{sT0}, s{sT0}, 8')
    e(f'v_xor_b32 v{vA3}, s{sT0}, v{vA3}')
    if olin:
        e(f's_lshl_b32 s{sT0}, s{sT0}, 2')
        e(f'v_add_u32 v{vA3}, s{sT0}, v{vL}')
        e(f'v_lshlrev_b32 v{vX3}, 4, v{vR}')
        e(f'v_lshl_add_u32 v{vX3}, v{vR+1}, 12, v{vX3}')
        e(f's_lshl_b32 s{sT0}, s{sW}, 1'); e(f's_add_u32 s{sT0}, s{sT0}, s{sSide}'); e(f's_lshl_b32 s{sT0}, s{sT0}, 9')
        e(f'v_add_u32 v{vX3}, s{sT0}, v{vX3}')
        e(f's_lshl_b32 s{sX3}, s{sH}, 13'); e(f's_add_u32 s{sX3}, s{sX3}, {OP}')
    e(f's_add_u32 s{sE}, s{sE}, 1')
    mktag(vTg2, sE, sT0)
    xcc(sPa)
    e(f'v_xor_b32 v{vTg2+3}, s{sPa}, v{vTg2+3}')
    e(f's_mov_b32 s12, s{sOut}'); e(f's_mov_b32 s13, s{sOut+1}'); e('s_mov_b32 s14, 8192')
    e(f's_mov_b32 s{sSpin}, {SPIN}')
    e(f's_cmp_lg_u32 s{sW}, s{sB}')
    e('s_waitcnt lgkmcnt(0)')
    e('s_barrier')
    if chan == 'tail': e('s_memrealtime s[90:91]')
    e('s_cbranch_scc1 L_x3first')
    for w in range(4): e(f'ds_read_b128 v[{vR + 4*w}:{vR + 4*w + 3}], v{vL} offset:{L_O + w * 1024}')
    e('s_waitcnt lgkmcnt(2)')
    for r in range(4): e(f'v_add_f32 v{vD + r}, v{vR + r}, v{vR + 4 + r}')
    e('s_waitcnt lgkmcnt(0)')
    for r in range(4): e(f'v_add_f32 v{vR + 8 + r}, v{vR + 8 + r}, v{vR + 12 + r}')
    for r in range(4): e(f'v_add_f32 v{vD + r}, v{vD + r}, v{vR + 8 + r}')
    for r in range(4): tag(vD + r, vTg)
    e(f'buffer_store_dwordx4 v[{vD}:{vD+3}], v{vA3}, s[8:11], s{sX3} offen sc1')
    for r in range(4): e(f'v_xor_b32 v{vR + r}, v{vD + r}, v{vTg + r}')
    e(f's_cmp_eq_u32 s{sSide}, 0')
    e('s_cselect_b32 exec_lo, 0, -1'); e('s_cselect_b32 exec_hi, -1, 0')
    e('L_x3first:')
    e(f'buffer_load_dwordx4 v[{vR}:{vR+3}], v{vX3}, s[8:11], s{sX3} offen sc1')
    e('s_barrier')
    e('s_branch L_x3w')
    e('L_x3spin:')
    if half3:
        e('s_cmp_eq_u32 vcc_lo, 0'); e('s_cselect_b32 exec_lo, 0, exec_lo')
        e('s_cmp_eq_u32 vcc_hi, 0'); e('s_cselect_b32 exec_hi, 0, exec_hi')
    if s3: e(f's_sleep {s3}')
    e(f'buffer_load_dwordx4 v[{vR}:{vR+3}], v{vX3}, s[8:11], s{sX3} offen sc1')
    e('L_x3w:')
    e(f's_sub_u32 s{sSpin}, s{sSpin}, 1'); e('s_cbranch_scc1 L_x3out')
    e('s_waitcnt vmcnt(0)')
    check(range(vR, vR + 4), vR + 4, vTg)
    e('s_cbranch_vccnz L_x3spin')
    e('L_x3out:')
    e('s_mov_b64 exec, -1')
    e('s_waitcnt vmcnt(0)')
    e(f'v_permlane32_swap_b32 v{vR}, v{vR+2}')
    e(f'v_permlane32_swap_b32 v{vR+1}, v{vR+3}')
    e(f's_cmp_lg_u32 s{sW}, 0')
    e(f'v_add_f32 v{vR}, v{vR}, v{vR+2}')
    e(f'v_add_f32 v{vR+1}, v{vR+1}, v{vR+3}')
    e(f'v_cvt_pk_bf16_f32 v{vR}, v{vR}, v{vR+1}')
    e(f'ds_write_b32 v{vA}, v{vR} offset:{L_RED}')
    e('s_waitcnt lgkmcnt(0)')
    e('s_barrier')
    e('s_cbranch_scc1 L_end')
    stamp(10)
    e('s_barrier')
    if ys0: e(f's_sleep {ys0}')
    def yload():
        for k in range(2): e(f'buffer_load_dwordx4 v[{vR + 4*k}:{vR + 4*k + 3}], v{vX4}, s[8:11], s{sX4a + k} offen sc1')
    if lazy:
        e(f's_mov_b32 s{sSpin}, {fast}')
        e('L_x4:')
        if s4: e(f's_sleep {s4}')
        yload()
        e(f's_sub_u32 s{sSpin}, s{sSpin}, 1'); e('s_cbranch_scc1 L_x4s')
        e('s_waitcnt vmcnt(0)')
        check(range(vR, vR + 8), vR + 8, vTg2)
        e('s_cbranch_vccnz L_x4')
        e('L_x4x:')
    elif fast:
        e(f's_mov_b32 s{sSpin}, {SPIN}')
        e('L_x4:')
        yload()
        e(f's_cmp_eq_u32 s{sSpin}, {SPIN - fast}')
        e(f's_cselect_b32 s{sT0}, {YF}, 0')
        e(f's_sub_u32 s{sX4a}, s{sX4a}, s{sT0}'); e(f's_sub_u32 s{sX4b}, s{sX4b}, s{sT0}')
        e(f's_sub_u32 s{sSpin}, s{sSpin}, 1'); e('s_cbranch_scc1 L_x4x')
        e('s_waitcnt vmcnt(0)')
        check(range(vR, vR + 8), vR + 8, vTg2)
        e('s_cbranch_vccnz L_x4')
        e('L_x4x:')
        e('s_waitcnt vmcnt(0)')
    else:
        spin(SPIN, yload, 'vmcnt(0)', lambda: check(range(vR, vR + 8), vR + 8, vTg2))
    for r in range(4): e(f'v_add_f32 v{vR + r}, v{vR + r}, v{vR + 4 + r}')
    e(f'v_add_f32_dpp v{vR+4}, v{vR}, v{vR} row_ror:8 row_mask:0xf bank_mask:0x3')
    e(f'v_add_f32_dpp v{vR+5}, v{vR+1}, v{vR+1} row_ror:8 row_mask:0xf bank_mask:0x3')
    e('s_nop 0')
    e(f'v_add_f32_dpp v{vR+4}, v{vR+2}, v{vR+2} row_ror:8 row_mask:0xf bank_mask:0xc')
    e(f'v_add_f32_dpp v{vR+5}, v{vR+3}, v{vR+3} row_ror:8 row_mask:0xf bank_mask:0xc')
    e('s_nop 0')
    e(f'v_add_f32_dpp v{vR}, v{vR+4}, v{vR+4} row_shl:4 row_mask:0xf bank_mask:0x5')
    e('s_nop 1')
    e(f'v_add_f32_dpp v{vR}, v{vR+5}, v{vR+5} row_shr:4 row_mask:0xf bank_mask:0xa')
    for sw in ('v_permlane16_swap_b32', 'v_permlane32_swap_b32'):
        e(f'v_mov_b32 v{vR+1}, v{vR}'); e('s_nop 1'); e(f'{sw} v{vR+1}, v{vR}'); e('s_nop 0')
        e(f'v_add_f32 v{vR}, v{vR}, v{vR+1}')
    e(f'v_cvt_pk_bf16_f32 v{vR}, v{vR}, v{vR}')
    e('s_mov_b64 exec, 0xffff')
    e(f'buffer_store_short v{vR}, v{vOut}, s[12:15], s{sOo} offen {outp}')
    stamp(12)
    if diag: e('s_waitcnt vmcnt(0)')
    stamp(7)
    flush_stamps([5, 6, 7, 8, 10, 12])
    if chan:
        e('s_memrealtime s[86:87]'); e('s_waitcnt lgkmcnt(0)')
        if chan == 'tail':
            e('s_sub_u32 s86, s86, s90'); e('s_min_u32 s86, s86, 500'); e('s_sub_u32 s86, 500, s86'); e('s_mul_i32 s86, s86, 50')
        else:
            e('s_sub_u32 s86, s86, s80'); e('s_mul_i32 s86, s86, 10')
        e('s_add_u32 s86, s86, 20000')
        e('L_chan:'); e('s_memrealtime s[82:83]'); e('s_waitcnt lgkmcnt(0)'); e('s_sub_u32 s82, s82, s80')
        e('s_cmp_lt_u32 s82, s86'); e('s_cbranch_scc1 L_chan')
    e('s_cmp_lg_u32 s2, 0')
    e('s_cbranch_scc1 L_end')
    e('s_mov_b64 exec, 1')
    e(f'v_mov_b32 v{vR+2}, s{sE}')
    e(f's_mov_b32 s{sT0}, {EP}')
    e(f'buffer_store_dword v{vR+2}, off, s[8:11], s{sT0}')
    e('L_end:')
    e('s_endpgm')
    if lazy:
        e('L_x4s:')
        for t in range(2): e(f'ds_read_b128 v[{vD + 4*t}:{vD + 4*t + 3}], v{vL} offset:{L_Y + t * 1024}')
        e('s_waitcnt lgkmcnt(0)')
        for t in range(2): e(f'v_xor_b32 v{vD + 4*t + 3}, s{sPa}, v{vD + 4*t + 3}')
        e(f'v_xor_b32 v{vA3}, 0x100, v{vA2}')
        e(f'buffer_store_dwordx4 v[{vD}:{vD+3}], v{vA2}, s[8:11], s{sDst} offen sc1')
        e(f'buffer_store_dwordx4 v[{vD+4}:{vD+7}], v{vA3}, s[8:11], s{sDst} offen sc1')
        def flipload():
            if flay:
                e(f's_xor_b32 s{sX4a}, s{sX4a}, s60'); e(f's_xor_b32 s{sX4b}, s{sX4b}, s61'); e(f'v_xor_b32 v{vX4}, v111, v{vX4}')
            else:
                e(f's_xor_b32 s{sX4a}, s{sX4a}, {YF}'); e(f's_xor_b32 s{sX4b}, s{sX4b}, {YF}')
            e(f'v_xor_b32 v{vTg2+3}, s{sPa}, v{vTg2+3}')
            yload()
        e('s_waitcnt vmcnt(0)')
        spin(SPIN, flipload, 'vmcnt(0)', lambda: check(range(vR, vR + 8), vR + 8, vTg2))
        e('s_branch L_x4x')
    e('.section .rodata,"a"')
    e('.p2align 6')
    e(f'.amdhsa_kernel {NAME}_kernel')
    e('  .amdhsa_next_free_vgpr 256')
    e('  .amdhsa_next_free_sgpr 102')
    e('  .amdhsa_accum_offset 256')
    e('  .amdhsa_group_segment_fixed_size 0')
    e('  .amdhsa_kernarg_size 104')
    e('  .amdhsa_user_sgpr_count 2')
    e('  .amdhsa_user_sgpr_kernarg_segment_ptr 1')
    e('  .amdhsa_system_sgpr_workgroup_id_x 1')
    e('  .amdhsa_float_denorm_mode_32 3')
    e('.end_amdhsa_kernel')
    if ool:
        for lb in ('L_late2', 'L_late1', 'L_nc3'):
            if lb + ':' not in L: continue
            a = L.index(f's_cbranch_scc1 {lb}'); b = L.index(lb + ':'); c = L.index('L_service:')
            L[:] = L[:a] + [f's_cbranch_scc0 {lb}o'] + L[b:c] + [f'{lb}o:'] + L[a + 1:b] + [f's_branch {lb}'] + L[c:]
    if front:
        a = L.index('L_service:'); b = L.index('L_service2:'); c = L.index('s_cbranch_scc1 L_service')
        L[:] = L[:c] + ['s_cbranch_scc0 L_stream'] + L[a + 1:b] + ['s_branch L_service2', 'L_stream:'] + L[c + 1:a] + L[b:]
    i0 = L.index('L_kbody:'); i1 = L.index('L_service2:' if front else 'L_service:')
    spots = [i for i in range(i0, i1) if L[i].startswith('s_branch ')]
    if pads == 0: return '\n'.join(L) + '\n'
    if pads == 2:
        def size(x):
            if x.endswith(':') or x.startswith(('.', ';')): return 0
            if x.startswith(('buffer_', 'global_', 'ds_', 'v_')) or '0x' in x: return 8
            return 5
        j0 = L.index('L_late1:' if nearB else 'L_late0:'); j1 = L.index('L_end:')
        out = L[:j0]; acc = 0; k = 0
        for i in range(j0, len(L)):
            x = L[i]; out.append(x); acc += size(x)
            if i < j1 - 1 and (acc > padgap or (acc > padgap - 250 and x.startswith(('s_branch ', 's_endpgm')))):
                free = x.startswith(('s_branch ', 's_endpgm'))
                if not free: out.append(f's_branch L_pads{k}')
                out.append(f'L_padx{k}:'); out.append(f's_branch L_padx{k - 1}' if k else 's_branch L_padret2')
                if not free: out.append(f'L_pads{k}:')
                k += 1; acc = 8
        return '\n'.join(out).replace('L_padtop', f'L_padx{k - 1}') + '\n'
    out = []
    for i, x in enumerate(L):
        out.append(x)
        if i in spots:
            k = spots.index(i)
            out.append(f'L_pad{k}:')
            out.append(f's_branch L_pad{k + 4}' if k + 4 < len(spots) else 's_branch L_padret')
    return '\n'.join(out) + '\n'

if __name__ == '__main__':
    import ast
    for spec in sys.argv[1:]:
        name, _, opts = spec.partition(':')
        kw = {}
        for o in filter(None, opts.split(',')):
            k_, v_ = o.split('=')
            v_ = v_.replace('/', ',')
            try: kw[k_] = ast.literal_eval(v_)
            except Exception: kw[k_] = v_
        open(name, 'w').write(gen(**kw))
```
